```python
import torch

def _softmax(x, axis=-1):
    return torch.softmax(x, dim=axis)

def _gelu(x):
    return torch.nn.functional.gelu(x, approximate='tanh')

def _silu(x):
    return torch.nn.functional.silu(x)

def _sigmoid(x):
    return torch.sigmoid(x)

def _layernorm(x, axis=-1, eps=1e-05):
    m = x.mean(dim=axis, keepdim=True)
    v = x.var(dim=axis, keepdim=True, unbiased=False)
    return (x - m) / torch.sqrt(v + eps)

def _scatter_add(tgt, idx, src, axis=0):
    return tgt.clone().index_add_(axis, idx, src)

def _segment_sum(src, seg, n):
    out = torch.zeros((n,) + src.shape[1:], dtype=src.dtype)
    return out.index_add_(0, seg, src)

def _pad(x, pw):
    flat = tuple((v for pair in reversed(pw) for v in pair))
    return torch.nn.functional.pad(x, flat)
kernel_name = 'adaLN_cond__compressed_kv_cla__mixer_gmlp__prompt'

def setup_inputs():

    _w = lambda a: (lambda t: t.to(torch.bfloat16) if t.is_floating_point() else t)(torch.as_tensor(a))

    def _A_setup():
        B, H, Sq, Sk, D, M = (1, 32, 2048, 2048, 128, 512)
        Dc = 4 * D
        return {'x': _w((lambda *s: torch.randn(*s, dtype=torch.bfloat16) * 0.05)(B, Sq, M)), 'c_kv': _w((lambda *s: torch.randn(*s, dtype=torch.bfloat16) * 1.6)(B, Sk, Dc)), 'w_q': _w((lambda *s: torch.randn(*s, dtype=torch.bfloat16) * 0.8)(M, H, D) * M ** (-0.5)), 'w_uk': _w((lambda *s: torch.randn(*s, dtype=torch.bfloat16) * 0.8)(Dc, H, D) * Dc ** (-0.5)), 'w_uv': _w((lambda *s: torch.randn(*s, dtype=torch.bfloat16) * 1.6)(Dc, H, D) * Dc ** (-0.5)), 'w_o': _w((lambda *s: torch.randn(*s, dtype=torch.bfloat16) * 1.6)(H, D, M) * (H * D) ** (-0.5))}
    _A_in = _A_setup()

    def _B_setup():
        B, S, D, F = (1, 2048, 512, 1376)
        Fh = F // 2
        return {'x': _w((lambda *s: torch.randn(*s, dtype=torch.bfloat16) * 0.05)(B, S, D)), 'w_in': _w((lambda *s: torch.randn(*s, dtype=torch.bfloat16) * 0.4)(D, 2 * Fh)), 'w_sp': _w(0.01 * (lambda *s: torch.randn(*s, dtype=torch.bfloat16) * 0.4)(S, S)), 'b_sp': _w(1.0 + 0.01 * (lambda *s: torch.randn(*s, dtype=torch.bfloat16) * 0.05)(S)), 'w_out': _w((lambda *s: torch.randn(*s, dtype=torch.bfloat16) * 0.05)(Fh, D))}
    _B_in = _B_setup()
    return {'A_x': _A_in['x'], 'A_c_kv': _A_in['c_kv'], 'A_w_q': _A_in['w_q'], 'A_w_uk': _A_in['w_uk'], 'A_w_uv': _A_in['w_uv'], 'A_w_o': _A_in['w_o'], 'B_x': _B_in['x'], 'B_w_in': _B_in['w_in'], 'B_w_sp': _B_in['w_sp'], 'B_b_sp': _B_in['b_sp'], 'B_w_out': _B_in['w_out'], 'c': _w((lambda *s: torch.randn(*s, dtype=torch.bfloat16) * 0.1)(1, 512) * 8.0), 'w_mod': _w((lambda *s: torch.randn(*s, dtype=torch.bfloat16) * 0.1)(512, 6 * 512) * 512 ** (-0.5) * 8.0)}

def reference(A_x, A_c_kv, A_w_q, A_w_uk, A_w_uv, A_w_o, B_x, B_w_in, B_w_sp, B_b_sp, B_w_out, c, w_mod):

    def _A_ref(x, c_kv, w_q, w_uk, w_uv, w_o):
        B, Sq, M = (x.shape[0], x.shape[1], x.shape[2])
        Sk = c_kv.shape[1]
        H, D = (w_q.shape[1], w_q.shape[2])
        q = torch.einsum('bqm,mhd->bhqd', x, w_q)
        k = torch.einsum('bkc,chd->bhkd', c_kv, w_uk)
        v = torch.einsum('bkc,chd->bhkd', c_kv, w_uv)
        scores = torch.einsum('bhqd,bhkd->bhqk', q, k) * D ** (-0.5)
        off = Sk - Sq
        qi = torch.arange(Sq)[:, None]
        kj = torch.arange(Sk)[None, :]
        cmask = kj <= qi + off
        scores = torch.where(cmask[None, None], scores, -1000000000.0)
        p = _softmax(scores, axis=-1)
        ctx = torch.einsum('bhqk,bhkd->bhqd', p, v)
        return torch.einsum('bhqd,hdm->bqm', ctx, w_o)

    def _B_ref(x, w_in, w_sp, b_sp, w_out):
        B, S, D = x.shape
        F = w_in.shape[-1]
        Fh = F // 2
        z = _gelu(torch.einsum('bsd,df->bsf', x, w_in))
        z1 = z[..., :Fh].clone()
        z2 = _layernorm(z[..., Fh:], axis=-1)
        g = torch.einsum('ts,bsf->btf', w_sp, z2) + b_sp[None, :, None]
        return torch.einsum('bsf,fd->bsd', z1 * g, w_out)
    x = A_x
    mod = (_silu(c) @ w_mod).reshape(c.shape[0], 6, 1, -1)
    sa, ca, ga, sb, cb, gb = (mod[:, 0].clone(), mod[:, 1].clone(), mod[:, 2].clone(), mod[:, 3].clone(), mod[:, 4].clone(), mod[:, 5].clone())
    h = _layernorm(x, axis=-1) * (1 + ca) + sa
    x = x + ga * _A_ref(h, A_c_kv, A_w_q, A_w_uk, A_w_uv, A_w_o)
    h = _layernorm(x, axis=-1) * (1 + cb) + sb
    x = x + gb * _B_ref(h, B_w_in, B_w_sp, B_b_sp, B_w_out)
    return x
```

```python
import re

REG_RE = re.compile(r'\b([vas])\[(\d+):(\d+)\]|\b([vas])(\d+)\b|\b(vcc|m0|exec|scc)\b')

def regs_of(tok):
    out = set()
    for m in REG_RE.finditer(tok):
        if m.group(1):
            for i in range(int(m.group(2)), int(m.group(3)) + 1):
                out.add((m.group(1), i))
        elif m.group(4):
            out.add((m.group(4), int(m.group(5))))
        else:
            out.add((m.group(6), 0))
    return out

TRANS = ('v_exp_f32', 'v_log_f32', 'v_rcp_f32', 'v_rsq_f32', 'v_sqrt_f32', 'v_sin_f32', 'v_cos_f32')
NODST = ('buffer_store', 'ds_write', 'global_store', 's_cmp', 's_cbranch', 's_branch', 's_waitcnt',
         's_barrier', 's_nop', 's_setprio', 's_endpgm', 's_sleep', 'buffer_atomic')

class Ins:
    __slots__ = ('mn', 'kind', 'dst', 'src', 'passes', 'srcc', 'isdpp', 'islds', 'wide_store', 'states')

class Asm:
    def __init__(self):
        self.lines = []
        self.hist = []
        self.nlabel = 0

    def raw(self, s):
        self.lines.append(s)

    def label(self, name):
        self.lines.append(f'{name}:')
        self.flush()

    def newlabel(self, p='L'):
        self.nlabel += 1
        return f'{p}_{self.nlabel}'

    def flush(self):
        need = 0
        dist = 0
        for ins in reversed(self.hist):
            if ins.kind == 'mfma':
                need = max(need, (12 if ins.passes >= 8 else 8) - dist)
            elif ins.kind in ('valu', 'trans'):
                need = max(need, 5 - dist)
            elif ins.kind == 'salu':
                need = max(need, 1 - dist)
            dist += ins.states
            if dist > 20:
                break
        if need > 0:
            self._nop(need)
        self.hist = []

    def _nop(self, n):
        while n > 0:
            k = min(n, 16)
            self.lines.append(f'    s_nop {k-1}')
            i = Ins(); i.mn = 's_nop'; i.kind = 'nop'; i.dst = set(); i.src = set(); i.passes = 0
            i.srcc = set(); i.isdpp = False; i.islds = False; i.wide_store = False; i.states = k
            self.hist.append(i)
            n -= k

    def nop(self, n):
        self._nop(n)

    def __call__(self, text):
        for line in text.strip().split('\n'):
            line = line.split(';')[0].strip()
            if not line:
                continue
            self._emit(line)

    def _emit(self, line):
        parts = line.split(None, 1)
        mn = parts[0]
        ops = parts[1] if len(parts) > 1 else ''
        opl = [o.strip() for o in ops.split(',')] if ops else []
        i = Ins(); i.mn = mn; i.passes = 0; i.srcc = set(); i.states = 1
        i.isdpp = ('dpp' in mn) or ('row_' in ops) or ('quad_perm' in ops)
        i.islds = (' lds' in (' ' + ops)) and mn.startswith('buffer_load') or mn.startswith('global_load_lds')
        i.wide_store = mn in ('buffer_store_dwordx4', 'buffer_store_dwordx3', 'global_store_dwordx4', 'global_store_dwordx3')
        if mn.startswith('v_mfma'):
            i.kind = 'mfma'
            i.passes = 8 if '32x32' in mn else 4
        elif mn.startswith('v_'):
            i.kind = 'trans' if mn in TRANS else 'valu'
        elif mn.startswith('s_'):
            i.kind = 'salu'
        elif mn.startswith('buffer_') or mn.startswith('global_'):
            i.kind = 'vmem'
        elif mn.startswith('ds_'):
            i.kind = 'ds'
        else:
            i.kind = 'other'
        nodst = any(mn.startswith(p) for p in NODST) or i.islds
        if nodst:
            i.dst = set()
            i.src = set().union(*[regs_of(o) for o in opl]) if opl else set()
        else:
            i.dst = regs_of(opl[0]) if opl else set()
            i.src = set().union(*[regs_of(o) for o in opl[1:]]) if len(opl) > 1 else set()
            if mn.startswith('v_permlane') and 'swap' in mn:
                i.dst = regs_of(opl[0]) | regs_of(opl[1])
                i.src = set(i.dst)
            if mn.startswith('v_cmp') and not opl[0].startswith('s') and 'vcc' not in opl[0]:
                pass
            if mn in ('v_cndmask_b32',) and len(opl) == 3:
                i.src.add(('vcc', 0))
            if mn.startswith('v_addc_co') or mn.startswith('v_subb_co'):
                i.src.add(('vcc', 0))
            if mn.startswith('v_add_co') or mn.startswith('v_sub_co') or mn.startswith('v_addc_co'):
                i.dst |= regs_of(opl[1])
            if mn.startswith('v_fmac') or mn.startswith('v_mac') :
                i.src |= i.dst
            if mn.startswith('s_and_saveexec') or mn.startswith('s_or_saveexec'):
                i.dst.add(('exec', 0))
        if i.kind == 'mfma':
            i.srcc = regs_of(opl[3])
        if i.islds:
            i.src.add(('m0', 0))
        mo = re.search(r'offset:(\d+)', ops)
        if mo:
            lim = 4095 if i.kind == 'vmem' else 65535
            assert int(mo.group(1)) <= lim, line
        need = 0
        dist = 0
        for p in reversed(self.hist):
            req = 0
            if p.kind in ('valu', 'trans'):
                vd = {r for r in p.dst if r[0] in ('v', 'a')}
                sd = {r for r in p.dst if r[0] in ('s', 'vcc')}
                if i.kind == 'mfma' and vd & i.src:
                    req = max(req, 2)
                if i.kind == 'mfma' and ('exec', 0) in p.dst:
                    req = max(req, 4)
                if sd & i.src:
                    if i.kind in ('valu', 'trans'):
                        req = max(req, 4 if mn.startswith('v_readlane') or mn.startswith('v_writelane') else 2)
                    if i.kind == 'vmem':
                        req = max(req, 5)
                    if i.kind == 'salu':
                        req = max(req, 1)
                if p.kind == 'trans' and vd & i.src and i.kind in ('valu', 'vmem', 'ds'):
                    req = max(req, 1)
                if vd & i.src and (mn.startswith('v_readlane') or mn.startswith('v_readfirstlane')):
                    req = max(req, 1)
                if vd & i.src and (mn.startswith('v_permlane') or i.isdpp):
                    req = max(req, 2)
            elif p.kind == 'mfma':
                big = p.passes >= 8
                if i.kind == 'mfma':
                    ab = i.src - i.srcc
                    if p.dst & ab:
                        req = max(req, 12 if big else 8)
                    if p.dst & i.srcc and p.dst != i.srcc:
                        req = max(req, 10 if big else 6)
                    abx = regs_of(opl[1]) | regs_of(opl[2])
                    if p.dst & abx:
                        req = max(req, 12 if big else 8)
                else:
                    if p.dst & (i.src | i.dst):
                        req = max(req, 12 if big else 8)
                    if i.kind in ('valu', 'trans') and p.srcc & i.dst:
                        req = max(req, 7 if big else 3)
            elif p.kind == 'salu':
                if ('m0', 0) in p.dst and ('m0', 0) in i.src:
                    req = max(req, 1)
            elif p.kind == 'vmem':
                if p.wide_store and i.kind in ('valu', 'trans') and (p.src & i.dst):
                    req = max(req, 2)
            need = max(need, req - dist)
            dist += p.states
            if dist > 24:
                break
        if need > 0:
            self._nop(need)
        self.lines.append('    ' + line)
        self.hist.append(i)
        if len(self.hist) > 40:
            self.hist = self.hist[-40:]
        if mn.startswith('s_branch') or mn == 's_endpgm':
            self.hist = []

    def text(self):
        return '\n'.join(self.lines) + '\n'
```

```python
from k_common import *

def gen_attn(a):
    name = 'attn_kernel'
    kernel_header(a, name)
    a(f'''
    s_load_dwordx2 s[4:5], s[0:1], {ARG['A_x']}
    s_load_dwordx2 s[6:7], s[0:1], {ARG['A_w_q']}
    s_load_dwordx2 s[8:9], s[0:1], {ARG['ws']}
    v_lshrrev_b32 v1, 6, v0
    s_waitcnt lgkmcnt(0)
    v_readfirstlane_b32 s3, v1
    s_cmp_ge_u32 s2, 512
    s_cbranch_scc1 AT_END
    s_and_b32 s40, s2, 7
    s_lshr_b32 s41, s2, 3
    s_and_b32 s42, s41, 3
    s_lshl_b32 s42, s42, 3
    s_add_u32 s40, s40, s42          ; head
    s_lshr_b32 s41, s41, 2
    s_sub_u32 s41, 15, s41           ; qb
    ''')
    srd(a, 12, 4, 5, 2048 * 512 * 2)
    srd(a, 16, 6, 7, 512 * 4096 * 2)
    a(f'''
    s_lshl_b32 s42, s40, 19
    s_add_u32 s43, s42, {WS_K}
    s_add_u32 s20, s8, s43
    s_addc_u32 s21, s9, 0
    s_mov_b32 s22, 524288
    s_mov_b32 s23, 0x00020000
    s_add_u32 s43, s42, {WS_VT}
    s_add_u32 s24, s8, s43
    s_addc_u32 s25, s9, 0
    s_mov_b32 s26, 524288
    s_mov_b32 s27, 0x00020000
    ''')
    srd(a, 28, 8, 9, 2048 * 4096 * 2, WS_CTX)
    srd(a, 32, 8, 9, 3072 * 4, WS_MOD)
    MODL = 65536
    X0 = 64
    QT = 192
    a(f'''
    s_lshl_b32 s36, s3, 10           ; w*1024
    v_and_b32 v1, 63, v0             ; lane
    v_and_b32 v2, 31, v1             ; l%32
    v_lshrrev_b32 v3, 5, v1          ; half
    s_lshl_b32 s44, s41, 7
    s_lshl_b32 s45, s3, 5
    s_add_u32 s44, s44, s45          ; q0 = qb*128 + w*32
    v_add_u32 v4, s44, v2            ; q row
    v_lshlrev_b32 v5, 10, v4
    v_lshl_add_u32 v5, v3, 4, v5     ; x offset
    ''')
    for s in range(32):
        a(f'buffer_load_dwordx4 v[{X0+4*s}:{X0+4*s+3}], v5, s[12:15], 0 offen offset:{s*32}')
    a(f'''
    v_lshlrev_b32 v6, 4, v0
    buffer_load_dwordx4 v[8:11], v6, s[32:35], 0 offen
    ''')
    a('''
    v_lshrrev_b32 v12, 4, v1         ; lane/16
    v_and_b32 v13, 15, v1
    v_lshlrev_b32 v14, 2, v12
    v_xor_b32 v14, v14, v13
    s_lshl_b32 s45, s3, 2
    v_add_u32 v15, s45, v12
    v_lshlrev_b32 v15, 13, v15
    v_lshl_add_u32 v16, v14, 4, v15
    s_lshl_b32 s45, s40, 8
    v_add_u32 v16, s45, v16
    ''')
    def issue_wq(c):
        slot = c % 4
        for i in range(4):
            a(f'''
            s_add_u32 m0, s36, {slot*16384 + i*4096}
            s_mov_b32 s39, {(c*64 + i*16)*8192}
            buffer_load_dwordx4 v16, s[16:19], s39 offen lds
            ''')
    for c in range(3):
        issue_wq(c)
    a('''
    v_bfe_u32 v12, v1, 2, 2          ; r
    v_and_b32 v13, 3, v1             ; c4
    v_bfe_u32 v14, v1, 4, 1          ; nsub
    v_lshlrev_b32 v15, 3, v3
    v_add_u32 v15, v15, v12
    v_lshlrev_b32 v15, 8, v15
    v_lshl_add_u32 v15, v14, 5, v15
    v_lshl_add_u32 v15, v13, 3, v15
    ''')
    for blk in range(4):
        a(f'''
        v_xor_b32 v17, {blk}, v12
        v_lshl_add_u32 v{20+blk}, v17, 6, v15
        ''')
    a(f'''
    s_waitcnt vmcnt(12)
    v_add_u32 v6, {MODL}, v6
    ds_write_b128 v6, v[8:11]
    ''')
    a('v_mov_b32 v24, 0')
    a('v_mov_b32 v25, 0')
    for r in range(128):
        a(f'''
        v_lshlrev_b32 v26, 16, v{X0+r}
        v_and_b32 v27, 0xffff0000, v{X0+r}
        v_add_f32 v24, v24, v26
        v_add_f32 v25, v25, v27
        ''')
    a('''
    v_add_f32 v24, v24, v25
    v_mov_b32 v25, v24
    v_permlane32_swap_b32 v24, v25
    v_add_f32 v24, v24, v25
    v_mul_f32 v24, 0x3b000000, v24   ; mean
    v_mov_b32 v25, 0
    v_mov_b32 v28, 0
    ''')
    for r in range(128):
        a(f'''
        v_lshlrev_b32 v26, 16, v{X0+r}
        v_and_b32 v27, 0xffff0000, v{X0+r}
        v_sub_f32 v26, v26, v24
        v_sub_f32 v27, v27, v24
        v_fma_f32 v25, v26, v26, v25
        v_fma_f32 v28, v27, v27, v28
        ''')
    a(f'''
    v_add_f32 v25, v25, v28
    v_mov_b32 v26, v25
    v_permlane32_swap_b32 v25, v26
    v_add_f32 v25, v25, v26
    v_mov_b32 v26, 0x3727c5ac        ; 1e-5
    v_fmac_f32 v26, 0x3b000000, v25
    v_rsq_f32 v25, v26               ; rstd
    s_waitcnt lgkmcnt(0)
    s_barrier
    v_lshlrev_b32 v26, 5, v3
    v_add_u32 v26, {MODL}, v26
    ''')
    for s in range(32):
        a(f'''
        ds_read_b128 v[28:31], v26 offset:{s*64}
        ds_read_b128 v[32:35], v26 offset:{s*64+16}
        ds_read_b128 v[36:39], v26 offset:{2048+s*64}
        ds_read_b128 v[40:43], v26 offset:{2048+s*64+16}
        ''')
        for j in range(4):
            a(f'''
            v_lshlrev_b32 v{44+2*j}, 16, v{X0+4*s+j}
            v_and_b32 v{45+2*j}, 0xffff0000, v{X0+4*s+j}
            ''')
        for j in range(8):
            a(f'''
            v_sub_f32 v{44+j}, v{44+j}, v24
            v_mul_f32 v{44+j}, v{44+j}, v25
            ''')
        a('s_waitcnt lgkmcnt(0)')
        for j in range(8):
            a(f'''
            v_add_f32 v{36+j}, 1.0, v{36+j}
            v_fma_f32 v{44+j}, v{44+j}, v{36+j}, v{28+j}
            ''')
        for j in range(4):
            a(f'v_cvt_pk_bf16_f32 v{X0+4*s+j}, v{44+2*j}, v{45+2*j}')
    for i in range(64):
        a(f'v_mov_b32 v{QT+i}, 0')
    FW = 28
    def wq_reads(slot, s, buf):
        for blk in range(4):
            for j in range(2):
                r = FW + buf*16 + blk*4 + j*2
                a(f'ds_read_b64_tr_b16 v[{r}:{r+1}], v{20+blk} offset:{slot*16384 + s*4096 + j*1024}')
    for c in range(8):
        slot = c % 4
        inflight = min(2, 7 - c)
        a(f's_waitcnt vmcnt({4*inflight})')
        a('s_barrier')
        if c + 3 < 8:
            issue_wq(c + 3)
        wq_reads(slot, 0, 0)
        for s in range(4):
            buf = s & 1
            if s < 3:
                wq_reads(slot, s + 1, buf ^ 1)
                a('s_waitcnt lgkmcnt(8)')
            else:
                a('s_waitcnt lgkmcnt(0)')
            hx = X0 + 4*(c*4 + s)
            for blk in range(4):
                f = FW + buf*16 + blk*4
                q = QT + blk*16
                a(f'v_mfma_f32_32x32x16_bf16 v[{q}:{q+15}], v[{f}:{f+3}], v[{hx}:{hx+3}], v[{q}:{q+15}]')
    QF = 64
    OA = 96
    SA = 160
    PF = 224
    KF = 28
    VF = 44
    KA = 4
    VA = 12
    DK, DV = 16, 17
    VM, VL, VMC, VAL, VT0, VT1, VDF = 18, 19, 20, 21, 22, 23, 24
    for s in range(8):
        blk, hf = s // 2, s % 2
        for j in range(4):
            r = QT + blk*16 + hf*8 + j*2
            a(f'v_cvt_pk_bf16_f32 v{QF+4*s+j}, v{r}, v{r+1}')
    for i in range(64):
        a(f'v_mov_b32 v{OA+i}, 0')
    a(f'''
    v_mov_b32 v{VM}, 0xf149f2ca
    v_mov_b32 v{VL}, 0
    v_and_b32 v2, 31, v1
    v_lshrrev_b32 v3, 5, v1
    v_and_b32 v25, 15, v1            ; rr
    v_lshlrev_b32 v26, 8, v2         ; row*256
    ''')
    for s in range(8):
        a(f'''
        v_or_b32 v27, {2*s}, v3
        v_xor_b32 v27, v27, v25
        v_lshl_add_u32 v{KA+s}, v27, 4, v26
        ''')
    a('''
    v_lshrrev_b32 v25, 1, v2
    v_and_b32 v25, 7, v25
    v_lshlrev_b32 v26, 7, v2
    v_add_u32 v26, 16384, v26
    ''')
    for u in range(4):
        a(f'''
        v_or_b32 v27, {2*u}, v3
        v_xor_b32 v27, v27, v25
        v_lshl_add_u32 v{VA+u}, v27, 4, v26
        ''')
    a(f'''
    v_lshrrev_b32 v25, 4, v1         ; lane/16
    s_lshl_b32 s45, s3, 2
    v_add_u32 v25, s45, v25          ; row (0..15)
    v_and_b32 v26, 15, v1
    v_xor_b32 v26, v26, v25
    v_lshlrev_b32 v25, 8, v25
    v_lshl_add_u32 v{DK}, v26, 4, v25
    v_lshrrev_b32 v25, 3, v1         ; lane/8
    s_lshl_b32 s45, s3, 3
    v_add_u32 v25, s45, v25          ; row 0..31
    v_lshrrev_b32 v26, 1, v25
    v_and_b32 v26, 7, v26
    v_and_b32 v27, 7, v1
    v_xor_b32 v26, v26, v27
    v_lshlrev_b32 v25, 12, v25
    v_lshl_add_u32 v{DV}, v26, 4, v25
    v_add_u32 v{VDF}, s44, v2        ; q
    v_lshlrev_b32 v25, 2, v3
    v_sub_u32 v{VDF}, v{VDF}, v25    ; q - 4*half
    s_lshl_b32 s46, s41, 1
    s_add_u32 s46, s46, 2            ; ntiles
    s_mov_b32 s47, 0                 ; t
    s_mov_b32 s48, 0x3e0293ee        ; c = 128^-0.5 * log2(e)
    s_barrier
    ''')
    def issue_kv(slot):
        a('s_lshl_b32 s50, s49, 14')
        for i in range(4):
            a(f'''
            s_add_u32 m0, s36, {slot*32768 + i*4096}
            s_add_u32 s39, s50, {i*4096}
            buffer_load_dwordx4 v{DK}, s[20:23], s39 offen lds
            ''')
        a('s_lshl_b32 s50, s49, 7')
        for i in range(4):
            a(f'''
            s_add_u32 m0, s36, {slot*32768 + 16384 + i*4096}
            s_add_u32 s39, s50, {i*131072}
            buffer_load_dwordx4 v{DV}, s[24:27], s39 offen lds
            ''')
    a('s_mov_b32 s49, 0')
    issue_kv(0)
    LOOP = 'AT_LOOP'
    a.label(LOOP)
    def body(slot):
        lskip = a.newlabel('AT_SKIP'); lnomask = a.newlabel('AT_NOMASK'); lnoiss = a.newlabel('AT_NOISS')
        lnors = a.newlabel('AT_NORS')
        base = slot * 32768
        a(f'''
        s_waitcnt vmcnt(0)
        s_barrier
        s_add_u32 s49, s47, 1
        s_cmp_ge_u32 s49, s46
        s_cbranch_scc1 {lnoiss}
        ''')
        issue_kv(slot ^ 1)
        a.label(lnoiss)
        a(f'''
        s_lshl_b32 s51, s47, 6           ; 64t
        s_add_u32 s52, s44, 31
        s_cmp_gt_u32 s51, s52
        s_cbranch_scc1 {lskip}
        ''')
        def kreads(s, buf):
            for kvb in range(2):
                r = KF + buf*8 + kvb*4
                a(f'ds_read_b128 v[{r}:{r+3}], v{KA+s} offset:{base + kvb*8192}')
        for i in range(32):
            a(f'v_mov_b32 v{SA+i}, 0')
        kreads(0, 0)
        for s in range(8):
            buf = s & 1
            if s < 7:
                kreads(s + 1, buf ^ 1)
                a('s_waitcnt lgkmcnt(2)')
            else:
                a('s_waitcnt lgkmcnt(0)')
            for kvb in range(2):
                r = KF + buf*8 + kvb*4
                c = SA + kvb*16
                a(f'v_mfma_f32_32x32x16_bf16 v[{c}:{c+15}], v[{r}:{r+3}], v[{QF+4*s}:{QF+4*s+3}], v[{c}:{c+15}]')
        def vreads(u, dbp, buf):
            for i in range(2):
                db = dbp*2 + i
                r = VF + buf*8 + i*4
                a(f'ds_read_b128 v[{r}:{r+3}], v{VA+u} offset:{base + db*4096}')
        vreads(0, 0, 0)
        a(f'''
        s_add_u32 s52, s51, 63
        s_cmp_le_u32 s52, s44
        s_cbranch_scc1 {lnomask}
        v_subrev_u32 v{VT0}, s51, v{VDF}
        v_mov_b32 v{VT1}, 0xf149f2ca
        ''')
        for kvb in range(2):
            for r in range(16):
                off = 32*kvb + 8*(r//4) + r % 4
                a(f'''
                v_cmp_gt_i32 vcc, {off}, v{VT0}
                v_cndmask_b32 v{SA+kvb*16+r}, v{SA+kvb*16+r}, v{VT1}, vcc
                ''')
        a.label(lnomask)
        a(f'v_max3_f32 v{VT0}, v{SA}, v{SA+1}, v{SA+2}')
        for i in range(3, 31, 2):
            a(f'v_max3_f32 v{VT0}, v{VT0}, v{SA+i}, v{SA+i+1}')
        a(f'''
        v_max_f32 v{VT0}, v{VT0}, v{SA+31}
        v_mov_b32 v{VT1}, v{VT0}
        v_permlane32_swap_b32 v{VT0}, v{VT1}
        v_max3_f32 v{VT0}, v{VT0}, v{VT1}, v{VM}      ; m_new
        v_sub_f32 v{VAL}, v{VM}, v{VT0}
        v_mul_f32 v{VAL}, s48, v{VAL}
        v_exp_f32 v{VAL}, v{VAL}                      ; alpha
        v_cmp_neq_f32 vcc, v{VM}, v{VT0}
        v_mov_b32 v{VM}, v{VT0}
        v_mul_f32 v{VMC}, s48, v{VT0}
        v_mul_f32 v{VL}, v{VL}, v{VAL}
        ''')
        for i in range(32):
            a(f'''
            v_fma_f32 v{SA+i}, v{SA+i}, s48, -v{VMC}
            v_exp_f32 v{SA+i}, v{SA+i}
            ''')
        a(f's_cbranch_vccz {lnors}')
        for i in range(64):
            a(f'v_mul_f32 v{OA+i}, v{OA+i}, v{VAL}')
        a.label(lnors)
        for i in range(32):
            a(f'v_add_f32 v{VL}, v{VL}, v{SA+i}')
        for u in range(4):
            kvb, hf = u // 2, u % 2
            for j in range(4):
                r = SA + kvb*16 + hf*8 + j*2
                a(f'v_cvt_pk_bf16_f32 v{PF+4*u+j}, v{r}, v{r+1}')
        seq = [(u, dbp) for u in range(4) for dbp in range(2)]
        for n, (u, dbp) in enumerate(seq):
            buf = n & 1
            if n + 1 < len(seq):
                vreads(seq[n+1][0], seq[n+1][1], buf ^ 1)
                a('s_waitcnt lgkmcnt(2)')
            else:
                a('s_waitcnt lgkmcnt(0)')
            for i in range(2):
                db = dbp*2 + i
                r = VF + buf*8 + i*4
                c = OA + db*16
                a(f'v_mfma_f32_32x32x16_bf16 v[{c}:{c+15}], v[{r}:{r+3}], v[{PF+4*u}:{PF+4*u+3}], v[{c}:{c+15}]')
        a.label(lskip)
        a('s_add_u32 s47, s47, 1')
    body(0)
    body(1)
    a(f'''
    s_cmp_lt_u32 s47, s46
    s_cbranch_scc1 {LOOP}
    ''')
    a(f'''
    v_mov_b32 v{VT0}, v{VL}
    v_permlane32_swap_b32 v{VL}, v{VT0}
    v_add_f32 v{VL}, v{VL}, v{VT0}
    v_rcp_f32 v{VL}, v{VL}
    v_add_u32 v25, s44, v2
    v_lshlrev_b32 v25, 13, v25
    v_lshl_add_u32 v25, v3, 3, v25
    s_lshl_b32 s45, s40, 8
    v_add_u32 v25, s45, v25
    ''')
    for db in range(4):
        for g in range(4):
            c = OA + db*16 + g*4
            t = 26 + (g % 2) * 2
            a(f'''
            v_mul_f32 v{c}, v{c}, v{VL}
            v_mul_f32 v{c+1}, v{c+1}, v{VL}
            v_mul_f32 v{c+2}, v{c+2}, v{VL}
            v_mul_f32 v{c+3}, v{c+3}, v{VL}
            v_cvt_pk_bf16_f32 v{t}, v{c}, v{c+1}
            v_cvt_pk_bf16_f32 v{t+1}, v{c+2}, v{c+3}
            buffer_store_dwordx2 v[{t}:{t+1}], v25, s[28:31], 0 offen offset:{db*64 + g*16}
            ''')
    a.label('AT_END')
    a('s_endpgm')
    return dict(name=name, grid=512, block=256, lds=65536 + 4096, vgpr=256)
```

```python
from asmlib import Asm

WS_MOD  = 0x0
WS_STAT = 0x10000
WS_K    = 0x1000000
WS_VT   = 0x2000000
WS_CTX  = 0x3000000
WS_X2   = 0x4000000
WS_Z1   = 0x4400000
WS_Z2   = 0x4800000
WS_Y    = 0x4C00000
ZP = 704

ARG = dict(A_x=0, A_c_kv=8, A_w_q=16, A_w_uk=24, A_w_uv=32, A_w_o=40, B_x=48, B_w_in=56, B_w_sp=64,
           B_b_sp=72, B_w_out=80, c=88, w_mod=96, out=104, dbg=112, ws=120)

def kernel_header(a, name):
    a.raw(f'.globl {name}')
    a.raw('.p2align 8')
    a.raw(f'.type {name},@function')
    a.raw(f'{name}:')
    a.hist = []

def kernel_desc(name, vgpr, sgpr=102, accum=None):
    if accum is None:
        accum = (vgpr + 3) // 4 * 4
    return f'''.amdhsa_kernel {name}
  .amdhsa_next_free_vgpr {vgpr}
  .amdhsa_next_free_sgpr {sgpr}
  .amdhsa_accum_offset {accum}
  .amdhsa_group_segment_fixed_size 0
  .amdhsa_kernarg_size 128
  .amdhsa_user_sgpr_count 2
  .amdhsa_user_sgpr_kernarg_segment_ptr 1
  .amdhsa_system_sgpr_workgroup_id_x 1
.end_amdhsa_kernel
'''

def srd(a, d, lo, hi, nbytes, off=0):
    if off:
        a(f's_add_u32 s{d}, s{lo}, {off}')
        a(f's_addc_u32 s{d+1}, s{hi}, 0')
    else:
        a(f's_mov_b32 s{d}, s{lo}')
        a(f's_mov_b32 s{d+1}, s{hi}')
    a(f's_mov_b32 s{d+2}, {nbytes}')
    a(f's_mov_b32 s{d+3}, 0x00020000')
```

```python
from k_common import *

NMOD = 24
NGEMM = 1024

def gen_kv(a):
    name = 'kv_kernel'
    kernel_header(a, name)
    a(f'''
    s_load_dwordx2 s[4:5], s[0:1], {ARG['A_c_kv']}
    s_load_dwordx2 s[6:7], s[0:1], {ARG['A_w_uk']}
    s_load_dwordx2 s[8:9], s[0:1], {ARG['A_w_uv']}
    s_load_dwordx2 s[10:11], s[0:1], {ARG['ws']}
    s_load_dwordx2 s[12:13], s[0:1], {ARG['c']}
    s_load_dwordx2 s[14:15], s[0:1], {ARG['w_mod']}
    v_lshrrev_b32 v1, 6, v0
    s_waitcnt lgkmcnt(0)
    v_readfirstlane_b32 s3, v1
    s_cmp_lt_u32 s2, {NMOD}
    s_cbranch_scc1 KV_MOD
    s_cmp_ge_u32 s2, {NMOD + NGEMM}
    s_cbranch_scc1 KV_END
    ''')
    a(f'''
    s_sub_u32 s28, s2, {NMOD}
    s_and_b32 s29, s28, 7
    s_lshr_b32 s30, s28, 3
    s_and_b32 s31, s30, 7
    s_lshl_b32 s29, s29, 3
    s_add_u32 s29, s29, s31          ; ntile 0..63
    s_lshr_b32 s30, s30, 3           ; mtile 0..15
    ''')
    srd(a, 16, 4, 5, 2048 * 512 * 2)
    a('''
    s_cmp_lt_u32 s29, 32
    s_cselect_b32 s20, s6, s8
    s_cselect_b32 s21, s7, s9
    s_mov_b32 s22, 4194304
    s_mov_b32 s23, 0x00020000
    s_and_b32 s31, s29, 31           ; head
    ''')
    a(f'''
    s_cmp_lt_u32 s29, 32
    s_mov_b32 s32, {WS_K}
    s_mov_b32 s33, {WS_VT}
    s_cselect_b32 s32, s32, s33
    s_lshl_b32 s33, s31, 19
    s_add_u32 s32, s32, s33
    s_add_u32 s24, s10, s32
    s_addc_u32 s25, s11, 0
    s_mov_b32 s26, 524288
    s_mov_b32 s27, 0x00020000
    ''')
    a('''
    v_and_b32 v1, 63, v0             ; lane
    v_lshrrev_b32 v2, 3, v1          ; lane/8
    v_and_b32 v3, 7, v1              ; lane%8
    s_lshl_b32 s34, s3, 3            ; w*8
    v_add_u32 v4, s34, v2
    v_lshrrev_b32 v5, 1, v4
    v_and_b32 v5, 7, v5
    v_xor_b32 v5, v5, v3
    s_lshl_b32 s35, s30, 7           ; m0
    v_add_u32 v4, s35, v4
    v_lshlrev_b32 v4, 10, v4
    v_lshl_add_u32 v10, v5, 4, v4
    v_lshrrev_b32 v2, 4, v1          ; lane/16
    v_and_b32 v3, 15, v1             ; lane%16
    v_lshlrev_b32 v5, 2, v2
    v_xor_b32 v5, v5, v3
    s_lshl_b32 s34, s3, 2
    v_add_u32 v4, s34, v2
    v_lshlrev_b32 v4, 13, v4
    v_lshl_add_u32 v11, v5, 4, v4
    s_lshl_b32 s34, s31, 8
    v_add_u32 v11, s34, v11
    s_lshl_b32 s36, s3, 10
    ''')
    a('''
    s_lshr_b32 s37, s3, 1            ; wm
    s_and_b32 s38, s3, 1             ; wn
    v_and_b32 v2, 31, v1             ; l%32
    v_lshrrev_b32 v3, 5, v1          ; half
    s_lshl_b32 s34, s37, 6
    v_add_u32 v4, s34, v2
    v_lshrrev_b32 v5, 1, v4
    v_and_b32 v5, 7, v5              ; g
    v_lshlrev_b32 v4, 7, v4          ; row*128
    ''')
    for s in range(4):
        a(f'''
        v_or_b32 v6, {2*s}, v3
        v_xor_b32 v6, v6, v5
        v_lshl_add_u32 v{12+s}, v6, 4, v4
        ''')
    a('''
    v_bfe_u32 v2, v1, 2, 2           ; r
    v_and_b32 v4, 3, v1              ; c4
    v_bfe_u32 v5, v1, 4, 1           ; nsub
    v_lshlrev_b32 v6, 3, v3          ; 8*half
    v_add_u32 v6, v6, v2             ; 8*half + r
    v_lshlrev_b32 v6, 8, v6          ; *256
    v_lshl_add_u32 v6, v5, 5, v6     ; + nsub*32
    v_lshl_add_u32 v6, v4, 3, v6     ; + c4*8
    v_add_u32 v6, 16384, v6          ; B region
    ''')
    for nb in range(2):
        a(f'''
        s_lshl_b32 s34, s38, 1
        s_add_u32 s34, s34, {nb}
        v_xor_b32 v7, s34, v2
        v_lshl_add_u32 v{16+nb}, v7, 6, v6
        ''')
    ACC = 64
    FA = 20
    FB = 36
    for i in range(64):
        a(f'v_mov_b32 v{ACC+i}, 0')

    NST = 2
    def issue(t):
        slot = t % NST
        for i in range(4):
            a(f'''
            s_add_u32 m0, s36, {slot*32768 + i*4096}
            s_mov_b32 s39, {t*128 + i*32768}
            buffer_load_dwordx4 v10, s[16:19], s39 offen lds
            ''')
        for i in range(4):
            a(f'''
            s_add_u32 m0, s36, {slot*32768 + 16384 + i*4096}
            s_mov_b32 s39, {(t*64 + i*16)*8192}
            buffer_load_dwordx4 v11, s[20:23], s39 offen lds
            ''')
    def reads(slot, s, buf):
        for mb in range(2):
            a(f'ds_read_b128 v[{FA+buf*8+mb*4}:{FA+buf*8+mb*4+3}], v{12+s} offset:{slot*32768 + mb*4096}')
        for nb in range(2):
            for j in range(2):
                r = FB + buf*8 + nb*4 + j*2
                a(f'ds_read_b64_tr_b16 v[{r}:{r+1}], v{16+nb} offset:{slot*32768 + s*4096 + j*1024}')
    def mainloop(swapped):
        for t in range(NST - 1):
            issue(t)
        for t in range(8):
            slot = t % NST
            inflight = min(NST - 2, 7 - t)
            a(f's_waitcnt vmcnt({8*inflight})')
            a('s_barrier')
            if t + NST - 1 < 8:
                issue(t + NST - 1)
            reads(slot, 0, 0)
            for s in range(4):
                buf = s & 1
                if s < 3:
                    reads(slot, s + 1, buf ^ 1)
                    a('s_waitcnt lgkmcnt(6)')
                else:
                    a('s_waitcnt lgkmcnt(0)')
                for mb in range(2):
                    for nb in range(2):
                        c = ACC + (mb*2+nb)*16
                        fa = FA + buf*8 + mb*4
                        fb = FB + buf*8 + nb*4
                        if swapped:
                            a(f'v_mfma_f32_32x32x16_bf16 v[{c}:{c+15}], v[{fb}:{fb+3}], v[{fa}:{fa+3}], v[{c}:{c+15}]')
                        else:
                            a(f'v_mfma_f32_32x32x16_bf16 v[{c}:{c+15}], v[{fa}:{fa+3}], v[{fb}:{fb+3}], v[{c}:{c+15}]')
    a('''
    s_cmp_ge_u32 s29, 32
    s_cbranch_scc1 KV_VPART
    ''')
    mainloop(True)
    a('''
    v_and_b32 v2, 31, v1
    v_lshrrev_b32 v3, 5, v1
    s_lshl_b32 s34, s37, 6
    s_add_u32 s34, s34, s35
    v_add_u32 v2, s34, v2
    v_lshlrev_b32 v2, 8, v2
    v_lshl_add_u32 v2, v3, 4, v2
    s_lshl_b32 s34, s38, 7
    v_add_u32 v2, s34, v2
    v_add_u32 v8, 8192, v2
    ''')
    for mb in range(2):
        for nb in range(2):
            c = ACC + (mb*2+nb)*16
            for g in range(4):
                va = 2 if mb == 0 else 8
                a(f'''
                v_cvt_pk_bf16_f32 v{4+(g%2)*2}, v{c+g*4}, v{c+g*4+1}
                v_cvt_pk_bf16_f32 v{5+(g%2)*2}, v{c+g*4+2}, v{c+g*4+3}
                buffer_store_dwordx2 v[{4+(g%2)*2}:{5+(g%2)*2}], v{va}, s[24:27], 0 offen offset:{nb*64 + (g//2)*32 + (g%2)*8}
                ''')
    a('s_branch KV_END')
    a.label('KV_VPART')
    mainloop(False)
    a('''
    v_and_b32 v2, 31, v1
    v_lshrrev_b32 v3, 5, v1
    s_lshl_b32 s34, s38, 6
    v_add_u32 v2, s34, v2
    v_lshlrev_b32 v2, 12, v2
    v_lshl_add_u32 v2, v3, 4, v2
    s_lshl_b32 s34, s37, 6
    s_add_u32 s34, s34, s35
    s_lshl_b32 s34, s34, 1
    v_add_u32 v2, s34, v2
    v_add_u32 v8, 0x20000, v2
    ''')
    for mb in range(2):
        for nb in range(2):
            c = ACC + (mb*2+nb)*16
            for g in range(4):
                va = 2 if nb == 0 else 8
                a(f'''
                v_cvt_pk_bf16_f32 v{4+(g%2)*2}, v{c+g*4}, v{c+g*4+1}
                v_cvt_pk_bf16_f32 v{5+(g%2)*2}, v{c+g*4+2}, v{c+g*4+3}
                buffer_store_dwordx2 v[{4+(g%2)*2}:{5+(g%2)*2}], v{va}, s[24:27], 0 offen offset:{mb*64 + (g//2)*32 + (g%2)*8}
                ''')
    a('s_branch KV_END')

    a.label('KV_MOD')
    srd(a, 16, 12, 13, 1024)
    srd(a, 20, 14, 15, 512 * 3072 * 2)
    srd(a, 24, 10, 11, 3072 * 4, WS_MOD)
    a('''
    v_and_b32 v1, 63, v0
    s_lshl_b32 s34, s3, 8            ; w*128*2 bytes
    v_lshlrev_b32 v2, 1, v1
    v_add_u32 v2, s34, v2
    buffer_load_ushort v4, v2, s[16:19], 0 offen
    buffer_load_ushort v5, v2, s[16:19], 0 offen offset:128
    s_waitcnt vmcnt(0)
    v_lshlrev_b32 v4, 16, v4
    v_lshlrev_b32 v5, 16, v5
    v_mul_f32 v6, 0xbfb8aa3b, v4
    v_mul_f32 v7, 0xbfb8aa3b, v5
    v_exp_f32 v6, v6
    v_exp_f32 v7, v7
    v_add_f32 v6, 1.0, v6
    v_add_f32 v7, 1.0, v7
    v_rcp_f32 v6, v6
    v_rcp_f32 v7, v7
    v_mul_f32 v4, v4, v6
    v_mul_f32 v5, v5, v7
    v_cvt_pk_bf16_f32 v4, v4, v5
    v_lshlrev_b32 v5, 16, v4
    v_and_b32 v4, 0xffff0000, v4
    v_mov_b32 v8, 0
    v_mov_b32 v9, 0
    v_lshlrev_b32 v2, 2, v1
    s_lshl_b32 s34, s2, 8
    v_add_u32 v2, s34, v2
    s_mul_i32 s35, s3, 128*6144
    ''')
    for blk in range(4):
        for j in range(32):
            k = blk * 32 + j
            a(f'''
            s_add_u32 s39, s35, {k*6144}
            buffer_load_dword v{16+j}, v2, s[20:23], s39 offen
            ''')
        a('s_waitcnt vmcnt(0)')
        for j in range(32):
            k = blk * 32 + j
            src = 5 if k < 64 else 4
            a(f'''
            v_readlane_b32 s40, v{src}, {k % 64}
            v_lshlrev_b32 v10, 16, v{16+j}
            v_and_b32 v11, 0xffff0000, v{16+j}
            v_fma_f32 v8, v10, s40, v8
            v_fma_f32 v9, v11, s40, v9
            ''')
    a('''
    s_lshl_b32 s34, s3, 9            ; w*512
    v_lshlrev_b32 v2, 3, v1
    v_add_u32 v2, s34, v2
    ds_write_b64 v2, v[8:9]
    s_waitcnt lgkmcnt(0)
    s_barrier
    v_cmp_gt_u32 vcc, 128, v0
    s_and_saveexec_b64 s[42:43], vcc
    s_cbranch_execz KV_END
    v_lshlrev_b32 v2, 2, v0
    ds_read_b32 v4, v2
    ds_read_b32 v5, v2 offset:512
    ds_read_b32 v6, v2 offset:1024
    ds_read_b32 v7, v2 offset:1536
    s_waitcnt lgkmcnt(0)
    v_add_f32 v4, v4, v5
    v_add_f32 v6, v6, v7
    v_add_f32 v4, v4, v6
    v_cvt_pk_bf16_f32 v4, v4, v4
    v_lshlrev_b32 v4, 16, v4
    s_lshl_b32 s34, s2, 9
    v_add_u32 v2, s34, v2
    buffer_store_dword v4, v2, s[24:27], 0 offen
    ''')
    a.label('KV_END')
    a('s_endpgm')
    return dict(name=name, grid=NMOD + NGEMM, block=256, lds=65536, vgpr=128)
```

```python
from k_common import *

def gemm_splitk(a, name, prefix, nmt, nnt, nstages, setup, lda, ldb, epilogue, bnorm=False):
    kernel_header(a, name)
    END = prefix + '_END'
    a(f'''
    s_load_dwordx2 s[4:5], s[0:1], {ARG['ws']}
    ''')
    setup_loads = setup(a, 'load')
    a(f'''
    v_lshrrev_b32 v1, 6, v0
    s_waitcnt lgkmcnt(0)
    v_readfirstlane_b32 s3, v1
    s_cmp_ge_u32 s2, {nmt*nnt}
    s_cbranch_scc1 {END}
    ''')
    a(f'''
    s_and_b32 s40, s2, 7
    s_lshr_b32 s41, s2, 3
    s_mov_b32 s42, {(1 << 32) // nnt + 1}
    s_mul_hi_u32 s43, s41, s42
    s_mul_i32 s42, s43, {nnt}
    s_sub_u32 s41, s41, s42          ; ntile
    s_lshl_b32 s43, s43, 3
    s_add_u32 s40, s40, s43          ; mtile
    ''')
    setup(a, 'srd')
    ACC = 64
    FA, FB = 20, 36
    BR = 128
    a(f'''
    s_lshl_b32 s36, s3, 10
    v_and_b32 v1, 63, v0
    v_and_b32 v2, 31, v1
    v_lshrrev_b32 v3, 5, v1
    v_lshrrev_b32 v4, 4, v1          ; lane/16
    s_lshl_b32 s34, s3, 2
    v_add_u32 v4, s34, v4            ; row 0..15
    v_and_b32 v5, 15, v1
    v_xor_b32 v5, v5, v4
    s_lshl_b32 s35, s40, 6           ; m0
    v_add_u32 v4, s35, v4
    s_mov_b32 s34, {lda}
    v_mul_lo_u32 v4, v4, s34
    v_lshl_add_u32 v10, v5, 4, v4
    v_lshrrev_b32 v4, 3, v1          ; lane/8
    v_bfe_u32 v5, v4, 1, 1
    v_lshlrev_b32 v5, 2, v5
    v_and_b32 v6, 7, v1
    v_xor_b32 v5, v5, v6
    s_lshl_b32 s34, s3, 3
    v_add_u32 v4, s34, v4            ; krow 0..31
    v_mov_b32 v9, v4
    s_mov_b32 s34, {ldb}
    v_mul_lo_u32 v4, v4, s34
    v_lshl_add_u32 v11, v5, 4, v4
    s_lshl_b32 s34, s41, 7           ; n0*2
    v_add_u32 v11, s34, v11          ; B voffset
    ''')
    a('''
    v_and_b32 v5, 15, v2             ; row&15
    v_lshlrev_b32 v4, 8, v2          ; row*256
    s_lshl_b32 s34, s3, 2            ; w*4
    ''')
    for s in range(2):
        a(f'''
        v_or_b32 v6, {2*s}, v3
        v_or_b32 v6, s34, v6
        v_xor_b32 v6, v6, v5
        v_lshl_add_u32 v{12+s}, v6, 4, v4
        ''')
    a('''
    v_bfe_u32 v4, v1, 2, 2           ; r
    v_and_b32 v5, 3, v1              ; c4
    v_bfe_u32 v6, v1, 4, 1           ; nsub
    v_lshlrev_b32 v7, 3, v3
    v_add_u32 v7, v7, v4             ; 8half + r
    s_lshl_b32 s34, s3, 5
    v_add_u32 v7, s34, v7            ; + 32w
    v_lshlrev_b32 v7, 7, v7          ; *128
    v_lshl_add_u32 v7, v6, 5, v7
    v_lshl_add_u32 v7, v5, 3, v7
    v_add_u32 v7, 16384, v7
    v_lshrrev_b32 v4, 1, v4          ; (r>>1)&1
    ''')
    for nb in range(2):
        a(f'''
        v_xor_b32 v6, {nb}, v4
        v_lshl_add_u32 v{14+nb}, v6, 6, v7
        ''')
    for i in range(64):
        a(f'v_mov_b32 v{ACC+i}, 0')
    setup(a, 'pre')
    NST = 2 if bnorm else 4
    def issueA(t, slot):
        for i in range(4):
            a(f'''
            s_add_u32 m0, s36, {slot*32768 + i*4096}
            s_mov_b32 s39, {t*256 + i*16*lda}
            buffer_load_dwordx4 v10, s[12:15], s39 offen lds
            ''')
    def issueB(t, slot):
        for i in range(4):
            if bnorm:
                a(f'''
                s_mov_b32 s39, {(t*128 + i*32)*ldb}
                buffer_load_dwordx4 v[{BR+4*i}:{BR+4*i+3}], v11, s[16:19], s39 offen
                ''')
            else:
                a(f'''
                s_add_u32 m0, s36, {slot*32768 + 16384 + i*4096}
                s_mov_b32 s39, {(t*128 + i*32)*ldb}
                buffer_load_dwordx4 v11, s[16:19], s39 offen lds
                ''')
    def writeB(t, slot):
        a('s_waitcnt vmcnt(0)')
        for i in range(4):
            a(f'ds_read_b64 v[{144+2*i}:{145+2*i}], v17 offset:{(t*128 + i*32)*8}')
        a('s_waitcnt lgkmcnt(0)')
        for i in range(4):
            for j in range(4):
                r = BR + 4*i + j
                a(f'''
                v_lshlrev_b32 v152, 16, v{r}
                v_and_b32 v153, 0xffff0000, v{r}
                v_sub_f32 v152, v152, v{144+2*i}
                v_sub_f32 v153, v153, v{144+2*i}
                v_mul_f32 v152, v152, v{145+2*i}
                v_mul_f32 v153, v153, v{145+2*i}
                v_cvt_pk_bf16_f32 v{r}, v152, v153
                ''')
            a(f'ds_write_b128 v16, v[{BR+4*i}:{BR+4*i+3}] offset:{slot*32768 + 16384 + i*4096}')
    def reads(slot, s, buf):
        sb = slot * 32768
        va, vb = 12, 14
        if sb >= 65536:
            sb -= 65536; va, vb = 156, 158
        for mb in range(2):
            a(f'ds_read_b128 v[{FA+buf*8+mb*4}:{FA+buf*8+mb*4+3}], v{va+s} offset:{sb + mb*8192}')
        for nb in range(2):
            for j in range(2):
                r = FB + buf*8 + nb*4 + j*2
                a(f'ds_read_b64_tr_b16 v[{r}:{r+1}], v{vb+nb} offset:{sb + s*2048 + j*512}')
    if NST > 2:
        for i in range(4):
            a(f'v_add_u32 v{156+i}, 0x10000, v{12+i}')
    if bnorm:
        a(f'''
        v_lshlrev_b32 v16, 4, v1
        v_add_u32 v16, s36, v16
        v_lshlrev_b32 v17, 3, v9
        v_add_u32 v17, 65536, v17
        ''')
        issueA(0, 0); issueB(0, 0); writeB(0, 0)
    else:
        for t in range(NST - 1):
            issueA(t, t); issueB(t, t)
    for t in range(nstages):
        slot = t % NST
        if bnorm:
            a('s_waitcnt vmcnt(0) lgkmcnt(0)')
        else:
            inflight = min(NST - 2, nstages - 1 - t)
            a(f's_waitcnt vmcnt({8*inflight})')
        a('s_barrier')
        tn = t + NST - 1
        if tn < nstages:
            issueA(tn, tn % NST); issueB(tn, tn % NST)
        reads(slot, 0, 0)
        reads(slot, 1, 1)
        for s in range(2):
            a(f's_waitcnt lgkmcnt({6 if s == 0 else 0})')
            for mb in range(2):
                for nb in range(2):
                    c = ACC + (mb*2+nb)*16
                    fa = FA + s*8 + mb*4
                    fb = FB + s*8 + nb*4
                    a(f'v_mfma_f32_32x32x16_bf16 v[{c}:{c+15}], v[{fb}:{fb+3}], v[{fa}:{fa+3}], v[{c}:{c+15}]')
        if bnorm and tn < nstages:
            writeB(tn, tn % NST)
    a(f'''
    s_waitcnt vmcnt(0) lgkmcnt(0)
    s_barrier
    s_lshl_b32 s34, s3, 14
    v_lshlrev_b32 v4, 4, v1
    v_add_u32 v5, s34, v4
    ''')
    for qd in range(16):
        a(f'ds_write_b128 v5, v[{ACC+4*qd}:{ACC+4*qd+3}] offset:{qd*1024}')
    a(f'''
    s_waitcnt lgkmcnt(0)
    s_barrier
    s_lshl_b32 s34, s3, 12
    v_add_u32 v5, s34, v4
    ''')
    for wv in range(4):
        for g in range(4):
            r = ACC + wv*16 + g*4
            a(f'ds_read_b128 v[{r}:{r+3}], v5 offset:{wv*16384 + g*1024}')
    a('s_waitcnt lgkmcnt(0)')
    for i in range(16):
        a(f'''
        v_add_f32 v{ACC+i}, v{ACC+i}, v{ACC+16+i}
        v_add_f32 v{ACC+32+i}, v{ACC+32+i}, v{ACC+48+i}
        v_add_f32 v{ACC+i}, v{ACC+i}, v{ACC+32+i}
        ''')
    a('''
    s_lshr_b32 s34, s3, 1
    s_lshl_b32 s34, s34, 5
    s_add_u32 s34, s34, s35
    v_add_u32 v4, s34, v2            ; row
    s_and_b32 s34, s3, 1
    s_lshl_b32 s34, s34, 5
    s_lshl_b32 s37, s41, 6
    s_add_u32 s34, s34, s37
    v_lshlrev_b32 v5, 2, v3
    v_add_u32 v5, s34, v5            ; col (g=0)
    ''')
    epilogue(a, ACC)
    a.label(END)
    a('s_endpgm')
    lds = NST * 32768 + (16384 if bnorm else 0)
    return dict(name=name, grid=nmt*nnt, block=256, lds=lds, vgpr=160)

def rbf(a, r):
    a(f'''
    v_cvt_pk_bf16_f32 v{r}, v{r}, v{r}
    v_lshlrev_b32 v{r}, 16, v{r}
    ''')

def gen_oproj(a):
    def setup(a, ph):
        if ph == 'load':
            a(f'''
            s_load_dwordx2 s[6:7], s[0:1], {ARG['A_w_o']}
            s_load_dwordx2 s[8:9], s[0:1], {ARG['A_x']}
            ''')
        elif ph == 'srd':
            srd(a, 12, 4, 5, 2048*4096*2, WS_CTX)
            srd(a, 16, 6, 7, 4096*512*2)
            srd(a, 20, 8, 9, 2048*512*2)
            srd(a, 24, 4, 5, 2048*512*2, WS_X2)
            srd(a, 28, 4, 5, 3072*4, WS_MOD)
    def epi(a, ACC):
        a('''
        v_lshlrev_b32 v6, 10, v4
        v_lshl_add_u32 v6, v5, 1, v6
        v_lshlrev_b32 v7, 2, v5          ; col*4
        v_add_u32 v7, 4096, v7
        ''')
        for g in range(4):
            a(f'''
            buffer_load_dwordx2 v[{20+2*g}:{21+2*g}], v6, s[20:23], 0 offen offset:{g*16}
            buffer_load_dwordx4 v[{28+4*g}:{31+4*g}], v7, s[28:31], 0 offen offset:{g*32}
            ''')
        a('s_waitcnt vmcnt(0)')
        for g in range(4):
            for j in range(4):
                r = ACC + g*4 + j
                rbf(a, r)
                a(f'v_mul_f32 v{r}, v{r}, v{28+4*g+j}')
                rbf(a, r)
                xs = 20 + 2*g + j//2
                if j % 2 == 0:
                    a(f'v_lshlrev_b32 v44, 16, v{xs}')
                else:
                    a(f'v_and_b32 v44, 0xffff0000, v{xs}')
                a(f'v_add_f32 v{r}, v{r}, v44')
            a(f'''
            v_cvt_pk_bf16_f32 v{46+2*(g%2)}, v{ACC+g*4}, v{ACC+g*4+1}
            v_cvt_pk_bf16_f32 v{47+2*(g%2)}, v{ACC+g*4+2}, v{ACC+g*4+3}
            buffer_store_dwordx2 v[{46+2*(g%2)}:{47+2*(g%2)}], v6, s[24:27], 0 offen offset:{g*16}
            ''')
    return gemm_splitk(a, 'oproj_kernel', 'OP', 32, 8, 32, setup, 8192, 1024, epi)

def gen_wout(a):
    def setup(a, ph):
        if ph == 'load':
            a(f'''
            s_load_dwordx2 s[6:7], s[0:1], {ARG['B_w_out']}
            s_load_dwordx2 s[8:9], s[0:1], {ARG['out']}
            ''')
        elif ph == 'srd':
            srd(a, 12, 4, 5, 2048*ZP*2, WS_Y)
            srd(a, 16, 6, 7, 688*512*2)
            srd(a, 20, 4, 5, 2048*512*2, WS_X2)
            srd(a, 24, 8, 9, 2048*512*2)
            srd(a, 28, 4, 5, 3072*4, WS_MOD)
    def epi(a, ACC):
        a('''
        v_lshlrev_b32 v6, 10, v4
        v_lshl_add_u32 v6, v5, 1, v6
        v_lshlrev_b32 v7, 2, v5
        v_add_u32 v7, 10240, v7
        ''')
        for g in range(4):
            a(f'''
            buffer_load_dwordx2 v[{20+2*g}:{21+2*g}], v6, s[20:23], 0 offen offset:{g*16}
            buffer_load_dwordx4 v[{28+4*g}:{31+4*g}], v7, s[28:31], 0 offen offset:{g*32}
            ''')
        a('s_waitcnt vmcnt(0)')
        for g in range(4):
            for j in range(4):
                r = ACC + g*4 + j
                rbf(a, r)
                a(f'v_mul_f32 v{r}, v{r}, v{28+4*g+j}')
                rbf(a, r)
                xs = 20 + 2*g + j//2
                if j % 2 == 0:
                    a(f'v_lshlrev_b32 v44, 16, v{xs}')
                else:
                    a(f'v_and_b32 v44, 0xffff0000, v{xs}')
                a(f'v_add_f32 v{r}, v{r}, v44')
            a(f'''
            v_cvt_pk_bf16_f32 v{46+2*(g%2)}, v{ACC+g*4}, v{ACC+g*4+1}
            v_cvt_pk_bf16_f32 v{47+2*(g%2)}, v{ACC+g*4+2}, v{ACC+g*4+3}
            buffer_store_dwordx2 v[{46+2*(g%2)}:{47+2*(g%2)}], v6, s[24:27], 0 offen offset:{g*16}
            ''')
    return gemm_splitk(a, 'wout_kernel', 'WO', 32, 8, 6, setup, ZP*2, 1024, epi)

def gen_sp(a):
    def setup(a, ph):
        if ph == 'load':
            a(f'''
            s_load_dwordx2 s[6:7], s[0:1], {ARG['B_w_sp']}
            s_load_dwordx2 s[8:9], s[0:1], {ARG['B_b_sp']}
            ''')
        elif ph == 'srd':
            srd(a, 12, 6, 7, 2048*2048*2)
            srd(a, 16, 4, 5, 2048*ZP*2, WS_Z2)
            srd(a, 20, 4, 5, 2048*ZP*2, WS_Z1)
            srd(a, 24, 4, 5, 2048*ZP*2, WS_Y)
            srd(a, 28, 8, 9, 2048*2)
            srd(a, 44, 4, 5, 6*2048*8, WS_STAT)
        elif ph == 'pre':
            a('v_lshlrev_b32 v16, 3, v0')
            a('v_add_u32 v17, 0x10000, v16')
            for i in range(8):
                for p in range(6):
                    a(f'''
                    s_mov_b32 s39, {p*16384 + i*2048}
                    buffer_load_dwordx2 v[{128+2*p}:{129+2*p}], v16, s[44:47], s39 offen
                    ''')
                a('s_waitcnt vmcnt(0)')
                a('''
                v_add_f32 v128, v128, v130
                v_add_f32 v129, v129, v131
                v_add_f32 v132, v132, v134
                v_add_f32 v133, v133, v135
                v_add_f32 v136, v136, v138
                v_add_f32 v137, v137, v139
                v_add_f32 v128, v128, v132
                v_add_f32 v129, v129, v133
                v_add_f32 v128, v128, v136
                v_add_f32 v129, v129, v137
                v_mul_f32 v128, 0x3abe82fa, v128     ; mean (1/688)
                v_mul_f32 v129, 0x3abe82fa, v129     ; E[x^2]
                v_fma_f32 v129, -v128, v128, v129
                v_max_f32 v129, 0, v129
                v_add_f32 v129, 0x3727c5ac, v129
                v_rsq_f32 v129, v129
                ''')
                a(f'ds_write_b64 v17, v[128:129] offset:{i*2048}')
            a('''
            s_waitcnt lgkmcnt(0)
            s_barrier
            ''')
    def epi(a, ACC):
        a(f'''
        s_mov_b32 s34, {ZP*2}
        v_mul_lo_u32 v6, v4, s34
        v_lshl_add_u32 v6, v5, 1, v6
        v_lshlrev_b32 v7, 1, v4
        buffer_load_ushort v44, v7, s[28:31], 0 offen
        ''')
        for g in range(4):
            a(f'buffer_load_dwordx2 v[{20+2*g}:{21+2*g}], v6, s[20:23], 0 offen offset:{g*16}')
        a('''
        s_waitcnt vmcnt(0)
        v_lshlrev_b32 v44, 16, v44
        ''')
        for g in range(4):
            for j in range(4):
                r = ACC + g*4 + j
                rbf(a, r)
                a(f'v_add_f32 v{r}, v{r}, v44')
                rbf(a, r)
                xs = 20 + 2*g + j//2
                if j % 2 == 0:
                    a(f'v_lshlrev_b32 v45, 16, v{xs}')
                else:
                    a(f'v_and_b32 v45, 0xffff0000, v{xs}')
                a(f'v_mul_f32 v{r}, v{r}, v45')
            a(f'''
            v_cvt_pk_bf16_f32 v{46+2*(g%2)}, v{ACC+g*4}, v{ACC+g*4+1}
            v_cvt_pk_bf16_f32 v{47+2*(g%2)}, v{ACC+g*4+2}, v{ACC+g*4+3}
            v_add_u32 v45, {8*g}, v5
            v_cmp_gt_u32 vcc, 688, v45
            v_cndmask_b32 v{46+2*(g%2)}, 0, v{46+2*(g%2)}, vcc
            v_cndmask_b32 v{47+2*(g%2)}, 0, v{47+2*(g%2)}, vcc
            buffer_store_dwordx2 v[{46+2*(g%2)}:{47+2*(g%2)}], v6, s[24:27], 0 offen offset:{g*16}
            ''')
    return gemm_splitk(a, 'sp_kernel', 'SP', 32, 11, 16, setup, 4096, ZP*2, epi, bnorm=True)

def gen_win(a):
    name = 'win_kernel'
    kernel_header(a, name)
    NNT = 11
    a(f'''
    s_load_dwordx2 s[4:5], s[0:1], {ARG['ws']}
    s_load_dwordx2 s[6:7], s[0:1], {ARG['B_w_in']}
    v_lshrrev_b32 v1, 6, v0
    s_waitcnt lgkmcnt(0)
    v_readfirstlane_b32 s3, v1
    s_cmp_ge_u32 s2, {16*NNT}
    s_cbranch_scc1 WI_END
    s_and_b32 s40, s2, 15            ; mtile
    s_lshr_b32 s41, s2, 4            ; ntile
    ''')
    srd(a, 12, 4, 5, 2048*512*2, WS_X2)
    srd(a, 16, 6, 7, 512*1376*2)
    srd(a, 20, 4, 5, 0x400000 + 2048*ZP*2, WS_Z1)
    srd(a, 24, 4, 5, 6*2048*8, WS_STAT)
    srd(a, 32, 4, 5, 4096, WS_MOD + 6144)
    MODL = 65536
    X0 = 64; QT = 192
    a(f'''
    s_lshl_b32 s36, s3, 10
    v_and_b32 v1, 63, v0
    v_and_b32 v2, 31, v1
    v_lshrrev_b32 v3, 5, v1
    s_lshl_b32 s44, s40, 7
    s_lshl_b32 s45, s3, 5
    s_add_u32 s44, s44, s45          ; row0
    v_add_u32 v4, s44, v2
    v_lshlrev_b32 v5, 10, v4
    v_lshl_add_u32 v5, v3, 4, v5
    ''')
    for s in range(32):
        a(f'buffer_load_dwordx4 v[{X0+4*s}:{X0+4*s+3}], v5, s[12:15], 0 offen offset:{s*32}')
    a(f'''
    v_lshlrev_b32 v6, 4, v0
    buffer_load_dwordx4 v[8:11], v6, s[32:35], 0 offen offset:0
    ''')
    a.lines[-1] = a.lines[-1]
    a('''
    v_lshrrev_b32 v12, 4, v1
    v_and_b32 v13, 15, v1
    v_lshlrev_b32 v14, 2, v12
    v_xor_b32 v14, v14, v13
    s_lshl_b32 s45, s3, 2
    v_add_u32 v15, s45, v12
    s_mov_b32 s45, 2752
    v_mul_lo_u32 v15, v15, s45
    v_lshl_add_u32 v16, v14, 4, v15
    s_lshl_b32 s45, s41, 8
    v_add_u32 v16, s45, v16
    ''')
    def issue_w(c):
        slot = c % 4
        for i in range(4):
            a(f'''
            s_add_u32 m0, s36, {slot*16384 + i*4096}
            s_mov_b32 s39, {(c*64 + i*16)*2752}
            buffer_load_dwordx4 v16, s[16:19], s39 offen lds
            ''')
    for c in range(3):
        issue_w(c)
    a('''
    v_bfe_u32 v12, v1, 2, 2
    v_and_b32 v13, 3, v1
    v_bfe_u32 v14, v1, 4, 1
    v_lshlrev_b32 v15, 3, v3
    v_add_u32 v15, v15, v12
    v_lshlrev_b32 v15, 8, v15
    v_lshl_add_u32 v15, v14, 5, v15
    v_lshl_add_u32 v15, v13, 3, v15
    ''')
    for blk in range(4):
        a(f'''
        v_xor_b32 v17, {blk}, v12
        v_lshl_add_u32 v{20+blk}, v17, 6, v15
        ''')
    a(f'''
    s_waitcnt vmcnt(12)
    v_add_u32 v6, {MODL}, v6
    ds_write_b128 v6, v[8:11]
    v_mov_b32 v24, 0
    v_mov_b32 v25, 0
    ''')
    for r in range(128):
        a(f'''
        v_lshlrev_b32 v26, 16, v{X0+r}
        v_and_b32 v27, 0xffff0000, v{X0+r}
        v_add_f32 v24, v24, v26
        v_add_f32 v25, v25, v27
        ''')
    a('''
    v_add_f32 v24, v24, v25
    v_mov_b32 v25, v24
    v_permlane32_swap_b32 v24, v25
    v_add_f32 v24, v24, v25
    v_mul_f32 v24, 0x3b000000, v24
    v_mov_b32 v25, 0
    v_mov_b32 v28, 0
    ''')
    for r in range(128):
        a(f'''
        v_lshlrev_b32 v26, 16, v{X0+r}
        v_and_b32 v27, 0xffff0000, v{X0+r}
        v_sub_f32 v26, v26, v24
        v_sub_f32 v27, v27, v24
        v_fma_f32 v25, v26, v26, v25
        v_fma_f32 v28, v27, v27, v28
        ''')
    a(f'''
    v_add_f32 v25, v25, v28
    v_mov_b32 v26, v25
    v_permlane32_swap_b32 v25, v26
    v_add_f32 v25, v25, v26
    v_mov_b32 v26, 0x3727c5ac
    v_fmac_f32 v26, 0x3b000000, v25
    v_rsq_f32 v25, v26
    s_waitcnt lgkmcnt(0)
    s_barrier
    v_lshlrev_b32 v26, 5, v3
    v_add_u32 v26, {MODL}, v26
    ''')
    for s in range(32):
        a(f'''
        ds_read_b128 v[28:31], v26 offset:{s*64}
        ds_read_b128 v[32:35], v26 offset:{s*64+16}
        ds_read_b128 v[36:39], v26 offset:{2048+s*64}
        ds_read_b128 v[40:43], v26 offset:{2048+s*64+16}
        ''')
        for j in range(4):
            a(f'''
            v_lshlrev_b32 v{44+2*j}, 16, v{X0+4*s+j}
            v_and_b32 v{45+2*j}, 0xffff0000, v{X0+4*s+j}
            ''')
        for j in range(8):
            a(f'''
            v_sub_f32 v{44+j}, v{44+j}, v24
            v_mul_f32 v{44+j}, v{44+j}, v25
            ''')
        a('s_waitcnt lgkmcnt(0)')
        for j in range(8):
            a(f'''
            v_add_f32 v{36+j}, 1.0, v{36+j}
            v_fma_f32 v{44+j}, v{44+j}, v{36+j}, v{28+j}
            ''')
        for j in range(4):
            a(f'v_cvt_pk_bf16_f32 v{X0+4*s+j}, v{44+2*j}, v{45+2*j}')
    for i in range(64):
        a(f'v_mov_b32 v{QT+i}, 0')
    FW = 28
    def w_reads(slot, s, buf):
        for blk in range(4):
            for j in range(2):
                r = FW + buf*16 + blk*4 + j*2
                a(f'ds_read_b64_tr_b16 v[{r}:{r+1}], v{20+blk} offset:{slot*16384 + s*4096 + j*1024}')
    for c in range(8):
        slot = c % 4
        inflight = min(2, 7 - c)
        a(f's_waitcnt vmcnt({4*inflight})')
        a('s_barrier')
        if c + 3 < 8:
            issue_w(c + 3)
        w_reads(slot, 0, 0)
        for s in range(4):
            buf = s & 1
            if s < 3:
                w_reads(slot, s + 1, buf ^ 1)
                a('s_waitcnt lgkmcnt(8)')
            else:
                a('s_waitcnt lgkmcnt(0)')
            hx = X0 + 4*(c*4 + s)
            for blk in range(4):
                f = FW + buf*16 + blk*4
                q = QT + blk*16
                a(f'v_mfma_f32_32x32x16_bf16 v[{q}:{q+15}], v[{f}:{f+3}], v[{hx}:{hx+3}], v[{q}:{q+15}]')
    a(f'''
    v_add_u32 v4, s44, v2            ; row
    s_mov_b32 s34, {ZP*2}
    v_mul_lo_u32 v6, v4, s34         ; row*1408
    s_lshl_b32 s37, s41, 7
    v_lshlrev_b32 v5, 2, v3
    v_add_u32 v5, s37, v5
    v_mov_b32 v24, 0
    v_mov_b32 v25, 0
    s_mov_b32 s48, 1376
    s_mov_b32 s46, 0x3d372713        ; 0.044715
    s_mov_b32 s47, 0xc0135761        ; -2*0.7978845608*log2(e)
    ''')
    for blk in range(4):
        for g in range(4):
            for j in range(4):
                r = QT + blk*16 + g*4 + j
                rbf(a, r)
                a(f'''
                v_mul_f32 v26, v{r}, v{r}
                v_fma_f32 v26, v26, s46, 1.0
                v_mul_f32 v26, v26, v{r}
                v_mul_f32 v26, s47, v26
                v_exp_f32 v26, v26
                v_add_f32 v26, 1.0, v26
                v_rcp_f32 v26, v26
                v_mul_f32 v{r}, v{r}, v26
                ''')
                rbf(a, r)
            r = QT + blk*16 + g*4
            a(f'''
            v_cvt_pk_bf16_f32 v28, v{r}, v{r+1}
            v_cvt_pk_bf16_f32 v29, v{r+2}, v{r+3}
            v_add_u32 v26, {blk*32 + g*8}, v5        ; col
            v_lshl_add_u32 v27, v26, 1, v6           ; z1 offset
            v_add_u32 v30, {0x400000 - 688*2}, v27   ; z2 offset
            v_cmp_gt_u32 vcc, 688, v26
            v_cndmask_b32 v27, v30, v27, vcc
            v_mov_b32 v30, 0x7ffffff0
            v_cmp_gt_u32 s[50:51], s48, v26
            v_cndmask_b32 v27, v30, v27, s[50:51]
            buffer_store_dwordx2 v[28:29], v27, s[20:23], 0 offen
            s_andn2_b64 s[50:51], s[50:51], vcc
            v_cndmask_b32 v30, 0, v{r}, s[50:51]
            v_cndmask_b32 v31, 0, v{r+1}, s[50:51]
            v_cndmask_b32 v32, 0, v{r+2}, s[50:51]
            v_cndmask_b32 v33, 0, v{r+3}, s[50:51]
            v_add_f32 v24, v24, v30
            v_fma_f32 v25, v30, v30, v25
            v_add_f32 v24, v24, v31
            v_fma_f32 v25, v31, v31, v25
            v_add_f32 v24, v24, v32
            v_fma_f32 v25, v32, v32, v25
            v_add_f32 v24, v24, v33
            v_fma_f32 v25, v33, v33, v25
            ''')
    a(f'''
    s_cmp_lt_u32 s41, 5
    s_cbranch_scc1 WI_END
    v_mov_b32 v26, v24
    v_mov_b32 v27, v25
    v_permlane32_swap_b32 v24, v26
    v_permlane32_swap_b32 v25, v27
    v_add_f32 v24, v24, v26
    v_add_f32 v25, v25, v27
    v_lshlrev_b32 v6, 3, v4
    s_sub_u32 s34, s41, 5
    s_lshl_b32 s34, s34, 14
    v_add_u32 v6, s34, v6
    v_mov_b32 v7, 0x7ffffff0
    v_cmp_gt_u32 vcc, 32, v1
    v_cndmask_b32 v6, v7, v6, vcc
    buffer_store_dwordx2 v[24:25], v6, s[24:27], 0 offen
    ''')
    a.label('WI_END')
    a('s_endpgm')
    return dict(name=name, grid=16*NNT, block=256, lds=65536 + 4096, vgpr=256)

GENS = [gen_oproj, gen_win, gen_sp, gen_wout]
```

```python
import sys
from k_common import *
import k_kv
mods = [k_kv.gen_kv]
try:
    import k_attn; mods.append(k_attn.gen_attn)
    import k_rest; mods += k_rest.GENS
except ImportError as e:
    print('partial build:', e)

HEAD = open('adaLN_cond__compressed_kv_cla__mixer_gmlp__prompt.s.ref').read().split('\n')
hdr = [l for l in HEAD if l.startswith(';') and '@launch' not in l and 'Override launch' not in l and 'grid=ceil' not in l]
a = Asm()
infos = []
for g in mods:
    infos.append(g(a))
out = '\n'.join(hdr) + '\n'
for k in infos:
    out += f"; @launch kernel={k['name']} grid=({k['grid']},1,1) block=({k['block']},1,1) lds={k['lds']}\n"
out += '.amdgcn_target "amdgcn-amd-amdhsa--gfx950"\n.text\n'
out += a.text()
out += '.section .rodata,"a"\n'
for k in infos:
    out += '.p2align 6\n' + kernel_desc(k['name'], k['vgpr'], accum=k.get('accum'))
dst = sys.argv[1] if len(sys.argv) > 1 else 'adaLN_cond__compressed_kv_cla__mixer_gmlp__prompt.s'
open(dst, 'w').write(out)
print('wrote', dst, len(out))
```

```python
from k_common import *
import os
EXP = os.environ.get('ATT_EXP', '')

def gen_attn(a):
    name = 'attn_kernel'
    WQL = 65536
    MODL = 147456
    SCRL = 151552
    kernel_header(a, name)
    dispense(a, 256, SCRL, 'AT')
    a(f'''
    s_load_dwordx2 s[6:7], s[0:1], {ARG['A_w_q']}
    s_load_dwordx2 s[8:9], s[0:1], {ARG['ws']}
    v_lshrrev_b32 v1, 6, v0
    s_waitcnt lgkmcnt(0)
    v_readfirstlane_b32 s55, v1      ; wave 0..7
    s_cmp_ge_u32 s2, 256
    s_cbranch_scc1 AT_END
    s_and_b32 s3, s55, 3
    s_and_b32 s40, s2, 7
    s_lshr_b32 s41, s2, 3
    s_and_b32 s42, s41, 3
    s_lshl_b32 s40, s40, 2
    s_add_u32 s40, s40, s42          ; head
    s_lshr_b32 s56, s41, 2           ; pair p 0..7
    s_sub_u32 s42, 15, s56
    s_cmp_lt_u32 s55, 4
    s_cselect_b32 s41, s42, s56      ; qb
    ''')
    srd(a, 12, 8, 9, 2048 * 512 * 2, WS_N1)
    srd(a, 16, 6, 7, 512 * 4096 * 2)
    a(f'''
    s_lshl_b32 s42, s40, 19
    s_add_u32 s43, s42, {WS_K}
    s_add_u32 s20, s8, s43
    s_addc_u32 s21, s9, 0
    s_mov_b32 s22, 524288
    s_mov_b32 s23, 0x00020000
    s_add_u32 s43, s42, {WS_VT}
    s_add_u32 s24, s8, s43
    s_addc_u32 s25, s9, 0
    s_mov_b32 s26, 524288
    s_mov_b32 s27, 0x00020000
    ''')
    srd(a, 28, 8, 9, 2048 * 4096 * 2, WS_CTX)
    srd(a, 32, 8, 9, 3072 * 4, WS_MOD)
    X0 = 64
    QT = 192
    DK, DV = 16, 17
    a(f'''
    s_lshl_b32 s36, s55, 10          ; wave*1024
    v_and_b32 v1, 63, v0             ; lane
    v_and_b32 v2, 31, v1             ; l%32
    v_lshrrev_b32 v3, 5, v1          ; half
    s_lshl_b32 s44, s41, 7
    s_lshl_b32 s45, s3, 5
    s_add_u32 s44, s44, s45          ; q0 = qb*128 + w*32
    v_add_u32 v4, s44, v2            ; q row
    v_lshlrev_b32 v5, 10, v4
    v_lshl_add_u32 v5, v3, 4, v5     ; n1 offset
    ''')
    for s in range(32):
        if 'E6' not in EXP:
            a(f'buffer_load_dwordx4 v[{X0+4*s}:{X0+4*s+3}], v5, s[12:15], 0 offen offset:{s*32}')
    a(f'''
    v_lshlrev_b32 v6, 3, v0
    buffer_load_dwordx2 v[8:9], v6, s[32:35], 0 offen
    v_lshrrev_b32 v12, 4, v1         ; lane/16
    v_and_b32 v13, 15, v1
    v_lshlrev_b32 v14, 2, v12
    v_xor_b32 v14, v14, v13
    s_lshl_b32 s45, s55, 2
    v_add_u32 v15, s45, v12          ; row 0..31
    v_lshlrev_b32 v18, 13, v15
    v_lshl_add_u32 v19, v14, 4, v18
    s_lshl_b32 s45, s40, 8
    v_add_u32 v19, s45, v19
    v_and_b32 v18, 15, v15
    v_xor_b32 v18, v18, v13
    v_lshlrev_b32 v15, 8, v15
    v_lshl_add_u32 v{DK}, v18, 4, v15
    v_lshrrev_b32 v25, 3, v1         ; lane/8
    s_lshl_b32 s45, s55, 3
    v_add_u32 v25, s45, v25          ; row 0..63
    v_lshrrev_b32 v26, 1, v25
    v_and_b32 v26, 7, v26
    v_and_b32 v27, 7, v1
    v_xor_b32 v26, v26, v27
    v_lshlrev_b32 v25, 12, v25
    v_lshl_add_u32 v{DV}, v26, 4, v25
    ''')
    def issue_wq(c):
        slot = c % 5
        for i in range(2):
            a(f'''
            s_add_u32 m0, s36, {WQL + slot*16384 + i*8192}
            s_mov_b32 s39, {(c*64 + i*32)*8192}
            buffer_load_dwordx4 v19, s[16:19], s39 offen lds
            ''')
    def issue_k(slot):
        if 'E4' in EXP: return
        a('s_lshl_b32 s50, s49, 14')
        for i in range(2):
            a(f"""
            s_add_u32 m0, s36, {slot*16384 + i*8192}
            s_add_u32 s39, s50, {i*8192}
            buffer_load_dwordx4 v{DK}, s[20:23], s39 offen lds
            """)
    def issue_v(slot):
        if 'E4' in EXP: return
        a('s_lshl_b32 s50, s49, 7')
        for i in range(2):
            a(f"""
            s_add_u32 m0, s36, {32768 + slot*16384 + i*8192}
            s_add_u32 s39, s50, {i*262144}
            buffer_load_dwordx4 v{DV}, s[24:27], s39 offen lds
            """)
    for c in range(4):
        issue_wq(c)
    a('s_mov_b32 s49, 0')
    issue_k(0); issue_v(0)
    a('s_mov_b32 s49, 1')
    issue_k(1)
    a(f'''
    v_bfe_u32 v12, v1, 2, 2          ; r
    v_and_b32 v13, 3, v1             ; c4
    v_bfe_u32 v14, v1, 4, 1          ; nsub
    v_lshlrev_b32 v15, 3, v3
    v_add_u32 v15, v15, v12
    v_lshlrev_b32 v15, 8, v15
    v_lshl_add_u32 v15, v14, 5, v15
    v_lshl_add_u32 v15, v13, 3, v15
    v_add_u32 v15, {WQL}, v15
    ''')
    for blk in range(4):
        a(f'''
        v_xor_b32 v18, {blk}, v12
        v_lshl_add_u32 v{20+blk}, v18, 6, v15
        v_add_u32 v{24+blk}, 0x8000, v{20+blk}
        ''')
    nd = 0 if 'E4' in EXP else 6
    a(f'''
    s_waitcnt vmcnt({8+nd})
    s_cmp_lt_u32 s55, 4
    s_cselect_b32 s45, 0, 1.0
    v_add_f32 v8, s45, v8
    v_add_f32 v9, s45, v9
    v_add_u32 v6, {MODL}, v6
    ds_write_b64 v6, v[8:9]
    s_waitcnt lgkmcnt(0)
    s_barrier
    v_lshlrev_b32 v18, 5, v3
    v_add_u32 v18, {MODL}, v18
    ''')
    for s in range(32):
        b = 28 if s % 2 == 0 else 44
        a(f'''
        ds_read_b128 v[{b}:{b+3}], v18 offset:{s*64}
        ds_read_b128 v[{b+4}:{b+7}], v18 offset:{s*64+16}
        ds_read_b128 v[{b+8}:{b+11}], v18 offset:{2048+s*64}
        ds_read_b128 v[{b+12}:{b+15}], v18 offset:{2048+s*64+16}
        ''')
        if s > 0:
            sp = s - 1
            bp = 28 if sp % 2 == 0 else 44
            a('s_waitcnt lgkmcnt(4)')
            for j in range(4):
                a(f'''
                v_lshlrev_b32 v{60}, 16, v{X0+4*sp+j}
                v_and_b32 v{61}, 0xffff0000, v{X0+4*sp+j}
                v_fma_f32 v60, v60, v{bp+8+2*j}, v{bp+2*j}
                v_fma_f32 v61, v61, v{bp+9+2*j}, v{bp+1+2*j}
                v_cvt_pk_bf16_f32 v{X0+4*sp+j}, v60, v61
                ''')
    a('s_waitcnt lgkmcnt(0)')
    sp = 31; bp = 44
    for j in range(4):
        a(f'''
        v_lshlrev_b32 v{60}, 16, v{X0+4*sp+j}
        v_and_b32 v{61}, 0xffff0000, v{X0+4*sp+j}
        v_fma_f32 v60, v60, v{bp+8+2*j}, v{bp+2*j}
        v_fma_f32 v61, v61, v{bp+9+2*j}, v{bp+1+2*j}
        v_cvt_pk_bf16_f32 v{X0+4*sp+j}, v60, v61
        ''')
    FW = 28
    def wq_reads(slot, s, buf):
        out = []
        vb, so = (20, slot) if slot < 2 else (24, slot - 2)
        for blk in range(4):
            for j in range(2):
                r = FW + buf*16 + blk*4 + j*2
                out.append(f'ds_read_b64_tr_b16 v[{r}:{r+1}], v{vb+blk} offset:{so*16384 + s*4096 + j*1024}')
        return out
    wcnt = [6+nd, 6+nd, 6+nd, 6+nd, 6, 4, 2, 0]
    for c in range(8):
        if 'E7' in EXP:
            a('s_waitcnt vmcnt(0)')
            break
        slot = c % 5
        a(f's_waitcnt vmcnt({wcnt[c]})')
        a('s_barrier')
        if c + 4 < 8:
            issue_wq(c + 4)
        for x in wq_reads(slot, 0, 0):
            a(x)
        for s in range(4):
            buf = s & 1
            a('s_waitcnt lgkmcnt(0)')
            nx = wq_reads(slot, s + 1, buf ^ 1) if s < 3 else []
            hx = X0 + 4*(c*4 + s)
            for blk in range(4):
                f = FW + buf*16 + blk*4
                q = QT + blk*16
                cc = '0' if (c == 0 and s == 0) else f'v[{q}:{q+15}]'
                a(f'v_mfma_f32_32x32x16_bf16 v[{q}:{q+15}], v[{f}:{f+3}], v[{hx}:{hx+3}], {cc}')
                for x in nx[blk*3:blk*3+3]:
                    a(x)
    QF = 64
    OA = 96
    SB = [160, 192]
    PF = 224
    KF = 28
    VF = 44
    KA = 4
    VA = 12
    VM, VL, VMC, VAL, VT0, VT1, VDF = 18, 19, 20, 21, 22, 23, 24
    for s in range(8):
        blk, hf = s // 2, s % 2
        for j in range(4):
            r = QT + blk*16 + hf*8 + j*2
            a(f'v_cvt_pk_bf16_f32 v{QF+4*s+j}, v{r}, v{r+1}')
    for i in range(64):
        a(f'v_mov_b32 v{OA+i}, 0')
    a(f"""
    v_mov_b32 v{VM}, 0xf149f2ca
    v_mov_b32 v{VL}, 0
    v_and_b32 v2, 31, v1
    v_lshrrev_b32 v3, 5, v1
    v_and_b32 v25, 15, v1            ; rr
    v_lshlrev_b32 v26, 8, v2         ; row*256
    """)
    for s in range(8):
        a(f"""
        v_or_b32 v27, {2*s}, v3
        v_xor_b32 v27, v27, v25
        v_lshl_add_u32 v{KA+s}, v27, 4, v26
        """)
    a("""
    v_lshrrev_b32 v25, 1, v2
    v_and_b32 v25, 7, v25
    v_lshlrev_b32 v26, 7, v2
    v_add_u32 v26, 32768, v26
    """)
    for u in range(4):
        a(f"""
        v_or_b32 v27, {2*u}, v3
        v_xor_b32 v27, v27, v25
        v_lshl_add_u32 v{VA+u}, v27, 4, v26
        """)
    a(f"""
    v_add_u32 v{VDF}, s44, v2        ; q
    v_lshlrev_b32 v25, 2, v3
    v_sub_u32 v{VDF}, v{VDF}, v25    ; q - 4*half
    s_lshl_b32 s46, s56, 1
    s_sub_u32 s46, 32, s46           ; ntiles
    s_add_u32 s53, s44, 31
    s_lshr_b32 s53, s53, 6
    s_mov_b32 s47, 0                 ; t
    s_mov_b32 s48, 0x3e0293ee        ; c = 128^-0.5 * log2(e)
    s_mov_b32 s54, 0x41000000
    """)
    def kreads(kslot, s, buf):
        if 'E3' in EXP: return
        for kvb in range(2):
            r = KF + buf*8 + kvb*4
            a(f'ds_read_b128 v[{r}:{r+3}], v{KA+s} offset:{kslot*16384 + kvb*8192}')
    def vreads(vslot, u, dbp, buf):
        if 'E3' in EXP: return
        for i in range(2):
            db = dbp*2 + i
            r = VF + buf*8 + i*4
            a(f'ds_read_b128 v[{r}:{r+3}], v{VA+u} offset:{vslot*16384 + db*4096}')
    def interleave(mf, valu):
        n = len(mf)
        per = (len(valu) + n - 1) // n if n else 0
        k = 0
        for i, f in enumerate(mf):
            f()
            for _ in range(per):
                if k < len(valu):
                    a(valu[k]); k += 1
        while k < len(valu):
            a(valu[k]); k += 1
    def s_mfmas(kslot, S):
        mf = []
        for s in range(8):
            for kvb in range(2):
                def f(s=s, kvb=kvb):
                    buf = s & 1
                    if kvb == 0:
                        if s == 0:
                            kreads(kslot, 0, 0)
                        if s < 7:
                            kreads(kslot, s + 1, buf ^ 1)
                            a('s_waitcnt lgkmcnt(2)')
                        else:
                            a('s_waitcnt lgkmcnt(0)')
                    r = KF + buf*8 + kvb*4
                    c = S + kvb*16
                    cc = '0' if s == 0 else f'v[{c}:{c+15}]'
                    a(f'v_mfma_f32_32x32x16_bf16 v[{c}:{c+15}], v[{r}:{r+3}], v[{QF+4*s}:{QF+4*s+3}], {cc}')
                mf.append(f)
        return mf
    def pv_mfmas(vslot):
        seq = [(u, dbp) for u in range(4) for dbp in range(2)]
        mf = []
        for n, (u, dbp) in enumerate(seq):
            for i in range(2):
                def f(n=n, u=u, dbp=dbp, i=i):
                    buf = n & 1
                    if i == 0:
                        if n == 0:
                            vreads(vslot, u, dbp, 0)
                        if n + 1 < len(seq):
                            vreads(vslot, seq[n+1][0], seq[n+1][1], buf ^ 1)
                            a('s_waitcnt lgkmcnt(2)')
                        else:
                            a('s_waitcnt lgkmcnt(0)')
                    db = dbp*2 + i
                    r = VF + buf*8 + i*4
                    c = OA + db*16
                    a(f'v_mfma_f32_32x32x16_bf16 v[{c}:{c+15}], v[{r}:{r+3}], v[{PF+4*u}:{PF+4*u+3}], v[{c}:{c+15}]')
                mf.append(f)
        return mf
    def mask_code(S):
        lnm = a.newlabel('AT_NOMASK')
        a(f"""
        s_lshl_b32 s51, s49, 6
        s_add_u32 s52, s51, 63
        s_cmp_le_u32 s52, s44
        s_cbranch_scc1 {lnm}
        v_subrev_u32 v{VT0}, s51, v{VDF}
        v_mov_b32 v{VT1}, 0xf149f2ca
        """)
        for kvb in range(2):
            for r in range(16):
                off = 32*kvb + 8*(r//4) + r % 4
                a(f"""
                v_cmp_gt_i32 vcc, {off}, v{VT0}
                v_cndmask_b32 v{S+kvb*16+r}, v{S+kvb*16+r}, v{VT1}, vcc
                """)
        a.label(lnm)
    def max_valu(S):
        v = [f'v_max3_f32 v{VT0}, v{S}, v{S+1}, v{S+2}']
        for i in range(3, 31, 2):
            v.append(f'v_max3_f32 v{VT0}, v{VT0}, v{S+i}, v{S+i+1}')
        v += [f'v_max_f32 v{VT0}, v{VT0}, v{S+31}',
              f'v_mov_b32 v{VT1}, v{VT0}',
              f'v_permlane32_swap_b32 v{VT0}, v{VT1}',
              f'v_max3_f32 v{VT0}, v{VT0}, v{VT1}, v{VM}',
              f'v_sub_f32 v{VT1}, v{VT0}, v{VM}',
              f'v_mul_f32 v{VT1}, s48, v{VT1}',
              f'v_cmp_lt_f32 vcc, s54, v{VT1}']
        return v
    def rescale_code():
        lnr = a.newlabel('AT_NORS')
        a(f"""
        s_cbranch_vccz {lnr}
        v_sub_f32 v{VAL}, 0, v{VT1}
        v_exp_f32 v{VAL}, v{VAL}
        v_mov_b32 v{VM}, v{VT0}
        v_mul_f32 v{VL}, v{VL}, v{VAL}
        """)
        for i in range(64):
            a(f'v_mul_f32 v{OA+i}, v{OA+i}, v{VAL}')
        a.label(lnr)
        a(f'v_mul_f32 v{VMC}, s48, v{VM}')
    def exp_valu(S):
        if 'E2' in EXP: return []
        v = []
        for i in range(32):
            v.append(f'v_fma_f32 v{S+i}, v{S+i}, s48, -v{VMC}')
        w = []
        for i in range(32):
            w.append(f'v_exp_f32 v{S+i}, v{S+i}')
        out = v[:4]
        for i in range(32):
            out.append(w[i])
            if i + 4 < 32:
                out.append(v[i+4])
        for u in range(4):
            kvb, hf = u // 2, u % 2
            for j in range(4):
                r = S + kvb*16 + hf*8 + j*2
                out.append(f'v_cvt_pk_bf16_f32 v{PF+4*u+j}, v{r}, v{r+1}')
        return out
    def sum_valu(S):
        if 'E2' in EXP: return []
        return [f'v_add_f32 v{VL}, v{VL}, v{S+i}' for i in range(32)]
    if 'E1' in EXP:
        a('s_branch AT_EPI')
    a('s_mov_b32 s49, 0')
    interleave(s_mfmas(0, SB[0]), [])
    mask_code(SB[0])
    for x in max_valu(SB[0]):
        a(x)
    if 'ST' in EXP:
        a('s_memtime s[70:71]')
        a('s_memrealtime s[72:73]')
        a('s_waitcnt lgkmcnt(0)')
    LOOP = 'AT_LOOP'
    a.label(LOOP)
    def body(p):
        lidle = a.newlabel('AT_IDLE'); ltail = a.newlabel('AT_TAIL'); ldone = a.newlabel('AT_DONE')
        ln1 = a.newlabel('AT_NI'); ln2 = a.newlabel('AT_NI')
        Sc, Sn = SB[p], SB[p ^ 1]
        a(f"""
        s_waitcnt vmcnt(0)
        s_barrier
        s_add_u32 s49, s47, 2
        s_cmp_ge_u32 s49, s46
        s_cbranch_scc1 {ln1}
        """)
        issue_k(p)
        a.label(ln1)
        a(f"""
        s_add_u32 s49, s47, 1
        s_cmp_ge_u32 s49, s46
        s_cbranch_scc1 {ln2}
        """)
        issue_v(p ^ 1)
        a.label(ln2)
        a(f"""
        s_cmp_gt_u32 s47, s53
        s_cbranch_scc1 {lidle}
        """)
        rescale_code()
        a(f"""
        s_cmp_eq_u32 s47, s53
        s_cbranch_scc1 {ltail}
        """)
        interleave(s_mfmas(p ^ 1, Sn), exp_valu(Sc))
        a('s_add_u32 s49, s47, 1')
        mask_code(Sn)
        interleave(pv_mfmas(p), sum_valu(Sc) + max_valu(Sn))
        a(f's_branch {ldone}')
        a.label(ltail)
        for x in exp_valu(Sc):
            a(x)
        interleave(pv_mfmas(p), sum_valu(Sc))
        a.label(ldone)
        a.label(lidle)
        a('s_add_u32 s47, s47, 1')
    body(0)
    body(1)
    a(f"""
    s_cmp_lt_u32 s47, s46
    s_cbranch_scc1 {LOOP}
    """)
    if 'ST' in EXP:
        a('''
        s_memtime s[74:75]
        s_memrealtime s[76:77]
        s_waitcnt lgkmcnt(0)
        s_sub_u32 s74, s74, s70
        s_sub_u32 s76, s76, s72
        v_mov_b32 v25, s74
        v_mov_b32 v26, s76
        s_lshr_b32 s78, s2, 5
        s_lshl_b32 s78, s78, 5
        s_add_u32 s78, s78, 8
        s_and_b32 s79, s2, 31
        s_or_b32 s79, s79, s55
        v_mov_b32 v27, s78
        s_cmp_lg_u32 s79, 0
        s_cbranch_scc1 AT_NOST
        buffer_store_dwordx2 v[25:26], v27, s[92:95], 0 offen
        ''')
        a.label('AT_NOST')
    a.label('AT_EPI')
    a(f'''
    v_mov_b32 v{VT0}, v{VL}
    v_permlane32_swap_b32 v{VL}, v{VT0}
    v_add_f32 v{VL}, v{VL}, v{VT0}
    v_rcp_f32 v{VL}, v{VL}
    v_add_u32 v25, s44, v2
    v_lshlrev_b32 v25, 13, v25
    v_lshl_add_u32 v25, v3, 3, v25
    s_lshl_b32 s45, s40, 8
    v_add_u32 v25, s45, v25
    ''')
    for db in range(4):
        for g in range(4):
            c = OA + db*16 + g*4
            t = 26 + (g % 2) * 2
            a(f'''
            v_mul_f32 v{c}, v{c}, v{VL}
            v_mul_f32 v{c+1}, v{c+1}, v{VL}
            v_mul_f32 v{c+2}, v{c+2}, v{VL}
            v_mul_f32 v{c+3}, v{c+3}, v{VL}
            v_cvt_pk_bf16_f32 v{t}, v{c}, v{c+1}
            v_cvt_pk_bf16_f32 v{t+1}, v{c+2}, v{c+3}
            ''')
            if 'E5' not in EXP:
                a(f'buffer_store_dwordx2 v[{t}:{t+1}], v25, s[28:31], 0 offen offset:{db*64 + g*16}')
    a.label('AT_END')
    a('s_endpgm')
    return dict(name=name, grid=256, block=512, lds=SCRL + 64, vgpr=256)
```

```python
from asmlib import Asm

WS_MOD  = 0x0
WS_STAT = 0x10000
WS_K    = 0x1000000
WS_VT   = 0x2000000
WS_CTX  = 0x3000000
WS_X2   = 0x4000000
WS_Z1   = 0x4400000
WS_Z2   = 0x4800000
WS_Y    = 0x4C00000
WS_N1   = 0x5000000
ZP = 704

ARG = dict(A_x=0, A_c_kv=8, A_w_q=16, A_w_uk=24, A_w_uv=32, A_w_o=40, B_x=48, B_w_in=56, B_w_sp=64,
           B_b_sp=72, B_w_out=80, c=88, w_mod=96, out=104, dbg=112, ws=120)

def kernel_header(a, name):
    a.raw(f'.globl {name}')
    a.raw('.p2align 8')
    a.raw(f'.type {name},@function')
    a.raw(f'{name}:')
    a.hist = []

def kernel_desc(name, vgpr, sgpr=102, accum=None):
    if accum is None:
        accum = (vgpr + 3) // 4 * 4
    return f'''.amdhsa_kernel {name}
  .amdhsa_next_free_vgpr {vgpr}
  .amdhsa_next_free_sgpr {sgpr}
  .amdhsa_accum_offset {accum}
  .amdhsa_group_segment_fixed_size 0
  .amdhsa_kernarg_size 128
  .amdhsa_user_sgpr_count 2
  .amdhsa_user_sgpr_kernarg_segment_ptr 1
  .amdhsa_system_sgpr_workgroup_id_x 1
.end_amdhsa_kernel
'''

def srd(a, d, lo, hi, nbytes, off=0):
    if off:
        a(f's_add_u32 s{d}, s{lo}, {off}')
        a(f's_addc_u32 s{d+1}, s{hi}, 0')
    else:
        a(f's_mov_b32 s{d}, s{lo}')
        a(f's_mov_b32 s{d+1}, s{hi}')
    a(f's_mov_b32 s{d+2}, {nbytes}')
    a(f's_mov_b32 s{d+3}, 0x00020000')

def dispense(a, nitems, ldsoff, tag, extra_barrier=False):
    assert nitems % 8 == 0
    Q = nitems // 8
    a(f'''
    s_load_dwordx2 s[92:93], s[0:1], {ARG['dbg']}
    s_getreg_b32 s90, hwreg(HW_REG_XCC_ID, 0, 4)
    v_lshrrev_b32 v1, 6, v0
    v_mov_b32 v2, {ldsoff}
    s_and_b32 s90, s90, 7
    v_readfirstlane_b32 s91, v1
    s_mov_b32 s94, 256
    s_mov_b32 s95, 0x00020000
    s_waitcnt lgkmcnt(0)
    s_cmp_lg_u32 s91, 0
    s_cbranch_scc1 {tag}_DW
    s_mov_b64 exec, 1
    s_mov_b32 s96, 0
    ''')
    a.label(f'{tag}_DL')
    a(f'''
    s_add_u32 s97, s90, s96
    s_and_b32 s97, s97, 7
    s_lshl_b32 s98, s97, 5
    v_mov_b32 v1, s98
    v_mov_b32 v3, 1
    buffer_atomic_add v3, v1, s[92:95], 0 offen sc0 sc1
    s_waitcnt vmcnt(0)
    v_readfirstlane_b32 s98, v3
    s_cmp_lt_u32 s98, {Q}
    s_cbranch_scc1 {tag}_DF
    s_add_u32 s96, s96, 1
    s_cmp_lt_u32 s96, 8
    s_cbranch_scc1 {tag}_DL
    s_mov_b32 s98, 0x0fffffff
    ''')
    a.label(f'{tag}_DF')
    a(f'''
    s_lshl_b32 s98, s98, 3
    s_add_u32 s98, s98, s97
    v_mov_b32 v3, s98
    ds_write_b32 v2, v3
    s_mov_b64 exec, -1
    s_waitcnt lgkmcnt(0)
    ''')
    a.label(f'{tag}_DW')
    a(f'''
    s_barrier
    ds_read_b32 v3, v2
    s_waitcnt lgkmcnt(0)
    v_readfirstlane_b32 s2, v3
    ''')
    if extra_barrier:
        a('s_barrier')
```

```python
from k_common import *
import os
EXP = os.environ.get('KV_EXP', '')

def wave_sum(a, v, t):
    a(f'''
    v_add_f32_dpp v{t}, v{v}, v{v} quad_perm:[1,0,3,2] row_mask:0xf bank_mask:0xf
    v_add_f32_dpp v{v}, v{t}, v{t} quad_perm:[2,3,0,1] row_mask:0xf bank_mask:0xf
    v_add_f32_dpp v{t}, v{v}, v{v} row_half_mirror row_mask:0xf bank_mask:0xf
    v_add_f32_dpp v{v}, v{t}, v{t} row_mirror row_mask:0xf bank_mask:0xf
    v_mov_b32 v{t}, v{v}
    v_permlane16_swap_b32 v{v}, v{t}
    v_add_f32 v{v}, v{v}, v{t}
    v_mov_b32 v{t}, v{v}
    v_permlane32_swap_b32 v{v}, v{t}
    v_add_f32 v{v}, v{v}, v{t}
    ''')

def gen_kv(a):
    name = 'kv_kernel'
    RING = 131072
    SCR = RING + 64
    kernel_header(a, name)
    if 'EMPTY' in EXP:
        a('s_endpgm')
    dispense(a, 256, RING, 'KV')
    if 'DISP' in EXP:
        a('s_endpgm')
    a(f'''
    s_load_dwordx2 s[4:5], s[0:1], {ARG['A_c_kv']}
    s_load_dwordx2 s[6:7], s[0:1], {ARG['A_w_uk']}
    s_load_dwordx2 s[8:9], s[0:1], {ARG['A_w_uv']}
    s_load_dwordx2 s[10:11], s[0:1], {ARG['ws']}
    s_load_dwordx2 s[12:13], s[0:1], {ARG['c']}
    s_load_dwordx2 s[14:15], s[0:1], {ARG['w_mod']}
    s_load_dwordx2 s[60:61], s[0:1], {ARG['A_x']}
    v_lshrrev_b32 v1, 6, v0
    s_waitcnt lgkmcnt(0)
    v_readfirstlane_b32 s3, v1
    s_cmp_ge_u32 s2, 256
    s_cbranch_scc1 KV_END
    s_and_b32 s29, s2, 7
    s_lshr_b32 s30, s2, 3
    s_and_b32 s31, s30, 3
    s_lshl_b32 s29, s29, 2
    s_add_u32 s29, s29, s31          ; ntile 0..31
    s_lshr_b32 s30, s30, 2           ; mtile 0..7
    ''')
    srd(a, 16, 4, 5, 2048 * 512 * 2)
    a(f'''
    s_cmp_lt_u32 s29, 16
    s_cselect_b32 s20, s6, s8
    s_cselect_b32 s21, s7, s9
    s_mov_b32 s22, 4194304
    s_mov_b32 s23, 0x00020000
    s_and_b32 s31, s29, 15
    s_cmp_lt_u32 s29, 16
    s_mov_b32 s32, {WS_K}
    s_mov_b32 s33, {WS_VT}
    s_cselect_b32 s32, s32, s33
    s_lshl_b32 s33, s31, 20
    s_add_u32 s32, s32, s33
    s_add_u32 s24, s10, s32
    s_addc_u32 s25, s11, 0
    s_mov_b32 s26, 1048576
    s_mov_b32 s27, 0x00020000
    ''')
    srd(a, 64, 60, 61, 2048 * 512 * 2)
    srd(a, 68, 10, 11, 2048 * 512 * 2, WS_N1)
    srd(a, 72, 12, 13, 1024)
    srd(a, 76, 14, 15, 512 * 3072 * 2)
    srd(a, 80, 10, 11, 3072 * 4, WS_MOD)
    SX, SC, SW = 200, 204, 206
    a(f'''
    v_and_b32 v1, 63, v0             ; lane
    s_lshl_b32 s34, s2, 3
    s_add_u32 s34, s34, s3
    s_lshl_b32 s34, s34, 10
    v_lshl_add_u32 v212, v1, 4, s34  ; x / n1 offset
    buffer_load_dwordx4 v[{SX}:{SX+3}], v212, s[64:67], 0 offen
    v_lshlrev_b32 v2, 1, v0
    buffer_load_ushort v{SC}, v2, s[72:75], 0 offen
    v_mul_u32_u24 v2, 6144, v0
    s_mul_i32 s34, s2, 24
    buffer_load_dwordx4 v[{SW}:{SW+3}], v2, s[76:79], s34 offen
    buffer_load_dwordx2 v[{SW+4}:{SW+5}], v2, s[76:79], s34 offen offset:16
    ''')
    a('''
    v_lshrrev_b32 v2, 2, v1          ; l/4
    v_lshrrev_b32 v3, 2, v2          ; (row>>2) (row%16)
    v_and_b32 v3, 3, v3
    v_and_b32 v4, 3, v1
    v_xor_b32 v3, v3, v4             ; chunk
    s_lshl_b32 s34, s3, 4
    s_lshl_b32 s35, s30, 8           ; m0
    s_add_u32 s34, s34, s35
    v_add_u32 v2, s34, v2
    v_lshlrev_b32 v2, 10, v2
    v_lshl_add_u32 v10, v3, 4, v2
    v_lshrrev_b32 v2, 5, v1          ; l/32
    s_lshl_b32 s34, s3, 1
    v_add_u32 v2, s34, v2
    v_and_b32 v3, 3, v2
    v_lshlrev_b32 v3, 2, v3
    v_and_b32 v4, 31, v1
    v_xor_b32 v3, v3, v4
    v_lshlrev_b32 v2, 13, v2
    v_lshl_add_u32 v11, v3, 4, v2
    s_lshl_b32 s34, s31, 9
    v_add_u32 v11, s34, v11
    s_lshl_b32 s36, s3, 10
    s_lshr_b32 s37, s3, 1            ; wm
    s_and_b32 s38, s3, 1             ; wn
    ''')
    def issue(t):
        slot = t % 4
        for i in range(2):
            a(f'''
            s_add_u32 m0, s36, {slot*32768 + i*8192}
            s_mov_b32 s39, {t*64 + i*131072}
            buffer_load_dwordx4 v10, s[16:19], s39 offen lds
            ''')
        for i in range(2):
            a(f'''
            s_add_u32 m0, s36, {slot*32768 + 16384 + i*8192}
            s_mov_b32 s39, {(t*32 + i*16)*8192}
            buffer_load_dwordx4 v11, s[20:23], s39 offen lds
            ''')
    for t in range(3):
        issue(t)
    a('''
    v_and_b32 v2, 31, v1
    v_lshrrev_b32 v3, 5, v1          ; half
    v_lshrrev_b32 v5, 2, v2
    v_and_b32 v5, 3, v5
    s_lshl_b32 s34, s37, 6
    v_add_u32 v4, s34, v2
    v_lshlrev_b32 v4, 6, v4          ; row*64
    ''')
    for s in range(2):
        a(f'''
        v_or_b32 v6, {2*s}, v3
        v_xor_b32 v6, v6, v5
        v_lshl_add_u32 v{12+s}, v6, 4, v4
        v_add_u32 v{14+s}, 0x10000, v{12+s}
        ''')
    a('''
    v_bfe_u32 v2, v1, 2, 2           ; r
    v_and_b32 v4, 3, v1              ; c4
    v_bfe_u32 v5, v1, 4, 1           ; nsub
    v_lshlrev_b32 v6, 3, v3
    v_add_u32 v6, v6, v2
    v_lshlrev_b32 v6, 9, v6
    v_lshl_add_u32 v6, v5, 5, v6
    v_lshl_add_u32 v6, v4, 3, v6
    v_add_u32 v6, 16384, v6
    ''')
    for nb in range(4):
        a(f'''
        s_lshl_b32 s34, s38, 2
        s_add_u32 s34, s34, {nb}
        v_xor_b32 v7, s34, v2
        v_lshl_add_u32 v{16+nb}, v7, 6, v6
        v_add_u32 v{20+nb}, 0x10000, v{16+nb}
        ''')
    ACC = 72
    FA = 24
    FB = 40
    for i in range(128):
        a(f'v_mov_b32 v{ACC+i}, 0')
    a(f'''
    s_waitcnt vmcnt(12)
    v_lshlrev_b32 v214, 16, v{SX}
    v_and_b32 v215, 0xffff0000, v{SX}
    v_lshlrev_b32 v216, 16, v{SX+1}
    v_and_b32 v217, 0xffff0000, v{SX+1}
    v_lshlrev_b32 v218, 16, v{SX+2}
    v_and_b32 v219, 0xffff0000, v{SX+2}
    v_lshlrev_b32 v220, 16, v{SX+3}
    v_and_b32 v221, 0xffff0000, v{SX+3}
    v_add_f32 v222, v214, v215
    v_add_f32 v223, v216, v217
    v_add_f32 v224, v218, v219
    v_add_f32 v225, v220, v221
    v_add_f32 v222, v222, v223
    v_add_f32 v224, v224, v225
    v_add_f32 v222, v222, v224
    ''')
    wave_sum(a, 222, 223)
    a('v_mul_f32 v222, 0x3b000000, v222')
    for j in range(8):
        a(f'v_sub_f32 v{214+j}, v{214+j}, v222')
    a('v_mul_f32 v222, v214, v214')
    for j in range(1, 8):
        a(f'v_fma_f32 v222, v{214+j}, v{214+j}, v222')
    wave_sum(a, 222, 223)
    a('''
    v_mov_b32 v223, 0x3727c5ac
    v_fmac_f32 v223, 0x3b000000, v222
    v_rsq_f32 v222, v223
    ''')
    for j in range(8):
        a(f'v_mul_f32 v{214+j}, v{214+j}, v222')
    for j in range(4):
        a(f'v_cvt_pk_bf16_f32 v{SX+j}, v{214+2*j}, v{215+2*j}')
    a(f'''
    v_lshlrev_b32 v{SC}, 16, v{SC}
    v_mul_f32 v214, 0xbfb8aa3b, v{SC}
    v_exp_f32 v214, v214
    v_add_f32 v214, 1.0, v214
    v_rcp_f32 v214, v214
    v_mul_f32 v{SC}, v{SC}, v214
    v_cvt_pk_bf16_f32 v{SC}, v{SC}, v{SC}
    v_lshlrev_b32 v{SC}, 16, v{SC}
    ''')
    for j in range(6):
        a(f'''
        v_lshlrev_b32 v{214+2*j}, 16, v{SW+j}
        v_and_b32 v{215+2*j}, 0xffff0000, v{SW+j}
        v_mul_f32 v{214+2*j}, v{214+2*j}, v{SC}
        v_mul_f32 v{215+2*j}, v{215+2*j}, v{SC}
        ''')
    for j in range(12):
        wave_sum(a, 214 + j, 227)
    a(f'''
    s_mul_i32 s34, s3, 48
    v_mov_b32 v227, s34
    v_add_u32 v227, {SCR}, v227
    s_mov_b64 exec, 1
    ds_write_b128 v227, v[214:217]
    ds_write_b128 v227, v[218:221] offset:16
    ds_write_b128 v227, v[222:225] offset:32
    s_mov_b64 exec, -1
    ''')

    def reads(t, s, buf):
        out = []
        if 'NOREADS' in EXP: return out
        slot = t % 4
        sb = (slot % 2) * 32768
        va, vb = (12, 16) if slot < 2 else (14, 20)
        for mb in range(2):
            r = FA + buf*8 + mb*4
            out.append(f'ds_read_b128 v[{r}:{r+3}], v{va+s} offset:{sb + mb*2048}')
        for nb in range(4):
            for j in range(2):
                r = FB + buf*16 + nb*4 + j*2
                out.append(f'ds_read_b64_tr_b16 v[{r}:{r+1}], v{vb+nb} offset:{sb + s*8192 + j*2048}')
        return out
    def issue_l(t):
        slot = t % 4
        out = []
        for i in range(2):
            out.append(f"""
            s_add_u32 m0, s36, {slot*32768 + i*8192}
            s_mov_b32 s39, {t*64 + i*131072}
            buffer_load_dwordx4 v10, s[16:19], s39 offen lds
            """)
        for i in range(2):
            out.append(f"""
            s_add_u32 m0, s36, {slot*32768 + 16384 + i*8192}
            s_mov_b32 s39, {(t*32 + i*16)*8192}
            buffer_load_dwordx4 v11, s[20:23], s39 offen lds
            """)
        return out
    def mfmas(buf, swapped):
        out = []
        for mb in range(2):
            for nb in range(4):
                c = ACC + (mb*4+nb)*16
                fa = FA + buf*8 + mb*4
                fb = FB + buf*16 + nb*4
                if swapped:
                    out.append(f'v_mfma_f32_32x32x16_bf16 v[{c}:{c+15}], v[{fb}:{fb+3}], v[{fa}:{fa+3}], v[{c}:{c+15}]')
                else:
                    out.append(f'v_mfma_f32_32x32x16_bf16 v[{c}:{c+15}], v[{fa}:{fa+3}], v[{fb}:{fb+3}], v[{c}:{c+15}]')
        return out
    def sched(mf, slots):
        for i, m in enumerate(mf):
            if 'NOMFMA' not in EXP:
                a(m)
            for x in slots.get(i, []):
                a(x)
    def spread(items, g0, per, slots):
        g = g0
        for i in range(0, len(items), per):
            slots.setdefault(g, []).extend(items[i:i+per]); g += 1
        return slots
    def mainloop(swapped):
        if 'LOOP0' in EXP:
            a('s_waitcnt vmcnt(0) lgkmcnt(0)')
            a('s_barrier')
            return
        a('s_waitcnt vmcnt(8) lgkmcnt(0)')
        a('s_barrier')
        for x in reads(0, 0, 0):
            a(x)
        for t in range(16):
            a('s_waitcnt lgkmcnt(0)')
            sl = spread(reads(t, 1, 1), 0, 2, {})
            if t + 1 < 16:
                infl = min(1, 14 - t)
                sl.setdefault(5, []).append(f's_waitcnt vmcnt({4*infl})')
                if 'NOBAR' not in EXP:
                    sl[5].append('s_barrier')
            sched(mfmas(0, swapped), sl)
            a('s_waitcnt lgkmcnt(0)')
            sl = {}
            if t + 1 < 16:
                spread(reads(t + 1, 0, 0), 0, 2, sl)
            if t + 3 < 16 and 'NODMA' not in EXP:
                spread(issue_l(t + 3), 4, 1, sl)
            sched(mfmas(1, swapped), sl)
    def side_store():
        a(f'''
        buffer_store_dwordx4 v[{SX}:{SX+3}], v212, s[68:71], 0 offen
        s_cmp_lg_u32 s3, 0
        s_cbranch_scc1 KV_END
        v_cmp_gt_u32 vcc, 12, v1
        s_and_saveexec_b64 s[42:43], vcc
        v_lshlrev_b32 v2, 2, v1
        v_add_u32 v3, {SCR}, v2
        ''')
        for w in range(8):
            a(f'ds_read_b32 v{4+w}, v3 offset:{w*48}')
        a(f'''
        s_waitcnt lgkmcnt(0)
        v_add_f32 v4, v4, v5
        v_add_f32 v6, v6, v7
        v_add_f32 v8, v8, v9
        v_add_f32 v10, v10, v11
        v_add_f32 v4, v4, v6
        v_add_f32 v8, v8, v10
        v_add_f32 v4, v4, v8
        v_cvt_pk_bf16_f32 v4, v4, v4
        v_lshlrev_b32 v4, 16, v4
        s_mul_i32 s34, s2, 48
        v_add_u32 v2, s34, v2
        buffer_store_dword v4, v2, s[80:83], 0 offen
        s_branch KV_END
        ''')
    a('''
    s_cmp_ge_u32 s29, 16
    s_cbranch_scc1 KV_VPART
    ''')
    mainloop(True)
    a('''
    v_and_b32 v2, 31, v1
    v_lshrrev_b32 v3, 5, v1
    s_lshl_b32 s34, s37, 6
    s_add_u32 s34, s34, s35
    v_add_u32 v2, s34, v2
    v_lshlrev_b32 v2, 8, v2
    v_lshl_add_u32 v2, v3, 4, v2
    s_lshl_b32 s34, s38, 19
    v_add_u32 v2, s34, v2
    v_add_u32 v8, 8192, v2
    ''')
    for mb in range(2):
        for nb in range(4):
            c = ACC + (mb*4+nb)*16
            for gp in range(2):
                va = 2 if mb == 0 else 8
                t = 24 + 4 * ((nb*2+gp) % 4)
                for j in range(4):
                    a(f'v_cvt_pk_bf16_f32 v{t+j}, v{c+gp*8+2*j}, v{c+gp*8+2*j+1}')
                if 'NOST' not in EXP:
                    a(f'buffer_store_dwordx4 v[{t}:{t+3}], v{va}, s[24:27], 0 offen offset:{nb*64 + gp*32}')
    side_store()
    a.label('KV_VPART')
    mainloop(False)
    a('''
    v_and_b32 v2, 31, v1
    v_lshrrev_b32 v3, 5, v1
    v_lshlrev_b32 v2, 12, v2
    v_lshl_add_u32 v2, v3, 4, v2
    s_lshl_b32 s34, s37, 6
    s_add_u32 s34, s34, s35
    s_lshl_b32 s34, s34, 1
    v_add_u32 v2, s34, v2
    s_lshl_b32 s34, s38, 19
    v_add_u32 v2, s34, v2
    v_add_u32 v8, 0x20000, v2
    v_add_u32 v9, 0x40000, v2
    v_add_u32 v10, 0x60000, v2
    ''')
    for mb in range(2):
        for nb in range(4):
            c = ACC + (mb*4+nb)*16
            for gp in range(2):
                va = [2, 8, 9, 10][nb]
                t = 24 + 4 * ((nb*2+gp) % 4)
                for j in range(4):
                    a(f'v_cvt_pk_bf16_f32 v{t+j}, v{c+gp*8+2*j}, v{c+gp*8+2*j+1}')
                if 'NOST' not in EXP:
                    a(f'buffer_store_dwordx4 v[{t}:{t+3}], v{va}, s[24:27], 0 offen offset:{mb*64 + gp*32}')
    side_store()
    a.label('KV_END')
    a('s_endpgm')
    return dict(name=name, grid=256, block=512, lds=RING + 64 + 448, vgpr=232)
```

```python
from k_common import *

def gemm_splitk(a, name, prefix, nmt, nnt, nstages, setup, lda, ldb, epilogue, bnorm=False):
    kernel_header(a, name)
    END = prefix + '_END'
    dispense(a, nmt*nnt, 65536 if bnorm else 131072, prefix, extra_barrier=bnorm)
    a(f'''
    s_load_dwordx2 s[4:5], s[0:1], {ARG['ws']}
    ''')
    setup_loads = setup(a, 'load')
    a(f'''
    v_lshrrev_b32 v1, 6, v0
    s_waitcnt lgkmcnt(0)
    v_readfirstlane_b32 s3, v1
    s_cmp_ge_u32 s2, {nmt*nnt}
    s_cbranch_scc1 {END}
    ''')
    a(f'''
    s_and_b32 s40, s2, 7
    s_lshr_b32 s41, s2, 3
    s_mov_b32 s42, {(1 << 32) // nnt + 1}
    s_mul_hi_u32 s43, s41, s42
    s_mul_i32 s42, s43, {nnt}
    s_sub_u32 s41, s41, s42          ; ntile
    s_lshl_b32 s43, s43, 3
    s_add_u32 s40, s40, s43          ; mtile
    ''')
    setup(a, 'srd')
    ACC = 64
    FA, FB = 20, 36
    BR = 128
    a(f'''
    s_lshl_b32 s36, s3, 10
    v_and_b32 v1, 63, v0
    v_and_b32 v2, 31, v1
    v_lshrrev_b32 v3, 5, v1
    v_lshrrev_b32 v4, 4, v1          ; lane/16
    s_lshl_b32 s34, s3, 2
    v_add_u32 v4, s34, v4            ; row 0..15
    v_and_b32 v5, 15, v1
    v_xor_b32 v5, v5, v4
    s_lshl_b32 s35, s40, 6           ; m0
    v_add_u32 v4, s35, v4
    s_mov_b32 s34, {lda}
    v_mul_lo_u32 v4, v4, s34
    v_lshl_add_u32 v10, v5, 4, v4
    v_lshrrev_b32 v4, 3, v1          ; lane/8
    v_bfe_u32 v5, v4, 1, 1
    v_lshlrev_b32 v5, 2, v5
    v_and_b32 v6, 7, v1
    v_xor_b32 v5, v5, v6
    s_lshl_b32 s34, s3, 3
    v_add_u32 v4, s34, v4            ; krow 0..31
    v_mov_b32 v9, v4
    s_mov_b32 s34, {ldb}
    v_mul_lo_u32 v4, v4, s34
    v_lshl_add_u32 v11, v5, 4, v4
    s_lshl_b32 s34, s41, 7           ; n0*2
    v_add_u32 v11, s34, v11          ; B voffset
    ''')
    a('''
    v_and_b32 v5, 15, v2             ; row&15
    v_lshlrev_b32 v4, 8, v2          ; row*256
    s_lshl_b32 s34, s3, 2            ; w*4
    ''')
    for s in range(2):
        a(f'''
        v_or_b32 v6, {2*s}, v3
        v_or_b32 v6, s34, v6
        v_xor_b32 v6, v6, v5
        v_lshl_add_u32 v{12+s}, v6, 4, v4
        ''')
    a('''
    v_bfe_u32 v4, v1, 2, 2           ; r
    v_and_b32 v5, 3, v1              ; c4
    v_bfe_u32 v6, v1, 4, 1           ; nsub
    v_lshlrev_b32 v7, 3, v3
    v_add_u32 v7, v7, v4             ; 8half + r
    s_lshl_b32 s34, s3, 5
    v_add_u32 v7, s34, v7            ; + 32w
    v_lshlrev_b32 v7, 7, v7          ; *128
    v_lshl_add_u32 v7, v6, 5, v7
    v_lshl_add_u32 v7, v5, 3, v7
    v_add_u32 v7, 16384, v7
    v_lshrrev_b32 v4, 1, v4          ; (r>>1)&1
    ''')
    for nb in range(2):
        a(f'''
        v_xor_b32 v6, {nb}, v4
        v_lshl_add_u32 v{14+nb}, v6, 6, v7
        ''')
    for i in range(64):
        a(f'v_mov_b32 v{ACC+i}, 0')
    setup(a, 'pre')
    NST = 2 if bnorm else 4
    def issueA(t, slot):
        for i in range(4):
            a(f'''
            s_add_u32 m0, s36, {slot*32768 + i*4096}
            s_mov_b32 s39, {t*256 + i*16*lda}
            buffer_load_dwordx4 v10, s[12:15], s39 offen lds
            ''')
    def issueB(t, slot):
        for i in range(4):
            if bnorm:
                a(f'''
                s_mov_b32 s39, {(t*128 + i*32)*ldb}
                buffer_load_dwordx4 v[{BR+4*i}:{BR+4*i+3}], v11, s[16:19], s39 offen
                ''')
            else:
                a(f'''
                s_add_u32 m0, s36, {slot*32768 + 16384 + i*4096}
                s_mov_b32 s39, {(t*128 + i*32)*ldb}
                buffer_load_dwordx4 v11, s[16:19], s39 offen lds
                ''')
    def writeB(t, slot):
        a('s_waitcnt vmcnt(0)')
        for i in range(4):
            a(f'ds_read_b64 v[{144+2*i}:{145+2*i}], v17 offset:{(t*128 + i*32)*8}')
        a('s_waitcnt lgkmcnt(0)')
        for i in range(4):
            for j in range(4):
                r = BR + 4*i + j
                a(f'''
                v_lshlrev_b32 v152, 16, v{r}
                v_and_b32 v153, 0xffff0000, v{r}
                v_sub_f32 v152, v152, v{144+2*i}
                v_sub_f32 v153, v153, v{144+2*i}
                v_mul_f32 v152, v152, v{145+2*i}
                v_mul_f32 v153, v153, v{145+2*i}
                v_cvt_pk_bf16_f32 v{r}, v152, v153
                ''')
            a(f'ds_write_b128 v16, v[{BR+4*i}:{BR+4*i+3}] offset:{slot*32768 + 16384 + i*4096}')
    def reads(slot, s, buf):
        sb = slot * 32768
        va, vb = 12, 14
        if sb >= 65536:
            sb -= 65536; va, vb = 156, 158
        for mb in range(2):
            a(f'ds_read_b128 v[{FA+buf*8+mb*4}:{FA+buf*8+mb*4+3}], v{va+s} offset:{sb + mb*8192}')
        for nb in range(2):
            for j in range(2):
                r = FB + buf*8 + nb*4 + j*2
                a(f'ds_read_b64_tr_b16 v[{r}:{r+1}], v{vb+nb} offset:{sb + s*2048 + j*512}')
    if NST > 2:
        for i in range(4):
            a(f'v_add_u32 v{156+i}, 0x10000, v{12+i}')
    if bnorm:
        a(f'''
        v_lshlrev_b32 v16, 4, v1
        v_add_u32 v16, s36, v16
        v_lshlrev_b32 v17, 3, v9
        v_add_u32 v17, 65536, v17
        ''')
        issueA(0, 0); issueB(0, 0); writeB(0, 0)
    else:
        for t in range(NST - 1):
            issueA(t, t); issueB(t, t)
    for t in range(nstages):
        slot = t % NST
        if bnorm:
            a('s_waitcnt vmcnt(0) lgkmcnt(0)')
        else:
            inflight = min(NST - 2, nstages - 1 - t)
            a(f's_waitcnt vmcnt({8*inflight})')
        a('s_barrier')
        tn = t + NST - 1
        if tn < nstages:
            issueA(tn, tn % NST); issueB(tn, tn % NST)
        reads(slot, 0, 0)
        reads(slot, 1, 1)
        for s in range(2):
            a(f's_waitcnt lgkmcnt({6 if s == 0 else 0})')
            for mb in range(2):
                for nb in range(2):
                    c = ACC + (mb*2+nb)*16
                    fa = FA + s*8 + mb*4
                    fb = FB + s*8 + nb*4
                    a(f'v_mfma_f32_32x32x16_bf16 v[{c}:{c+15}], v[{fb}:{fb+3}], v[{fa}:{fa+3}], v[{c}:{c+15}]')
        if bnorm and tn < nstages:
            writeB(tn, tn % NST)
    a(f'''
    s_waitcnt vmcnt(0) lgkmcnt(0)
    s_barrier
    s_lshl_b32 s34, s3, 14
    v_lshlrev_b32 v4, 4, v1
    v_add_u32 v5, s34, v4
    ''')
    for qd in range(16):
        a(f'ds_write_b128 v5, v[{ACC+4*qd}:{ACC+4*qd+3}] offset:{qd*1024}')
    a(f'''
    s_waitcnt lgkmcnt(0)
    s_barrier
    s_lshl_b32 s34, s3, 12
    v_add_u32 v5, s34, v4
    ''')
    for wv in range(4):
        for g in range(4):
            r = ACC + wv*16 + g*4
            a(f'ds_read_b128 v[{r}:{r+3}], v5 offset:{wv*16384 + g*1024}')
    a('s_waitcnt lgkmcnt(0)')
    for i in range(16):
        a(f'''
        v_add_f32 v{ACC+i}, v{ACC+i}, v{ACC+16+i}
        v_add_f32 v{ACC+32+i}, v{ACC+32+i}, v{ACC+48+i}
        v_add_f32 v{ACC+i}, v{ACC+i}, v{ACC+32+i}
        ''')
    a('''
    s_lshr_b32 s34, s3, 1
    s_lshl_b32 s34, s34, 5
    s_add_u32 s34, s34, s35
    v_add_u32 v4, s34, v2            ; row
    s_and_b32 s34, s3, 1
    s_lshl_b32 s34, s34, 5
    s_lshl_b32 s37, s41, 6
    s_add_u32 s34, s34, s37
    v_lshlrev_b32 v5, 2, v3
    v_add_u32 v5, s34, v5            ; col (g=0)
    ''')
    epilogue(a, ACC)
    a.label(END)
    a('s_endpgm')
    lds = NST * 32768 + (16384 if bnorm else 64)
    return dict(name=name, grid=nmt*nnt, block=256, lds=lds, vgpr=160)

def rbf(a, r):
    a(f'''
    v_cvt_pk_bf16_f32 v{r}, v{r}, v{r}
    v_lshlrev_b32 v{r}, 16, v{r}
    ''')

def gen_oproj(a):
    def setup(a, ph):
        if ph == 'load':
            a(f'''
            s_load_dwordx2 s[6:7], s[0:1], {ARG['A_w_o']}
            s_load_dwordx2 s[8:9], s[0:1], {ARG['A_x']}
            ''')
        elif ph == 'srd':
            srd(a, 12, 4, 5, 2048*4096*2, WS_CTX)
            srd(a, 16, 6, 7, 4096*512*2)
            srd(a, 20, 8, 9, 2048*512*2)
            srd(a, 24, 4, 5, 2048*512*2, WS_X2)
            srd(a, 28, 4, 5, 3072*4, WS_MOD)
    def epi(a, ACC):
        a('''
        v_lshlrev_b32 v6, 10, v4
        v_lshl_add_u32 v6, v5, 1, v6
        v_lshlrev_b32 v7, 2, v5          ; col*4
        v_add_u32 v7, 4096, v7
        ''')
        for g in range(4):
            a(f'''
            buffer_load_dwordx2 v[{20+2*g}:{21+2*g}], v6, s[20:23], 0 offen offset:{g*16}
            buffer_load_dwordx4 v[{28+4*g}:{31+4*g}], v7, s[28:31], 0 offen offset:{g*32}
            ''')
        a('s_waitcnt vmcnt(0)')
        for g in range(4):
            for j in range(4):
                r = ACC + g*4 + j
                rbf(a, r)
                a(f'v_mul_f32 v{r}, v{r}, v{28+4*g+j}')
                rbf(a, r)
                xs = 20 + 2*g + j//2
                if j % 2 == 0:
                    a(f'v_lshlrev_b32 v44, 16, v{xs}')
                else:
                    a(f'v_and_b32 v44, 0xffff0000, v{xs}')
                a(f'v_add_f32 v{r}, v{r}, v44')
            a(f'''
            v_cvt_pk_bf16_f32 v{46+2*(g%2)}, v{ACC+g*4}, v{ACC+g*4+1}
            v_cvt_pk_bf16_f32 v{47+2*(g%2)}, v{ACC+g*4+2}, v{ACC+g*4+3}
            buffer_store_dwordx2 v[{46+2*(g%2)}:{47+2*(g%2)}], v6, s[24:27], 0 offen offset:{g*16}
            ''')
    return gemm_splitk(a, 'oproj_kernel', 'OP', 32, 8, 32, setup, 8192, 1024, epi)

def gen_wout(a):
    def setup(a, ph):
        if ph == 'load':
            a(f'''
            s_load_dwordx2 s[6:7], s[0:1], {ARG['B_w_out']}
            s_load_dwordx2 s[8:9], s[0:1], {ARG['out']}
            ''')
        elif ph == 'srd':
            srd(a, 12, 4, 5, 2048*ZP*2, WS_Y)
            srd(a, 16, 6, 7, 688*512*2)
            srd(a, 20, 4, 5, 2048*512*2, WS_X2)
            srd(a, 24, 8, 9, 2048*512*2)
            srd(a, 28, 4, 5, 3072*4, WS_MOD)
    def epi(a, ACC):
        a('''
        v_lshlrev_b32 v6, 10, v4
        v_lshl_add_u32 v6, v5, 1, v6
        v_lshlrev_b32 v7, 2, v5
        v_add_u32 v7, 10240, v7
        ''')
        for g in range(4):
            a(f'''
            buffer_load_dwordx2 v[{20+2*g}:{21+2*g}], v6, s[20:23], 0 offen offset:{g*16}
            buffer_load_dwordx4 v[{28+4*g}:{31+4*g}], v7, s[28:31], 0 offen offset:{g*32}
            ''')
        a('s_waitcnt vmcnt(0)')
        for g in range(4):
            for j in range(4):
                r = ACC + g*4 + j
                rbf(a, r)
                a(f'v_mul_f32 v{r}, v{r}, v{28+4*g+j}')
                rbf(a, r)
                xs = 20 + 2*g + j//2
                if j % 2 == 0:
                    a(f'v_lshlrev_b32 v44, 16, v{xs}')
                else:
                    a(f'v_and_b32 v44, 0xffff0000, v{xs}')
                a(f'v_add_f32 v{r}, v{r}, v44')
            a(f'''
            v_cvt_pk_bf16_f32 v{46+2*(g%2)}, v{ACC+g*4}, v{ACC+g*4+1}
            v_cvt_pk_bf16_f32 v{47+2*(g%2)}, v{ACC+g*4+2}, v{ACC+g*4+3}
            buffer_store_dwordx2 v[{46+2*(g%2)}:{47+2*(g%2)}], v6, s[24:27], 0 offen offset:{g*16}
            ''')
    return gemm_splitk(a, 'wout_kernel', 'WO', 32, 8, 6, setup, ZP*2, 1024, epi)

def gen_sp(a):
    def setup(a, ph):
        if ph == 'load':
            a(f'''
            s_load_dwordx2 s[6:7], s[0:1], {ARG['B_w_sp']}
            s_load_dwordx2 s[8:9], s[0:1], {ARG['B_b_sp']}
            ''')
        elif ph == 'srd':
            srd(a, 12, 6, 7, 2048*2048*2)
            srd(a, 16, 4, 5, 2048*ZP*2, WS_Z2)
            srd(a, 20, 4, 5, 2048*ZP*2, WS_Z1)
            srd(a, 24, 4, 5, 2048*ZP*2, WS_Y)
            srd(a, 28, 8, 9, 2048*2)
            srd(a, 44, 4, 5, 6*2048*8, WS_STAT)
        elif ph == 'pre':
            a('v_lshlrev_b32 v16, 3, v0')
            a('v_add_u32 v17, 0x10000, v16')
            for i in range(8):
                for p in range(6):
                    a(f'''
                    s_mov_b32 s39, {p*16384 + i*2048}
                    buffer_load_dwordx2 v[{128+2*p}:{129+2*p}], v16, s[44:47], s39 offen
                    ''')
                a('s_waitcnt vmcnt(0)')
                a('''
                v_add_f32 v128, v128, v130
                v_add_f32 v129, v129, v131
                v_add_f32 v132, v132, v134
                v_add_f32 v133, v133, v135
                v_add_f32 v136, v136, v138
                v_add_f32 v137, v137, v139
                v_add_f32 v128, v128, v132
                v_add_f32 v129, v129, v133
                v_add_f32 v128, v128, v136
                v_add_f32 v129, v129, v137
                v_mul_f32 v128, 0x3abe82fa, v128     ; mean (1/688)
                v_mul_f32 v129, 0x3abe82fa, v129     ; E[x^2]
                v_fma_f32 v129, -v128, v128, v129
                v_max_f32 v129, 0, v129
                v_add_f32 v129, 0x3727c5ac, v129
                v_rsq_f32 v129, v129
                ''')
                a(f'ds_write_b64 v17, v[128:129] offset:{i*2048}')
            a('''
            s_waitcnt lgkmcnt(0)
            s_barrier
            ''')
    def epi(a, ACC):
        a(f'''
        s_mov_b32 s34, {ZP*2}
        v_mul_lo_u32 v6, v4, s34
        v_lshl_add_u32 v6, v5, 1, v6
        v_lshlrev_b32 v7, 1, v4
        buffer_load_ushort v44, v7, s[28:31], 0 offen
        ''')
        for g in range(4):
            a(f'buffer_load_dwordx2 v[{20+2*g}:{21+2*g}], v6, s[20:23], 0 offen offset:{g*16}')
        a('''
        s_waitcnt vmcnt(0)
        v_lshlrev_b32 v44, 16, v44
        ''')
        for g in range(4):
            for j in range(4):
                r = ACC + g*4 + j
                rbf(a, r)
                a(f'v_add_f32 v{r}, v{r}, v44')
                rbf(a, r)
                xs = 20 + 2*g + j//2
                if j % 2 == 0:
                    a(f'v_lshlrev_b32 v45, 16, v{xs}')
                else:
                    a(f'v_and_b32 v45, 0xffff0000, v{xs}')
                a(f'v_mul_f32 v{r}, v{r}, v45')
            a(f'''
            v_cvt_pk_bf16_f32 v{46+2*(g%2)}, v{ACC+g*4}, v{ACC+g*4+1}
            v_cvt_pk_bf16_f32 v{47+2*(g%2)}, v{ACC+g*4+2}, v{ACC+g*4+3}
            v_add_u32 v45, {8*g}, v5
            v_cmp_gt_u32 vcc, 688, v45
            v_cndmask_b32 v{46+2*(g%2)}, 0, v{46+2*(g%2)}, vcc
            v_cndmask_b32 v{47+2*(g%2)}, 0, v{47+2*(g%2)}, vcc
            buffer_store_dwordx2 v[{46+2*(g%2)}:{47+2*(g%2)}], v6, s[24:27], 0 offen offset:{g*16}
            ''')
    return gemm_splitk(a, 'sp_kernel', 'SP', 32, 11, 16, setup, 4096, ZP*2, epi, bnorm=True)

def gen_win(a):
    name = 'win_kernel'
    kernel_header(a, name)
    NNT = 11
    dispense(a, 16*NNT, 65536 + 4096, 'WI')
    a(f'''
    s_load_dwordx2 s[4:5], s[0:1], {ARG['ws']}
    s_load_dwordx2 s[6:7], s[0:1], {ARG['B_w_in']}
    v_lshrrev_b32 v1, 6, v0
    s_waitcnt lgkmcnt(0)
    v_readfirstlane_b32 s3, v1
    s_cmp_ge_u32 s2, {16*NNT}
    s_cbranch_scc1 WI_END
    s_and_b32 s40, s2, 15            ; mtile
    s_lshr_b32 s41, s2, 4            ; ntile
    ''')
    srd(a, 12, 4, 5, 2048*512*2, WS_X2)
    srd(a, 16, 6, 7, 512*1376*2)
    srd(a, 20, 4, 5, 0x400000 + 2048*ZP*2, WS_Z1)
    srd(a, 24, 4, 5, 6*2048*8, WS_STAT)
    srd(a, 32, 4, 5, 4096, WS_MOD + 6144)
    MODL = 65536
    X0 = 64; QT = 192
    a(f'''
    s_lshl_b32 s36, s3, 10
    v_and_b32 v1, 63, v0
    v_and_b32 v2, 31, v1
    v_lshrrev_b32 v3, 5, v1
    s_lshl_b32 s44, s40, 7
    s_lshl_b32 s45, s3, 5
    s_add_u32 s44, s44, s45          ; row0
    v_add_u32 v4, s44, v2
    v_lshlrev_b32 v5, 10, v4
    v_lshl_add_u32 v5, v3, 4, v5
    ''')
    for s in range(32):
        a(f'buffer_load_dwordx4 v[{X0+4*s}:{X0+4*s+3}], v5, s[12:15], 0 offen offset:{s*32}')
    a(f'''
    v_lshlrev_b32 v6, 4, v0
    buffer_load_dwordx4 v[8:11], v6, s[32:35], 0 offen offset:0
    ''')
    a.lines[-1] = a.lines[-1]
    a('''
    v_lshrrev_b32 v12, 4, v1
    v_and_b32 v13, 15, v1
    v_lshlrev_b32 v14, 2, v12
    v_xor_b32 v14, v14, v13
    s_lshl_b32 s45, s3, 2
    v_add_u32 v15, s45, v12
    s_mov_b32 s45, 2752
    v_mul_lo_u32 v15, v15, s45
    v_lshl_add_u32 v16, v14, 4, v15
    s_lshl_b32 s45, s41, 8
    v_add_u32 v16, s45, v16
    ''')
    def issue_w(c):
        slot = c % 4
        for i in range(4):
            a(f'''
            s_add_u32 m0, s36, {slot*16384 + i*4096}
            s_mov_b32 s39, {(c*64 + i*16)*2752}
            buffer_load_dwordx4 v16, s[16:19], s39 offen lds
            ''')
    for c in range(3):
        issue_w(c)
    a('''
    v_bfe_u32 v12, v1, 2, 2
    v_and_b32 v13, 3, v1
    v_bfe_u32 v14, v1, 4, 1
    v_lshlrev_b32 v15, 3, v3
    v_add_u32 v15, v15, v12
    v_lshlrev_b32 v15, 8, v15
    v_lshl_add_u32 v15, v14, 5, v15
    v_lshl_add_u32 v15, v13, 3, v15
    ''')
    for blk in range(4):
        a(f'''
        v_xor_b32 v17, {blk}, v12
        v_lshl_add_u32 v{20+blk}, v17, 6, v15
        ''')
    a(f'''
    s_waitcnt vmcnt(12)
    v_add_u32 v6, {MODL}, v6
    ds_write_b128 v6, v[8:11]
    v_mov_b32 v24, 0
    v_mov_b32 v25, 0
    ''')
    for r in range(128):
        a(f'''
        v_lshlrev_b32 v26, 16, v{X0+r}
        v_and_b32 v27, 0xffff0000, v{X0+r}
        v_add_f32 v24, v24, v26
        v_add_f32 v25, v25, v27
        ''')
    a('''
    v_add_f32 v24, v24, v25
    v_mov_b32 v25, v24
    v_permlane32_swap_b32 v24, v25
    v_add_f32 v24, v24, v25
    v_mul_f32 v24, 0x3b000000, v24
    v_mov_b32 v25, 0
    v_mov_b32 v28, 0
    ''')
    for r in range(128):
        a(f'''
        v_lshlrev_b32 v26, 16, v{X0+r}
        v_and_b32 v27, 0xffff0000, v{X0+r}
        v_sub_f32 v26, v26, v24
        v_sub_f32 v27, v27, v24
        v_fma_f32 v25, v26, v26, v25
        v_fma_f32 v28, v27, v27, v28
        ''')
    a(f'''
    v_add_f32 v25, v25, v28
    v_mov_b32 v26, v25
    v_permlane32_swap_b32 v25, v26
    v_add_f32 v25, v25, v26
    v_mov_b32 v26, 0x3727c5ac
    v_fmac_f32 v26, 0x3b000000, v25
    v_rsq_f32 v25, v26
    s_waitcnt lgkmcnt(0)
    s_barrier
    v_lshlrev_b32 v26, 5, v3
    v_add_u32 v26, {MODL}, v26
    ''')
    for s in range(32):
        a(f'''
        ds_read_b128 v[28:31], v26 offset:{s*64}
        ds_read_b128 v[32:35], v26 offset:{s*64+16}
        ds_read_b128 v[36:39], v26 offset:{2048+s*64}
        ds_read_b128 v[40:43], v26 offset:{2048+s*64+16}
        ''')
        for j in range(4):
            a(f'''
            v_lshlrev_b32 v{44+2*j}, 16, v{X0+4*s+j}
            v_and_b32 v{45+2*j}, 0xffff0000, v{X0+4*s+j}
            ''')
        for j in range(8):
            a(f'''
            v_sub_f32 v{44+j}, v{44+j}, v24
            v_mul_f32 v{44+j}, v{44+j}, v25
            ''')
        a('s_waitcnt lgkmcnt(0)')
        for j in range(8):
            a(f'''
            v_add_f32 v{36+j}, 1.0, v{36+j}
            v_fma_f32 v{44+j}, v{44+j}, v{36+j}, v{28+j}
            ''')
        for j in range(4):
            a(f'v_cvt_pk_bf16_f32 v{X0+4*s+j}, v{44+2*j}, v{45+2*j}')
    for i in range(64):
        a(f'v_mov_b32 v{QT+i}, 0')
    FW = 28
    def w_reads(slot, s, buf):
        for blk in range(4):
            for j in range(2):
                r = FW + buf*16 + blk*4 + j*2
                a(f'ds_read_b64_tr_b16 v[{r}:{r+1}], v{20+blk} offset:{slot*16384 + s*4096 + j*1024}')
    for c in range(8):
        slot = c % 4
        inflight = min(2, 7 - c)
        a(f's_waitcnt vmcnt({4*inflight})')
        a('s_barrier')
        if c + 3 < 8:
            issue_w(c + 3)
        w_reads(slot, 0, 0)
        for s in range(4):
            buf = s & 1
            if s < 3:
                w_reads(slot, s + 1, buf ^ 1)
                a('s_waitcnt lgkmcnt(8)')
            else:
                a('s_waitcnt lgkmcnt(0)')
            hx = X0 + 4*(c*4 + s)
            for blk in range(4):
                f = FW + buf*16 + blk*4
                q = QT + blk*16
                a(f'v_mfma_f32_32x32x16_bf16 v[{q}:{q+15}], v[{f}:{f+3}], v[{hx}:{hx+3}], v[{q}:{q+15}]')
    a(f'''
    v_add_u32 v4, s44, v2            ; row
    s_mov_b32 s34, {ZP*2}
    v_mul_lo_u32 v6, v4, s34         ; row*1408
    s_lshl_b32 s37, s41, 7
    v_lshlrev_b32 v5, 2, v3
    v_add_u32 v5, s37, v5
    v_mov_b32 v24, 0
    v_mov_b32 v25, 0
    s_mov_b32 s48, 1376
    s_mov_b32 s46, 0x3d372713        ; 0.044715
    s_mov_b32 s47, 0xc0135761        ; -2*0.7978845608*log2(e)
    ''')
    for blk in range(4):
        for g in range(4):
            for j in range(4):
                r = QT + blk*16 + g*4 + j
                rbf(a, r)
                a(f'''
                v_mul_f32 v26, v{r}, v{r}
                v_fma_f32 v26, v26, s46, 1.0
                v_mul_f32 v26, v26, v{r}
                v_mul_f32 v26, s47, v26
                v_exp_f32 v26, v26
                v_add_f32 v26, 1.0, v26
                v_rcp_f32 v26, v26
                v_mul_f32 v{r}, v{r}, v26
                ''')
                rbf(a, r)
            r = QT + blk*16 + g*4
            a(f'''
            v_cvt_pk_bf16_f32 v28, v{r}, v{r+1}
            v_cvt_pk_bf16_f32 v29, v{r+2}, v{r+3}
            v_add_u32 v26, {blk*32 + g*8}, v5        ; col
            v_lshl_add_u32 v27, v26, 1, v6           ; z1 offset
            v_add_u32 v30, {0x400000 - 688*2}, v27   ; z2 offset
            v_cmp_gt_u32 vcc, 688, v26
            v_cndmask_b32 v27, v30, v27, vcc
            v_mov_b32 v30, 0x7ffffff0
            v_cmp_gt_u32 s[50:51], s48, v26
            v_cndmask_b32 v27, v30, v27, s[50:51]
            buffer_store_dwordx2 v[28:29], v27, s[20:23], 0 offen
            s_andn2_b64 s[50:51], s[50:51], vcc
            v_cndmask_b32 v30, 0, v{r}, s[50:51]
            v_cndmask_b32 v31, 0, v{r+1}, s[50:51]
            v_cndmask_b32 v32, 0, v{r+2}, s[50:51]
            v_cndmask_b32 v33, 0, v{r+3}, s[50:51]
            v_add_f32 v24, v24, v30
            v_fma_f32 v25, v30, v30, v25
            v_add_f32 v24, v24, v31
            v_fma_f32 v25, v31, v31, v25
            v_add_f32 v24, v24, v32
            v_fma_f32 v25, v32, v32, v25
            v_add_f32 v24, v24, v33
            v_fma_f32 v25, v33, v33, v25
            ''')
    a(f'''
    s_cmp_lt_u32 s41, 5
    s_cbranch_scc1 WI_END
    v_mov_b32 v26, v24
    v_mov_b32 v27, v25
    v_permlane32_swap_b32 v24, v26
    v_permlane32_swap_b32 v25, v27
    v_add_f32 v24, v24, v26
    v_add_f32 v25, v25, v27
    v_lshlrev_b32 v6, 3, v4
    s_sub_u32 s34, s41, 5
    s_lshl_b32 s34, s34, 14
    v_add_u32 v6, s34, v6
    v_mov_b32 v7, 0x7ffffff0
    v_cmp_gt_u32 vcc, 32, v1
    v_cndmask_b32 v6, v7, v6, vcc
    buffer_store_dwordx2 v[24:25], v6, s[24:27], 0 offen
    ''')
    a.label('WI_END')
    a('s_endpgm')
    return dict(name=name, grid=16*NNT, block=256, lds=65536 + 4096 + 64, vgpr=256)

GENS = [gen_oproj, gen_win, gen_sp, gen_wout]
```

```python
import sys
from k_common import *
import k_kv3 as k_kv
mods = [k_kv.gen_kv]
try:
    import os, importlib; k_attn = importlib.import_module(os.environ.get('ATTN', 'k_attn5')); mods.append(k_attn.gen_attn)
    import k_rest3; mods += k_rest3.GENS
except ImportError as e:
    print('partial build:', e)

HEAD = open('adaLN_cond__compressed_kv_cla__mixer_gmlp__prompt.s.ref').read().split('\n')
hdr = [l for l in HEAD if l.startswith(';') and '@launch' not in l and 'Override launch' not in l and 'grid=ceil' not in l]
import os
if os.environ.get('NK'):
    mods = mods[:int(os.environ['NK'])]
a = Asm()
infos = []
for g in mods:
    infos.append(g(a))
out = '\n'.join(hdr) + '\n'
for k in infos:
    out += f"; @launch kernel={k['name']} grid=({k['grid']},1,1) block=({k['block']},1,1) lds={k['lds']}\n"
out += '.amdgcn_target "amdgcn-amd-amdhsa--gfx950"\n.text\n'
out += a.text()
out += '.section .rodata,"a"\n'
for k in infos:
    out += '.p2align 6\n' + kernel_desc(k['name'], k['vgpr'], accum=k.get('accum'))
dst = sys.argv[1] if len(sys.argv) > 1 else 'adaLN_cond__compressed_kv_cla__mixer_gmlp__prompt.s'
open(dst, 'w').write(out)
print('wrote', dst, len(out))
```

```python
from k_common import *
import os
EXP = os.environ.get('ATT_EXP', '')

def gen_attn(a):
    name = 'attn_kernel'
    WQL = 32768
    MODL = 131072
    QST = 131072
    SCRL = 163840 - 64
    kernel_header(a, name)
    dispense(a, 256, SCRL, 'AT')
    a(f'''
    s_load_dwordx2 s[6:7], s[0:1], {ARG['A_w_q']}
    s_load_dwordx2 s[8:9], s[0:1], {ARG['ws']}
    s_load_dwordx2 s[62:63], s[0:1], {ARG['A_w_o']}
    s_load_dwordx2 s[64:65], s[0:1], {ARG['B_w_sp']}
    s_load_dwordx2 s[66:67], s[0:1], {ARG['B_w_in']}
    s_load_dwordx2 s[68:69], s[0:1], {ARG['B_w_out']}
    v_lshrrev_b32 v1, 6, v0
    s_waitcnt lgkmcnt(0)
    v_readfirstlane_b32 s55, v1      ; wave 0..7
    s_cmp_ge_u32 s2, 256
    s_cbranch_scc1 AT_END
    s_and_b32 s3, s55, 3
    s_and_b32 s40, s2, 7
    s_lshr_b32 s41, s2, 3
    s_and_b32 s42, s41, 3
    s_lshl_b32 s40, s40, 2
    s_add_u32 s40, s40, s42          ; head
    s_lshr_b32 s56, s41, 2           ; pair p 0..7
    s_sub_u32 s42, 15, s56
    s_cmp_lt_u32 s55, 4
    s_cselect_b32 s41, s42, s56      ; qb
    ''')
    srd(a, 12, 8, 9, 2048 * 512 * 2, WS_N1)
    srd(a, 16, 6, 7, 512 * 4096 * 2)
    a(f'''
    s_lshl_b32 s42, s40, 19
    s_add_u32 s43, s42, {WS_K}
    s_add_u32 s20, s8, s43
    s_addc_u32 s21, s9, 0
    s_mov_b32 s22, 524288
    s_mov_b32 s23, 0x00020000
    s_add_u32 s43, s42, {WS_VT}
    s_add_u32 s24, s8, s43
    s_addc_u32 s25, s9, 0
    s_mov_b32 s26, 524288
    s_mov_b32 s27, 0x00020000
    ''')
    srd(a, 28, 8, 9, 2048 * 4096 * 2, WS_CTX)
    srd(a, 32, 8, 9, 3072 * 4, WS_MOD)
    X0 = 64
    QT = 192
    DKV = 16
    L16 = 17
    a(f'''
    s_lshl_b32 s36, s55, 10          ; wave*1024
    v_and_b32 v1, 63, v0             ; lane
    v_and_b32 v2, 31, v1             ; l%32
    v_lshrrev_b32 v3, 5, v1          ; half
    v_lshlrev_b32 v{L16}, 4, v1
    s_lshl_b32 s44, s41, 7
    s_lshl_b32 s45, s3, 5
    s_add_u32 s44, s44, s45          ; q0 = qb*128 + w*32
    s_lshl_b32 s45, s44, 10          ; rb*32768
    v_add_u32 v5, s45, v{L16}        ; n1 offset
    v_add_u32 v{DKV}, s36, v{L16}
    ''')
    for s in range(32):
        if s % 4 == 0:
            a(f's_mov_b32 s39, {(s//4)*4096}')
        a(f'buffer_load_dwordx4 v[{X0+4*s}:{X0+4*s+3}], v5, s[12:15], s39 offen offset:{(s%4)*1024}')
    a(f'''
    v_lshlrev_b32 v6, 3, v0
    buffer_load_dwordx2 v[8:9], v6, s[32:35], 0 offen
    v_lshrrev_b32 v12, 4, v1         ; lane/16
    v_and_b32 v13, 15, v1
    v_lshlrev_b32 v14, 2, v12
    v_xor_b32 v14, v14, v13
    s_lshl_b32 s45, s55, 2
    v_add_u32 v15, s45, v12          ; row 0..31
    v_lshlrev_b32 v18, 13, v15
    v_lshl_add_u32 v19, v14, 4, v18
    s_lshl_b32 s45, s40, 8
    v_add_u32 v19, s45, v19
    ''')
    def issue_wq(c):
        slot = c % 5
        for i in range(2):
            a(f'''
            s_add_u32 m0, s36, {WQL + slot*16384 + i*8192}
            s_mov_b32 s39, {(c*64 + i*32)*8192}
            buffer_load_dwordx4 v19, s[16:19], s39 offen lds
            ''')
    def issue_k(st):
        a(f'''
        s_lshl_b32 s50, s{st}, 14
        s_and_b32 s51, s{st}, 3
        s_lshl_b32 s51, s51, 14
        s_add_u32 s51, s51, s36
        s_mov_b32 m0, s51
        buffer_load_dwordx4 v{DKV}, s[20:23], s50 offen lds
        s_add_u32 m0, s51, 8192
        s_add_u32 s50, s50, 8192
        buffer_load_dwordx4 v{DKV}, s[20:23], s50 offen lds
        ''')
    def issue_v(st):
        a(f'''
        s_lshl_b32 s50, s{st}, 14
        s_add_u32 s51, s{st}, 3
        s_and_b32 s51, s51, 3
        s_lshl_b32 s51, s51, 14
        s_add_u32 s51, s51, s36
        s_add_u32 m0, s51, 65536
        buffer_load_dwordx4 v{DKV}, s[24:27], s50 offen lds
        s_add_u32 m0, s51, {65536+8192}
        s_add_u32 s50, s50, 8192
        buffer_load_dwordx4 v{DKV}, s[24:27], s50 offen lds
        ''')
    for c in range(4):
        issue_wq(c)
    a('s_mov_b32 s49, 0')
    issue_k(49); issue_v(49)
    a('s_mov_b32 s49, 1')
    issue_k(49)
    a(f'''
    v_bfe_u32 v12, v1, 2, 2          ; r
    v_and_b32 v13, 3, v1             ; c4
    v_bfe_u32 v14, v1, 4, 1          ; nsub
    v_lshlrev_b32 v15, 3, v3
    v_add_u32 v15, v15, v12
    v_lshlrev_b32 v15, 8, v15
    v_lshl_add_u32 v15, v14, 5, v15
    v_lshl_add_u32 v15, v13, 3, v15
    v_add_u32 v15, {WQL}, v15
    ''')
    for blk in range(4):
        a(f'''
        v_xor_b32 v18, {blk}, v12
        v_lshl_add_u32 v{20+blk}, v18, 6, v15
        v_add_u32 v{24+blk}, 0x8000, v{20+blk}
        ''')
    nd = 6
    a(f'''
    s_waitcnt vmcnt({8+nd})
    s_cmp_lt_u32 s55, 4
    s_cselect_b32 s45, 0, 1.0
    v_add_f32 v8, s45, v8
    v_add_f32 v9, s45, v9
    v_add_u32 v6, {MODL}, v6
    ds_write_b64 v6, v[8:9]
    s_waitcnt lgkmcnt(0)
    s_barrier
    v_lshlrev_b32 v18, 5, v3
    v_add_u32 v18, {MODL}, v18
    ''')
    for s in range(32):
        b = 28 if s % 2 == 0 else 44
        a(f'''
        ds_read_b128 v[{b}:{b+3}], v18 offset:{s*64}
        ds_read_b128 v[{b+4}:{b+7}], v18 offset:{s*64+16}
        ds_read_b128 v[{b+8}:{b+11}], v18 offset:{2048+s*64}
        ds_read_b128 v[{b+12}:{b+15}], v18 offset:{2048+s*64+16}
        ''')
        if s > 0:
            sp = s - 1
            bp = 28 if sp % 2 == 0 else 44
            a('s_waitcnt lgkmcnt(4)')
            for j in range(4):
                a(f'''
                v_lshlrev_b32 v{60}, 16, v{X0+4*sp+j}
                v_and_b32 v{61}, 0xffff0000, v{X0+4*sp+j}
                v_fma_f32 v60, v60, v{bp+8+2*j}, v{bp+2*j}
                v_fma_f32 v61, v61, v{bp+9+2*j}, v{bp+1+2*j}
                v_cvt_pk_bf16_f32 v{X0+4*sp+j}, v60, v61
                ''')
    a('s_waitcnt lgkmcnt(0)')
    sp = 31; bp = 44
    for j in range(4):
        a(f'''
        v_lshlrev_b32 v{60}, 16, v{X0+4*sp+j}
        v_and_b32 v{61}, 0xffff0000, v{X0+4*sp+j}
        v_fma_f32 v60, v60, v{bp+8+2*j}, v{bp+2*j}
        v_fma_f32 v61, v61, v{bp+9+2*j}, v{bp+1+2*j}
        v_cvt_pk_bf16_f32 v{X0+4*sp+j}, v60, v61
        ''')
    FW = 28
    def wq_reads(slot, s, buf):
        out = []
        vb, so = (20, slot) if slot < 2 else (24, slot - 2)
        for blk in range(4):
            for j in range(2):
                r = FW + buf*16 + blk*4 + j*2
                out.append(f'ds_read_b64_tr_b16 v[{r}:{r+1}], v{vb+blk} offset:{so*16384 + s*4096 + j*1024}')
        return out
    wcnt = [6+nd, 6+nd, 6+nd, 6+nd, 6, 4, 2, 0]
    for c in range(8):
        slot = c % 5
        a(f's_waitcnt vmcnt({wcnt[c]})')
        a('s_barrier')
        if c + 4 < 8:
            issue_wq(c + 4)
        for x in wq_reads(slot, 0, 0):
            a(x)
        for s in range(4):
            buf = s & 1
            a('s_waitcnt lgkmcnt(0)')
            nx = wq_reads(slot, s + 1, buf ^ 1) if s < 3 else []
            hx = X0 + 4*(c*4 + s)
            for blk in range(4):
                f = FW + buf*16 + blk*4
                q = QT + blk*16
                cc = '0' if (c == 0 and s == 0) else f'v[{q}:{q+15}]'
                a(f'v_mfma_f32_32x32x16_bf16 v[{q}:{q+15}], v[{f}:{f+3}], v[{hx}:{hx+3}], {cc}')
                for x in nx[blk*3:blk*3+3]:
                    a(x)
    QF = 64
    OA = 96
    SB = [160, 192]
    PF = 224
    KF = 28
    VF = 44
    KA, VA = 4, 5
    PFR = 240
    VM, VL, VMC, VAL, VT0, VT1, VDF = 18, 19, 20, 21, 22, 23, 24
    for s in range(8):
        blk, hf = s // 2, s % 2
        for j in range(4):
            r = QT + blk*16 + hf*8 + j*2
            a(f'v_cvt_pk_bf16_f32 v{QF+4*s+j}, v{r}, v{r+1}')
    a(f'''
    s_lshl_b32 s45, s3, 13
    s_add_u32 s45, s45, {QST}
    v_add_u32 v6, s45, v{L16}
    s_cmp_ge_u32 s55, 4
    s_cbranch_scc1 AT_NOSTASH
    ''')
    for s in range(8):
        a(f'ds_write_b128 v6, v[{QF+4*s}:{QF+4*s+3}] offset:{s*1024}')
    a.label('AT_NOSTASH')
    for i in range(64):
        a(f'v_mov_b32 v{OA+i}, 0')
    a(f"""
    v_mov_b32 v{VM}, 0xf149f2ca
    v_mov_b32 v{VL}, 0
    v_and_b32 v2, 31, v1
    v_lshrrev_b32 v3, 5, v1
    v_add_u32 v{VDF}, s44, v2        ; q
    v_lshlrev_b32 v25, 2, v3
    v_sub_u32 v{VDF}, v{VDF}, v25    ; q - 4*half
    s_lshl_b32 s59, s56, 1           ; 2p
    s_sub_u32 s46, 32, s59           ; ntiles
    s_add_u32 s53, s44, 31
    s_lshr_b32 s53, s53, 6
    s_mov_b32 s47, 0                 ; i
    s_mov_b32 s57, 0                 ; cur
    s_mov_b32 s60, 2                 ; kq
    s_mov_b32 s61, 1                 ; vq
    s_mov_b32 s48, 0x3e0293ee        ; c = 128^-0.5 * log2(e)
    s_mov_b32 s54, 0x41000000
    s_lshl_b32 s70, s2, 13
    s_add_u32 s70, s70, s36
    v_add_u32 v7, s70, v{L16}
    s_mov_b32 s75, 0x00020000
    v_mov_b32 v{KA}, v{L16}
    """)
    def kreads(s, buf):
        for kvb in range(2):
            r = KF + buf*8 + kvb*4
            a(f'ds_read_b128 v[{r}:{r+3}], v{KA} offset:{kvb*8192 + s*1024}')
    def vreads(u, dbp, buf):
        for i in range(2):
            db = dbp*2 + i
            r = VF + buf*8 + i*4
            a(f'ds_read_b128 v[{r}:{r+3}], v{VA} offset:{db*4096 + u*1024}')
    def interleave(mf, valu):
        n = len(mf)
        per = (len(valu) + n - 1) // n if n else 0
        k = 0
        for i, f in enumerate(mf):
            f()
            for _ in range(per):
                if k < len(valu):
                    a(valu[k]); k += 1
        while k < len(valu):
            a(valu[k]); k += 1
    def s_mfmas(S):
        mf = []
        for s in range(8):
            for kvb in range(2):
                def f(s=s, kvb=kvb):
                    buf = s & 1
                    if kvb == 0:
                        if s == 0:
                            kreads(0, 0)
                        if s < 7:
                            kreads(s + 1, buf ^ 1)
                            a('s_waitcnt lgkmcnt(2)')
                        else:
                            a('s_waitcnt lgkmcnt(0)')
                    r = KF + buf*8 + kvb*4
                    c = S + kvb*16
                    cc = '0' if s == 0 else f'v[{c}:{c+15}]'
                    a(f'v_mfma_f32_32x32x16_bf16 v[{c}:{c+15}], v[{r}:{r+3}], v[{QF+4*s}:{QF+4*s+3}], {cc}')
                mf.append(f)
        return mf
    def pv_mfmas():
        seq = [(u, dbp) for u in range(4) for dbp in range(2)]
        mf = []
        for n, (u, dbp) in enumerate(seq):
            for i in range(2):
                def f(n=n, u=u, dbp=dbp, i=i):
                    buf = n & 1
                    if i == 0:
                        if n == 0:
                            vreads(u, dbp, 0)
                        if n + 1 < len(seq):
                            vreads(seq[n+1][0], seq[n+1][1], buf ^ 1)
                            a('s_waitcnt lgkmcnt(2)')
                        else:
                            a('s_waitcnt lgkmcnt(0)')
                    db = dbp*2 + i
                    r = VF + buf*8 + i*4
                    c = OA + db*16
                    a(f'v_mfma_f32_32x32x16_bf16 v[{c}:{c+15}], v[{r}:{r+3}], v[{PF+4*u}:{PF+4*u+3}], v[{c}:{c+15}]')
                mf.append(f)
        return mf
    def mask_code(S):
        lnm = a.newlabel('AT_NOMASK')
        a(f"""
        s_lshl_b32 s51, s49, 6
        s_add_u32 s52, s51, 63
        s_cmp_le_u32 s52, s44
        s_cbranch_scc1 {lnm}
        v_subrev_u32 v{VT0}, s51, v{VDF}
        v_mov_b32 v{VT1}, 0xf149f2ca
        """)
        for kvb in range(2):
            for r in range(16):
                off = 32*kvb + 8*(r//4) + r % 4
                a(f"""
                v_cmp_gt_i32 vcc, {off}, v{VT0}
                v_cndmask_b32 v{S+kvb*16+r}, v{S+kvb*16+r}, v{VT1}, vcc
                """)
        a.label(lnm)
    def max_valu(S):
        v = [f'v_max3_f32 v{VT0}, v{S}, v{S+1}, v{S+2}']
        for i in range(3, 31, 2):
            v.append(f'v_max3_f32 v{VT0}, v{VT0}, v{S+i}, v{S+i+1}')
        v += [f'v_max_f32 v{VT0}, v{VT0}, v{S+31}',
              f'v_mov_b32 v{VT1}, v{VT0}',
              f'v_permlane32_swap_b32 v{VT0}, v{VT1}',
              f'v_max3_f32 v{VT0}, v{VT0}, v{VT1}, v{VM}',
              f'v_sub_f32 v{VT1}, v{VT0}, v{VM}',
              f'v_mul_f32 v{VT1}, s48, v{VT1}',
              f'v_cmp_lt_f32 vcc, s54, v{VT1}']
        return v
    def rescale_code():
        lnr = a.newlabel('AT_NORS')
        a(f"""
        s_cbranch_vccz {lnr}
        v_sub_f32 v{VAL}, 0, v{VT1}
        v_exp_f32 v{VAL}, v{VAL}
        v_mov_b32 v{VM}, v{VT0}
        v_mul_f32 v{VL}, v{VL}, v{VAL}
        """)
        for i in range(64):
            a(f'v_mul_f32 v{OA+i}, v{OA+i}, v{VAL}')
        a.label(lnr)
        a(f'v_mul_f32 v{VMC}, s48, v{VM}')
    def exp_valu(S):
        v = []
        for i in range(32):
            v.append(f'v_fma_f32 v{S+i}, v{S+i}, s48, -v{VMC}')
        w = []
        for i in range(32):
            w.append(f'v_exp_f32 v{S+i}, v{S+i}')
        out = v[:4]
        for i in range(32):
            out.append(w[i])
            if i + 4 < 32:
                out.append(v[i+4])
        for u in range(4):
            kvb, hf = u // 2, u % 2
            for j in range(4):
                r = S + kvb*16 + hf*8 + j*2
                out.append(f'v_cvt_pk_bf16_f32 v{PF+4*u+j}, v{r}, v{r+1}')
        return out
    def sum_valu(S):
        return [f'v_add_f32 v{VL}, v{VL}, v{S+i}' for i in range(32)]
    def ctx_addr():
        a(f'''
        s_lshl_b32 s45, s44, 13
        s_lshl_b32 s50, s40, 13
        s_add_u32 s45, s45, s50
        v_add_u32 v25, s45, v{L16}
        v_add_u32 v26, 4096, v25
        ''')
    def store_db(db, scale, T):
        for gp in range(2):
            c = OA + db*16 + gp*8
            t = T + gp*4
            for j in range(4):
                if scale is not None:
                    a(f'''
                    v_mul_f32 v{c+2*j}, v{c+2*j}, v{scale}
                    v_mul_f32 v{c+2*j+1}, v{c+2*j+1}, v{scale}
                    ''')
                a(f'v_cvt_pk_bf16_f32 v{t+j}, v{c+2*j}, v{c+2*j+1}')
            va = 25 if db < 2 else 26
            a(f'buffer_store_dwordx4 v[{t}:{t+3}], v{va}, s[28:31], 0 offen offset:{(db%2)*2048 + gp*1024}')
    a('s_mov_b32 s49, 0')
    interleave(s_mfmas(SB[0]), [])
    mask_code(SB[0])
    for x in max_valu(SB[0]):
        a(x)
    LOOP = 'AT_LOOP'
    a.label(LOOP)
    def body(p):
        lidle = a.newlabel('AT_IDLE'); ltail = a.newlabel('AT_TAIL'); ldone = a.newlabel('AT_DONE')
        Sc, Sn = SB[p], SB[p ^ 1]
        lk = a.newlabel('AT_K'); lv = a.newlabel('AT_V'); lp = a.newlabel('AT_P')
        a(f"""
        s_waitcnt vmcnt(0)
        s_barrier
        s_lshl_b32 s49, s47, 1
        s_sub_u32 s49, s49, s59          ; 2i - 2p
        s_add_u32 s52, s49, 3
        s_add_u32 s58, s47, 2
        s_cmp_lt_u32 s47, s59
        s_cselect_b32 s52, s58, s52      ; KT
        s_sub_u32 s58, s46, 1
        s_min_u32 s52, s52, s58
        s_add_u32 s49, s49, 1
        s_add_u32 s71, s47, 1
        s_cmp_le_u32 s47, s59
        s_cselect_b32 s49, s71, s49      ; VT
        s_min_u32 s49, s49, s58
        s_cmp_gt_u32 s60, s52
        s_cbranch_scc1 {lk}
        """)
        issue_k(60)
        a(f"""
        s_add_u32 s60, s60, 1
        s_cmp_gt_u32 s60, s52
        s_cbranch_scc1 {lk}
        """)
        issue_k(60)
        a('s_add_u32 s60, s60, 1')
        a.label(lk)
        a(f"""
        s_cmp_gt_u32 s61, s49
        s_cbranch_scc1 {lv}
        """)
        issue_v(61)
        a(f"""
        s_add_u32 s61, s61, 1
        s_cmp_gt_u32 s61, s49
        s_cbranch_scc1 {lv}
        """)
        issue_v(61)
        a('s_add_u32 s61, s61, 1')
        a.label(lv)
        if 'NOPF' not in EXP:
            a(f"""
            s_sub_u32 s49, s47, 4
            s_cmp_ge_u32 s49, 8
            s_cbranch_scc1 {lp}
            s_mov_b32 s72, s62
            s_mov_b32 s73, s63
            s_mov_b32 s74, {4096*512*2}
            s_lshl_b32 s52, s49, 21
            s_cmp_lt_u32 s49, 2
            s_cbranch_scc1 {lp}_go
            s_mov_b32 s72, s64
            s_mov_b32 s73, s65
            s_mov_b32 s74, {2048*2048*2}
            s_sub_u32 s52, s52, {2<<21}
            s_cmp_lt_u32 s49, 6
            s_cbranch_scc1 {lp}_go
            s_mov_b32 s72, s66
            s_mov_b32 s73, s67
            s_mov_b32 s74, {512*1376*2}
            s_mov_b32 s52, 0
            s_cmp_lt_u32 s49, 7
            s_cbranch_scc1 {lp}_go
            s_mov_b32 s72, s68
            s_mov_b32 s73, s69
            s_mov_b32 s74, {688*512*2}
            """)
            a.label(lp + '_go')
            a(f'buffer_load_dwordx4 v[{PFR}:{PFR+3}], v7, s[72:75], s52 offen')
            a.label(lp)
        a(f"""
        s_add_u32 s52, s59, 2
        s_cmp_ge_u32 s47, s52
        s_cselect_b32 s58, 2, 1          ; step
        s_add_u32 s49, s57, s58          ; next
        s_and_b32 s50, s49, 3
        s_lshl_b32 s50, s50, 14
        s_add_u32 s51, s57, 3
        s_and_b32 s51, s51, 3
        s_lshl_b32 s51, s51, 14
        s_add_u32 s51, s51, 65536
        v_add_u32 v{KA}, s50, v{L16}
        v_add_u32 v{VA}, s51, v{L16}
        s_cmp_gt_u32 s57, s53
        s_cbranch_scc1 {lidle}
        """)
        rescale_code()
        a(f"""
        s_cmp_gt_u32 s49, s53
        s_cbranch_scc1 {ltail}
        """)
        interleave(s_mfmas(Sn), exp_valu(Sc))
        mask_code(Sn)
        interleave(pv_mfmas(), sum_valu(Sc) + max_valu(Sn))
        a(f's_branch {ldone}')
        a.label(ltail)
        for x in exp_valu(Sc):
            a(x)
        interleave(pv_mfmas(), sum_valu(Sc))
        a.label(ldone)
        a.label(lidle)
        a('s_add_u32 s57, s57, s58')
        if p == 1:
            lns = a.newlabel('AT_NOSW')
            a(f"""
            s_add_u32 s52, s59, 1
            s_cmp_lg_u32 s47, s52
            s_cbranch_scc1 {lns}
            s_cmp_lt_u32 s55, 4
            s_cbranch_scc1 {lns}
            """)
            for s in range(8):
                a(f'ds_read_b128 v[{QF+4*s}:{QF+4*s+3}], v6 offset:{s*1024}')
            a(f'''
            v_mov_b32 v{VT0}, v{VL}
            v_permlane32_swap_b32 v{VL}, v{VT0}
            v_add_f32 v{VL}, v{VL}, v{VT0}
            v_rcp_f32 v{VL}, v{VL}
            ''')
            ctx_addr()
            for db in range(4):
                store_db(db, VL, Sc + (db % 4) * 8)
            for i in range(64):
                a(f'v_mov_b32 v{OA+i}, 0')
            a(f'''
            v_mov_b32 v{VM}, 0xf149f2ca
            v_mov_b32 v{VL}, 0
            s_sub_u32 s44, 15, s56
            s_lshl_b32 s44, s44, 7
            s_lshl_b32 s45, s3, 5
            s_add_u32 s44, s44, s45
            v_add_u32 v{VDF}, s44, v2
            v_lshlrev_b32 v25, 2, v3
            v_sub_u32 v{VDF}, v{VDF}, v25
            s_add_u32 s53, s44, 31
            s_lshr_b32 s53, s53, 6
            s_add_u32 s57, s59, 3            ; cur = 2p+3
            s_mov_b32 s49, s57
            s_and_b32 s50, s49, 3
            s_lshl_b32 s50, s50, 14
            v_add_u32 v{KA}, s50, v{L16}
            s_waitcnt lgkmcnt(0)
            s_cmp_gt_u32 s57, s53
            s_cbranch_scc1 {lns}
            ''')
            interleave(s_mfmas(Sn), [])
            mask_code(Sn)
            for x in max_valu(Sn):
                a(x)
            a.label(lns)
        a('s_add_u32 s47, s47, 1')
    body(0)
    a(f"""
    s_cmp_eq_u32 s47, 17
    s_cbranch_scc1 AT_MERGE
    """)
    body(1)
    a(f's_branch {LOOP}')
    a.label('AT_MERGE')
    a(f'''
    v_mov_b32 v{VT0}, v{VL}
    v_permlane32_swap_b32 v{VL}, v{VT0}
    v_add_f32 v{VL}, v{VL}, v{VT0}
    s_lshl_b32 s45, s55, 14
    v_add_u32 v8, s45, v{L16}
    v_lshlrev_b32 v9, 3, v1
    v_add_u32 v9, s45, v9
    s_xor_b32 s45, s45, 0x10000
    v_add_u32 v10, s45, v{L16}
    v_lshlrev_b32 v11, 3, v1
    v_add_u32 v11, s45, v11
    s_barrier
    s_cmp_ge_u32 s55, 4
    s_cbranch_scc1 AT_MG1
    ''')
    MO = 160
    def merge(keep, send, tag):
        for k in range(8):
            r = OA + send*16 + k*4
            a(f'ds_write_b128 v8, v[{r}:{r+3}] offset:{k*1024}')
        a(f'''
        ds_write_b64 v9, v[{VM}:{VL}] offset:8192
        s_waitcnt lgkmcnt(0)
        s_barrier
        ds_read_b64 v[{VT0}:{VT1}], v11 offset:8192
        ''')
        for k in range(8):
            a(f'ds_read_b128 v[{MO+k*4}:{MO+k*4+3}], v10 offset:{k*1024}')
        ctx_addr()
        a(f'''
        s_waitcnt lgkmcnt(8)
        v_max_f32 v{VMC}, v{VM}, v{VT0}
        v_sub_f32 v{VM}, v{VM}, v{VMC}
        v_sub_f32 v{VT0}, v{VT0}, v{VMC}
        v_mul_f32 v{VM}, s48, v{VM}
        v_mul_f32 v{VT0}, s48, v{VT0}
        v_exp_f32 v{VM}, v{VM}
        v_exp_f32 v{VT0}, v{VT0}
        v_mul_f32 v{VL}, v{VL}, v{VM}
        v_fma_f32 v{VL}, v{VT1}, v{VT0}, v{VL}
        v_rcp_f32 v{VL}, v{VL}
        v_mul_f32 v{VM}, v{VM}, v{VL}
        v_mul_f32 v{VT0}, v{VT0}, v{VL}
        s_waitcnt lgkmcnt(0)
        ''')
        for i in range(32):
            r = OA + keep*16 + i
            a(f'''
            v_mul_f32 v{r}, v{r}, v{VM}
            v_fma_f32 v{r}, v{MO+i}, v{VT0}, v{r}
            ''')
        for db in (keep, keep + 1):
            store_db(db, None, 192 + (db % 2) * 8)
    merge(0, 2, 'a')
    a('s_branch AT_END')
    a.label('AT_MG1')
    merge(2, 0, 'b')
    a.label('AT_END')
    a('s_endpgm')
    return dict(name=name, grid=256, block=512, lds=163840, vgpr=256)
```

```python
from k_common import *
import os
EXP = os.environ.get('KV_EXP', '')

def wave_sum(a, v, t):
    a(f'''
    v_add_f32_dpp v{t}, v{v}, v{v} quad_perm:[1,0,3,2] row_mask:0xf bank_mask:0xf
    v_add_f32_dpp v{v}, v{t}, v{t} quad_perm:[2,3,0,1] row_mask:0xf bank_mask:0xf
    v_add_f32_dpp v{t}, v{v}, v{v} row_half_mirror row_mask:0xf bank_mask:0xf
    v_add_f32_dpp v{v}, v{t}, v{t} row_mirror row_mask:0xf bank_mask:0xf
    v_mov_b32 v{t}, v{v}
    v_permlane16_swap_b32 v{v}, v{t}
    v_add_f32 v{v}, v{v}, v{t}
    v_mov_b32 v{t}, v{v}
    v_permlane32_swap_b32 v{v}, v{t}
    v_add_f32 v{v}, v{v}, v{t}
    ''')

def gen_kv(a):
    name = 'kv_kernel'
    RING = 131072
    SCR = RING + 64
    kernel_header(a, name)
    if 'EMPTY' in EXP:
        a('s_endpgm')
    dispense(a, 256, RING, 'KV')
    if 'DISP' in EXP:
        a('s_endpgm')
    a(f'''
    s_load_dwordx2 s[4:5], s[0:1], {ARG['A_c_kv']}
    s_load_dwordx2 s[6:7], s[0:1], {ARG['A_w_uk']}
    s_load_dwordx2 s[8:9], s[0:1], {ARG['A_w_uv']}
    s_load_dwordx2 s[10:11], s[0:1], {ARG['ws']}
    s_load_dwordx2 s[12:13], s[0:1], {ARG['c']}
    s_load_dwordx2 s[14:15], s[0:1], {ARG['w_mod']}
    s_load_dwordx2 s[60:61], s[0:1], {ARG['A_x']}
    v_lshrrev_b32 v1, 6, v0
    s_waitcnt lgkmcnt(0)
    v_readfirstlane_b32 s3, v1
    s_cmp_ge_u32 s2, 256
    s_cbranch_scc1 KV_END
    s_and_b32 s29, s2, 7
    s_lshr_b32 s30, s2, 3
    s_and_b32 s31, s30, 3
    s_lshl_b32 s29, s29, 2
    s_add_u32 s29, s29, s31          ; ntile 0..31
    s_lshr_b32 s30, s30, 2           ; mtile 0..7
    ''')
    srd(a, 16, 4, 5, 2048 * 512 * 2)
    a(f'''
    s_cmp_lt_u32 s29, 16
    s_cselect_b32 s20, s6, s8
    s_cselect_b32 s21, s7, s9
    s_mov_b32 s22, 4194304
    s_mov_b32 s23, 0x00020000
    s_and_b32 s31, s29, 15
    s_cmp_lt_u32 s29, 16
    s_mov_b32 s32, {WS_K}
    s_mov_b32 s33, {WS_VT}
    s_cselect_b32 s32, s32, s33
    s_lshl_b32 s33, s31, 20
    s_add_u32 s32, s32, s33
    s_add_u32 s24, s10, s32
    s_addc_u32 s25, s11, 0
    s_mov_b32 s26, 1048576
    s_mov_b32 s27, 0x00020000
    ''')
    srd(a, 64, 60, 61, 2048 * 512 * 2)
    srd(a, 68, 10, 11, 2048 * 512 * 2, WS_N1)
    srd(a, 72, 12, 13, 1024)
    srd(a, 76, 14, 15, 512 * 3072 * 2)
    srd(a, 80, 10, 11, 3072 * 4, WS_MOD)
    SX, SC, SW = 200, 204, 206
    a(f'''
    v_and_b32 v1, 63, v0             ; lane
    s_lshl_b32 s34, s2, 3
    s_add_u32 s34, s34, s3
    s_lshl_b32 s34, s34, 10
    v_lshl_add_u32 v212, v1, 4, s34  ; x offset
    s_lshl_b32 s34, s2, 3
    s_add_u32 s34, s34, s3
    s_lshr_b32 s35, s34, 5
    s_lshl_b32 s35, s35, 15          ; rb*32768
    s_and_b32 s34, s34, 31
    s_lshl_b32 s34, s34, 4
    s_add_u32 s34, s34, s35
    v_lshrrev_b32 v2, 1, v1
    v_lshlrev_b32 v2, 10, v2
    v_and_b32 v3, 1, v1
    v_lshl_add_u32 v2, v3, 9, v2
    v_add_u32 v213, s34, v2
    buffer_load_dwordx4 v[{SX}:{SX+3}], v212, s[64:67], 0 offen
    v_lshlrev_b32 v2, 1, v0
    buffer_load_ushort v{SC}, v2, s[72:75], 0 offen
    v_mul_u32_u24 v2, 6144, v0
    s_mul_i32 s34, s2, 24
    buffer_load_dwordx4 v[{SW}:{SW+3}], v2, s[76:79], s34 offen
    buffer_load_dwordx2 v[{SW+4}:{SW+5}], v2, s[76:79], s34 offen offset:16
    ''')
    a('''
    v_lshrrev_b32 v2, 2, v1          ; l/4
    v_lshrrev_b32 v3, 2, v2          ; (row>>2) (row%16)
    v_and_b32 v3, 3, v3
    v_and_b32 v4, 3, v1
    v_xor_b32 v3, v3, v4             ; chunk
    s_lshl_b32 s34, s3, 4
    s_lshl_b32 s35, s30, 8           ; m0
    s_add_u32 s34, s34, s35
    v_add_u32 v2, s34, v2
    v_lshlrev_b32 v2, 10, v2
    v_lshl_add_u32 v10, v3, 4, v2
    v_lshrrev_b32 v2, 5, v1          ; l/32
    s_lshl_b32 s34, s3, 1
    v_add_u32 v2, s34, v2
    v_and_b32 v3, 3, v2
    v_lshlrev_b32 v3, 2, v3
    v_and_b32 v4, 31, v1
    v_xor_b32 v3, v3, v4
    v_lshlrev_b32 v2, 13, v2
    v_lshl_add_u32 v11, v3, 4, v2
    s_lshl_b32 s34, s31, 9
    v_add_u32 v11, s34, v11
    s_lshl_b32 s36, s3, 10
    s_lshr_b32 s37, s3, 1            ; wm
    s_and_b32 s38, s3, 1             ; wn
    ''')
    def issue(t):
        slot = t % 4
        for i in range(2):
            a(f'''
            s_add_u32 m0, s36, {slot*32768 + i*8192}
            s_mov_b32 s39, {t*64 + i*131072}
            buffer_load_dwordx4 v10, s[16:19], s39 offen lds
            ''')
        for i in range(2):
            a(f'''
            s_add_u32 m0, s36, {slot*32768 + 16384 + i*8192}
            s_mov_b32 s39, {(t*32 + i*16)*8192}
            buffer_load_dwordx4 v11, s[20:23], s39 offen lds
            ''')
    for t in range(3):
        issue(t)
    a('''
    v_and_b32 v2, 31, v1
    v_lshrrev_b32 v3, 5, v1          ; half
    v_lshrrev_b32 v5, 2, v2
    v_and_b32 v5, 3, v5
    s_lshl_b32 s34, s37, 6
    v_add_u32 v4, s34, v2
    v_lshlrev_b32 v4, 6, v4          ; row*64
    ''')
    for s in range(2):
        a(f'''
        v_or_b32 v6, {2*s}, v3
        v_xor_b32 v6, v6, v5
        v_lshl_add_u32 v{12+s}, v6, 4, v4
        v_add_u32 v{14+s}, 0x10000, v{12+s}
        ''')
    a('''
    v_bfe_u32 v2, v1, 2, 2           ; r
    v_and_b32 v4, 3, v1              ; c4
    v_bfe_u32 v5, v1, 4, 1           ; nsub
    v_lshlrev_b32 v6, 3, v3
    v_add_u32 v6, v6, v2
    v_lshlrev_b32 v6, 9, v6
    v_lshl_add_u32 v6, v5, 5, v6
    v_lshl_add_u32 v6, v4, 3, v6
    v_add_u32 v6, 16384, v6
    ''')
    for nb in range(4):
        a(f'''
        s_lshl_b32 s34, s38, 2
        s_add_u32 s34, s34, {nb}
        v_xor_b32 v7, s34, v2
        v_lshl_add_u32 v{16+nb}, v7, 6, v6
        v_add_u32 v{20+nb}, 0x10000, v{16+nb}
        ''')
    ACC = 72
    FA = 24
    FB = 40
    for i in range(128):
        a(f'v_mov_b32 v{ACC+i}, 0')
    a(f'''
    s_waitcnt vmcnt(12)
    v_lshlrev_b32 v214, 16, v{SX}
    v_and_b32 v215, 0xffff0000, v{SX}
    v_lshlrev_b32 v216, 16, v{SX+1}
    v_and_b32 v217, 0xffff0000, v{SX+1}
    v_lshlrev_b32 v218, 16, v{SX+2}
    v_and_b32 v219, 0xffff0000, v{SX+2}
    v_lshlrev_b32 v220, 16, v{SX+3}
    v_and_b32 v221, 0xffff0000, v{SX+3}
    v_add_f32 v222, v214, v215
    v_add_f32 v223, v216, v217
    v_add_f32 v224, v218, v219
    v_add_f32 v225, v220, v221
    v_add_f32 v222, v222, v223
    v_add_f32 v224, v224, v225
    v_add_f32 v222, v222, v224
    ''')
    wave_sum(a, 222, 223)
    a('v_mul_f32 v222, 0x3b000000, v222')
    for j in range(8):
        a(f'v_sub_f32 v{214+j}, v{214+j}, v222')
    a('v_mul_f32 v222, v214, v214')
    for j in range(1, 8):
        a(f'v_fma_f32 v222, v{214+j}, v{214+j}, v222')
    wave_sum(a, 222, 223)
    a('''
    v_mov_b32 v223, 0x3727c5ac
    v_fmac_f32 v223, 0x3b000000, v222
    v_rsq_f32 v222, v223
    ''')
    for j in range(8):
        a(f'v_mul_f32 v{214+j}, v{214+j}, v222')
    for j in range(4):
        a(f'v_cvt_pk_bf16_f32 v{SX+j}, v{214+2*j}, v{215+2*j}')
    a(f'''
    v_lshlrev_b32 v{SC}, 16, v{SC}
    v_mul_f32 v214, 0xbfb8aa3b, v{SC}
    v_exp_f32 v214, v214
    v_add_f32 v214, 1.0, v214
    v_rcp_f32 v214, v214
    v_mul_f32 v{SC}, v{SC}, v214
    v_cvt_pk_bf16_f32 v{SC}, v{SC}, v{SC}
    v_lshlrev_b32 v{SC}, 16, v{SC}
    ''')
    for j in range(6):
        a(f'''
        v_lshlrev_b32 v{214+2*j}, 16, v{SW+j}
        v_and_b32 v{215+2*j}, 0xffff0000, v{SW+j}
        v_mul_f32 v{214+2*j}, v{214+2*j}, v{SC}
        v_mul_f32 v{215+2*j}, v{215+2*j}, v{SC}
        ''')
    for j in range(12):
        wave_sum(a, 214 + j, 227)
    a(f'''
    s_mul_i32 s34, s3, 48
    v_mov_b32 v227, s34
    v_add_u32 v227, {SCR}, v227
    s_mov_b64 exec, 1
    ds_write_b128 v227, v[214:217]
    ds_write_b128 v227, v[218:221] offset:16
    ds_write_b128 v227, v[222:225] offset:32
    s_mov_b64 exec, -1
    ''')

    def reads(t, s, buf):
        out = []
        if 'NOREADS' in EXP: return out
        slot = t % 4
        sb = (slot % 2) * 32768
        va, vb = (12, 16) if slot < 2 else (14, 20)
        for mb in range(2):
            r = FA + buf*8 + mb*4
            out.append(f'ds_read_b128 v[{r}:{r+3}], v{va+s} offset:{sb + mb*2048}')
        for nb in range(4):
            for j in range(2):
                r = FB + buf*16 + nb*4 + j*2
                out.append(f'ds_read_b64_tr_b16 v[{r}:{r+1}], v{vb+nb} offset:{sb + s*8192 + j*2048}')
        return out
    def issue_l(t):
        slot = t % 4
        out = []
        for i in range(2):
            out.append(f"""
            s_add_u32 m0, s36, {slot*32768 + i*8192}
            s_mov_b32 s39, {t*64 + i*131072}
            buffer_load_dwordx4 v10, s[16:19], s39 offen lds
            """)
        for i in range(2):
            out.append(f"""
            s_add_u32 m0, s36, {slot*32768 + 16384 + i*8192}
            s_mov_b32 s39, {(t*32 + i*16)*8192}
            buffer_load_dwordx4 v11, s[20:23], s39 offen lds
            """)
        return out
    def mfmas(buf, swapped):
        out = []
        for mb in range(2):
            for nb in range(4):
                c = ACC + (mb*4+nb)*16
                fa = FA + buf*8 + mb*4
                fb = FB + buf*16 + nb*4
                if swapped:
                    out.append(f'v_mfma_f32_32x32x16_bf16 v[{c}:{c+15}], v[{fb}:{fb+3}], v[{fa}:{fa+3}], v[{c}:{c+15}]')
                else:
                    out.append(f'v_mfma_f32_32x32x16_bf16 v[{c}:{c+15}], v[{fa}:{fa+3}], v[{fb}:{fb+3}], v[{c}:{c+15}]')
        return out
    def sched(mf, slots):
        for i, m in enumerate(mf):
            if 'NOMFMA' not in EXP:
                a(m)
            for x in slots.get(i, []):
                a(x)
    def spread(items, g0, per, slots):
        g = g0
        for i in range(0, len(items), per):
            slots.setdefault(g, []).extend(items[i:i+per]); g += 1
        return slots
    def mainloop(swapped):
        if 'LOOP0' in EXP:
            a('s_waitcnt vmcnt(0) lgkmcnt(0)')
            a('s_barrier')
            return
        a('s_waitcnt vmcnt(8) lgkmcnt(0)')
        a('s_barrier')
        for x in reads(0, 0, 0):
            a(x)
        for t in range(16):
            a('s_waitcnt lgkmcnt(0)')
            sl = spread(reads(t, 1, 1), 0, 2, {})
            if t + 1 < 16:
                infl = min(1, 14 - t)
                sl.setdefault(5, []).append(f's_waitcnt vmcnt({4*infl})')
                if 'NOBAR' not in EXP:
                    sl[5].append('s_barrier')
            sched(mfmas(0, swapped), sl)
            a('s_waitcnt lgkmcnt(0)')
            sl = {}
            if t + 1 < 16:
                spread(reads(t + 1, 0, 0), 0, 2, sl)
            if t + 3 < 16 and 'NODMA' not in EXP:
                spread(issue_l(t + 3), 4, 1, sl)
            sched(mfmas(1, swapped), sl)
    def side_store():
        a(f'''
        buffer_store_dwordx4 v[{SX}:{SX+3}], v213, s[68:71], 0 offen
        s_cmp_lg_u32 s3, 0
        s_cbranch_scc1 KV_END
        v_cmp_gt_u32 vcc, 12, v1
        s_and_saveexec_b64 s[42:43], vcc
        v_lshlrev_b32 v2, 2, v1
        v_add_u32 v3, {SCR}, v2
        ''')
        for w in range(8):
            a(f'ds_read_b32 v{4+w}, v3 offset:{w*48}')
        a(f'''
        s_waitcnt lgkmcnt(0)
        v_add_f32 v4, v4, v5
        v_add_f32 v6, v6, v7
        v_add_f32 v8, v8, v9
        v_add_f32 v10, v10, v11
        v_add_f32 v4, v4, v6
        v_add_f32 v8, v8, v10
        v_add_f32 v4, v4, v8
        v_cvt_pk_bf16_f32 v4, v4, v4
        v_lshlrev_b32 v4, 16, v4
        s_mul_i32 s34, s2, 48
        v_add_u32 v2, s34, v2
        buffer_store_dword v4, v2, s[80:83], 0 offen
        s_branch KV_END
        ''')
    a('''
    s_cmp_ge_u32 s29, 16
    s_cbranch_scc1 KV_VPART
    ''')
    mainloop(True)
    a('''
    s_lshr_b32 s34, s35, 5
    s_lshl_b32 s39, s37, 1
    s_add_u32 s34, s34, s39
    s_lshl_b32 s34, s34, 13
    s_lshl_b32 s39, s38, 19
    s_add_u32 s34, s34, s39
    v_lshl_add_u32 v2, v1, 4, s34
    v_add_u32 v3, 4096, v2
    v_add_u32 v8, 8192, v2
    v_add_u32 v9, 12288, v2
    ''')
    for mb in range(2):
        for nb in range(4):
            c = ACC + (mb*4+nb)*16
            for gp in range(2):
                va = [2, 3, 8, 9][mb*2 + nb//2]
                t = 24 + 4 * ((nb*2+gp) % 4)
                for j in range(4):
                    a(f'v_cvt_pk_bf16_f32 v{t+j}, v{c+gp*8+2*j}, v{c+gp*8+2*j+1}')
                if 'NOST' not in EXP:
                    a(f'buffer_store_dwordx4 v[{t}:{t+3}], v{va}, s[24:27], 0 offen offset:{(nb%2)*2048 + gp*1024}')
    side_store()
    a.label('KV_VPART')
    mainloop(False)
    a('''
    s_lshr_b32 s34, s35, 6
    s_add_u32 s34, s34, s37
    s_lshl_b32 s34, s34, 14
    s_lshl_b32 s39, s38, 19
    s_add_u32 s34, s34, s39
    v_lshl_add_u32 v2, v1, 4, s34
    v_add_u32 v8, 4096, v2
    v_add_u32 v9, 8192, v2
    v_add_u32 v10, 12288, v2
    ''')
    for mb in range(2):
        for nb in range(4):
            c = ACC + (mb*4+nb)*16
            for gp in range(2):
                va = [2, 8, 9, 10][nb]
                t = 24 + 4 * ((nb*2+gp) % 4)
                for j in range(4):
                    a(f'v_cvt_pk_bf16_f32 v{t+j}, v{c+gp*8+2*j}, v{c+gp*8+2*j+1}')
                if 'NOST' not in EXP:
                    a(f'buffer_store_dwordx4 v[{t}:{t+3}], v{va}, s[24:27], 0 offen offset:{(mb*2+gp)*1024}')
    side_store()
    a.label('KV_END')
    a('s_endpgm')
    return dict(name=name, grid=256, block=512, lds=RING + 64 + 448, vgpr=232)
```

```python
from k_common import *

def gemm_splitk(a, name, prefix, nmt, nnt, nstages, setup, lda, ldb, epilogue, bnorm=False, afrag=False):
    kernel_header(a, name)
    END = prefix + '_END'
    dispense(a, nmt*nnt, 65536 if bnorm else 131072, prefix, extra_barrier=bnorm)
    a(f'''
    s_load_dwordx2 s[4:5], s[0:1], {ARG['ws']}
    ''')
    setup_loads = setup(a, 'load')
    a(f'''
    v_lshrrev_b32 v1, 6, v0
    s_waitcnt lgkmcnt(0)
    v_readfirstlane_b32 s3, v1
    s_cmp_ge_u32 s2, {nmt*nnt}
    s_cbranch_scc1 {END}
    ''')
    a(f'''
    s_and_b32 s40, s2, 7
    s_lshr_b32 s41, s2, 3
    s_mov_b32 s42, {(1 << 32) // nnt + 1}
    s_mul_hi_u32 s43, s41, s42
    s_mul_i32 s42, s43, {nnt}
    s_sub_u32 s41, s41, s42          ; ntile
    s_lshl_b32 s43, s43, 3
    s_add_u32 s40, s40, s43          ; mtile
    ''')
    setup(a, 'srd')
    ACC = 64
    FA, FB = 20, 36
    BR = 128
    a(f'''
    s_lshl_b32 s36, s3, 10
    v_and_b32 v1, 63, v0
    v_and_b32 v2, 31, v1
    v_lshrrev_b32 v3, 5, v1
    v_lshrrev_b32 v4, 4, v1          ; lane/16
    s_lshl_b32 s34, s3, 2
    v_add_u32 v4, s34, v4            ; row 0..15
    v_and_b32 v5, 15, v1
    v_xor_b32 v5, v5, v4
    s_lshl_b32 s35, s40, 6           ; m0
    v_add_u32 v4, s35, v4
    s_mov_b32 s34, {lda}
    v_mul_lo_u32 v4, v4, s34
    v_lshl_add_u32 v10, v5, 4, v4
    v_lshrrev_b32 v4, 3, v1          ; lane/8
    v_bfe_u32 v5, v4, 1, 1
    v_lshlrev_b32 v5, 2, v5
    v_and_b32 v6, 7, v1
    v_xor_b32 v5, v5, v6
    s_lshl_b32 s34, s3, 3
    v_add_u32 v4, s34, v4            ; krow 0..31
    v_mov_b32 v9, v4
    s_mov_b32 s34, {ldb}
    v_mul_lo_u32 v4, v4, s34
    v_lshl_add_u32 v11, v5, 4, v4
    s_lshl_b32 s34, s41, 7           ; n0*2
    v_add_u32 v11, s34, v11          ; B voffset
    ''')
    if afrag:
        a('''
        s_lshl_b32 s34, s40, 19
        s_add_u32 s34, s34, s36
        v_lshl_add_u32 v10, v1, 4, s34
        ''')
    a('''
    v_and_b32 v5, 15, v2             ; row&15
    v_lshlrev_b32 v4, 8, v2          ; row*256
    s_lshl_b32 s34, s3, 2            ; w*4
    ''')
    for s in range(2):
        a(f'''
        v_or_b32 v6, {2*s}, v3
        v_or_b32 v6, s34, v6
        v_xor_b32 v6, v6, v5
        v_lshl_add_u32 v{12+s}, v6, 4, v4
        ''')
        if afrag:
            a(f'''
            s_lshl_b32 s37, s3, 11
            s_add_u32 s37, s37, {s*1024}
            v_lshl_add_u32 v{12+s}, v1, 4, s37
            ''')
    a('''
    v_bfe_u32 v4, v1, 2, 2           ; r
    v_and_b32 v5, 3, v1              ; c4
    v_bfe_u32 v6, v1, 4, 1           ; nsub
    v_lshlrev_b32 v7, HSH, v3
    v_add_u32 v7, v7, v4             ; 8half + r
    s_lshl_b32 s34, s3, 5
    v_add_u32 v7, s34, v7            ; + 32w
    v_lshlrev_b32 v7, 7, v7          ; *128
    v_lshl_add_u32 v7, v6, 5, v7
    v_lshl_add_u32 v7, v5, 3, v7
    v_add_u32 v7, 16384, v7
    v_lshrrev_b32 v4, 1, v4          ; (r>>1)&1
    '''.replace('HSH', '2' if afrag else '3'))
    for nb in range(2):
        a(f'''
        v_xor_b32 v6, {nb}, v4
        v_lshl_add_u32 v{14+nb}, v6, 6, v7
        ''')
    for i in range(64):
        a(f'v_mov_b32 v{ACC+i}, 0')
    setup(a, 'pre')
    NST = 2 if bnorm else 4
    def issueA(t, slot):
        for i in range(4):
            a(f'''
            s_add_u32 m0, s36, {slot*32768 + i*4096}
            s_mov_b32 s39, {(t*8192 + (i//2)*262144 + (i%2)*4096) if afrag else (t*256 + i*16*lda)}
            buffer_load_dwordx4 v10, s[12:15], s39 offen lds
            ''')
    def issueB(t, slot):
        for i in range(4):
            if bnorm:
                a(f'''
                s_mov_b32 s39, {(t*128 + i*32)*ldb}
                buffer_load_dwordx4 v[{BR+4*i}:{BR+4*i+3}], v11, s[16:19], s39 offen
                ''')
            else:
                a(f'''
                s_add_u32 m0, s36, {slot*32768 + 16384 + i*4096}
                s_mov_b32 s39, {(t*128 + i*32)*ldb}
                buffer_load_dwordx4 v11, s[16:19], s39 offen lds
                ''')
    def writeB(t, slot):
        a('s_waitcnt vmcnt(0)')
        for i in range(4):
            a(f'ds_read_b64 v[{144+2*i}:{145+2*i}], v17 offset:{(t*128 + i*32)*8}')
        a('s_waitcnt lgkmcnt(0)')
        for i in range(4):
            for j in range(4):
                r = BR + 4*i + j
                a(f'''
                v_lshlrev_b32 v152, 16, v{r}
                v_and_b32 v153, 0xffff0000, v{r}
                v_sub_f32 v152, v152, v{144+2*i}
                v_sub_f32 v153, v153, v{144+2*i}
                v_mul_f32 v152, v152, v{145+2*i}
                v_mul_f32 v153, v153, v{145+2*i}
                v_cvt_pk_bf16_f32 v{r}, v152, v153
                ''')
            a(f'ds_write_b128 v16, v[{BR+4*i}:{BR+4*i+3}] offset:{slot*32768 + 16384 + i*4096}')
    def reads(slot, s, buf):
        sb = slot * 32768
        va, vb = 12, 14
        if sb >= 65536:
            sb -= 65536; va, vb = 156, 158
        for mb in range(2):
            a(f'ds_read_b128 v[{FA+buf*8+mb*4}:{FA+buf*8+mb*4+3}], v{va+s} offset:{sb + mb*8192}')
        for nb in range(2):
            for j in range(2):
                r = FB + buf*8 + nb*4 + j*2
                a(f'ds_read_b64_tr_b16 v[{r}:{r+1}], v{vb+nb} offset:{sb + s*2048 + j*(1024 if afrag else 512)}')
    if NST > 2:
        for i in range(4):
            a(f'v_add_u32 v{156+i}, 0x10000, v{12+i}')
    if bnorm:
        a(f'''
        v_lshlrev_b32 v16, 4, v1
        v_add_u32 v16, s36, v16
        v_lshlrev_b32 v17, 3, v9
        v_add_u32 v17, 65536, v17
        ''')
        issueA(0, 0); issueB(0, 0); writeB(0, 0)
    else:
        for t in range(NST - 1):
            issueA(t, t); issueB(t, t)
    for t in range(nstages):
        slot = t % NST
        if bnorm:
            a('s_waitcnt vmcnt(0) lgkmcnt(0)')
        else:
            inflight = min(NST - 2, nstages - 1 - t)
            a(f's_waitcnt vmcnt({8*inflight})')
        a('s_barrier')
        tn = t + NST - 1
        if tn < nstages:
            issueA(tn, tn % NST); issueB(tn, tn % NST)
        reads(slot, 0, 0)
        reads(slot, 1, 1)
        for s in range(2):
            a(f's_waitcnt lgkmcnt({6 if s == 0 else 0})')
            for mb in range(2):
                for nb in range(2):
                    c = ACC + (mb*2+nb)*16
                    fa = FA + s*8 + mb*4
                    fb = FB + s*8 + nb*4
                    a(f'v_mfma_f32_32x32x16_bf16 v[{c}:{c+15}], v[{fb}:{fb+3}], v[{fa}:{fa+3}], v[{c}:{c+15}]')
        if bnorm and tn < nstages:
            writeB(tn, tn % NST)
    a(f'''
    s_waitcnt vmcnt(0) lgkmcnt(0)
    s_barrier
    s_lshl_b32 s34, s3, 14
    v_lshlrev_b32 v4, 4, v1
    v_add_u32 v5, s34, v4
    ''')
    for qd in range(16):
        a(f'ds_write_b128 v5, v[{ACC+4*qd}:{ACC+4*qd+3}] offset:{qd*1024}')
    a(f'''
    s_waitcnt lgkmcnt(0)
    s_barrier
    s_lshl_b32 s34, s3, 12
    v_add_u32 v5, s34, v4
    ''')
    for wv in range(4):
        for g in range(4):
            r = ACC + wv*16 + g*4
            a(f'ds_read_b128 v[{r}:{r+3}], v5 offset:{wv*16384 + g*1024}')
    a('s_waitcnt lgkmcnt(0)')
    for i in range(16):
        a(f'''
        v_add_f32 v{ACC+i}, v{ACC+i}, v{ACC+16+i}
        v_add_f32 v{ACC+32+i}, v{ACC+32+i}, v{ACC+48+i}
        v_add_f32 v{ACC+i}, v{ACC+i}, v{ACC+32+i}
        ''')
    a('''
    s_lshr_b32 s34, s3, 1
    s_lshl_b32 s34, s34, 5
    s_add_u32 s34, s34, s35
    v_add_u32 v4, s34, v2            ; row
    s_and_b32 s34, s3, 1
    s_lshl_b32 s34, s34, 5
    s_lshl_b32 s37, s41, 6
    s_add_u32 s34, s34, s37
    v_lshlrev_b32 v5, 2, v3
    v_add_u32 v5, s34, v5            ; col (g=0)
    ''')
    epilogue(a, ACC)
    a.label(END)
    a('s_endpgm')
    lds = NST * 32768 + (16384 if bnorm else 64)
    return dict(name=name, grid=nmt*nnt, block=256, lds=lds, vgpr=160)

def rbf(a, r):
    a(f'''
    v_cvt_pk_bf16_f32 v{r}, v{r}, v{r}
    v_lshlrev_b32 v{r}, 16, v{r}
    ''')

def gen_oproj(a):
    def setup(a, ph):
        if ph == 'load':
            a(f'''
            s_load_dwordx2 s[6:7], s[0:1], {ARG['A_w_o']}
            s_load_dwordx2 s[8:9], s[0:1], {ARG['A_x']}
            ''')
        elif ph == 'srd':
            srd(a, 12, 4, 5, 2048*4096*2, WS_CTX)
            srd(a, 16, 6, 7, 4096*512*2)
            srd(a, 20, 8, 9, 2048*512*2)
            srd(a, 24, 4, 5, 2048*512*2, WS_X2)
            srd(a, 28, 4, 5, 3072*4, WS_MOD)
    def epi(a, ACC):
        a('''
        v_lshlrev_b32 v6, 10, v4
        v_lshl_add_u32 v6, v5, 1, v6
        v_lshlrev_b32 v7, 2, v5          ; col*4
        v_add_u32 v7, 4096, v7
        ''')
        for g in range(4):
            a(f'''
            buffer_load_dwordx2 v[{20+2*g}:{21+2*g}], v6, s[20:23], 0 offen offset:{g*16}
            buffer_load_dwordx4 v[{28+4*g}:{31+4*g}], v7, s[28:31], 0 offen offset:{g*32}
            ''')
        a('s_waitcnt vmcnt(0)')
        for g in range(4):
            for j in range(4):
                r = ACC + g*4 + j
                rbf(a, r)
                a(f'v_mul_f32 v{r}, v{r}, v{28+4*g+j}')
                rbf(a, r)
                xs = 20 + 2*g + j//2
                if j % 2 == 0:
                    a(f'v_lshlrev_b32 v44, 16, v{xs}')
                else:
                    a(f'v_and_b32 v44, 0xffff0000, v{xs}')
                a(f'v_add_f32 v{r}, v{r}, v44')
            a(f'''
            v_cvt_pk_bf16_f32 v{46+2*(g%2)}, v{ACC+g*4}, v{ACC+g*4+1}
            v_cvt_pk_bf16_f32 v{47+2*(g%2)}, v{ACC+g*4+2}, v{ACC+g*4+3}
            buffer_store_dwordx2 v[{46+2*(g%2)}:{47+2*(g%2)}], v6, s[24:27], 0 offen offset:{g*16}
            ''')
    return gemm_splitk(a, 'oproj_kernel', 'OP', 32, 8, 32, setup, 8192, 1024, epi, afrag=True)

def gen_wout(a):
    def setup(a, ph):
        if ph == 'load':
            a(f'''
            s_load_dwordx2 s[6:7], s[0:1], {ARG['B_w_out']}
            s_load_dwordx2 s[8:9], s[0:1], {ARG['out']}
            ''')
        elif ph == 'srd':
            srd(a, 12, 4, 5, 2048*ZP*2, WS_Y)
            srd(a, 16, 6, 7, 688*512*2)
            srd(a, 20, 4, 5, 2048*512*2, WS_X2)
            srd(a, 24, 8, 9, 2048*512*2)
            srd(a, 28, 4, 5, 3072*4, WS_MOD)
    def epi(a, ACC):
        a('''
        v_lshlrev_b32 v6, 10, v4
        v_lshl_add_u32 v6, v5, 1, v6
        v_lshlrev_b32 v7, 2, v5
        v_add_u32 v7, 10240, v7
        ''')
        for g in range(4):
            a(f'''
            buffer_load_dwordx2 v[{20+2*g}:{21+2*g}], v6, s[20:23], 0 offen offset:{g*16}
            buffer_load_dwordx4 v[{28+4*g}:{31+4*g}], v7, s[28:31], 0 offen offset:{g*32}
            ''')
        a('s_waitcnt vmcnt(0)')
        for g in range(4):
            for j in range(4):
                r = ACC + g*4 + j
                rbf(a, r)
                a(f'v_mul_f32 v{r}, v{r}, v{28+4*g+j}')
                rbf(a, r)
                xs = 20 + 2*g + j//2
                if j % 2 == 0:
                    a(f'v_lshlrev_b32 v44, 16, v{xs}')
                else:
                    a(f'v_and_b32 v44, 0xffff0000, v{xs}')
                a(f'v_add_f32 v{r}, v{r}, v44')
            a(f'''
            v_cvt_pk_bf16_f32 v{46+2*(g%2)}, v{ACC+g*4}, v{ACC+g*4+1}
            v_cvt_pk_bf16_f32 v{47+2*(g%2)}, v{ACC+g*4+2}, v{ACC+g*4+3}
            buffer_store_dwordx2 v[{46+2*(g%2)}:{47+2*(g%2)}], v6, s[24:27], 0 offen offset:{g*16}
            ''')
    return gemm_splitk(a, 'wout_kernel', 'WO', 32, 8, 6, setup, ZP*2, 1024, epi)

def gen_sp(a):
    def setup(a, ph):
        if ph == 'load':
            a(f'''
            s_load_dwordx2 s[6:7], s[0:1], {ARG['B_w_sp']}
            s_load_dwordx2 s[8:9], s[0:1], {ARG['B_b_sp']}
            ''')
        elif ph == 'srd':
            srd(a, 12, 6, 7, 2048*2048*2)
            srd(a, 16, 4, 5, 2048*ZP*2, WS_Z2)
            srd(a, 20, 4, 5, 2048*ZP*2, WS_Z1)
            srd(a, 24, 4, 5, 2048*ZP*2, WS_Y)
            srd(a, 28, 8, 9, 2048*2)
            srd(a, 44, 4, 5, 6*2048*8, WS_STAT)
        elif ph == 'pre':
            a('v_lshlrev_b32 v16, 3, v0')
            a('v_add_u32 v17, 0x10000, v16')
            for i in range(8):
                for p in range(6):
                    a(f'''
                    s_mov_b32 s39, {p*16384 + i*2048}
                    buffer_load_dwordx2 v[{128+2*p}:{129+2*p}], v16, s[44:47], s39 offen
                    ''')
                a('s_waitcnt vmcnt(0)')
                a('''
                v_add_f32 v128, v128, v130
                v_add_f32 v129, v129, v131
                v_add_f32 v132, v132, v134
                v_add_f32 v133, v133, v135
                v_add_f32 v136, v136, v138
                v_add_f32 v137, v137, v139
                v_add_f32 v128, v128, v132
                v_add_f32 v129, v129, v133
                v_add_f32 v128, v128, v136
                v_add_f32 v129, v129, v137
                v_mul_f32 v128, 0x3abe82fa, v128     ; mean (1/688)
                v_mul_f32 v129, 0x3abe82fa, v129     ; E[x^2]
                v_fma_f32 v129, -v128, v128, v129
                v_max_f32 v129, 0, v129
                v_add_f32 v129, 0x3727c5ac, v129
                v_rsq_f32 v129, v129
                ''')
                a(f'ds_write_b64 v17, v[128:129] offset:{i*2048}')
            a('''
            s_waitcnt lgkmcnt(0)
            s_barrier
            ''')
    def epi(a, ACC):
        a(f'''
        s_mov_b32 s34, {ZP*2}
        v_mul_lo_u32 v6, v4, s34
        v_lshl_add_u32 v6, v5, 1, v6
        v_lshlrev_b32 v7, 1, v4
        buffer_load_ushort v44, v7, s[28:31], 0 offen
        ''')
        for g in range(4):
            a(f'buffer_load_dwordx2 v[{20+2*g}:{21+2*g}], v6, s[20:23], 0 offen offset:{g*16}')
        a('''
        s_waitcnt vmcnt(0)
        v_lshlrev_b32 v44, 16, v44
        ''')
        for g in range(4):
            for j in range(4):
                r = ACC + g*4 + j
                rbf(a, r)
                a(f'v_add_f32 v{r}, v{r}, v44')
                rbf(a, r)
                xs = 20 + 2*g + j//2
                if j % 2 == 0:
                    a(f'v_lshlrev_b32 v45, 16, v{xs}')
                else:
                    a(f'v_and_b32 v45, 0xffff0000, v{xs}')
                a(f'v_mul_f32 v{r}, v{r}, v45')
            a(f'''
            v_cvt_pk_bf16_f32 v{46+2*(g%2)}, v{ACC+g*4}, v{ACC+g*4+1}
            v_cvt_pk_bf16_f32 v{47+2*(g%2)}, v{ACC+g*4+2}, v{ACC+g*4+3}
            v_add_u32 v45, {8*g}, v5
            v_cmp_gt_u32 vcc, 688, v45
            v_cndmask_b32 v{46+2*(g%2)}, 0, v{46+2*(g%2)}, vcc
            v_cndmask_b32 v{47+2*(g%2)}, 0, v{47+2*(g%2)}, vcc
            buffer_store_dwordx2 v[{46+2*(g%2)}:{47+2*(g%2)}], v6, s[24:27], 0 offen offset:{g*16}
            ''')
    return gemm_splitk(a, 'sp_kernel', 'SP', 32, 11, 16, setup, 4096, ZP*2, epi, bnorm=True)

def gen_win(a):
    name = 'win_kernel'
    kernel_header(a, name)
    NNT = 11
    dispense(a, 16*NNT, 65536 + 4096, 'WI')
    a(f'''
    s_load_dwordx2 s[4:5], s[0:1], {ARG['ws']}
    s_load_dwordx2 s[6:7], s[0:1], {ARG['B_w_in']}
    v_lshrrev_b32 v1, 6, v0
    s_waitcnt lgkmcnt(0)
    v_readfirstlane_b32 s3, v1
    s_cmp_ge_u32 s2, {16*NNT}
    s_cbranch_scc1 WI_END
    s_and_b32 s40, s2, 15            ; mtile
    s_lshr_b32 s41, s2, 4            ; ntile
    ''')
    srd(a, 12, 4, 5, 2048*512*2, WS_X2)
    srd(a, 16, 6, 7, 512*1376*2)
    srd(a, 20, 4, 5, 0x400000 + 2048*ZP*2, WS_Z1)
    srd(a, 24, 4, 5, 6*2048*8, WS_STAT)
    srd(a, 32, 4, 5, 4096, WS_MOD + 6144)
    MODL = 65536
    X0 = 64; QT = 192
    a(f'''
    s_lshl_b32 s36, s3, 10
    v_and_b32 v1, 63, v0
    v_and_b32 v2, 31, v1
    v_lshrrev_b32 v3, 5, v1
    s_lshl_b32 s44, s40, 7
    s_lshl_b32 s45, s3, 5
    s_add_u32 s44, s44, s45          ; row0
    v_add_u32 v4, s44, v2
    v_lshlrev_b32 v5, 10, v4
    v_lshl_add_u32 v5, v3, 4, v5
    ''')
    for s in range(32):
        a(f'buffer_load_dwordx4 v[{X0+4*s}:{X0+4*s+3}], v5, s[12:15], 0 offen offset:{s*32}')
    a(f'''
    v_lshlrev_b32 v6, 4, v0
    buffer_load_dwordx4 v[8:11], v6, s[32:35], 0 offen offset:0
    ''')
    a.lines[-1] = a.lines[-1]
    a('''
    v_lshrrev_b32 v12, 4, v1
    v_and_b32 v13, 15, v1
    v_lshlrev_b32 v14, 2, v12
    v_xor_b32 v14, v14, v13
    s_lshl_b32 s45, s3, 2
    v_add_u32 v15, s45, v12
    s_mov_b32 s45, 2752
    v_mul_lo_u32 v15, v15, s45
    v_lshl_add_u32 v16, v14, 4, v15
    s_lshl_b32 s45, s41, 8
    v_add_u32 v16, s45, v16
    ''')
    def issue_w(c):
        slot = c % 4
        for i in range(4):
            a(f'''
            s_add_u32 m0, s36, {slot*16384 + i*4096}
            s_mov_b32 s39, {(c*64 + i*16)*2752}
            buffer_load_dwordx4 v16, s[16:19], s39 offen lds
            ''')
    for c in range(3):
        issue_w(c)
    a('''
    v_bfe_u32 v12, v1, 2, 2
    v_and_b32 v13, 3, v1
    v_bfe_u32 v14, v1, 4, 1
    v_lshlrev_b32 v15, 3, v3
    v_add_u32 v15, v15, v12
    v_lshlrev_b32 v15, 8, v15
    v_lshl_add_u32 v15, v14, 5, v15
    v_lshl_add_u32 v15, v13, 3, v15
    ''')
    for blk in range(4):
        a(f'''
        v_xor_b32 v17, {blk}, v12
        v_lshl_add_u32 v{20+blk}, v17, 6, v15
        ''')
    a(f'''
    s_waitcnt vmcnt(12)
    v_add_u32 v6, {MODL}, v6
    ds_write_b128 v6, v[8:11]
    v_mov_b32 v24, 0
    v_mov_b32 v25, 0
    ''')
    for r in range(128):
        a(f'''
        v_lshlrev_b32 v26, 16, v{X0+r}
        v_and_b32 v27, 0xffff0000, v{X0+r}
        v_add_f32 v24, v24, v26
        v_add_f32 v25, v25, v27
        ''')
    a('''
    v_add_f32 v24, v24, v25
    v_mov_b32 v25, v24
    v_permlane32_swap_b32 v24, v25
    v_add_f32 v24, v24, v25
    v_mul_f32 v24, 0x3b000000, v24
    v_mov_b32 v25, 0
    v_mov_b32 v28, 0
    ''')
    for r in range(128):
        a(f'''
        v_lshlrev_b32 v26, 16, v{X0+r}
        v_and_b32 v27, 0xffff0000, v{X0+r}
        v_sub_f32 v26, v26, v24
        v_sub_f32 v27, v27, v24
        v_fma_f32 v25, v26, v26, v25
        v_fma_f32 v28, v27, v27, v28
        ''')
    a(f'''
    v_add_f32 v25, v25, v28
    v_mov_b32 v26, v25
    v_permlane32_swap_b32 v25, v26
    v_add_f32 v25, v25, v26
    v_mov_b32 v26, 0x3727c5ac
    v_fmac_f32 v26, 0x3b000000, v25
    v_rsq_f32 v25, v26
    s_waitcnt lgkmcnt(0)
    s_barrier
    v_lshlrev_b32 v26, 5, v3
    v_add_u32 v26, {MODL}, v26
    ''')
    for s in range(32):
        a(f'''
        ds_read_b128 v[28:31], v26 offset:{s*64}
        ds_read_b128 v[32:35], v26 offset:{s*64+16}
        ds_read_b128 v[36:39], v26 offset:{2048+s*64}
        ds_read_b128 v[40:43], v26 offset:{2048+s*64+16}
        ''')
        for j in range(4):
            a(f'''
            v_lshlrev_b32 v{44+2*j}, 16, v{X0+4*s+j}
            v_and_b32 v{45+2*j}, 0xffff0000, v{X0+4*s+j}
            ''')
        for j in range(8):
            a(f'''
            v_sub_f32 v{44+j}, v{44+j}, v24
            v_mul_f32 v{44+j}, v{44+j}, v25
            ''')
        a('s_waitcnt lgkmcnt(0)')
        for j in range(8):
            a(f'''
            v_add_f32 v{36+j}, 1.0, v{36+j}
            v_fma_f32 v{44+j}, v{44+j}, v{36+j}, v{28+j}
            ''')
        for j in range(4):
            a(f'v_cvt_pk_bf16_f32 v{X0+4*s+j}, v{44+2*j}, v{45+2*j}')
    for i in range(64):
        a(f'v_mov_b32 v{QT+i}, 0')
    FW = 28
    def w_reads(slot, s, buf):
        for blk in range(4):
            for j in range(2):
                r = FW + buf*16 + blk*4 + j*2
                a(f'ds_read_b64_tr_b16 v[{r}:{r+1}], v{20+blk} offset:{slot*16384 + s*4096 + j*1024}')
    for c in range(8):
        slot = c % 4
        inflight = min(2, 7 - c)
        a(f's_waitcnt vmcnt({4*inflight})')
        a('s_barrier')
        if c + 3 < 8:
            issue_w(c + 3)
        w_reads(slot, 0, 0)
        for s in range(4):
            buf = s & 1
            if s < 3:
                w_reads(slot, s + 1, buf ^ 1)
                a('s_waitcnt lgkmcnt(8)')
            else:
                a('s_waitcnt lgkmcnt(0)')
            hx = X0 + 4*(c*4 + s)
            for blk in range(4):
                f = FW + buf*16 + blk*4
                q = QT + blk*16
                a(f'v_mfma_f32_32x32x16_bf16 v[{q}:{q+15}], v[{f}:{f+3}], v[{hx}:{hx+3}], v[{q}:{q+15}]')
    a(f'''
    v_add_u32 v4, s44, v2            ; row
    s_mov_b32 s34, {ZP*2}
    v_mul_lo_u32 v6, v4, s34         ; row*1408
    s_lshl_b32 s37, s41, 7
    v_lshlrev_b32 v5, 2, v3
    v_add_u32 v5, s37, v5
    v_mov_b32 v24, 0
    v_mov_b32 v25, 0
    s_mov_b32 s48, 1376
    s_mov_b32 s46, 0x3d372713        ; 0.044715
    s_mov_b32 s47, 0xc0135761        ; -2*0.7978845608*log2(e)
    ''')
    for blk in range(4):
        for g in range(4):
            for j in range(4):
                r = QT + blk*16 + g*4 + j
                rbf(a, r)
                a(f'''
                v_mul_f32 v26, v{r}, v{r}
                v_fma_f32 v26, v26, s46, 1.0
                v_mul_f32 v26, v26, v{r}
                v_mul_f32 v26, s47, v26
                v_exp_f32 v26, v26
                v_add_f32 v26, 1.0, v26
                v_rcp_f32 v26, v26
                v_mul_f32 v{r}, v{r}, v26
                ''')
                rbf(a, r)
            r = QT + blk*16 + g*4
            a(f'''
            v_cvt_pk_bf16_f32 v28, v{r}, v{r+1}
            v_cvt_pk_bf16_f32 v29, v{r+2}, v{r+3}
            v_add_u32 v26, {blk*32 + g*8}, v5        ; col
            v_lshl_add_u32 v27, v26, 1, v6           ; z1 offset
            v_add_u32 v30, {0x400000 - 688*2}, v27   ; z2 offset
            v_cmp_gt_u32 vcc, 688, v26
            v_cndmask_b32 v27, v30, v27, vcc
            v_mov_b32 v30, 0x7ffffff0
            v_cmp_gt_u32 s[50:51], s48, v26
            v_cndmask_b32 v27, v30, v27, s[50:51]
            buffer_store_dwordx2 v[28:29], v27, s[20:23], 0 offen
            s_andn2_b64 s[50:51], s[50:51], vcc
            v_cndmask_b32 v30, 0, v{r}, s[50:51]
            v_cndmask_b32 v31, 0, v{r+1}, s[50:51]
            v_cndmask_b32 v32, 0, v{r+2}, s[50:51]
            v_cndmask_b32 v33, 0, v{r+3}, s[50:51]
            v_add_f32 v24, v24, v30
            v_fma_f32 v25, v30, v30, v25
            v_add_f32 v24, v24, v31
            v_fma_f32 v25, v31, v31, v25
            v_add_f32 v24, v24, v32
            v_fma_f32 v25, v32, v32, v25
            v_add_f32 v24, v24, v33
            v_fma_f32 v25, v33, v33, v25
            ''')
    a(f'''
    s_cmp_lt_u32 s41, 5
    s_cbranch_scc1 WI_END
    v_mov_b32 v26, v24
    v_mov_b32 v27, v25
    v_permlane32_swap_b32 v24, v26
    v_permlane32_swap_b32 v25, v27
    v_add_f32 v24, v24, v26
    v_add_f32 v25, v25, v27
    v_lshlrev_b32 v6, 3, v4
    s_sub_u32 s34, s41, 5
    s_lshl_b32 s34, s34, 14
    v_add_u32 v6, s34, v6
    v_mov_b32 v7, 0x7ffffff0
    v_cmp_gt_u32 vcc, 32, v1
    v_cndmask_b32 v6, v7, v6, vcc
    buffer_store_dwordx2 v[24:25], v6, s[24:27], 0 offen
    ''')
    a.label('WI_END')
    a('s_endpgm')
    return dict(name=name, grid=16*NNT, block=256, lds=65536 + 4096 + 64, vgpr=256)

GENS = [gen_oproj, gen_win, gen_sp, gen_wout]
```

```python
from k_common import *
import os
EXP = os.environ.get('ATT_EXP', '')

def gen_attn(a):
    name = 'attn_kernel'
    WQL = 32768
    MODL = 131072
    QST = 131072
    SCRL = 163840 - 64
    kernel_header(a, name)
    dispense(a, 256, SCRL, 'AT')
    a(f'''
    s_load_dwordx2 s[6:7], s[0:1], {ARG['A_w_q']}
    s_load_dwordx2 s[8:9], s[0:1], {ARG['ws']}
    s_load_dwordx2 s[62:63], s[0:1], {ARG['A_w_o']}
    s_load_dwordx2 s[64:65], s[0:1], {ARG['B_w_sp']}
    s_load_dwordx2 s[66:67], s[0:1], {ARG['B_w_in']}
    s_load_dwordx2 s[68:69], s[0:1], {ARG['B_w_out']}
    v_lshrrev_b32 v1, 6, v0
    s_waitcnt lgkmcnt(0)
    v_readfirstlane_b32 s55, v1      ; wave 0..7
    s_cmp_ge_u32 s2, 256
    s_cbranch_scc1 AT_END
    s_and_b32 s3, s55, 3
    s_and_b32 s40, s2, 7
    s_lshr_b32 s41, s2, 3
    s_and_b32 s42, s41, 3
    s_lshl_b32 s40, s40, 2
    s_add_u32 s40, s40, s42          ; head
    s_lshr_b32 s56, s41, 2           ; pair p 0..7
    s_sub_u32 s42, 15, s56
    s_cmp_lt_u32 s55, 4
    s_cselect_b32 s41, s42, s56      ; qb
    ''')
    srd(a, 12, 8, 9, 2048 * 512 * 2, WS_N1)
    srd(a, 16, 6, 7, 512 * 4096 * 2)
    a(f'''
    s_lshl_b32 s42, s40, 19
    s_add_u32 s43, s42, {WS_K}
    s_add_u32 s20, s8, s43
    s_addc_u32 s21, s9, 0
    s_mov_b32 s22, 524288
    s_mov_b32 s23, 0x00020000
    s_add_u32 s43, s42, {WS_VT}
    s_add_u32 s24, s8, s43
    s_addc_u32 s25, s9, 0
    s_mov_b32 s26, 524288
    s_mov_b32 s27, 0x00020000
    ''')
    srd(a, 28, 8, 9, 2048 * 4096 * 2, WS_CTX)
    srd(a, 32, 8, 9, 3072 * 4, WS_MOD)
    X0 = 64
    QT = 192
    DKV = 16
    L16 = 17
    a(f'''
    s_lshl_b32 s36, s55, 10          ; wave*1024
    v_and_b32 v1, 63, v0             ; lane
    v_and_b32 v2, 31, v1             ; l%32
    v_lshrrev_b32 v3, 5, v1          ; half
    v_lshlrev_b32 v{L16}, 4, v1
    s_lshl_b32 s44, s41, 7
    s_lshl_b32 s45, s3, 5
    s_add_u32 s44, s44, s45          ; q0 = qb*128 + w*32
    s_lshl_b32 s45, s44, 10          ; rb*32768
    v_add_u32 v5, s45, v{L16}        ; n1 offset
    v_add_u32 v{DKV}, s36, v{L16}
    ''')
    for s in range(32):
        if s % 4 == 0:
            a(f's_mov_b32 s39, {(s//4)*4096}')
        a(f'buffer_load_dwordx4 v[{X0+4*s}:{X0+4*s+3}], v5, s[12:15], s39 offen offset:{(s%4)*1024}')
    a(f'''
    v_lshlrev_b32 v6, 3, v0
    buffer_load_dwordx2 v[8:9], v6, s[32:35], 0 offen
    v_lshrrev_b32 v12, 4, v1         ; lane/16
    v_and_b32 v13, 15, v1
    v_lshlrev_b32 v14, 2, v12
    v_xor_b32 v14, v14, v13
    s_lshl_b32 s45, s55, 2
    v_add_u32 v15, s45, v12          ; row 0..31
    v_lshlrev_b32 v18, 13, v15
    v_lshl_add_u32 v19, v14, 4, v18
    s_lshl_b32 s45, s40, 8
    v_add_u32 v19, s45, v19
    ''')
    def issue_wq(c):
        slot = c % 5
        for i in range(2):
            a(f'''
            s_add_u32 m0, s36, {WQL + slot*16384 + i*8192}
            s_mov_b32 s39, {(c*64 + i*32)*8192}
            buffer_load_dwordx4 v19, s[16:19], s39 offen lds
            ''')
    def issue_k(st):
        if 'E4' in EXP and st != 49: return
        a(f'''
        s_lshl_b32 s50, s{st}, 14
        s_and_b32 s51, s{st}, 3
        s_lshl_b32 s51, s51, 14
        s_add_u32 s51, s51, s36
        s_mov_b32 m0, s51
        buffer_load_dwordx4 v{DKV}, s[20:23], s50 offen lds
        s_add_u32 m0, s51, 8192
        s_add_u32 s50, s50, 8192
        buffer_load_dwordx4 v{DKV}, s[20:23], s50 offen lds
        ''')
    def issue_v(st):
        if 'E4' in EXP and st != 49: return
        a(f'''
        s_lshl_b32 s50, s{st}, 14
        s_add_u32 s51, s{st}, 3
        s_and_b32 s51, s51, 3
        s_lshl_b32 s51, s51, 14
        s_add_u32 s51, s51, s36
        s_add_u32 m0, s51, 65536
        buffer_load_dwordx4 v{DKV}, s[24:27], s50 offen lds
        s_add_u32 m0, s51, {65536+8192}
        s_add_u32 s50, s50, 8192
        buffer_load_dwordx4 v{DKV}, s[24:27], s50 offen lds
        ''')
    for c in range(4):
        issue_wq(c)
    a('s_mov_b32 s49, 0')
    issue_k(49); issue_v(49)
    a('s_mov_b32 s49, 1')
    issue_k(49)
    a(f'''
    v_bfe_u32 v12, v1, 2, 2          ; r
    v_and_b32 v13, 3, v1             ; c4
    v_bfe_u32 v14, v1, 4, 1          ; nsub
    v_lshlrev_b32 v15, 3, v3
    v_add_u32 v15, v15, v12
    v_lshlrev_b32 v15, 8, v15
    v_lshl_add_u32 v15, v14, 5, v15
    v_lshl_add_u32 v15, v13, 3, v15
    v_add_u32 v15, {WQL}, v15
    ''')
    for blk in range(4):
        a(f'''
        v_xor_b32 v18, {blk}, v12
        v_lshl_add_u32 v{20+blk}, v18, 6, v15
        v_add_u32 v{24+blk}, 0x8000, v{20+blk}
        ''')
    nd = 6
    a(f'''
    s_waitcnt vmcnt({8+nd})
    s_cmp_lt_u32 s55, 4
    s_cselect_b32 s45, 0, 1.0
    v_add_f32 v8, s45, v8
    v_add_f32 v9, s45, v9
    v_add_u32 v6, {MODL}, v6
    ds_write_b64 v6, v[8:9]
    s_waitcnt lgkmcnt(0)
    s_barrier
    v_lshlrev_b32 v18, 5, v3
    v_add_u32 v18, {MODL}, v18
    ''')
    for s in range(32):
        b = 28 if s % 2 == 0 else 44
        a(f'''
        ds_read_b128 v[{b}:{b+3}], v18 offset:{s*64}
        ds_read_b128 v[{b+4}:{b+7}], v18 offset:{s*64+16}
        ds_read_b128 v[{b+8}:{b+11}], v18 offset:{2048+s*64}
        ds_read_b128 v[{b+12}:{b+15}], v18 offset:{2048+s*64+16}
        ''')
        if s > 0:
            sp = s - 1
            bp = 28 if sp % 2 == 0 else 44
            a('s_waitcnt lgkmcnt(4)')
            for j in range(4):
                a(f'''
                v_lshlrev_b32 v{60}, 16, v{X0+4*sp+j}
                v_and_b32 v{61}, 0xffff0000, v{X0+4*sp+j}
                v_fma_f32 v60, v60, v{bp+8+2*j}, v{bp+2*j}
                v_fma_f32 v61, v61, v{bp+9+2*j}, v{bp+1+2*j}
                v_cvt_pk_bf16_f32 v{X0+4*sp+j}, v60, v61
                ''')
    a('s_waitcnt lgkmcnt(0)')
    sp = 31; bp = 44
    for j in range(4):
        a(f'''
        v_lshlrev_b32 v{60}, 16, v{X0+4*sp+j}
        v_and_b32 v{61}, 0xffff0000, v{X0+4*sp+j}
        v_fma_f32 v60, v60, v{bp+8+2*j}, v{bp+2*j}
        v_fma_f32 v61, v61, v{bp+9+2*j}, v{bp+1+2*j}
        v_cvt_pk_bf16_f32 v{X0+4*sp+j}, v60, v61
        ''')
    FW = 28
    def wq_reads(slot, s, buf):
        out = []
        vb, so = (20, slot) if slot < 2 else (24, slot - 2)
        for blk in range(4):
            for j in range(2):
                r = FW + buf*16 + blk*4 + j*2
                out.append(f'ds_read_b64_tr_b16 v[{r}:{r+1}], v{vb+blk} offset:{so*16384 + s*4096 + j*1024}')
        return out
    wcnt = [6+nd, 6+nd, 6+nd, 6+nd, 6, 4, 2, 0]
    for c in range(8):
        if 'E7' in EXP:
            a('s_waitcnt vmcnt(0)')
            a('s_barrier')
            break
        slot = c % 5
        a(f's_waitcnt vmcnt({wcnt[c]})')
        a('s_barrier')
        if c + 4 < 8:
            issue_wq(c + 4)
        for x in wq_reads(slot, 0, 0):
            a(x)
        for s in range(4):
            buf = s & 1
            a('s_waitcnt lgkmcnt(0)')
            nx = wq_reads(slot, s + 1, buf ^ 1) if s < 3 else []
            hx = X0 + 4*(c*4 + s)
            for blk in range(4):
                f = FW + buf*16 + blk*4
                q = QT + blk*16
                cc = '0' if (c == 0 and s == 0) else f'v[{q}:{q+15}]'
                a(f'v_mfma_f32_32x32x16_bf16 v[{q}:{q+15}], v[{f}:{f+3}], v[{hx}:{hx+3}], {cc}')
                for x in nx[blk*3:blk*3+3]:
                    a(x)
    QF = 64
    OA = 96
    SB = [160, 192]
    PF = 224
    KF = 28
    VF = 44
    KA, VA = 4, 5
    PFR = 240
    VM, VL, VMC, VAL, VT0, VT1, VDF = 18, 19, 20, 21, 22, 23, 24
    for s in range(8):
        blk, hf = s // 2, s % 2
        for j in range(4):
            r = QT + blk*16 + hf*8 + j*2
            a(f'v_cvt_pk_bf16_f32 v{QF+4*s+j}, v{r}, v{r+1}')
    a(f'''
    s_lshl_b32 s45, s3, 13
    s_add_u32 s45, s45, {QST}
    v_add_u32 v6, s45, v{L16}
    s_cmp_ge_u32 s55, 4
    s_cbranch_scc1 AT_NOSTASH
    ''')
    for s in range(8):
        a(f'ds_write_b128 v6, v[{QF+4*s}:{QF+4*s+3}] offset:{s*1024}')
    a.label('AT_NOSTASH')
    for i in range(64):
        a(f'v_mov_b32 v{OA+i}, 0')
    a(f"""
    v_mov_b32 v{VM}, 0xf149f2ca
    v_mov_b32 v{VL}, 0
    v_and_b32 v2, 31, v1
    v_lshrrev_b32 v3, 5, v1
    v_add_u32 v{VDF}, s44, v2        ; q
    v_lshlrev_b32 v25, 2, v3
    v_sub_u32 v{VDF}, v{VDF}, v25    ; q - 4*half
    s_lshl_b32 s59, s56, 1           ; 2p
    s_sub_u32 s46, 32, s59           ; ntiles
    s_add_u32 s53, s44, 31
    s_lshr_b32 s53, s53, 6
    s_mov_b32 s47, 0                 ; i
    s_mov_b32 s57, 0                 ; cur
    s_mov_b32 s60, 2                 ; kq
    s_mov_b32 s61, 1                 ; vq
    s_mov_b32 s48, 0x3e0293ee        ; c = 128^-0.5 * log2(e)
    s_mov_b32 s54, 0x41000000
    s_lshl_b32 s70, s2, 13
    s_add_u32 s70, s70, s36
    v_add_u32 v7, s70, v{L16}
    s_mov_b32 s75, 0x00020000
    v_mov_b32 v{KA}, v{L16}
    """)
    def kreads(s, buf):
        if 'E3' in EXP: return
        for kvb in range(2):
            r = KF + buf*8 + kvb*4
            a(f'ds_read_b128 v[{r}:{r+3}], v{KA} offset:{kvb*8192 + s*1024}')
    def vreads(u, dbp, buf):
        if 'E3' in EXP: return
        for i in range(2):
            db = dbp*2 + i
            r = VF + buf*8 + i*4
            a(f'ds_read_b128 v[{r}:{r+3}], v{VA} offset:{db*4096 + u*1024}')
    def interleave(mf, valu):
        n = len(mf)
        per = (len(valu) + n - 1) // n if n else 0
        k = 0
        for i, f in enumerate(mf):
            f()
            for _ in range(per):
                if k < len(valu):
                    a(valu[k]); k += 1
        while k < len(valu):
            a(valu[k]); k += 1
    def s_mfmas(S):
        mf = []
        for s in range(8):
            for kvb in range(2):
                def f(s=s, kvb=kvb):
                    buf = s & 1
                    if kvb == 0:
                        if s == 0:
                            kreads(0, 0)
                        if s < 7:
                            kreads(s + 1, buf ^ 1)
                            a('s_waitcnt lgkmcnt(2)')
                        else:
                            a('s_waitcnt lgkmcnt(0)')
                    r = KF + buf*8 + kvb*4
                    c = S + kvb*16
                    cc = '0' if s == 0 else f'v[{c}:{c+15}]'
                    a(f'v_mfma_f32_32x32x16_bf16 v[{c}:{c+15}], v[{r}:{r+3}], v[{QF+4*s}:{QF+4*s+3}], {cc}')
                mf.append(f)
        return mf
    def pv_mfmas():
        seq = [(u, dbp) for u in range(4) for dbp in range(2)]
        mf = []
        for n, (u, dbp) in enumerate(seq):
            for i in range(2):
                def f(n=n, u=u, dbp=dbp, i=i):
                    buf = n & 1
                    if i == 0:
                        if n == 0:
                            vreads(u, dbp, 0)
                        if n + 1 < len(seq):
                            vreads(seq[n+1][0], seq[n+1][1], buf ^ 1)
                            a('s_waitcnt lgkmcnt(2)')
                        else:
                            a('s_waitcnt lgkmcnt(0)')
                    db = dbp*2 + i
                    r = VF + buf*8 + i*4
                    c = OA + db*16
                    a(f'v_mfma_f32_32x32x16_bf16 v[{c}:{c+15}], v[{r}:{r+3}], v[{PF+4*u}:{PF+4*u+3}], v[{c}:{c+15}]')
                mf.append(f)
        return mf
    def mask_code(S):
        lnm = a.newlabel('AT_NOMASK')
        a(f"""
        s_lshl_b32 s51, s49, 6
        s_add_u32 s52, s51, 63
        s_cmp_le_u32 s52, s44
        s_cbranch_scc1 {lnm}
        v_subrev_u32 v{VT0}, s51, v{VDF}
        v_mov_b32 v{VT1}, 0xf149f2ca
        """)
        for kvb in range(2):
            for r in range(16):
                off = 32*kvb + 8*(r//4) + r % 4
                a(f"""
                v_cmp_gt_i32 vcc, {off}, v{VT0}
                v_cndmask_b32 v{S+kvb*16+r}, v{S+kvb*16+r}, v{VT1}, vcc
                """)
        a.label(lnm)
    def max_valu(S):
        v = [f'v_max3_f32 v{VT0}, v{S}, v{S+1}, v{S+2}']
        for i in range(3, 31, 2):
            v.append(f'v_max3_f32 v{VT0}, v{VT0}, v{S+i}, v{S+i+1}')
        v += [f'v_max_f32 v{VT0}, v{VT0}, v{S+31}',
              f'v_mov_b32 v{VT1}, v{VT0}',
              f'v_permlane32_swap_b32 v{VT0}, v{VT1}',
              f'v_max3_f32 v{VT0}, v{VT0}, v{VT1}, v{VM}',
              f'v_sub_f32 v{VT1}, v{VT0}, v{VM}',
              f'v_mul_f32 v{VT1}, s48, v{VT1}',
              f'v_cmp_lt_f32 vcc, s54, v{VT1}']
        return v
    def rescale_code():
        lnr = a.newlabel('AT_NORS')
        a(f"""
        s_cbranch_vccz {lnr}
        v_sub_f32 v{VAL}, 0, v{VT1}
        v_exp_f32 v{VAL}, v{VAL}
        v_mov_b32 v{VM}, v{VT0}
        v_mul_f32 v{VL}, v{VL}, v{VAL}
        """)
        for i in range(64):
            a(f'v_mul_f32 v{OA+i}, v{OA+i}, v{VAL}')
        a.label(lnr)
        a(f'v_mul_f32 v{VMC}, s48, v{VM}')
    def exp_valu(S):
        if 'E2' in EXP: return []
        v = []
        for i in range(32):
            v.append(f'v_fma_f32 v{S+i}, v{S+i}, s48, -v{VMC}')
        w = []
        for i in range(32):
            w.append(f'v_exp_f32 v{S+i}, v{S+i}')
        out = v[:4]
        for i in range(32):
            out.append(w[i])
            if i + 4 < 32:
                out.append(v[i+4])
        for u in range(4):
            kvb, hf = u // 2, u % 2
            for j in range(4):
                r = S + kvb*16 + hf*8 + j*2
                out.append(f'v_cvt_pk_bf16_f32 v{PF+4*u+j}, v{r}, v{r+1}')
        return out
    def sum_valu(S):
        if 'E2' in EXP: return []
        return [f'v_add_f32 v{VL}, v{VL}, v{S+i}' for i in range(32)]
    def ctx_addr():
        a(f'''
        s_lshl_b32 s45, s44, 13
        s_lshl_b32 s50, s40, 13
        s_add_u32 s45, s45, s50
        v_add_u32 v25, s45, v{L16}
        v_add_u32 v26, 4096, v25
        ''')
    def store_db(db, scale, T):
        for gp in range(2):
            c = OA + db*16 + gp*8
            t = T + gp*4
            for j in range(4):
                if scale is not None:
                    a(f'''
                    v_mul_f32 v{c+2*j}, v{c+2*j}, v{scale}
                    v_mul_f32 v{c+2*j+1}, v{c+2*j+1}, v{scale}
                    ''')
                a(f'v_cvt_pk_bf16_f32 v{t+j}, v{c+2*j}, v{c+2*j+1}')
            va = 25 if db < 2 else 26
            a(f'buffer_store_dwordx4 v[{t}:{t+3}], v{va}, s[28:31], 0 offen offset:{(db%2)*2048 + gp*1024}')
    a('s_mov_b32 s49, 0')
    interleave(s_mfmas(SB[0]), [])
    mask_code(SB[0])
    for x in max_valu(SB[0]):
        a(x)
    if 'E1' in EXP:
        a('s_branch AT_MERGE')
    LOOP = 'AT_LOOP'
    a.label(LOOP)
    def body(p):
        lidle = a.newlabel('AT_IDLE'); ltail = a.newlabel('AT_TAIL'); ldone = a.newlabel('AT_DONE')
        Sc, Sn = SB[p], SB[p ^ 1]
        lk = a.newlabel('AT_K'); lv = a.newlabel('AT_V'); lp = a.newlabel('AT_P')
        a(f"""
        s_waitcnt vmcnt(0)
        s_barrier
        s_lshl_b32 s49, s47, 1
        s_sub_u32 s49, s49, s59          ; 2i - 2p
        s_add_u32 s52, s49, 3
        s_add_u32 s58, s47, 2
        s_cmp_lt_u32 s47, s59
        s_cselect_b32 s52, s58, s52      ; KT
        s_sub_u32 s58, s46, 1
        s_min_u32 s52, s52, s58
        s_add_u32 s49, s49, 1
        s_add_u32 s71, s47, 1
        s_cmp_le_u32 s47, s59
        s_cselect_b32 s49, s71, s49      ; VT
        s_min_u32 s49, s49, s58
        s_cmp_gt_u32 s60, s52
        s_cbranch_scc1 {lk}
        """)
        issue_k(60)
        a(f"""
        s_add_u32 s60, s60, 1
        s_cmp_gt_u32 s60, s52
        s_cbranch_scc1 {lk}
        """)
        issue_k(60)
        a('s_add_u32 s60, s60, 1')
        a.label(lk)
        a(f"""
        s_cmp_gt_u32 s61, s49
        s_cbranch_scc1 {lv}
        """)
        issue_v(61)
        a(f"""
        s_add_u32 s61, s61, 1
        s_cmp_gt_u32 s61, s49
        s_cbranch_scc1 {lv}
        """)
        issue_v(61)
        a('s_add_u32 s61, s61, 1')
        a.label(lv)
        if 'NOPF' not in EXP:
            a(f"""
            s_sub_u32 s49, s47, 4
            s_cmp_ge_u32 s49, 8
            s_cbranch_scc1 {lp}
            s_mov_b32 s72, s62
            s_mov_b32 s73, s63
            s_mov_b32 s74, {4096*512*2}
            s_lshl_b32 s52, s49, 21
            s_cmp_lt_u32 s49, 2
            s_cbranch_scc1 {lp}_go
            s_mov_b32 s72, s64
            s_mov_b32 s73, s65
            s_mov_b32 s74, {2048*2048*2}
            s_sub_u32 s52, s52, {2<<21}
            s_cmp_lt_u32 s49, 6
            s_cbranch_scc1 {lp}_go
            s_mov_b32 s72, s66
            s_mov_b32 s73, s67
            s_mov_b32 s74, {512*1376*2}
            s_mov_b32 s52, 0
            s_cmp_lt_u32 s49, 7
            s_cbranch_scc1 {lp}_go
            s_mov_b32 s72, s68
            s_mov_b32 s73, s69
            s_mov_b32 s74, {688*512*2}
            """)
            a.label(lp + '_go')
            a(f'buffer_load_dwordx4 v[{PFR}:{PFR+3}], v7, s[72:75], s52 offen')
            a.label(lp)
        a(f"""
        s_add_u32 s52, s59, 2
        s_cmp_ge_u32 s47, s52
        s_cselect_b32 s58, 2, 1          ; step
        s_add_u32 s49, s57, s58          ; next
        s_and_b32 s50, s49, 3
        s_lshl_b32 s50, s50, 14
        s_add_u32 s51, s57, 3
        s_and_b32 s51, s51, 3
        s_lshl_b32 s51, s51, 14
        s_add_u32 s51, s51, 65536
        v_add_u32 v{KA}, s50, v{L16}
        v_add_u32 v{VA}, s51, v{L16}
        s_cmp_gt_u32 s57, s53
        s_cbranch_scc1 {lidle}
        """)
        rescale_code()
        a(f"""
        s_cmp_gt_u32 s49, s53
        s_cbranch_scc1 {ltail}
        """)
        interleave(s_mfmas(Sn), exp_valu(Sc))
        mask_code(Sn)
        interleave(pv_mfmas(), sum_valu(Sc) + max_valu(Sn))
        a(f's_branch {ldone}')
        a.label(ltail)
        for x in exp_valu(Sc):
            a(x)
        interleave(pv_mfmas(), sum_valu(Sc))
        a.label(ldone)
        a.label(lidle)
        a('s_add_u32 s57, s57, s58')
        if p == 1:
            lns = a.newlabel('AT_NOSW')
            a(f"""
            s_add_u32 s52, s59, 1
            s_cmp_lg_u32 s47, s52
            s_cbranch_scc1 {lns}
            s_cmp_lt_u32 s55, 4
            s_cbranch_scc1 {lns}
            """)
            for s in range(8):
                a(f'ds_read_b128 v[{QF+4*s}:{QF+4*s+3}], v6 offset:{s*1024}')
            a(f'''
            v_mov_b32 v{VT0}, v{VL}
            v_permlane32_swap_b32 v{VL}, v{VT0}
            v_add_f32 v{VL}, v{VL}, v{VT0}
            v_rcp_f32 v{VL}, v{VL}
            ''')
            ctx_addr()
            for db in range(4):
                store_db(db, VL, Sc + (db % 4) * 8)
            for i in range(64):
                a(f'v_mov_b32 v{OA+i}, 0')
            a(f'''
            v_mov_b32 v{VM}, 0xf149f2ca
            v_mov_b32 v{VL}, 0
            s_sub_u32 s44, 15, s56
            s_lshl_b32 s44, s44, 7
            s_lshl_b32 s45, s3, 5
            s_add_u32 s44, s44, s45
            v_add_u32 v{VDF}, s44, v2
            v_lshlrev_b32 v25, 2, v3
            v_sub_u32 v{VDF}, v{VDF}, v25
            s_add_u32 s53, s44, 31
            s_lshr_b32 s53, s53, 6
            s_add_u32 s57, s59, 3            ; cur = 2p+3
            s_mov_b32 s49, s57
            s_and_b32 s50, s49, 3
            s_lshl_b32 s50, s50, 14
            v_add_u32 v{KA}, s50, v{L16}
            s_waitcnt lgkmcnt(0)
            s_cmp_gt_u32 s57, s53
            s_cbranch_scc1 {lns}
            ''')
            interleave(s_mfmas(Sn), [])
            mask_code(Sn)
            for x in max_valu(Sn):
                a(x)
            a.label(lns)
        a('s_add_u32 s47, s47, 1')
    body(0)
    a(f"""
    s_cmp_eq_u32 s47, 17
    s_cbranch_scc1 AT_MERGE
    """)
    body(1)
    a(f's_branch {LOOP}')
    a.label('AT_MERGE')
    a(f'''
    v_mov_b32 v{VT0}, v{VL}
    v_permlane32_swap_b32 v{VL}, v{VT0}
    v_add_f32 v{VL}, v{VL}, v{VT0}
    s_lshl_b32 s45, s55, 14
    v_add_u32 v8, s45, v{L16}
    v_lshlrev_b32 v9, 3, v1
    v_add_u32 v9, s45, v9
    s_xor_b32 s45, s45, 0x10000
    v_add_u32 v10, s45, v{L16}
    v_lshlrev_b32 v11, 3, v1
    v_add_u32 v11, s45, v11
    s_barrier
    s_cmp_ge_u32 s55, 4
    s_cbranch_scc1 AT_MG1
    ''')
    MO = 160
    def merge(keep, send, tag):
        for k in range(8):
            r = OA + send*16 + k*4
            a(f'ds_write_b128 v8, v[{r}:{r+3}] offset:{k*1024}')
        a(f'''
        ds_write_b64 v9, v[{VM}:{VL}] offset:8192
        s_waitcnt lgkmcnt(0)
        s_barrier
        ds_read_b64 v[{VT0}:{VT1}], v11 offset:8192
        ''')
        for k in range(8):
            a(f'ds_read_b128 v[{MO+k*4}:{MO+k*4+3}], v10 offset:{k*1024}')
        ctx_addr()
        a(f'''
        s_waitcnt lgkmcnt(8)
        v_max_f32 v{VMC}, v{VM}, v{VT0}
        v_sub_f32 v{VM}, v{VM}, v{VMC}
        v_sub_f32 v{VT0}, v{VT0}, v{VMC}
        v_mul_f32 v{VM}, s48, v{VM}
        v_mul_f32 v{VT0}, s48, v{VT0}
        v_exp_f32 v{VM}, v{VM}
        v_exp_f32 v{VT0}, v{VT0}
        v_mul_f32 v{VL}, v{VL}, v{VM}
        v_fma_f32 v{VL}, v{VT1}, v{VT0}, v{VL}
        v_rcp_f32 v{VL}, v{VL}
        v_mul_f32 v{VM}, v{VM}, v{VL}
        v_mul_f32 v{VT0}, v{VT0}, v{VL}
        s_waitcnt lgkmcnt(0)
        ''')
        for i in range(32):
            r = OA + keep*16 + i
            a(f'''
            v_mul_f32 v{r}, v{r}, v{VM}
            v_fma_f32 v{r}, v{MO+i}, v{VT0}, v{r}
            ''')
        for db in (keep, keep + 1):
            store_db(db, None, 192 + (db % 2) * 8)
    merge(0, 2, 'a')
    a('s_branch AT_END')
    a.label('AT_MG1')
    merge(2, 0, 'b')
    a.label('AT_END')
    a('s_endpgm')
    return dict(name=name, grid=256, block=512, lds=163840, vgpr=256)
```

```python
from k_common import *

def gemm_splitk(a, name, prefix, nmt, nnt, nstages, setup, lda, ldb, epilogue, bnorm=False, afrag=False, rbstride=262144, browmap=None):
    kernel_header(a, name)
    END = prefix + '_END'
    dispense(a, nmt*nnt, 65536 if bnorm else 131072, prefix, extra_barrier=bnorm)
    a(f'''
    s_load_dwordx2 s[4:5], s[0:1], {ARG['ws']}
    ''')
    setup_loads = setup(a, 'load')
    a(f'''
    v_lshrrev_b32 v1, 6, v0
    s_waitcnt lgkmcnt(0)
    v_readfirstlane_b32 s3, v1
    s_cmp_ge_u32 s2, {nmt*nnt}
    s_cbranch_scc1 {END}
    ''')
    a(f'''
    s_and_b32 s40, s2, 7
    s_lshr_b32 s41, s2, 3
    s_mov_b32 s42, {(1 << 32) // nnt + 1}
    s_mul_hi_u32 s43, s41, s42
    s_mul_i32 s42, s43, {nnt}
    s_sub_u32 s41, s41, s42          ; ntile
    s_lshl_b32 s43, s43, 3
    s_add_u32 s40, s40, s43          ; mtile
    ''')
    setup(a, 'srd')
    ACC = 64
    FA, FB = 20, 36
    BR = 128
    a(f'''
    s_lshl_b32 s36, s3, 10
    v_and_b32 v1, 63, v0
    v_and_b32 v2, 31, v1
    v_lshrrev_b32 v3, 5, v1
    v_lshrrev_b32 v4, 4, v1          ; lane/16
    s_lshl_b32 s34, s3, 2
    v_add_u32 v4, s34, v4            ; row 0..15
    v_and_b32 v5, 15, v1
    v_xor_b32 v5, v5, v4
    s_lshl_b32 s35, s40, 6           ; m0
    v_add_u32 v4, s35, v4
    s_mov_b32 s34, {lda}
    v_mul_lo_u32 v4, v4, s34
    v_lshl_add_u32 v10, v5, 4, v4
    v_lshrrev_b32 v4, 3, v1          ; lane/8
    v_bfe_u32 v5, v4, 1, 1
    v_lshlrev_b32 v5, 2, v5
    v_and_b32 v6, 7, v1
    v_xor_b32 v5, v5, v6
    s_lshl_b32 s34, s3, 3
    v_add_u32 v4, s34, v4            ; krow 0..31
    v_mov_b32 v9, v4
    s_mov_b32 s34, {ldb}
    v_mul_lo_u32 v4, v4, s34
    v_lshl_add_u32 v11, v5, 4, v4
    s_lshl_b32 s34, s41, 7           ; n0*2
    v_add_u32 v11, s34, v11          ; B voffset
    ''')
    if afrag:
        a(f'''
        s_mul_i32 s34, s40, {2*rbstride}
        s_add_u32 s34, s34, s36
        v_lshl_add_u32 v10, v1, 4, s34
        ''')
    a('''
    v_and_b32 v5, 15, v2             ; row&15
    v_lshlrev_b32 v4, 8, v2          ; row*256
    s_lshl_b32 s34, s3, 2            ; w*4
    ''')
    for s in range(2):
        a(f'''
        v_or_b32 v6, {2*s}, v3
        v_or_b32 v6, s34, v6
        v_xor_b32 v6, v6, v5
        v_lshl_add_u32 v{12+s}, v6, 4, v4
        ''')
        if afrag:
            a(f'''
            s_lshl_b32 s37, s3, 11
            s_add_u32 s37, s37, {s*1024}
            v_lshl_add_u32 v{12+s}, v1, 4, s37
            ''')
    a('''
    v_bfe_u32 v4, v1, 2, 2           ; r
    v_and_b32 v5, 3, v1              ; c4
    v_bfe_u32 v6, v1, 4, 1           ; nsub
    v_lshlrev_b32 v7, HSH, v3
    v_add_u32 v7, v7, v4             ; 8half + r
    s_lshl_b32 s34, s3, 5
    v_add_u32 v7, s34, v7            ; + 32w
    v_lshlrev_b32 v7, 7, v7          ; *128
    v_lshl_add_u32 v7, v6, 5, v7
    v_lshl_add_u32 v7, v5, 3, v7
    v_add_u32 v7, 16384, v7
    v_lshrrev_b32 v4, 1, v4          ; (r>>1)&1
    '''.replace('HSH', '2' if afrag else '3'))
    for nb in range(2):
        a(f'''
        v_xor_b32 v6, {nb}, v4
        v_lshl_add_u32 v{14+nb}, v6, 6, v7
        ''')
    for i in range(64):
        a(f'v_mov_b32 v{ACC+i}, 0')
    setup(a, 'pre')
    NST = 2 if bnorm else 4
    def issueA(t, slot):
        for i in range(4):
            a(f'''
            s_add_u32 m0, s36, {slot*32768 + i*4096}
            s_mov_b32 s39, {(t*8192 + (i//2)*rbstride + (i%2)*4096) if afrag else (t*256 + i*16*lda)}
            buffer_load_dwordx4 v10, s[12:15], s39 offen lds
            ''')
    def issueB(t, slot):
        for i in range(4):
            if bnorm:
                a(f'''
                s_mov_b32 s39, {(t*128 + i*32)*ldb}
                buffer_load_dwordx4 v[{BR+4*i}:{BR+4*i+3}], v11, s[16:19], s39 offen
                ''')
            else:
                a(f'''
                s_add_u32 m0, s36, {slot*32768 + 16384 + i*4096}
                s_mov_b32 s39, {(browmap(t, i) if browmap else (t*128 + i*32))*ldb}
                buffer_load_dwordx4 v11, s[16:19], s39 offen lds
                ''')
    def writeB(t, slot):
        a('s_waitcnt vmcnt(0)')
        for i in range(4):
            a(f'ds_read_b64 v[{144+2*i}:{145+2*i}], v17 offset:{(t*128 + i*32)*8}')
        a('s_waitcnt lgkmcnt(0)')
        for i in range(4):
            for j in range(4):
                r = BR + 4*i + j
                a(f'''
                v_lshlrev_b32 v152, 16, v{r}
                v_and_b32 v153, 0xffff0000, v{r}
                v_sub_f32 v152, v152, v{144+2*i}
                v_sub_f32 v153, v153, v{144+2*i}
                v_mul_f32 v152, v152, v{145+2*i}
                v_mul_f32 v153, v153, v{145+2*i}
                v_cvt_pk_bf16_f32 v{r}, v152, v153
                ''')
            a(f'ds_write_b128 v16, v[{BR+4*i}:{BR+4*i+3}] offset:{slot*32768 + 16384 + i*4096}')
    def reads(slot, s, buf):
        sb = slot * 32768
        va, vb = 12, 14
        if sb >= 65536:
            sb -= 65536; va, vb = 156, 158
        for mb in range(2):
            a(f'ds_read_b128 v[{FA+buf*8+mb*4}:{FA+buf*8+mb*4+3}], v{va+s} offset:{sb + mb*8192}')
        for nb in range(2):
            for j in range(2):
                r = FB + buf*8 + nb*4 + j*2
                a(f'ds_read_b64_tr_b16 v[{r}:{r+1}], v{vb+nb} offset:{sb + s*2048 + j*(1024 if afrag else 512)}')
    if NST > 2:
        for i in range(4):
            a(f'v_add_u32 v{156+i}, 0x10000, v{12+i}')
    if bnorm:
        a(f'''
        v_lshlrev_b32 v16, 4, v1
        v_add_u32 v16, s36, v16
        v_lshlrev_b32 v17, 3, v9
        v_add_u32 v17, 65536, v17
        ''')
        issueA(0, 0); issueB(0, 0); writeB(0, 0)
    else:
        for t in range(NST - 1):
            issueA(t, t); issueB(t, t)
    for t in range(nstages):
        slot = t % NST
        if bnorm:
            a('s_waitcnt vmcnt(0) lgkmcnt(0)')
        else:
            inflight = min(NST - 2, nstages - 1 - t)
            a(f's_waitcnt vmcnt({8*inflight})')
        a('s_barrier')
        tn = t + NST - 1
        if tn < nstages:
            issueA(tn, tn % NST); issueB(tn, tn % NST)
        reads(slot, 0, 0)
        reads(slot, 1, 1)
        for s in range(2):
            a(f's_waitcnt lgkmcnt({6 if s == 0 else 0})')
            for mb in range(2):
                for nb in range(2):
                    c = ACC + (mb*2+nb)*16
                    fa = FA + s*8 + mb*4
                    fb = FB + s*8 + nb*4
                    a(f'v_mfma_f32_32x32x16_bf16 v[{c}:{c+15}], v[{fb}:{fb+3}], v[{fa}:{fa+3}], v[{c}:{c+15}]')
        if bnorm and tn < nstages:
            writeB(tn, tn % NST)
    a(f'''
    s_waitcnt vmcnt(0) lgkmcnt(0)
    s_barrier
    s_lshl_b32 s34, s3, 14
    v_lshlrev_b32 v4, 4, v1
    v_add_u32 v5, s34, v4
    ''')
    for qd in range(16):
        a(f'ds_write_b128 v5, v[{ACC+4*qd}:{ACC+4*qd+3}] offset:{qd*1024}')
    a(f'''
    s_waitcnt lgkmcnt(0)
    s_barrier
    s_lshl_b32 s34, s3, 12
    v_add_u32 v5, s34, v4
    ''')
    for wv in range(4):
        for g in range(4):
            r = ACC + wv*16 + g*4
            a(f'ds_read_b128 v[{r}:{r+3}], v5 offset:{wv*16384 + g*1024}')
    a('s_waitcnt lgkmcnt(0)')
    for i in range(16):
        a(f'''
        v_add_f32 v{ACC+i}, v{ACC+i}, v{ACC+16+i}
        v_add_f32 v{ACC+32+i}, v{ACC+32+i}, v{ACC+48+i}
        v_add_f32 v{ACC+i}, v{ACC+i}, v{ACC+32+i}
        ''')
    a('''
    s_lshr_b32 s34, s3, 1
    s_lshl_b32 s34, s34, 5
    s_add_u32 s34, s34, s35
    v_add_u32 v4, s34, v2            ; row
    s_and_b32 s34, s3, 1
    s_lshl_b32 s34, s34, 5
    s_lshl_b32 s37, s41, 6
    s_add_u32 s34, s34, s37
    v_lshlrev_b32 v5, 2, v3
    v_add_u32 v5, s34, v5            ; col (g=0)
    ''')
    epilogue(a, ACC)
    a.label(END)
    a('s_endpgm')
    lds = NST * 32768 + (16384 if bnorm else 64)
    return dict(name=name, grid=nmt*nnt, block=256, lds=lds, vgpr=160)

def rbf(a, r):
    a(f'''
    v_cvt_pk_bf16_f32 v{r}, v{r}, v{r}
    v_lshlrev_b32 v{r}, 16, v{r}
    ''')

def gen_oproj(a):
    def setup(a, ph):
        if ph == 'load':
            a(f'''
            s_load_dwordx2 s[6:7], s[0:1], {ARG['A_w_o']}
            s_load_dwordx2 s[8:9], s[0:1], {ARG['A_x']}
            ''')
        elif ph == 'srd':
            srd(a, 12, 4, 5, 2048*4096*2, WS_CTX)
            srd(a, 16, 6, 7, 4096*512*2)
            srd(a, 20, 8, 9, 2048*512*2)
            srd(a, 24, 4, 5, 2048*512*2, WS_X2)
            srd(a, 28, 4, 5, 3072*4, WS_MOD)
    def epi(a, ACC):
        a('''
        v_lshlrev_b32 v6, 10, v4
        v_lshl_add_u32 v6, v5, 1, v6
        v_lshlrev_b32 v7, 2, v5          ; col*4
        v_add_u32 v7, 4096, v7
        ''')
        for g in range(4):
            a(f'''
            buffer_load_dwordx2 v[{20+2*g}:{21+2*g}], v6, s[20:23], 0 offen offset:{g*16}
            buffer_load_dwordx4 v[{28+4*g}:{31+4*g}], v7, s[28:31], 0 offen offset:{g*32}
            ''')
        a('s_waitcnt vmcnt(0)')
        for g in range(4):
            for j in range(4):
                r = ACC + g*4 + j
                rbf(a, r)
                a(f'v_mul_f32 v{r}, v{r}, v{28+4*g+j}')
                rbf(a, r)
                xs = 20 + 2*g + j//2
                if j % 2 == 0:
                    a(f'v_lshlrev_b32 v44, 16, v{xs}')
                else:
                    a(f'v_and_b32 v44, 0xffff0000, v{xs}')
                a(f'v_add_f32 v{r}, v{r}, v44')
            a(f'''
            v_cvt_pk_bf16_f32 v{46+2*(g%2)}, v{ACC+g*4}, v{ACC+g*4+1}
            v_cvt_pk_bf16_f32 v{47+2*(g%2)}, v{ACC+g*4+2}, v{ACC+g*4+3}
            buffer_store_dwordx2 v[{46+2*(g%2)}:{47+2*(g%2)}], v6, s[24:27], 0 offen offset:{g*16}
            ''')
    return gemm_splitk(a, 'oproj_kernel', 'OP', 32, 8, 32, setup, 8192, 1024, epi, afrag=True)

def gen_wout(a):
    def setup(a, ph):
        if ph == 'load':
            a(f'''
            s_load_dwordx2 s[6:7], s[0:1], {ARG['B_w_out']}
            s_load_dwordx2 s[8:9], s[0:1], {ARG['out']}
            ''')
        elif ph == 'srd':
            srd(a, 12, 4, 5, 0x300000, WS_Y)
            srd(a, 16, 6, 7, 688*512*2)
            srd(a, 20, 4, 5, 2048*512*2, WS_X2)
            srd(a, 24, 8, 9, 2048*512*2)
            srd(a, 28, 4, 5, 3072*4, WS_MOD)
    def epi(a, ACC):
        a('''
        v_lshlrev_b32 v6, 10, v4
        v_lshl_add_u32 v6, v5, 1, v6
        v_lshlrev_b32 v7, 2, v5
        v_add_u32 v7, 10240, v7
        ''')
        for g in range(4):
            a(f'''
            buffer_load_dwordx2 v[{20+2*g}:{21+2*g}], v6, s[20:23], 0 offen offset:{g*16}
            buffer_load_dwordx4 v[{28+4*g}:{31+4*g}], v7, s[28:31], 0 offen offset:{g*32}
            ''')
        a('s_waitcnt vmcnt(0)')
        for g in range(4):
            for j in range(4):
                r = ACC + g*4 + j
                rbf(a, r)
                a(f'v_mul_f32 v{r}, v{r}, v{28+4*g+j}')
                rbf(a, r)
                xs = 20 + 2*g + j//2
                if j % 2 == 0:
                    a(f'v_lshlrev_b32 v44, 16, v{xs}')
                else:
                    a(f'v_and_b32 v44, 0xffff0000, v{xs}')
                a(f'v_add_f32 v{r}, v{r}, v44')
            a(f'''
            v_cvt_pk_bf16_f32 v{46+2*(g%2)}, v{ACC+g*4}, v{ACC+g*4+1}
            v_cvt_pk_bf16_f32 v{47+2*(g%2)}, v{ACC+g*4+2}, v{ACC+g*4+3}
            buffer_store_dwordx2 v[{46+2*(g%2)}:{47+2*(g%2)}], v6, s[24:27], 0 offen offset:{g*16}
            ''')
    return gemm_splitk(a, 'wout_kernel', 'WO', 32, 8, 6, setup, ZP*2, 1024, epi, afrag=True, rbstride=49152,
                       browmap=lambda t, i: 88*((8*t+2*i)//6) + 16*((8*t+2*i)%6))

def gen_sp(a):
    def setup(a, ph):
        if ph == 'load':
            a(f'''
            s_load_dwordx2 s[6:7], s[0:1], {ARG['B_w_sp']}
            s_load_dwordx2 s[8:9], s[0:1], {ARG['B_b_sp']}
            ''')
        elif ph == 'srd':
            srd(a, 12, 6, 7, 2048*2048*2)
            srd(a, 16, 4, 5, 2048*ZP*2, WS_Z2)
            srd(a, 20, 4, 5, 2048*ZP*2, WS_Z1)
            srd(a, 24, 4, 5, 2048*ZP*2, WS_Y)
            srd(a, 28, 8, 9, 2048*2)
            srd(a, 44, 4, 5, 6*2048*8, WS_STAT)
        elif ph == 'pre':
            a('v_lshlrev_b32 v16, 3, v0')
            a('v_add_u32 v17, 0x10000, v16')
            for i in range(8):
                for p in range(6):
                    a(f'''
                    s_mov_b32 s39, {p*16384 + i*2048}
                    buffer_load_dwordx2 v[{128+2*p}:{129+2*p}], v16, s[44:47], s39 offen
                    ''')
                a('s_waitcnt vmcnt(0)')
                a('''
                v_add_f32 v128, v128, v130
                v_add_f32 v129, v129, v131
                v_add_f32 v132, v132, v134
                v_add_f32 v133, v133, v135
                v_add_f32 v136, v136, v138
                v_add_f32 v137, v137, v139
                v_add_f32 v128, v128, v132
                v_add_f32 v129, v129, v133
                v_add_f32 v128, v128, v136
                v_add_f32 v129, v129, v137
                v_mul_f32 v128, 0x3abe82fa, v128     ; mean (1/688)
                v_mul_f32 v129, 0x3abe82fa, v129     ; E[x^2]
                v_fma_f32 v129, -v128, v128, v129
                v_max_f32 v129, 0, v129
                v_add_f32 v129, 0x3727c5ac, v129
                v_rsq_f32 v129, v129
                ''')
                a(f'ds_write_b64 v17, v[128:129] offset:{i*2048}')
            a('''
            s_waitcnt lgkmcnt(0)
            s_barrier
            ''')
    def epi(a, ACC):
        a(f'''
        s_mov_b32 s34, {ZP*2}
        v_mul_lo_u32 v6, v4, s34
        v_lshl_add_u32 v6, v5, 1, v6
        v_lshlrev_b32 v7, 1, v4
        buffer_load_ushort v44, v7, s[28:31], 0 offen
        ''')
        for g in range(4):
            a(f'buffer_load_dwordx2 v[{20+2*g}:{21+2*g}], v6, s[20:23], 0 offen offset:{g*16}')
        a('''
        s_waitcnt vmcnt(0)
        v_lshlrev_b32 v44, 16, v44
        ''')
        for g in range(4):
            for j in range(4):
                r = ACC + g*4 + j
                rbf(a, r)
                a(f'v_add_f32 v{r}, v{r}, v44')
                rbf(a, r)
                xs = 20 + 2*g + j//2
                if j % 2 == 0:
                    a(f'v_lshlrev_b32 v45, 16, v{xs}')
                else:
                    a(f'v_and_b32 v45, 0xffff0000, v{xs}')
                a(f'v_mul_f32 v{r}, v{r}, v45')
            a(f'''
            v_cvt_pk_bf16_f32 v{46+2*(g%2)}, v{ACC+g*4}, v{ACC+g*4+1}
            v_cvt_pk_bf16_f32 v{47+2*(g%2)}, v{ACC+g*4+2}, v{ACC+g*4+3}
            v_add_u32 v45, {8*g}, v5
            v_cmp_gt_u32 vcc, 688, v45
            v_cndmask_b32 v{46+2*(g%2)}, 0, v{46+2*(g%2)}, vcc
            v_cndmask_b32 v{47+2*(g%2)}, 0, v{47+2*(g%2)}, vcc
            buffer_store_dwordx2 v[{46+2*(g%2)}:{47+2*(g%2)}], v6, s[24:27], 0 offen offset:{g*16}
            ''')
    return gemm_splitk(a, 'sp_kernel', 'SP', 32, 11, 16, setup, 4096, ZP*2, epi, bnorm=True)

def gen_win(a):
    name = 'win_kernel'
    kernel_header(a, name)
    NNT = 11
    dispense(a, 16*NNT, 65536 + 4096, 'WI')
    a(f'''
    s_load_dwordx2 s[4:5], s[0:1], {ARG['ws']}
    s_load_dwordx2 s[6:7], s[0:1], {ARG['B_w_in']}
    v_lshrrev_b32 v1, 6, v0
    s_waitcnt lgkmcnt(0)
    v_readfirstlane_b32 s3, v1
    s_cmp_ge_u32 s2, {16*NNT}
    s_cbranch_scc1 WI_END
    s_and_b32 s40, s2, 15            ; mtile
    s_lshr_b32 s41, s2, 4            ; ntile
    ''')
    srd(a, 12, 4, 5, 2048*512*2, WS_X2)
    srd(a, 16, 6, 7, 512*1376*2)
    srd(a, 20, 4, 5, 0x400000 + 2048*ZP*2, WS_Z1)
    srd(a, 24, 4, 5, 6*2048*8, WS_STAT)
    srd(a, 32, 4, 5, 4096, WS_MOD + 6144)
    MODL = 65536
    X0 = 64; QT = 192
    a(f'''
    s_lshl_b32 s36, s3, 10
    v_and_b32 v1, 63, v0
    v_and_b32 v2, 31, v1
    v_lshrrev_b32 v3, 5, v1
    s_lshl_b32 s44, s40, 7
    s_lshl_b32 s45, s3, 5
    s_add_u32 s44, s44, s45          ; row0
    v_add_u32 v4, s44, v2
    v_lshlrev_b32 v5, 10, v4
    v_lshl_add_u32 v5, v3, 4, v5
    ''')
    for s in range(32):
        a(f'buffer_load_dwordx4 v[{X0+4*s}:{X0+4*s+3}], v5, s[12:15], 0 offen offset:{s*32}')
    a(f'''
    v_lshlrev_b32 v6, 4, v0
    buffer_load_dwordx4 v[8:11], v6, s[32:35], 0 offen offset:0
    ''')
    a.lines[-1] = a.lines[-1]
    a('''
    v_lshrrev_b32 v12, 4, v1
    v_and_b32 v13, 15, v1
    v_lshlrev_b32 v14, 2, v12
    v_xor_b32 v14, v14, v13
    s_lshl_b32 s45, s3, 2
    v_add_u32 v15, s45, v12
    s_mov_b32 s45, 2752
    v_mul_lo_u32 v15, v15, s45
    v_lshl_add_u32 v16, v14, 4, v15
    s_lshl_b32 s45, s41, 8
    v_add_u32 v16, s45, v16
    ''')
    def issue_w(c):
        slot = c % 4
        for i in range(4):
            a(f'''
            s_add_u32 m0, s36, {slot*16384 + i*4096}
            s_mov_b32 s39, {(c*64 + i*16)*2752}
            buffer_load_dwordx4 v16, s[16:19], s39 offen lds
            ''')
    for c in range(3):
        issue_w(c)
    a('''
    v_bfe_u32 v12, v1, 2, 2
    v_and_b32 v13, 3, v1
    v_bfe_u32 v14, v1, 4, 1
    v_lshlrev_b32 v15, 3, v3
    v_add_u32 v15, v15, v12
    v_lshlrev_b32 v15, 8, v15
    v_lshl_add_u32 v15, v14, 5, v15
    v_lshl_add_u32 v15, v13, 3, v15
    ''')
    for blk in range(4):
        a(f'''
        v_xor_b32 v17, {blk}, v12
        v_lshl_add_u32 v{20+blk}, v17, 6, v15
        ''')
    a(f'''
    s_waitcnt vmcnt(12)
    v_add_u32 v6, {MODL}, v6
    ds_write_b128 v6, v[8:11]
    v_mov_b32 v24, 0
    v_mov_b32 v25, 0
    ''')
    for r in range(128):
        a(f'''
        v_lshlrev_b32 v26, 16, v{X0+r}
        v_and_b32 v27, 0xffff0000, v{X0+r}
        v_add_f32 v24, v24, v26
        v_add_f32 v25, v25, v27
        ''')
    a('''
    v_add_f32 v24, v24, v25
    v_mov_b32 v25, v24
    v_permlane32_swap_b32 v24, v25
    v_add_f32 v24, v24, v25
    v_mul_f32 v24, 0x3b000000, v24
    v_mov_b32 v25, 0
    v_mov_b32 v28, 0
    ''')
    for r in range(128):
        a(f'''
        v_lshlrev_b32 v26, 16, v{X0+r}
        v_and_b32 v27, 0xffff0000, v{X0+r}
        v_sub_f32 v26, v26, v24
        v_sub_f32 v27, v27, v24
        v_fma_f32 v25, v26, v26, v25
        v_fma_f32 v28, v27, v27, v28
        ''')
    a(f'''
    v_add_f32 v25, v25, v28
    v_mov_b32 v26, v25
    v_permlane32_swap_b32 v25, v26
    v_add_f32 v25, v25, v26
    v_mov_b32 v26, 0x3727c5ac
    v_fmac_f32 v26, 0x3b000000, v25
    v_rsq_f32 v25, v26
    s_waitcnt lgkmcnt(0)
    s_barrier
    v_lshlrev_b32 v26, 5, v3
    v_add_u32 v26, {MODL}, v26
    ''')
    for s in range(32):
        a(f'''
        ds_read_b128 v[28:31], v26 offset:{s*64}
        ds_read_b128 v[32:35], v26 offset:{s*64+16}
        ds_read_b128 v[36:39], v26 offset:{2048+s*64}
        ds_read_b128 v[40:43], v26 offset:{2048+s*64+16}
        ''')
        for j in range(4):
            a(f'''
            v_lshlrev_b32 v{44+2*j}, 16, v{X0+4*s+j}
            v_and_b32 v{45+2*j}, 0xffff0000, v{X0+4*s+j}
            ''')
        for j in range(8):
            a(f'''
            v_sub_f32 v{44+j}, v{44+j}, v24
            v_mul_f32 v{44+j}, v{44+j}, v25
            ''')
        a('s_waitcnt lgkmcnt(0)')
        for j in range(8):
            a(f'''
            v_add_f32 v{36+j}, 1.0, v{36+j}
            v_fma_f32 v{44+j}, v{44+j}, v{36+j}, v{28+j}
            ''')
        for j in range(4):
            a(f'v_cvt_pk_bf16_f32 v{X0+4*s+j}, v{44+2*j}, v{45+2*j}')
    for i in range(64):
        a(f'v_mov_b32 v{QT+i}, 0')
    FW = 28
    def w_reads(slot, s, buf):
        for blk in range(4):
            for j in range(2):
                r = FW + buf*16 + blk*4 + j*2
                a(f'ds_read_b64_tr_b16 v[{r}:{r+1}], v{20+blk} offset:{slot*16384 + s*4096 + j*1024}')
    for c in range(8):
        slot = c % 4
        inflight = min(2, 7 - c)
        a(f's_waitcnt vmcnt({4*inflight})')
        a('s_barrier')
        if c + 3 < 8:
            issue_w(c + 3)
        w_reads(slot, 0, 0)
        for s in range(4):
            buf = s & 1
            if s < 3:
                w_reads(slot, s + 1, buf ^ 1)
                a('s_waitcnt lgkmcnt(8)')
            else:
                a('s_waitcnt lgkmcnt(0)')
            hx = X0 + 4*(c*4 + s)
            for blk in range(4):
                f = FW + buf*16 + blk*4
                q = QT + blk*16
                a(f'v_mfma_f32_32x32x16_bf16 v[{q}:{q+15}], v[{f}:{f+3}], v[{hx}:{hx+3}], v[{q}:{q+15}]')
    a(f'''
    v_add_u32 v4, s44, v2            ; row
    s_mov_b32 s34, {ZP*2}
    v_mul_lo_u32 v6, v4, s34         ; row*1408
    s_lshl_b32 s37, s41, 7
    v_lshlrev_b32 v5, 2, v3
    v_add_u32 v5, s37, v5
    v_mov_b32 v24, 0
    v_mov_b32 v25, 0
    s_mov_b32 s48, 1376
    s_mov_b32 s46, 0x3d372713        ; 0.044715
    s_mov_b32 s47, 0xc0135761        ; -2*0.7978845608*log2(e)
    ''')
    for blk in range(4):
        for g in range(4):
            for j in range(4):
                r = QT + blk*16 + g*4 + j
                rbf(a, r)
                a(f'''
                v_mul_f32 v26, v{r}, v{r}
                v_fma_f32 v26, v26, s46, 1.0
                v_mul_f32 v26, v26, v{r}
                v_mul_f32 v26, s47, v26
                v_exp_f32 v26, v26
                v_add_f32 v26, 1.0, v26
                v_rcp_f32 v26, v26
                v_mul_f32 v{r}, v{r}, v26
                ''')
                rbf(a, r)
            r = QT + blk*16 + g*4
            a(f'''
            v_cvt_pk_bf16_f32 v28, v{r}, v{r+1}
            v_cvt_pk_bf16_f32 v29, v{r+2}, v{r+3}
            v_add_u32 v26, {blk*32 + g*8}, v5        ; col
            v_lshl_add_u32 v27, v26, 1, v6           ; z1 offset
            v_add_u32 v30, {0x400000 - 688*2}, v27   ; z2 offset
            v_cmp_gt_u32 vcc, 688, v26
            v_cndmask_b32 v27, v30, v27, vcc
            v_mov_b32 v30, 0x7ffffff0
            v_cmp_gt_u32 s[50:51], s48, v26
            v_cndmask_b32 v27, v30, v27, s[50:51]
            buffer_store_dwordx2 v[28:29], v27, s[20:23], 0 offen
            s_andn2_b64 s[50:51], s[50:51], vcc
            v_cndmask_b32 v30, 0, v{r}, s[50:51]
            v_cndmask_b32 v31, 0, v{r+1}, s[50:51]
            v_cndmask_b32 v32, 0, v{r+2}, s[50:51]
            v_cndmask_b32 v33, 0, v{r+3}, s[50:51]
            v_add_f32 v24, v24, v30
            v_fma_f32 v25, v30, v30, v25
            v_add_f32 v24, v24, v31
            v_fma_f32 v25, v31, v31, v25
            v_add_f32 v24, v24, v32
            v_fma_f32 v25, v32, v32, v25
            v_add_f32 v24, v24, v33
            v_fma_f32 v25, v33, v33, v25
            ''')
    a(f'''
    s_cmp_lt_u32 s41, 5
    s_cbranch_scc1 WI_END
    v_mov_b32 v26, v24
    v_mov_b32 v27, v25
    v_permlane32_swap_b32 v24, v26
    v_permlane32_swap_b32 v25, v27
    v_add_f32 v24, v24, v26
    v_add_f32 v25, v25, v27
    v_lshlrev_b32 v6, 3, v4
    s_sub_u32 s34, s41, 5
    s_lshl_b32 s34, s34, 14
    v_add_u32 v6, s34, v6
    v_mov_b32 v7, 0x7ffffff0
    v_cmp_gt_u32 vcc, 32, v1
    v_cndmask_b32 v6, v7, v6, vcc
    buffer_store_dwordx2 v[24:25], v6, s[24:27], 0 offen
    ''')
    a.label('WI_END')
    a('s_endpgm')
    return dict(name=name, grid=16*NNT, block=256, lds=65536 + 4096 + 64, vgpr=256)

import k_win2, k_sp2
GENS = [gen_oproj, k_win2.gen_win, k_sp2.gen_sp, gen_wout]
```

```python
from k_common import *
import os
EXP = os.environ.get('SP_EXP', '')

def rbf(a, r):
    a(f'''
    v_cvt_pk_bf16_f32 v{r}, v{r}, v{r}
    v_lshlrev_b32 v{r}, 16, v{r}
    ''')

def gen_sp(a):
    name = 'sp_kernel'
    NST = 3; STG = 40960
    SCRL = NST * STG
    kernel_header(a, name)
    dispense(a, 256, SCRL, 'SP')
    a(f'''
    s_load_dwordx2 s[4:5], s[0:1], {ARG['ws']}
    s_load_dwordx2 s[6:7], s[0:1], {ARG['B_w_sp']}
    s_load_dwordx2 s[8:9], s[0:1], {ARG['B_b_sp']}
    v_lshrrev_b32 v1, 6, v0
    s_waitcnt lgkmcnt(0)
    v_readfirstlane_b32 s3, v1
    s_cmp_ge_u32 s2, 256
    s_cbranch_scc1 SP_END
    s_and_b32 s40, s2, 7
    s_lshr_b32 s41, s2, 3
    s_lshr_b32 s43, s41, 3           ; mg
    s_and_b32 s41, s41, 7            ; ntile
    s_lshl_b32 s43, s43, 3
    s_add_u32 s40, s40, s43          ; mtile
    ''')
    srd(a, 12, 6, 7, 2048*2048*2)
    srd(a, 16, 4, 5, 0x300000, WS_Z2)
    srd(a, 20, 4, 5, 0x300000, WS_Z1)
    srd(a, 24, 4, 5, 0x300000, WS_Y)
    srd(a, 28, 8, 9, 2048*2)
    ACC = 64
    FA, FB = 20, 36
    a(f'''
    s_lshl_b32 s36, s3, 10
    v_and_b32 v1, 63, v0
    v_and_b32 v2, 31, v1
    v_lshrrev_b32 v3, 5, v1
    v_lshlrev_b32 v17, 4, v1
    v_lshrrev_b32 v4, 4, v1          ; lane/16
    s_lshl_b32 s34, s3, 2
    v_add_u32 v4, s34, v4            ; row 0..15
    v_and_b32 v5, 15, v1
    v_xor_b32 v5, v5, v4
    s_lshl_b32 s35, s40, 6           ; m0
    v_add_u32 v4, s35, v4
    v_lshlrev_b32 v4, 12, v4
    v_lshl_add_u32 v10, v5, 4, v4
    s_mul_i32 s34, s41, {128*3072}
    s_add_u32 s34, s34, s36
    v_add_u32 v11, s34, v17
    v_and_b32 v5, 15, v2             ; row&15
    v_lshlrev_b32 v4, 8, v2          ; row*256
    s_lshl_b32 s34, s3, 2            ; w*4
    ''')
    for s in range(2):
        a(f'''
        v_or_b32 v6, {2*s}, v3
        v_or_b32 v6, s34, v6
        v_xor_b32 v6, v6, v5
        v_lshl_add_u32 v{12+s}, v6, 4, v4
        v_add_u32 v{160+s}, {2*STG}, v{12+s}
        ''')
    a(f'''
    s_mul_i32 s34, s3, 6144
    s_add_u32 s34, s34, 16384
    v_add_u32 v14, s34, v17
    v_add_u32 v162, {2*STG}, v14
    ''')
    def issue(t):
        slot = t % NST
        for i in range(4):
            a(f'''
            s_add_u32 m0, s36, {slot*STG + i*4096}
            s_mov_b32 s39, {t*256 + i*16*4096}
            buffer_load_dwordx4 v10, s[12:15], s39 offen lds
            ''')
        for i in range(6):
            a(f'''
            s_add_u32 m0, s36, {slot*STG + 16384 + i*4096}
            s_mov_b32 s39, {t*24576 + i*4096}
            buffer_load_dwordx4 v11, s[16:19], s39 offen lds
            ''')
    for t in range(NST - 1):
        issue(t)
    def reads(slot, s):
        sb = slot * STG
        va, vb = 12, 14
        if slot == 2:
            sb = 0; va, vb = 160, 162
        for mb in range(2):
            r = FA + s*8 + mb*4
            a(f'ds_read_b128 v[{r}:{r+3}], v{va+s} offset:{sb + mb*8192}')
        for blk in range(3):
            r = FB + s*12 + blk*4
            a(f'ds_read_b128 v[{r}:{r+3}], v{vb} offset:{sb + s*3072 + blk*1024}')
    nst = 16
    for t in range(nst):
        slot = t % NST
        inflight = min(NST - 2, nst - 1 - t)
        a(f's_waitcnt vmcnt({10*inflight})')
        a('s_barrier')
        reads(slot, 0)
        reads(slot, 1)
        tn = t + NST - 1
        if tn < nst:
            issue(tn)
        for s in range(2):
            a(f's_waitcnt lgkmcnt({5 if s == 0 else 0})')
            for mb in range(2):
                for blk in range(3):
                    c = ACC + (mb*3+blk)*16
                    fa = FA + s*8 + mb*4
                    fb = FB + s*12 + blk*4
                    cc = '0' if (t == 0 and s == 0) else f'v[{c}:{c+15}]'
                    a(f'v_mfma_f32_32x32x16_bf16 v[{c}:{c+15}], v[{fb}:{fb+3}], v[{fa}:{fa+3}], {cc}')
    a(f'''
    s_lshl_b32 s34, s40, 4
    s_add_u32 s34, s34, s41
    s_mul_i32 s34, s34, 6144
    s_mul_i32 s37, s3, 3             ; u0
    s_cmp_ge_u32 s3, 2
    s_cselect_b32 s38, 1, 0          ; mb
    s_mul_i32 s42, s38, 6
    s_sub_u32 s42, s37, s42
    s_mul_i32 s43, s38, 49152
    s_add_u32 s34, s34, s43
    s_lshl_b32 s43, s42, 10
    s_add_u32 s34, s34, s43
    v_add_u32 v6, s34, v17           ; z1f addr
    s_lshl_b32 s43, s38, 5
    s_add_u32 s43, s43, s35
    v_add_u32 v4, s43, v2            ; row t
    v_lshlrev_b32 v7, 1, v4
    buffer_load_ushort v44, v7, s[28:31], 0 offen
    ''')
    for k in range(3):
        a(f'buffer_load_dwordx4 v[{20+4*k}:{23+4*k}], v6, s[20:23], 0 offen offset:{k*1024}')
    a(f'''
    s_lshl_b32 s34, s40, 1
    s_add_u32 s34, s34, s38
    s_mul_i32 s34, s34, 49152
    s_mul_i32 s43, s41, 6
    s_add_u32 s43, s43, s42
    s_lshl_b32 s43, s43, 10
    s_add_u32 s34, s34, s43
    v_add_u32 v7, s34, v17
    s_barrier
    s_mul_i32 s34, s3, 24576
    v_add_u32 v5, s34, v17
    ''')
    for qd in range(24):
        a(f'ds_write_b128 v5, v[{ACC+4*qd}:{ACC+4*qd+3}] offset:{qd*1024}')
    a(f'''
    s_waitcnt lgkmcnt(0)
    s_barrier
    s_mul_i32 s34, s3, 6144          ; quads 6w..6w+5
    v_add_u32 v5, s34, v17
    v_add_u32 v8, 49152, v5
    ''')
    for wv in range(4):
        for g in range(6):
            r = ACC + wv*24 + g*4
            va, off = (5, wv*24576 + g*1024) if wv < 2 else (8, (wv-2)*24576 + g*1024)
            a(f'ds_read_b128 v[{r}:{r+3}], v{va} offset:{off}')
    a('s_waitcnt lgkmcnt(0)')
    for i in range(24):
        a(f'''
        v_add_f32 v{ACC+i}, v{ACC+i}, v{ACC+24+i}
        v_add_f32 v{ACC+48+i}, v{ACC+48+i}, v{ACC+72+i}
        v_add_f32 v{ACC+i}, v{ACC+i}, v{ACC+48+i}
        ''')
    a(f'''
    s_mul_i32 s34, s41, 88
    s_sub_u32 s34, 688, s34
    s_min_u32 s34, s34, 88
    s_lshl_b32 s43, s42, 4
    s_sub_u32 s34, s34, s43          ; limit - 16c0
    v_lshlrev_b32 v5, 2, v3
    v_sub_u32 v5, s34, v5
    s_waitcnt vmcnt(0)
    v_lshlrev_b32 v44, 16, v44
    ''')
    for k in range(3):
        for i in range(8):
            r = ACC + k*8 + i
            rbf(a, r)
            a(f'v_add_f32 v{r}, v{r}, v44')
            rbf(a, r)
            xs = 20 + 4*k + i//2
            if i % 2 == 0:
                a(f'v_lshlrev_b32 v45, 16, v{xs}')
            else:
                a(f'v_and_b32 v45, 0xffff0000, v{xs}')
            a(f'v_mul_f32 v{r}, v{r}, v45')
        t = 48 + 4*k
        for j in range(4):
            a(f'v_cvt_pk_bf16_f32 v{t+j}, v{ACC+k*8+2*j}, v{ACC+k*8+2*j+1}')
        for hq in range(2):
            a(f'''
            v_cmp_lt_i32 vcc, {16*k + 8*hq}, v5
            v_cndmask_b32 v{t+2*hq}, 0, v{t+2*hq}, vcc
            v_cndmask_b32 v{t+2*hq+1}, 0, v{t+2*hq+1}, vcc
            ''')
        a(f'buffer_store_dwordx4 v[{t}:{t+3}], v7, s[24:27], 0 offen offset:{k*1024}')
    a.label('SP_END')
    a('s_endpgm')
    return dict(name=name, grid=256, block=256, lds=SCRL + 64, vgpr=168)
```

```python
from k_common import *
import os
EXP = os.environ.get('WIN_EXP', '')

def rbf(a, r):
    a(f'''
    v_cvt_pk_bf16_f32 v{r}, v{r}, v{r}
    v_lshlrev_b32 v{r}, 16, v{r}
    ''')

def red16(a, v, t):
    a(f'''
    v_add_f32_dpp v{t}, v{v}, v{v} quad_perm:[1,0,3,2] row_mask:0xf bank_mask:0xf
    v_add_f32_dpp v{v}, v{t}, v{t} quad_perm:[2,3,0,1] row_mask:0xf bank_mask:0xf
    v_add_f32_dpp v{t}, v{v}, v{v} row_half_mirror row_mask:0xf bank_mask:0xf
    v_add_f32_dpp v{v}, v{t}, v{t} row_mirror row_mask:0xf bank_mask:0xf
    ''')

def gen_win(a):
    name = 'win_kernel'
    RING = 32768; RST = 3072; NST = 5
    PART = RING + 8 * NST * RST
    TAB = PART + 2048
    SCRL = TAB + 256
    kernel_header(a, name)
    dispense(a, 128, SCRL, 'WI')
    a(f'''
    s_load_dwordx2 s[4:5], s[0:1], {ARG['ws']}
    s_load_dwordx2 s[6:7], s[0:1], {ARG['B_w_in']}
    v_lshrrev_b32 v1, 6, v0
    s_waitcnt lgkmcnt(0)
    v_readfirstlane_b32 s3, v1
    s_cmp_ge_u32 s2, 128
    s_cbranch_scc1 WI_END
    s_and_b32 s40, s2, 7
    s_lshr_b32 s41, s2, 3
    s_and_b32 s42, s41, 1            ; part
    s_lshr_b32 s41, s41, 1
    s_lshl_b32 s40, s40, 3
    s_add_u32 s40, s40, s41          ; rb
    ''')
    if 'X1' in EXP:
        a('s_xor_b32 s40, s40, 9')
    srd(a, 12, 4, 5, 2048*512*2, WS_X2)
    srd(a, 16, 6, 7, 512*1376*2)
    srd(a, 20, 4, 5, 0x300000, WS_Z1)
    srd(a, 24, 4, 5, 0x300000, WS_Z2)
    srd(a, 48, 4, 5, 4096, WS_MOD + 6144)
    XR = 64
    MR = 80
    a(f'''
    v_and_b32 v1, 63, v0
    v_and_b32 v2, 31, v1
    v_lshrrev_b32 v3, 5, v1
    v_lshlrev_b32 v17, 4, v1         ; lane*16
    v_lshrrev_b32 v4, 4, v0
    v_and_b32 v5, 15, v0             ; c
    s_lshl_b32 s34, s40, 15
    v_lshlrev_b32 v6, 10, v4
    v_lshl_add_u32 v6, v5, 4, v6
    v_add_u32 v6, s34, v6
    v_lshlrev_b32 v7, 5, v5          ; c*32 bytes
    ''')
    for i in range(4):
        a(f'buffer_load_dwordx4 v[{XR+4*i}:{XR+4*i+3}], v6, s[12:15], 0 offen offset:{i*256}')
    for i in range(4):
        a(f'''
        buffer_load_dwordx4 v[{MR+8*i}:{MR+8*i+3}], v7, s[48:51], 0 offen offset:{i*512}
        buffer_load_dwordx4 v[{MR+8*i+4}:{MR+8*i+7}], v7, s[48:51], 0 offen offset:{i*512+16}
        buffer_load_dwordx4 v[{MR+32+8*i}:{MR+32+8*i+3}], v7, s[48:51], 0 offen offset:{2048+i*512}
        buffer_load_dwordx4 v[{MR+32+8*i+4}:{MR+32+8*i+7}], v7, s[48:51], 0 offen offset:{2048+i*512+16}
        ''')
    a(f'''
    s_mul_i32 s34, s42, 1376
    s_mul_i32 s35, s3, 176
    s_add_u32 s34, s34, s35
    s_mul_i32 s36, s3, {NST*RST}
    s_add_u32 s36, s36, {RING}
    s_mov_b32 s35, 0x15555556
    ''')
    for i in range(3):
        a(f'''
        v_add_u32 v8, {i*64}, v1
        v_mul_hi_u32 v9, v8, s35         ; /12
        v_mul_u32_u24 v11, 12, v9
        v_sub_u32 v8, v8, v11
        v_mul_u32_u24 v9, 2752, v9
        v_lshl_add_u32 v9, v8, 4, v9
        v_add_u32 v{12+i}, s34, v9
        ''')
    def issue(ks):
        slot = ks % NST
        for i in range(3):
            a(f'''
            s_add_u32 m0, s36, {slot*RST + i*1024}
            s_mov_b32 s39, {ks*16*2752}
            buffer_load_dwordx4 v{12+i}, s[16:19], s39 offen lds
            ''')
    for ks in range(4):
        issue(ks)
    a(f'''
    v_bfe_u32 v8, v1, 2, 2           ; r
    v_and_b32 v9, 3, v1              ; c4
    v_bfe_u32 v10, v1, 4, 1          ; nsub
    v_lshl_add_u32 v11, v3, 3, v8    ; 8half + r
    v_mul_u32_u24 v11, 192, v11
    v_lshl_add_u32 v11, v10, 5, v11
    v_lshl_add_u32 v11, v9, 3, v11
    v_add_u32 v16, s36, v11
    s_waitcnt vmcnt(28)
    ''')
    XU = 144
    for i in range(16):
        a(f'''
        v_lshlrev_b32 v{XU+2*i}, 16, v{XR+i}
        v_and_b32 v{XU+2*i+1}, 0xffff0000, v{XR+i}
        ''')
    a(f'v_add_f32 v18, v{XU}, v{XU+1}')
    for i in range(2, 32):
        a(f'v_add_f32 v18, v18, v{XU+i}')
    red16(a, 18, 19)
    a('v_mul_f32 v18, 0x3b000000, v18')
    for i in range(32):
        a(f'v_sub_f32 v{XU+i}, v{XU+i}, v18')
    a(f'v_mul_f32 v18, v{XU}, v{XU}')
    for i in range(1, 32):
        a(f'v_fma_f32 v18, v{XU+i}, v{XU+i}, v18')
    red16(a, 18, 19)
    a(f'''
    v_mov_b32 v19, 0x3727c5ac
    v_fmac_f32 v19, 0x3b000000, v18
    v_rsq_f32 v18, v19
    v_lshrrev_b32 v8, 1, v5          ; c/2
    v_and_b32 v9, 1, v5
    v_lshlrev_b32 v8, 10, v8
    v_lshl_add_u32 v8, v9, 9, v8
    v_lshl_add_u32 v8, v4, 4, v8
    s_waitcnt vmcnt(12)
    ''')
    for i in range(4):
        for j in range(8):
            x = XU + 8*i + j
            a(f'''
            v_mul_f32 v{x}, v{x}, v18
            v_add_f32 v{MR+32+8*i+j}, 1.0, v{MR+32+8*i+j}
            v_fma_f32 v{x}, v{x}, v{MR+32+8*i+j}, v{MR+8*i+j}
            ''')
        for j in range(4):
            a(f'v_cvt_pk_bf16_f32 v{XR+4*i+j}, v{XU+8*i+2*j}, v{XU+8*i+2*j+1}')
        a(f'ds_write_b128 v8, v[{XR+4*i}:{XR+4*i+3}] offset:{i*8192}')
        if 'DH' in EXP:
            if i == 0:
                srd(a, 44, 4, 5, 2048*512*2, 0x6000000)
            a(f'buffer_store_dwordx4 v[{XR+4*i}:{XR+4*i+3}], v6, s[44:47], 0 offen offset:{i*256}')
    ACC = 64
    FA = 20
    FB = 28
    a('''
    s_waitcnt lgkmcnt(0)
    s_barrier
    ''')
    def reads(ks, buf):
        slot = ks % NST
        out = [f'ds_read_b128 v[{FA+buf*4}:{FA+buf*4+3}], v17 offset:{ks*1024}']
        for blk in range(3):
            for j in range(2):
                r = FB + buf*12 + blk*4 + j*2
                out.append(f'ds_read_b64_tr_b16 v[{r}:{r+1}], v16 offset:{slot*RST + j*768 + blk*64}')
        return out
    def mainloop(z2):
        a('s_waitcnt vmcnt(0)' if 'DH' in EXP else 's_waitcnt vmcnt(9)')
        for x in reads(0, 0):
            a(x)
        for ks in range(32):
            buf = ks & 1
            if ks + 1 < 32:
                infl = min(2, 31 - (ks + 1))
                a(f's_waitcnt vmcnt({3*infl}) lgkmcnt(0)')
                nx = reads(ks + 1, buf ^ 1)
            else:
                a('s_waitcnt lgkmcnt(0)')
                nx = []
            for blk in range(3):
                c = ACC + blk*16
                fa = FA + buf*4
                fb = FB + buf*12 + blk*4
                cc = '0' if ks == 0 else f'v[{c}:{c+15}]'
                if z2:
                    a(f'v_mfma_f32_32x32x16_bf16 v[{c}:{c+15}], v[{fa}:{fa+3}], v[{fb}:{fb+3}], {cc}')
                else:
                    a(f'v_mfma_f32_32x32x16_bf16 v[{c}:{c+15}], v[{fb}:{fb+3}], v[{fa}:{fa+3}], {cc}')
                for x in nx[blk*3:blk*3+3]:
                    a(x)
                if blk == 2 and ks + 4 < 32:
                    issue(ks + 4)
    def gelu():
        a('''
        s_mov_b32 s46, 0x3d372713        ; 0.044715
        s_mov_b32 s47, 0xc0135761        ; -2*0.7978845608*log2(e)
        ''')
        for i in range(0, 48, 4):
            for j in range(4):
                r = ACC + i + j
                rbf(a, r)
            for j in range(4):
                r = ACC + i + j; t = 20 + j
                a(f'''
                v_mul_f32 v{t}, v{r}, v{r}
                v_fma_f32 v{t}, v{t}, s46, 1.0
                v_mul_f32 v{t}, v{t}, v{r}
                v_mul_f32 v{t}, s47, v{t}
                ''')
            for j in range(4):
                a(f'v_exp_f32 v{20+j}, v{20+j}')
            for j in range(4):
                a(f'v_add_f32 v{20+j}, 1.0, v{20+j}')
            for j in range(4):
                a(f'v_rcp_f32 v{20+j}, v{20+j}')
            for j in range(4):
                r = ACC + i + j
                a(f'v_mul_f32 v{r}, v{r}, v{20+j}')
    a('''
    s_cmp_eq_u32 s42, 1
    s_cbranch_scc1 WI_Z2
    ''')
    mainloop(False)
    gelu()
    a('''
    s_lshl_b32 s34, s40, 3
    s_add_u32 s34, s34, s3
    s_mul_i32 s34, s34, 6144
    v_add_u32 v6, s34, v17
    v_add_u32 v7, 4096, v6
    ''')
    for blk in range(3):
        for q in range(2):
            t = 24 + 4*((blk*2+q) % 4)
            c = ACC + blk*16 + q*8
            for j in range(4):
                a(f'v_cvt_pk_bf16_f32 v{t+j}, v{c+2*j}, v{c+2*j+1}')
            off = blk*2048 + q*1024
            va = 6 if off < 4096 else 7
            a(f'buffer_store_dwordx4 v[{t}:{t+3}], v{va}, s[20:23], 0 offen offset:{off % 4096}')
    a('s_branch WI_END')
    a.label('WI_Z2')
    mainloop(True)
    gelu()
    for i in range(48):
        rbf(a, ACC + i)
    a('''
    s_mul_i32 s34, s3, 88
    s_sub_u32 s34, 688, s34
    s_min_u32 s34, s34, 88
    v_cmp_gt_u32 s[50:51], s34, v2
    v_add_u32 v4, 32, v2
    v_cmp_gt_u32 s[52:53], s34, v4
    v_add_u32 v4, 64, v2
    v_cmp_gt_u32 s[54:55], s34, v4
    ''')
    for blk in range(3):
        for r in range(16):
            a(f'v_cndmask_b32 v{ACC+blk*16+r}, 0, v{ACC+blk*16+r}, s[{50+2*blk}:{51+2*blk}]')
    SM = 112; SQ = 128
    for r in range(16):
        a(f'''
        v_add_f32 v{SM+r}, v{ACC+r}, v{ACC+16+r}
        v_mul_f32 v{SQ+r}, v{ACC+r}, v{ACC+r}
        v_add_f32 v{SM+r}, v{SM+r}, v{ACC+32+r}
        v_fma_f32 v{SQ+r}, v{ACC+16+r}, v{ACC+16+r}, v{SQ+r}
        v_fma_f32 v{SQ+r}, v{ACC+32+r}, v{ACC+32+r}, v{SQ+r}
        ''')
    for k in range(0, 32, 2):
        v0, v1 = SM + k, SM + k + 1
        a(f'''
        v_add_f32_dpp v20, v{v0}, v{v0} quad_perm:[1,0,3,2] row_mask:0xf bank_mask:0xf
        v_add_f32_dpp v21, v{v1}, v{v1} quad_perm:[1,0,3,2] row_mask:0xf bank_mask:0xf
        v_add_f32_dpp v{v0}, v20, v20 quad_perm:[2,3,0,1] row_mask:0xf bank_mask:0xf
        v_add_f32_dpp v{v1}, v21, v21 quad_perm:[2,3,0,1] row_mask:0xf bank_mask:0xf
        v_add_f32_dpp v20, v{v0}, v{v0} row_half_mirror row_mask:0xf bank_mask:0xf
        v_add_f32_dpp v21, v{v1}, v{v1} row_half_mirror row_mask:0xf bank_mask:0xf
        v_add_f32_dpp v{v0}, v20, v20 row_mirror row_mask:0xf bank_mask:0xf
        v_add_f32_dpp v{v1}, v21, v21 row_mirror row_mask:0xf bank_mask:0xf
        v_mov_b32 v20, v{v0}
        v_mov_b32 v21, v{v1}
        v_permlane16_swap_b32 v{v0}, v20
        v_permlane16_swap_b32 v{v1}, v21
        v_add_f32 v{v0}, v{v0}, v20
        v_add_f32 v{v1}, v{v1}, v21
        ''')
    a(f'''
    s_lshl_b32 s34, s3, 8
    s_add_u32 s34, s34, {PART}
    v_lshl_add_u32 v4, v3, 4, s34
    s_mov_b32 exec_lo, 1
    s_mov_b32 exec_hi, 1
    ''')
    for g in range(4):
        a(f'''
        ds_write_b128 v4, v[{SM+4*g}:{SM+4*g+3}] offset:{g*32}
        ds_write_b128 v4, v[{SQ+4*g}:{SQ+4*g+3}] offset:{128+g*32}
        ''')
    a(f'''
    s_mov_b64 exec, -1
    s_waitcnt lgkmcnt(0)
    s_barrier
    v_lshlrev_b32 v4, 2, v2
    v_add_u32 v4, {PART}, v4         ; row l%32
    ''')
    for w in range(8):
        a(f'''
        ds_read_b32 v{20+w}, v4 offset:{w*256}
        ds_read_b32 v{28+w}, v4 offset:{w*256+128}
        ''')
    a(f'''
    s_waitcnt lgkmcnt(0)
    v_add_f32 v20, v20, v21
    v_add_f32 v22, v22, v23
    v_add_f32 v24, v24, v25
    v_add_f32 v26, v26, v27
    v_add_f32 v28, v28, v29
    v_add_f32 v30, v30, v31
    v_add_f32 v32, v32, v33
    v_add_f32 v34, v34, v35
    v_add_f32 v20, v20, v22
    v_add_f32 v24, v24, v26
    v_add_f32 v28, v28, v30
    v_add_f32 v32, v32, v34
    v_add_f32 v20, v20, v24
    v_add_f32 v28, v28, v32
    v_mul_f32 v20, 0x3abe82fa, v20   ; mean
    v_mul_f32 v28, 0x3abe82fa, v28   ; E[x^2]
    v_fma_f32 v28, -v20, v20, v28
    v_max_f32 v28, 0, v28
    v_add_f32 v28, 0x3727c5ac, v28
    v_rsq_f32 v28, v28
    s_lshl_b32 s34, s3, 8
    s_add_u32 s34, s34, {RING}
    v_lshl_add_u32 v4, v2, 2, s34
    ds_write_b32 v4, v20
    ds_write_b32 v4, v28 offset:128
    v_lshl_add_u32 v4, v3, 4, s34
    s_waitcnt lgkmcnt(0)
    ''')
    for g in range(4):
        a(f'''
        ds_read_b128 v[{SM+4*g}:{SM+4*g+3}], v4 offset:{g*32}
        ds_read_b128 v[{SQ+4*g}:{SQ+4*g+3}], v4 offset:{128+g*32}
        ''')
    a(f'''
    s_lshl_b32 s34, s3, 7
    s_lshl_b32 s35, s40, 1
    s_add_u32 s34, s34, s35
    s_mul_i32 s34, s34, 3072
    v_add_u32 v6, s34, v17
    v_add_u32 v7, 3072, v6
    s_waitcnt lgkmcnt(0)
    ''')
    for blk in range(3):
        for r in range(16):
            x = ACC + blk*16 + r
            a(f'''
            v_sub_f32 v{x}, v{x}, v{SM+r}
            v_mul_f32 v{x}, v{x}, v{SQ+r}
            v_cndmask_b32 v{x}, 0, v{x}, s[{50+2*blk}:{51+2*blk}]
            ''')
        for gp in range(2):
            t = 20 + 4*((blk*2+gp) % 4)
            c = ACC + blk*16 + gp*8
            for j in range(4):
                a(f'v_cvt_pk_bf16_f32 v{t+j}, v{c+2*j}, v{c+2*j+1}')
            a(f'''
            v_permlane32_swap_b32 v{t}, v{t+2}
            v_permlane32_swap_b32 v{t+1}, v{t+3}
            ''')
            a(f'buffer_store_dwordx4 v[{t}:{t+3}], v{6+gp}, s[24:27], 0 offen offset:{blk*1024}')
    a.label('WI_END')
    a('s_endpgm')
    return dict(name=name, grid=128, block=512, lds=SCRL + 64, vgpr=176)
```

```python
import re

REG_RE = re.compile(r'\b([vas])\[(\d+):(\d+)\]|\b([vas])(\d+)\b|\b(vcc|m0|exec|scc)\b')

def regs_of(tok):
    out = set()
    for m in REG_RE.finditer(tok):
        if m.group(1):
            for i in range(int(m.group(2)), int(m.group(3)) + 1):
                out.add((m.group(1), i))
        elif m.group(4):
            out.add((m.group(4), int(m.group(5))))
        else:
            out.add((m.group(6), 0))
    return out

TRANS = ('v_exp_f32', 'v_log_f32', 'v_rcp_f32', 'v_rsq_f32', 'v_sqrt_f32', 'v_sin_f32', 'v_cos_f32')
NODST = ('buffer_store', 'ds_write', 'global_store', 's_cmp', 's_cbranch', 's_branch', 's_waitcnt',
         's_barrier', 's_nop', 's_setprio', 's_endpgm', 's_sleep', 'buffer_atomic')

class Ins:
    __slots__ = ('mn', 'kind', 'dst', 'src', 'passes', 'srcc', 'isdpp', 'islds', 'wide_store', 'states')

class Asm:
    def __init__(self):
        self.lines = []
        self.hist = []
        self.nlabel = 0
        self.vm_seq = []
        self.ds_seq = []

    def raw(self, s):
        self.lines.append(s)

    def label(self, name):
        self.lines.append(f'{name}:')
        self.flush()

    def newlabel(self, p='L'):
        self.nlabel += 1
        return f'{p}_{self.nlabel}'

    def flush(self):
        need = 0
        dist = 0
        for ins in reversed(self.hist):
            if ins.kind == 'mfma':
                need = max(need, (12 if ins.passes >= 8 else 8) - dist)
            elif ins.kind in ('valu', 'trans'):
                need = max(need, 5 - dist)
            elif ins.kind == 'salu':
                need = max(need, 1 - dist)
            dist += ins.states
            if dist > 20:
                break
        if need > 0:
            self._nop(need)
        self.hist = []

    def _nop(self, n):
        while n > 0:
            k = min(n, 16)
            self.lines.append(f'    s_nop {k-1}')
            i = Ins(); i.mn = 's_nop'; i.kind = 'nop'; i.dst = set(); i.src = set(); i.passes = 0
            i.srcc = set(); i.isdpp = False; i.islds = False; i.wide_store = False; i.states = k
            self.hist.append(i)
            n -= k

    def nop(self, n):
        self._nop(n)

    def __call__(self, text):
        for line in text.strip().split('\n'):
            tag = None
            if ';' in line:
                cm = line.split(';', 1)[1]
                mt = re.search(r'T:(\S+)', cm)
                if mt:
                    tag = mt.group(1)
            line = line.split(';')[0].strip()
            if not line:
                continue
            self._emit(line)
            if line.startswith('buffer_') or line.startswith('global_'):
                self.vm_seq.append(tag)
            if line.startswith('ds_'):
                self.ds_seq.append(tag)

    def _emit(self, line):
        parts = line.split(None, 1)
        mn = parts[0]
        ops = parts[1] if len(parts) > 1 else ''
        opl = [o.strip() for o in ops.split(',')] if ops else []
        i = Ins(); i.mn = mn; i.passes = 0; i.srcc = set(); i.states = 1
        i.isdpp = ('dpp' in mn) or ('row_' in ops) or ('quad_perm' in ops)
        i.islds = (' lds' in (' ' + ops)) and mn.startswith('buffer_load') or mn.startswith('global_load_lds')
        i.wide_store = mn in ('buffer_store_dwordx4', 'buffer_store_dwordx3', 'global_store_dwordx4', 'global_store_dwordx3')
        if mn.startswith('v_mfma'):
            i.kind = 'mfma'
            i.passes = 8 if '32x32' in mn else 4
        elif mn.startswith('v_'):
            i.kind = 'trans' if mn in TRANS else 'valu'
        elif mn.startswith('s_'):
            i.kind = 'salu'
        elif mn.startswith('buffer_') or mn.startswith('global_'):
            i.kind = 'vmem'
        elif mn.startswith('ds_'):
            i.kind = 'ds'
        else:
            i.kind = 'other'
        nodst = any(mn.startswith(p) for p in NODST) or i.islds
        if nodst:
            i.dst = set()
            i.src = set().union(*[regs_of(o) for o in opl]) if opl else set()
        else:
            i.dst = regs_of(opl[0]) if opl else set()
            i.src = set().union(*[regs_of(o) for o in opl[1:]]) if len(opl) > 1 else set()
            if mn.startswith('v_permlane') and 'swap' in mn:
                i.dst = regs_of(opl[0]) | regs_of(opl[1])
                i.src = set(i.dst)
            if mn.startswith('v_cmp') and not opl[0].startswith('s') and 'vcc' not in opl[0]:
                pass
            if mn in ('v_cndmask_b32',) and len(opl) == 3:
                i.src.add(('vcc', 0))
            if mn.startswith('v_addc_co') or mn.startswith('v_subb_co'):
                i.src.add(('vcc', 0))
            if mn.startswith('v_add_co') or mn.startswith('v_sub_co') or mn.startswith('v_addc_co'):
                i.dst |= regs_of(opl[1])
            if mn.startswith('v_fmac') or mn.startswith('v_mac') :
                i.src |= i.dst
            if mn.startswith('s_and_saveexec') or mn.startswith('s_or_saveexec'):
                i.dst.add(('exec', 0))
        if i.kind == 'mfma':
            i.srcc = regs_of(opl[3])
        if i.islds:
            i.src.add(('m0', 0))
        mo = re.search(r'offset:(\d+)', ops)
        if mo:
            lim = 4095 if i.kind == 'vmem' else 65535
            assert int(mo.group(1)) <= lim, line
        need = 0
        dist = 0
        for p in reversed(self.hist):
            req = 0
            if p.kind in ('valu', 'trans'):
                vd = {r for r in p.dst if r[0] in ('v', 'a')}
                sd = {r for r in p.dst if r[0] in ('s', 'vcc')}
                if i.kind == 'mfma' and vd & i.src:
                    req = max(req, 2)
                if i.kind == 'mfma' and ('exec', 0) in p.dst:
                    req = max(req, 4)
                if sd & i.src:
                    if i.kind in ('valu', 'trans'):
                        req = max(req, 4 if mn.startswith('v_readlane') or mn.startswith('v_writelane') else 2)
                    if i.kind == 'vmem':
                        req = max(req, 5)
                    if i.kind == 'salu':
                        req = max(req, 1)
                if p.kind == 'trans' and vd & i.src and i.kind in ('valu', 'vmem', 'ds'):
                    req = max(req, 1)
                if vd & i.src and (mn.startswith('v_readlane') or mn.startswith('v_readfirstlane')):
                    req = max(req, 1)
                if vd & i.src and (mn.startswith('v_permlane') or i.isdpp):
                    req = max(req, 2)
            elif p.kind == 'mfma':
                big = p.passes >= 8
                if i.kind == 'mfma':
                    ab = i.src - i.srcc
                    if p.dst & ab:
                        req = max(req, 12 if big else 8)
                    if p.dst & i.srcc and p.dst != i.srcc:
                        req = max(req, 10 if big else 6)
                    abx = regs_of(opl[1]) | regs_of(opl[2])
                    if p.dst & abx:
                        req = max(req, 12 if big else 8)
                else:
                    if p.dst & (i.src | i.dst):
                        req = max(req, 12 if big else 8)
                    if i.kind in ('valu', 'trans') and p.srcc & i.dst:
                        req = max(req, 7 if big else 3)
            elif p.kind == 'salu':
                if ('m0', 0) in p.dst and ('m0', 0) in i.src:
                    req = max(req, 1)
            elif p.kind == 'vmem':
                if p.wide_store and i.kind in ('valu', 'trans') and (p.src & i.dst):
                    req = max(req, 2)
            need = max(need, req - dist)
            dist += p.states
            if dist > 24:
                break
        if need > 0:
            self._nop(need)
        self.lines.append('    ' + line)
        self.hist.append(i)
        if len(self.hist) > 40:
            self.hist = self.hist[-40:]
        if mn.startswith('s_branch') or mn == 's_endpgm':
            self.hist = []

    def text(self):
        return '\n'.join(self.lines) + '\n'
```

```python
from asmlib import Asm

WS_MOD  = 0x0
WS_STAT = 0x10000
WS_K    = 0x1000000
WS_VT   = 0x2000000
WS_CTX  = 0x3000000
WS_X2   = 0x4000000
WS_Z1   = 0x4400000
WS_Z2   = 0x4800000
WS_Y    = 0x4C00000
WS_N1   = 0x5000000
ZP = 704

ARG = dict(A_x=0, A_c_kv=8, A_w_q=16, A_w_uk=24, A_w_uv=32, A_w_o=40, B_x=48, B_w_in=56, B_w_sp=64,
           B_b_sp=72, B_w_out=80, c=88, w_mod=96, out=104, dbg=112, ws=120)

def kernel_header(a, name):
    a.raw(f'.globl {name}')
    a.raw('.p2align 8')
    a.raw(f'.type {name},@function')
    a.raw(f'{name}:')
    a.hist = []

def kernel_desc(name, vgpr, sgpr=102, accum=None):
    if accum is None:
        accum = (vgpr + 3) // 4 * 4
    return f'''.amdhsa_kernel {name}
  .amdhsa_next_free_vgpr {vgpr}
  .amdhsa_next_free_sgpr {sgpr}
  .amdhsa_accum_offset {accum}
  .amdhsa_group_segment_fixed_size 0
  .amdhsa_kernarg_size 128
  .amdhsa_user_sgpr_count 2
  .amdhsa_user_sgpr_kernarg_segment_ptr 1
  .amdhsa_system_sgpr_workgroup_id_x 1
.end_amdhsa_kernel
'''

def srd(a, d, lo, hi, nbytes, off=0):
    if off:
        a(f's_add_u32 s{d}, s{lo}, {off}')
        a(f's_addc_u32 s{d+1}, s{hi}, 0')
    else:
        a(f's_mov_b32 s{d}, s{lo}')
        a(f's_mov_b32 s{d+1}, s{hi}')
    a(f's_mov_b32 s{d+2}, {nbytes}')
    a(f's_mov_b32 s{d+3}, 0x00020000')

def dispense(a, nitems, ldsoff, tag, extra_barrier=False):
    assert nitems % 8 == 0
    Q = nitems // 8
    import os
    nd = os.environ.get('NODISP', '')
    if nd == 'all' or tag in nd.split(','):
        return
    a(f'''
    s_load_dwordx2 s[92:93], s[0:1], {ARG['dbg']}
    s_getreg_b32 s90, hwreg(HW_REG_XCC_ID, 0, 4)
    v_lshrrev_b32 v1, 6, v0
    v_mov_b32 v2, {ldsoff}
    s_and_b32 s90, s90, 7
    v_readfirstlane_b32 s91, v1
    s_mov_b32 s94, 256
    s_mov_b32 s95, 0x00020000
    s_waitcnt lgkmcnt(0)
    s_cmp_lg_u32 s91, 0
    s_cbranch_scc1 {tag}_DW
    s_mov_b64 exec, 1
    s_mov_b32 s96, 0
    ''')
    a.label(f'{tag}_DL')
    a(f'''
    s_add_u32 s97, s90, s96
    s_and_b32 s97, s97, 7
    s_lshl_b32 s98, s97, 5
    v_mov_b32 v1, s98
    v_mov_b32 v3, 1
    buffer_atomic_add v3, v1, s[92:95], 0 offen sc0 sc1
    s_waitcnt vmcnt(0)
    v_readfirstlane_b32 s98, v3
    s_cmp_lt_u32 s98, {Q}
    s_cbranch_scc1 {tag}_DF
    s_add_u32 s96, s96, 1
    s_cmp_lt_u32 s96, 8
    s_cbranch_scc1 {tag}_DL
    s_mov_b32 s98, 0x0fffffff
    ''')
    a.label(f'{tag}_DF')
    a(f'''
    s_lshl_b32 s98, s98, 3
    s_add_u32 s98, s98, s97
    v_mov_b32 v3, s98
    ds_write_b32 v2, v3
    s_mov_b64 exec, -1
    s_waitcnt lgkmcnt(0)
    ''')
    a.label(f'{tag}_DW')
    a(f'''
    s_barrier
    ds_read_b32 v3, v2
    s_waitcnt lgkmcnt(0)
    v_readfirstlane_b32 s2, v3
    ''')
    if extra_barrier:
        a('s_barrier')
```

```python
from k_common import *
import os
PFW = os.environ.get('PFW', '1') == '1'
PFD = int(os.environ.get('PFD', '9'))

STK = os.environ.get('STK', '')
def gstamp(a, prefix, idx):
    if STK != prefix: return
    a(f"""
    s_memtime s[82:83]
    s_waitcnt lgkmcnt(0)
    v_writelane_b32 v155, s82, {idx}
    """)
def gstamp_out(a, prefix):
    if STK != prefix: return
    a('s_waitcnt vmcnt(0)')
    gstamp(a, prefix, 63)
    srd(a, 72, 4, 5, 1 << 20, 0x7000000)
    a("""
    s_lshl_b32 s45, s2, 10
    s_lshl_b32 s50, s3, 8
    s_add_u32 s45, s45, s50
    v_and_b32 v1, 63, v0
    v_lshlrev_b32 v1, 2, v1
    buffer_store_dword v155, v1, s[72:75], s45 offen
    """)

def gemm_splitk(a, name, prefix, nmt, nnt, nstages, setup, lda, ldb, epilogue, bnorm=False, afrag=False, rbstride=262144, browmap=None, pf=None):
    kernel_header(a, name)
    END = prefix + '_END'
    gstamp(a, prefix, 0)
    dispense(a, nmt*nnt, 65536 if bnorm else 131072, prefix, extra_barrier=bnorm)
    a(f'''
    s_load_dwordx2 s[4:5], s[0:1], {ARG['ws']}
    ''')
    gstamp(a, prefix, 1)
    setup_loads = setup(a, 'load')
    a(f'''
    v_lshrrev_b32 v1, 6, v0
    s_waitcnt lgkmcnt(0)
    v_readfirstlane_b32 s3, v1
    s_cmp_ge_u32 s2, {nmt*nnt}
    s_cbranch_scc1 {END}
    ''')
    a(f'''
    s_and_b32 s40, s2, 7
    s_lshr_b32 s41, s2, 3
    s_mov_b32 s42, {(1 << 32) // nnt + 1}
    s_mul_hi_u32 s43, s41, s42
    s_mul_i32 s42, s43, {nnt}
    s_sub_u32 s41, s41, s42          ; ntile
    s_lshl_b32 s43, s43, 3
    s_add_u32 s40, s40, s43          ; mtile
    ''')
    setup(a, 'srd')
    if pf is not None and PFW:
        a(f'''
        s_cmp_lg_u32 s3, 4
        s_cbranch_scc1 {prefix}_MAIN
        v_and_b32 v1, 63, v0
        v_lshlrev_b32 v2, 7, v1          ; lane*128
        s_lshr_b32 s50, s2, 3            ; j
        s_and_b32 s51, s2, 7             ; y
        s_lshr_b32 s52, s50, 2           ; jj
        s_lshr_b32 s53, s52, 1
        s_lshl_b32 s53, s53, 3
        s_add_u32 s53, s53, s51
        s_lshl_b32 s53, s53, 1
        s_and_b32 s52, s52, 1
        s_add_u32 s53, s53, s52
        s_and_b32 s52, s50, 3            ; sub
        ''')
        if os.environ.get('PFX', '') != 'none':
            pf(a)
        a('''
        s_waitcnt vmcnt(0)
        s_endpgm
        ''')
        a.label(f'{prefix}_MAIN')
    ACC = 64
    FA, FB = 20, 36
    BR = 128
    a(f'''
    s_lshl_b32 s36, s3, 10
    v_and_b32 v1, 63, v0
    v_and_b32 v2, 31, v1
    v_lshrrev_b32 v3, 5, v1
    v_lshrrev_b32 v4, 4, v1          ; lane/16
    s_lshl_b32 s34, s3, 2
    v_add_u32 v4, s34, v4            ; row 0..15
    v_and_b32 v5, 15, v1
    v_xor_b32 v5, v5, v4
    s_lshl_b32 s35, s40, 6           ; m0
    v_add_u32 v4, s35, v4
    s_mov_b32 s34, {lda}
    v_mul_lo_u32 v4, v4, s34
    v_lshl_add_u32 v10, v5, 4, v4
    v_lshrrev_b32 v4, 3, v1          ; lane/8
    v_bfe_u32 v5, v4, 1, 1
    v_lshlrev_b32 v5, 2, v5
    v_and_b32 v6, 7, v1
    v_xor_b32 v5, v5, v6
    s_lshl_b32 s34, s3, 3
    v_add_u32 v4, s34, v4            ; krow 0..31
    v_mov_b32 v9, v4
    s_mov_b32 s34, {ldb}
    v_mul_lo_u32 v4, v4, s34
    v_lshl_add_u32 v11, v5, 4, v4
    s_lshl_b32 s34, s41, 7           ; n0*2
    v_add_u32 v11, s34, v11          ; B voffset
    ''')
    if afrag:
        a(f'''
        s_mul_i32 s34, s40, {2*rbstride}
        s_add_u32 s34, s34, s36
        v_lshl_add_u32 v10, v1, 4, s34
        ''')
    a('''
    v_and_b32 v5, 15, v2             ; row&15
    v_lshlrev_b32 v4, 8, v2          ; row*256
    s_lshl_b32 s34, s3, 2            ; w*4
    ''')
    for s in range(2):
        a(f'''
        v_or_b32 v6, {2*s}, v3
        v_or_b32 v6, s34, v6
        v_xor_b32 v6, v6, v5
        v_lshl_add_u32 v{12+s}, v6, 4, v4
        ''')
        if afrag:
            a(f'''
            s_lshl_b32 s37, s3, 11
            s_add_u32 s37, s37, {s*1024}
            v_lshl_add_u32 v{12+s}, v1, 4, s37
            ''')
    a('''
    v_bfe_u32 v4, v1, 2, 2           ; r
    v_and_b32 v5, 3, v1              ; c4
    v_bfe_u32 v6, v1, 4, 1           ; nsub
    v_lshlrev_b32 v7, HSH, v3
    v_add_u32 v7, v7, v4             ; 8half + r
    s_lshl_b32 s34, s3, 5
    v_add_u32 v7, s34, v7            ; + 32w
    v_lshlrev_b32 v7, 7, v7          ; *128
    v_lshl_add_u32 v7, v6, 5, v7
    v_lshl_add_u32 v7, v5, 3, v7
    v_add_u32 v7, 16384, v7
    v_lshrrev_b32 v4, 1, v4          ; (r>>1)&1
    '''.replace('HSH', '2' if afrag else '3'))
    for nb in range(2):
        a(f'''
        v_xor_b32 v6, {nb}, v4
        v_lshl_add_u32 v{14+nb}, v6, 6, v7
        ''')
    for i in range(64):
        a(f'v_mov_b32 v{ACC+i}, 0')
    setup(a, 'pre')
    NST = 2 if bnorm else 4
    def issueA(t, slot):
        for i in range(4):
            a(f'''
            s_add_u32 m0, s36, {slot*32768 + i*4096}
            s_mov_b32 s39, {(t*8192 + (i//2)*rbstride + (i%2)*4096) if afrag else (t*256 + i*16*lda)}
            buffer_load_dwordx4 v10, s[12:15], s39 offen lds
            ''')
    def issueB(t, slot):
        for i in range(4):
            if bnorm:
                a(f'''
                s_mov_b32 s39, {(t*128 + i*32)*ldb}
                buffer_load_dwordx4 v[{BR+4*i}:{BR+4*i+3}], v11, s[16:19], s39 offen
                ''')
            else:
                a(f'''
                s_add_u32 m0, s36, {slot*32768 + 16384 + i*4096}
                s_mov_b32 s39, {(browmap(t, i) if browmap else (t*128 + i*32))*ldb}
                buffer_load_dwordx4 v11, s[16:19], s39 offen lds
                ''')
    def writeB(t, slot):
        a('s_waitcnt vmcnt(0)')
        for i in range(4):
            a(f'ds_read_b64 v[{144+2*i}:{145+2*i}], v17 offset:{(t*128 + i*32)*8}')
        a('s_waitcnt lgkmcnt(0)')
        for i in range(4):
            for j in range(4):
                r = BR + 4*i + j
                a(f'''
                v_lshlrev_b32 v152, 16, v{r}
                v_and_b32 v153, 0xffff0000, v{r}
                v_sub_f32 v152, v152, v{144+2*i}
                v_sub_f32 v153, v153, v{144+2*i}
                v_mul_f32 v152, v152, v{145+2*i}
                v_mul_f32 v153, v153, v{145+2*i}
                v_cvt_pk_bf16_f32 v{r}, v152, v153
                ''')
            a(f'ds_write_b128 v16, v[{BR+4*i}:{BR+4*i+3}] offset:{slot*32768 + 16384 + i*4096}')
    def reads(slot, s, buf):
        sb = slot * 32768
        va, vb = 12, 14
        if sb >= 65536:
            sb -= 65536; va, vb = 156, 158
        for mb in range(2):
            a(f'ds_read_b128 v[{FA+buf*8+mb*4}:{FA+buf*8+mb*4+3}], v{va+s} offset:{sb + mb*8192}')
        for nb in range(2):
            for j in range(2):
                r = FB + buf*8 + nb*4 + j*2
                a(f'ds_read_b64_tr_b16 v[{r}:{r+1}], v{vb+nb} offset:{sb + s*2048 + j*(1024 if afrag else 512)}')
    if NST > 2:
        for i in range(4):
            a(f'v_add_u32 v{156+i}, 0x10000, v{12+i}')
    if bnorm:
        a(f'''
        v_lshlrev_b32 v16, 4, v1
        v_add_u32 v16, s36, v16
        v_lshlrev_b32 v17, 3, v9
        v_add_u32 v17, 65536, v17
        ''')
        issueA(0, 0); issueB(0, 0); writeB(0, 0)
    else:
        for t in range(NST - 1):
            issueA(t, t); issueB(t, t)
    gstamp(a, prefix, 2)
    for t in range(nstages):
        slot = t % NST
        if bnorm:
            a('s_waitcnt vmcnt(0) lgkmcnt(0)')
        else:
            inflight = min(NST - 2, nstages - 1 - t)
            a(f's_waitcnt vmcnt({8*inflight})')
        a('s_barrier')
        gstamp(a, prefix, 4 + t)
        tn = t + NST - 1
        if tn < nstages:
            issueA(tn, tn % NST); issueB(tn, tn % NST)
        reads(slot, 0, 0)
        reads(slot, 1, 1)
        for s in range(2):
            a(f's_waitcnt lgkmcnt({6 if s == 0 else 0})')
            for mb in range(2):
                for nb in range(2):
                    c = ACC + (mb*2+nb)*16
                    fa = FA + s*8 + mb*4
                    fb = FB + s*8 + nb*4
                    a(f'v_mfma_f32_32x32x16_bf16 v[{c}:{c+15}], v[{fb}:{fb+3}], v[{fa}:{fa+3}], v[{c}:{c+15}]')
        if bnorm and tn < nstages:
            writeB(tn, tn % NST)
    gstamp(a, prefix, 60)
    a(f'''
    s_waitcnt vmcnt(0) lgkmcnt(0)
    s_barrier
    s_lshl_b32 s34, s3, 14
    v_lshlrev_b32 v4, 4, v1
    v_add_u32 v5, s34, v4
    ''')
    for qd in range(16):
        a(f'ds_write_b128 v5, v[{ACC+4*qd}:{ACC+4*qd+3}] offset:{qd*1024}')
    a(f'''
    s_waitcnt lgkmcnt(0)
    s_barrier
    s_lshl_b32 s34, s3, 12
    v_add_u32 v5, s34, v4
    ''')
    for wv in range(4):
        for g in range(4):
            r = ACC + wv*16 + g*4
            a(f'ds_read_b128 v[{r}:{r+3}], v5 offset:{wv*16384 + g*1024}')
    a('s_waitcnt lgkmcnt(0)')
    for i in range(16):
        a(f'''
        v_add_f32 v{ACC+i}, v{ACC+i}, v{ACC+16+i}
        v_add_f32 v{ACC+32+i}, v{ACC+32+i}, v{ACC+48+i}
        v_add_f32 v{ACC+i}, v{ACC+i}, v{ACC+32+i}
        ''')
    a('''
    s_lshr_b32 s34, s3, 1
    s_lshl_b32 s34, s34, 5
    s_add_u32 s34, s34, s35
    v_add_u32 v4, s34, v2            ; row
    s_and_b32 s34, s3, 1
    s_lshl_b32 s34, s34, 5
    s_lshl_b32 s37, s41, 6
    s_add_u32 s34, s34, s37
    v_lshlrev_b32 v5, 2, v3
    v_add_u32 v5, s34, v5            ; col (g=0)
    ''')
    gstamp(a, prefix, 61)
    epilogue(a, ACC)
    gstamp(a, prefix, 62)
    gstamp_out(a, prefix)
    a.label(END)
    a('s_endpgm')
    lds = NST * 32768 + (16384 if bnorm else 64)
    return dict(name=name, grid=nmt*nnt, block=320 if (pf is not None and PFW) else 256, lds=lds, vgpr=160)

def rbf(a, r):
    a(f'''
    v_cvt_pk_bf16_f32 v{r}, v{r}, v{r}
    v_lshlrev_b32 v{r}, 16, v{r}
    ''')

def gen_oproj(a):
    def setup(a, ph):
        if ph == 'load':
            a(f'''
            s_load_dwordx2 s[6:7], s[0:1], {ARG['A_w_o']}
            s_load_dwordx2 s[8:9], s[0:1], {ARG['A_x']}
            ''')
        elif ph == 'srd':
            srd(a, 12, 4, 5, 2048*4096*2, WS_CTX)
            srd(a, 16, 6, 7, 4096*512*2)
            srd(a, 20, 8, 9, 2048*512*2)
            srd(a, 24, 4, 5, 2048*512*2, WS_X2)
            srd(a, 28, 4, 5, 3072*4, WS_MOD)
    def epi(a, ACC):
        a('''
        v_lshlrev_b32 v6, 10, v4
        v_lshl_add_u32 v6, v5, 1, v6
        v_lshlrev_b32 v7, 2, v5          ; col*4
        v_add_u32 v7, 4096, v7
        ''')
        for g in range(4):
            a(f'''
            buffer_load_dwordx2 v[{20+2*g}:{21+2*g}], v6, s[20:23], 0 offen offset:{g*16}
            buffer_load_dwordx4 v[{28+4*g}:{31+4*g}], v7, s[28:31], 0 offen offset:{g*32}
            ''')
        a('s_waitcnt vmcnt(0)')
        for g in range(4):
            for j in range(4):
                r = ACC + g*4 + j
                rbf(a, r)
                a(f'v_mul_f32 v{r}, v{r}, v{28+4*g+j}')
                rbf(a, r)
                xs = 20 + 2*g + j//2
                if j % 2 == 0:
                    a(f'v_lshlrev_b32 v44, 16, v{xs}')
                else:
                    a(f'v_and_b32 v44, 0xffff0000, v{xs}')
                a(f'v_add_f32 v{r}, v{r}, v44')
            a(f'''
            v_cvt_pk_bf16_f32 v{46+2*(g%2)}, v{ACC+g*4}, v{ACC+g*4+1}
            v_cvt_pk_bf16_f32 v{47+2*(g%2)}, v{ACC+g*4+2}, v{ACC+g*4+3}
            buffer_store_dwordx2 v[{46+2*(g%2)}:{47+2*(g%2)}], v6, s[24:27], 0 offen offset:{g*16}
            ''')
    def pf(a):
        a('''
        s_lshl_b32 s54, s50, 13          ; B: j*8192
        s_lshl_b32 s55, s53, 18
        s_lshl_b32 s56, s52, 13
        s_add_u32 s55, s55, s56
        s_lshl_b32 s57, s53, 15
        s_add_u32 s57, s57, s56
        ''')
        PX = os.environ.get('PFX', '')
        for q in range(8):
            a(f'''
            {'' if PX == 'B' else 'buffer_load_dword v3, v2, s[12:15], s55 offen'}
            {'' if PX == 'A' else 'buffer_load_dword v3, v2, s[16:19], s54 offen'}
            s_add_u32 s54, s54, 262144
            {'' if PX == 'A' else 'buffer_load_dword v3, v2, s[16:19], s54 offen'}
            s_add_u32 s54, s54, 262144
            s_add_u32 s55, s55, 32768
            s_waitcnt vmcnt({PFD})
            ''')
        a('buffer_load_dword v3, v2, s[20:23], s57 offen')
    return gemm_splitk(a, 'oproj_kernel', 'OP', 32, 8, 32, setup, 8192, 1024, epi, afrag=True, pf=pf)

def gen_wout(a):
    def setup(a, ph):
        if ph == 'load':
            a(f'''
            s_load_dwordx2 s[6:7], s[0:1], {ARG['B_w_out']}
            s_load_dwordx2 s[8:9], s[0:1], {ARG['out']}
            ''')
        elif ph == 'srd':
            srd(a, 12, 4, 5, 0x300000, WS_Y)
            srd(a, 16, 6, 7, 688*512*2)
            srd(a, 20, 4, 5, 2048*512*2, WS_X2)
            srd(a, 24, 8, 9, 2048*512*2)
            srd(a, 28, 4, 5, 3072*4, WS_MOD)
    def epi(a, ACC):
        a('''
        v_lshlrev_b32 v6, 10, v4
        v_lshl_add_u32 v6, v5, 1, v6
        v_lshlrev_b32 v7, 2, v5
        v_add_u32 v7, 10240, v7
        ''')
        for g in range(4):
            a(f'''
            buffer_load_dwordx2 v[{20+2*g}:{21+2*g}], v6, s[20:23], 0 offen offset:{g*16}
            buffer_load_dwordx4 v[{28+4*g}:{31+4*g}], v7, s[28:31], 0 offen offset:{g*32}
            ''')
        a('s_waitcnt vmcnt(0)')
        for g in range(4):
            for j in range(4):
                r = ACC + g*4 + j
                rbf(a, r)
                a(f'v_mul_f32 v{r}, v{r}, v{28+4*g+j}')
                rbf(a, r)
                xs = 20 + 2*g + j//2
                if j % 2 == 0:
                    a(f'v_lshlrev_b32 v44, 16, v{xs}')
                else:
                    a(f'v_and_b32 v44, 0xffff0000, v{xs}')
                a(f'v_add_f32 v{r}, v{r}, v44')
            a(f'''
            v_cvt_pk_bf16_f32 v{46+2*(g%2)}, v{ACC+g*4}, v{ACC+g*4+1}
            v_cvt_pk_bf16_f32 v{47+2*(g%2)}, v{ACC+g*4+2}, v{ACC+g*4+3}
            buffer_store_dwordx2 v[{46+2*(g%2)}:{47+2*(g%2)}], v6, s[24:27], 0 offen offset:{g*16}
            ''')
    def pf(a):
        a('''
        s_mul_i32 s54, s50, 22016        ; B share
        s_mul_i32 s55, s53, 49152
        s_mul_i32 s56, s52, 12288
        s_add_u32 s55, s55, s56
        s_lshl_b32 s56, s52, 13
        s_lshl_b32 s57, s53, 15
        s_add_u32 s57, s57, s56
        buffer_load_dword v3, v2, s[12:15], s55 offen
        buffer_load_dword v3, v2, s[16:19], s54 offen
        s_add_u32 s54, s54, 8192
        s_add_u32 s55, s55, 4096
        buffer_load_dword v3, v2, s[16:19], s54 offen
        buffer_load_dword v3, v2, s[12:15], s55 offen
        s_add_u32 s54, s54, 8192
        buffer_load_dword v3, v2, s[16:19], s54 offen
        buffer_load_dword v3, v2, s[20:23], s57 offen
        ''')
    return gemm_splitk(a, 'wout_kernel', 'WO', 32, 8, 6, setup, ZP*2, 1024, epi, afrag=True, rbstride=49152, pf=pf,
                       browmap=lambda t, i: 88*((8*t+2*i)//6) + 16*((8*t+2*i)%6))

def gen_sp(a):
    def setup(a, ph):
        if ph == 'load':
            a(f'''
            s_load_dwordx2 s[6:7], s[0:1], {ARG['B_w_sp']}
            s_load_dwordx2 s[8:9], s[0:1], {ARG['B_b_sp']}
            ''')
        elif ph == 'srd':
            srd(a, 12, 6, 7, 2048*2048*2)
            srd(a, 16, 4, 5, 2048*ZP*2, WS_Z2)
            srd(a, 20, 4, 5, 2048*ZP*2, WS_Z1)
            srd(a, 24, 4, 5, 2048*ZP*2, WS_Y)
            srd(a, 28, 8, 9, 2048*2)
            srd(a, 44, 4, 5, 6*2048*8, WS_STAT)
        elif ph == 'pre':
            a('v_lshlrev_b32 v16, 3, v0')
            a('v_add_u32 v17, 0x10000, v16')
            for i in range(8):
                for p in range(6):
                    a(f'''
                    s_mov_b32 s39, {p*16384 + i*2048}
                    buffer_load_dwordx2 v[{128+2*p}:{129+2*p}], v16, s[44:47], s39 offen
                    ''')
                a('s_waitcnt vmcnt(0)')
                a('''
                v_add_f32 v128, v128, v130
                v_add_f32 v129, v129, v131
                v_add_f32 v132, v132, v134
                v_add_f32 v133, v133, v135
                v_add_f32 v136, v136, v138
                v_add_f32 v137, v137, v139
                v_add_f32 v128, v128, v132
                v_add_f32 v129, v129, v133
                v_add_f32 v128, v128, v136
                v_add_f32 v129, v129, v137
                v_mul_f32 v128, 0x3abe82fa, v128     ; mean (1/688)
                v_mul_f32 v129, 0x3abe82fa, v129     ; E[x^2]
                v_fma_f32 v129, -v128, v128, v129
                v_max_f32 v129, 0, v129
                v_add_f32 v129, 0x3727c5ac, v129
                v_rsq_f32 v129, v129
                ''')
                a(f'ds_write_b64 v17, v[128:129] offset:{i*2048}')
            a('''
            s_waitcnt lgkmcnt(0)
            s_barrier
            ''')
    def epi(a, ACC):
        a(f'''
        s_mov_b32 s34, {ZP*2}
        v_mul_lo_u32 v6, v4, s34
        v_lshl_add_u32 v6, v5, 1, v6
        v_lshlrev_b32 v7, 1, v4
        buffer_load_ushort v44, v7, s[28:31], 0 offen
        ''')
        for g in range(4):
            a(f'buffer_load_dwordx2 v[{20+2*g}:{21+2*g}], v6, s[20:23], 0 offen offset:{g*16}')
        a('''
        s_waitcnt vmcnt(0)
        v_lshlrev_b32 v44, 16, v44
        ''')
        for g in range(4):
            for j in range(4):
                r = ACC + g*4 + j
                rbf(a, r)
                a(f'v_add_f32 v{r}, v{r}, v44')
                rbf(a, r)
                xs = 20 + 2*g + j//2
                if j % 2 == 0:
                    a(f'v_lshlrev_b32 v45, 16, v{xs}')
                else:
                    a(f'v_and_b32 v45, 0xffff0000, v{xs}')
                a(f'v_mul_f32 v{r}, v{r}, v45')
            a(f'''
            v_cvt_pk_bf16_f32 v{46+2*(g%2)}, v{ACC+g*4}, v{ACC+g*4+1}
            v_cvt_pk_bf16_f32 v{47+2*(g%2)}, v{ACC+g*4+2}, v{ACC+g*4+3}
            v_add_u32 v45, {8*g}, v5
            v_cmp_gt_u32 vcc, 688, v45
            v_cndmask_b32 v{46+2*(g%2)}, 0, v{46+2*(g%2)}, vcc
            v_cndmask_b32 v{47+2*(g%2)}, 0, v{47+2*(g%2)}, vcc
            buffer_store_dwordx2 v[{46+2*(g%2)}:{47+2*(g%2)}], v6, s[24:27], 0 offen offset:{g*16}
            ''')
    return gemm_splitk(a, 'sp_kernel', 'SP', 32, 11, 16, setup, 4096, ZP*2, epi, bnorm=True)

def gen_win(a):
    name = 'win_kernel'
    kernel_header(a, name)
    NNT = 11
    dispense(a, 16*NNT, 65536 + 4096, 'WI')
    a(f'''
    s_load_dwordx2 s[4:5], s[0:1], {ARG['ws']}
    s_load_dwordx2 s[6:7], s[0:1], {ARG['B_w_in']}
    v_lshrrev_b32 v1, 6, v0
    s_waitcnt lgkmcnt(0)
    v_readfirstlane_b32 s3, v1
    s_cmp_ge_u32 s2, {16*NNT}
    s_cbranch_scc1 WI_END
    s_and_b32 s40, s2, 15            ; mtile
    s_lshr_b32 s41, s2, 4            ; ntile
    ''')
    srd(a, 12, 4, 5, 2048*512*2, WS_X2)
    srd(a, 16, 6, 7, 512*1376*2)
    srd(a, 20, 4, 5, 0x400000 + 2048*ZP*2, WS_Z1)
    srd(a, 24, 4, 5, 6*2048*8, WS_STAT)
    srd(a, 32, 4, 5, 4096, WS_MOD + 6144)
    MODL = 65536
    X0 = 64; QT = 192
    a(f'''
    s_lshl_b32 s36, s3, 10
    v_and_b32 v1, 63, v0
    v_and_b32 v2, 31, v1
    v_lshrrev_b32 v3, 5, v1
    s_lshl_b32 s44, s40, 7
    s_lshl_b32 s45, s3, 5
    s_add_u32 s44, s44, s45          ; row0
    v_add_u32 v4, s44, v2
    v_lshlrev_b32 v5, 10, v4
    v_lshl_add_u32 v5, v3, 4, v5
    ''')
    for s in range(32):
        a(f'buffer_load_dwordx4 v[{X0+4*s}:{X0+4*s+3}], v5, s[12:15], 0 offen offset:{s*32}')
    a(f'''
    v_lshlrev_b32 v6, 4, v0
    buffer_load_dwordx4 v[8:11], v6, s[32:35], 0 offen offset:0
    ''')
    a.lines[-1] = a.lines[-1]
    a('''
    v_lshrrev_b32 v12, 4, v1
    v_and_b32 v13, 15, v1
    v_lshlrev_b32 v14, 2, v12
    v_xor_b32 v14, v14, v13
    s_lshl_b32 s45, s3, 2
    v_add_u32 v15, s45, v12
    s_mov_b32 s45, 2752
    v_mul_lo_u32 v15, v15, s45
    v_lshl_add_u32 v16, v14, 4, v15
    s_lshl_b32 s45, s41, 8
    v_add_u32 v16, s45, v16
    ''')
    def issue_w(c):
        slot = c % 4
        for i in range(4):
            a(f'''
            s_add_u32 m0, s36, {slot*16384 + i*4096}
            s_mov_b32 s39, {(c*64 + i*16)*2752}
            buffer_load_dwordx4 v16, s[16:19], s39 offen lds
            ''')
    for c in range(3):
        issue_w(c)
    a('''
    v_bfe_u32 v12, v1, 2, 2
    v_and_b32 v13, 3, v1
    v_bfe_u32 v14, v1, 4, 1
    v_lshlrev_b32 v15, 3, v3
    v_add_u32 v15, v15, v12
    v_lshlrev_b32 v15, 8, v15
    v_lshl_add_u32 v15, v14, 5, v15
    v_lshl_add_u32 v15, v13, 3, v15
    ''')
    for blk in range(4):
        a(f'''
        v_xor_b32 v17, {blk}, v12
        v_lshl_add_u32 v{20+blk}, v17, 6, v15
        ''')
    a(f'''
    s_waitcnt vmcnt(12)
    v_add_u32 v6, {MODL}, v6
    ds_write_b128 v6, v[8:11]
    v_mov_b32 v24, 0
    v_mov_b32 v25, 0
    ''')
    for r in range(128):
        a(f'''
        v_lshlrev_b32 v26, 16, v{X0+r}
        v_and_b32 v27, 0xffff0000, v{X0+r}
        v_add_f32 v24, v24, v26
        v_add_f32 v25, v25, v27
        ''')
    a('''
    v_add_f32 v24, v24, v25
    v_mov_b32 v25, v24
    v_permlane32_swap_b32 v24, v25
    v_add_f32 v24, v24, v25
    v_mul_f32 v24, 0x3b000000, v24
    v_mov_b32 v25, 0
    v_mov_b32 v28, 0
    ''')
    for r in range(128):
        a(f'''
        v_lshlrev_b32 v26, 16, v{X0+r}
        v_and_b32 v27, 0xffff0000, v{X0+r}
        v_sub_f32 v26, v26, v24
        v_sub_f32 v27, v27, v24
        v_fma_f32 v25, v26, v26, v25
        v_fma_f32 v28, v27, v27, v28
        ''')
    a(f'''
    v_add_f32 v25, v25, v28
    v_mov_b32 v26, v25
    v_permlane32_swap_b32 v25, v26
    v_add_f32 v25, v25, v26
    v_mov_b32 v26, 0x3727c5ac
    v_fmac_f32 v26, 0x3b000000, v25
    v_rsq_f32 v25, v26
    s_waitcnt lgkmcnt(0)
    s_barrier
    v_lshlrev_b32 v26, 5, v3
    v_add_u32 v26, {MODL}, v26
    ''')
    for s in range(32):
        a(f'''
        ds_read_b128 v[28:31], v26 offset:{s*64}
        ds_read_b128 v[32:35], v26 offset:{s*64+16}
        ds_read_b128 v[36:39], v26 offset:{2048+s*64}
        ds_read_b128 v[40:43], v26 offset:{2048+s*64+16}
        ''')
        for j in range(4):
            a(f'''
            v_lshlrev_b32 v{44+2*j}, 16, v{X0+4*s+j}
            v_and_b32 v{45+2*j}, 0xffff0000, v{X0+4*s+j}
            ''')
        for j in range(8):
            a(f'''
            v_sub_f32 v{44+j}, v{44+j}, v24
            v_mul_f32 v{44+j}, v{44+j}, v25
            ''')
        a('s_waitcnt lgkmcnt(0)')
        for j in range(8):
            a(f'''
            v_add_f32 v{36+j}, 1.0, v{36+j}
            v_fma_f32 v{44+j}, v{44+j}, v{36+j}, v{28+j}
            ''')
        for j in range(4):
            a(f'v_cvt_pk_bf16_f32 v{X0+4*s+j}, v{44+2*j}, v{45+2*j}')
    for i in range(64):
        a(f'v_mov_b32 v{QT+i}, 0')
    FW = 28
    def w_reads(slot, s, buf):
        for blk in range(4):
            for j in range(2):
                r = FW + buf*16 + blk*4 + j*2
                a(f'ds_read_b64_tr_b16 v[{r}:{r+1}], v{20+blk} offset:{slot*16384 + s*4096 + j*1024}')
    for c in range(8):
        slot = c % 4
        inflight = min(2, 7 - c)
        a(f's_waitcnt vmcnt({4*inflight})')
        a('s_barrier')
        if c + 3 < 8:
            issue_w(c + 3)
        w_reads(slot, 0, 0)
        for s in range(4):
            buf = s & 1
            if s < 3:
                w_reads(slot, s + 1, buf ^ 1)
                a('s_waitcnt lgkmcnt(8)')
            else:
                a('s_waitcnt lgkmcnt(0)')
            hx = X0 + 4*(c*4 + s)
            for blk in range(4):
                f = FW + buf*16 + blk*4
                q = QT + blk*16
                a(f'v_mfma_f32_32x32x16_bf16 v[{q}:{q+15}], v[{f}:{f+3}], v[{hx}:{hx+3}], v[{q}:{q+15}]')
    a(f'''
    v_add_u32 v4, s44, v2            ; row
    s_mov_b32 s34, {ZP*2}
    v_mul_lo_u32 v6, v4, s34         ; row*1408
    s_lshl_b32 s37, s41, 7
    v_lshlrev_b32 v5, 2, v3
    v_add_u32 v5, s37, v5
    v_mov_b32 v24, 0
    v_mov_b32 v25, 0
    s_mov_b32 s48, 1376
    s_mov_b32 s46, 0x3d372713        ; 0.044715
    s_mov_b32 s47, 0xc0135761        ; -2*0.7978845608*log2(e)
    ''')
    for blk in range(4):
        for g in range(4):
            for j in range(4):
                r = QT + blk*16 + g*4 + j
                rbf(a, r)
                a(f'''
                v_mul_f32 v26, v{r}, v{r}
                v_fma_f32 v26, v26, s46, 1.0
                v_mul_f32 v26, v26, v{r}
                v_mul_f32 v26, s47, v26
                v_exp_f32 v26, v26
                v_add_f32 v26, 1.0, v26
                v_rcp_f32 v26, v26
                v_mul_f32 v{r}, v{r}, v26
                ''')
                rbf(a, r)
            r = QT + blk*16 + g*4
            a(f'''
            v_cvt_pk_bf16_f32 v28, v{r}, v{r+1}
            v_cvt_pk_bf16_f32 v29, v{r+2}, v{r+3}
            v_add_u32 v26, {blk*32 + g*8}, v5        ; col
            v_lshl_add_u32 v27, v26, 1, v6           ; z1 offset
            v_add_u32 v30, {0x400000 - 688*2}, v27   ; z2 offset
            v_cmp_gt_u32 vcc, 688, v26
            v_cndmask_b32 v27, v30, v27, vcc
            v_mov_b32 v30, 0x7ffffff0
            v_cmp_gt_u32 s[50:51], s48, v26
            v_cndmask_b32 v27, v30, v27, s[50:51]
            buffer_store_dwordx2 v[28:29], v27, s[20:23], 0 offen
            s_andn2_b64 s[50:51], s[50:51], vcc
            v_cndmask_b32 v30, 0, v{r}, s[50:51]
            v_cndmask_b32 v31, 0, v{r+1}, s[50:51]
            v_cndmask_b32 v32, 0, v{r+2}, s[50:51]
            v_cndmask_b32 v33, 0, v{r+3}, s[50:51]
            v_add_f32 v24, v24, v30
            v_fma_f32 v25, v30, v30, v25
            v_add_f32 v24, v24, v31
            v_fma_f32 v25, v31, v31, v25
            v_add_f32 v24, v24, v32
            v_fma_f32 v25, v32, v32, v25
            v_add_f32 v24, v24, v33
            v_fma_f32 v25, v33, v33, v25
            ''')
    a(f'''
    s_cmp_lt_u32 s41, 5
    s_cbranch_scc1 WI_END
    v_mov_b32 v26, v24
    v_mov_b32 v27, v25
    v_permlane32_swap_b32 v24, v26
    v_permlane32_swap_b32 v25, v27
    v_add_f32 v24, v24, v26
    v_add_f32 v25, v25, v27
    v_lshlrev_b32 v6, 3, v4
    s_sub_u32 s34, s41, 5
    s_lshl_b32 s34, s34, 14
    v_add_u32 v6, s34, v6
    v_mov_b32 v7, 0x7ffffff0
    v_cmp_gt_u32 vcc, 32, v1
    v_cndmask_b32 v6, v7, v6, vcc
    buffer_store_dwordx2 v[24:25], v6, s[24:27], 0 offen
    ''')
    a.label('WI_END')
    a('s_endpgm')
    return dict(name=name, grid=16*NNT, block=256, lds=65536 + 4096 + 64, vgpr=256)

import k_win2, k_sp2
GENS = [gen_oproj, k_win2.gen_win, k_sp2.gen_sp, gen_wout]
```

```python
from asmlib import Asm

WS_MOD  = 0x0
WS_STAT = 0x10000
WS_K    = 0x1000000
WS_VT   = 0x2000000
WS_CTX  = 0x3000000
WS_X2   = 0x4000000
WS_Z1   = 0x4400000
WS_Z2   = 0x4800000
WS_Y    = 0x4C00000
WS_N1   = 0x5000000
WS_WO   = 0x5400000
WS_WOUT = 0x5800000
ZP = 704

ARG = dict(A_x=0, A_c_kv=8, A_w_q=16, A_w_uk=24, A_w_uv=32, A_w_o=40, B_x=48, B_w_in=56, B_w_sp=64,
           B_b_sp=72, B_w_out=80, c=88, w_mod=96, out=104, dbg=112, ws=120)

def kernel_header(a, name):
    a.raw(f'.globl {name}')
    a.raw('.p2align 8')
    a.raw(f'.type {name},@function')
    a.raw(f'{name}:')
    a.hist = []

def kernel_desc(name, vgpr, sgpr=102, accum=None):
    if accum is None:
        accum = (vgpr + 3) // 4 * 4
    return f'''.amdhsa_kernel {name}
  .amdhsa_next_free_vgpr {vgpr}
  .amdhsa_next_free_sgpr {sgpr}
  .amdhsa_accum_offset {accum}
  .amdhsa_group_segment_fixed_size 0
  .amdhsa_kernarg_size 128
  .amdhsa_user_sgpr_count 2
  .amdhsa_user_sgpr_kernarg_segment_ptr 1
  .amdhsa_system_sgpr_workgroup_id_x 1
.end_amdhsa_kernel
'''

def srd(a, d, lo, hi, nbytes, off=0):
    if off:
        a(f's_add_u32 s{d}, s{lo}, {off}')
        a(f's_addc_u32 s{d+1}, s{hi}, 0')
    else:
        a(f's_mov_b32 s{d}, s{lo}')
        a(f's_mov_b32 s{d+1}, s{hi}')
    a(f's_mov_b32 s{d+2}, {nbytes}')
    a(f's_mov_b32 s{d+3}, 0x00020000')

def dispense(a, nitems, ldsoff, tag, extra_barrier=False):
    assert nitems % 8 == 0
    Q = nitems // 8
    import os
    nd = os.environ.get('NODISP', '')
    if nd == 'all' or tag in nd.split(','):
        return
    if tag != 'KV' and os.environ.get('DISP2', '1') == '1':
        assert not extra_barrier
        return dispense2(a, nitems, ldsoff, tag)
    a(f'''
    s_load_dwordx2 s[92:93], s[0:1], {ARG['dbg']}
    s_getreg_b32 s90, hwreg(HW_REG_XCC_ID, 0, 4)
    v_lshrrev_b32 v1, 6, v0
    v_mov_b32 v2, {ldsoff}
    s_and_b32 s90, s90, 7
    v_readfirstlane_b32 s91, v1
    s_mov_b32 s94, 256
    s_mov_b32 s95, 0x00020000
    s_waitcnt lgkmcnt(0)
    s_cmp_lg_u32 s91, 0
    s_cbranch_scc1 {tag}_DW
    s_mov_b64 exec, 1
    s_mov_b32 s96, 0
    ''')
    a.label(f'{tag}_DL')
    a(f'''
    s_add_u32 s97, s90, s96
    s_and_b32 s97, s97, 7
    s_lshl_b32 s98, s97, 5
    v_mov_b32 v1, s98
    v_mov_b32 v3, 1
    buffer_atomic_add v3, v1, s[92:95], 0 offen sc0 sc1
    s_waitcnt vmcnt(0)
    v_readfirstlane_b32 s98, v3
    s_cmp_lt_u32 s98, {Q}
    s_cbranch_scc1 {tag}_DF
    s_add_u32 s96, s96, 1
    s_cmp_lt_u32 s96, 8
    s_cbranch_scc1 {tag}_DL
    s_mov_b32 s98, 0x0fffffff
    ''')
    a.label(f'{tag}_DF')
    a(f'''
    s_lshl_b32 s98, s98, 3
    s_add_u32 s98, s98, s97
    v_mov_b32 v3, s98
    ds_write_b32 v2, v3
    s_mov_b64 exec, -1
    s_waitcnt lgkmcnt(0)
    ''')
    a.label(f'{tag}_DW')
    a(f'''
    s_barrier
    ds_read_b32 v3, v2
    s_waitcnt lgkmcnt(0)
    v_readfirstlane_b32 s2, v3
    ''')
    if extra_barrier:
        a('s_barrier')

WS_CNT = 0x20000
KIDX = dict(AT=0, OP=1, WI=2, SP=3, WO=4)
def dispense2(a, nitems, ldsoff, tag):
    nsub = nitems // 64
    lg = nsub.bit_length() - 1
    ncnt = 8 * nsub
    a(f'''
    s_load_dwordx2 s[92:93], s[0:1], {ARG['ws']}
    s_getreg_b32 s90, hwreg(HW_REG_XCC_ID, 0, 4)
    v_lshrrev_b32 v1, 6, v0
    v_mov_b32 v2, {ldsoff}
    s_cmp_ge_u32 s2, {nitems}
    s_cbranch_scc1 {tag}_DX
    s_and_b32 s90, s90, 7
    v_readfirstlane_b32 s91, v1
    s_lshl_b32 s90, s90, {lg}
    s_lshr_b32 s96, s2, 6
    s_add_u32 s90, s90, s96
    s_mov_b32 s94, 8192
    s_mov_b32 s95, 0x00020000
    s_cmp_lg_u32 s91, 0
    s_cbranch_scc1 {tag}_DW
    s_mov_b64 exec, 1
    s_mov_b32 s96, 0
    s_waitcnt lgkmcnt(0)
    s_add_u32 s92, s92, {WS_CNT + KIDX[tag] * 8192}
    s_addc_u32 s93, s93, 0
    ''')
    a.label(f'{tag}_DL')
    a(f'''
    s_add_u32 s97, s90, s96
    s_and_b32 s97, s97, {ncnt - 1}
    s_lshl_b32 s98, s97, 8
    v_mov_b32 v1, s98
    v_mov_b32 v3, 1
    buffer_atomic_add v3, v1, s[92:95], 0 offen sc0 sc1
    s_waitcnt vmcnt(0)
    v_readfirstlane_b32 s98, v3
    s_cmp_lt_u32 s98, 8
    s_cbranch_scc1 {tag}_DF
    s_add_u32 s96, s96, 1
    s_cmp_lt_u32 s96, {ncnt}
    s_cbranch_scc1 {tag}_DL
    s_mov_b32 s98, 0x00ffffff
    ''')
    a.label(f'{tag}_DF')
    a(f'''
    s_and_b32 s99, s97, {nsub - 1}
    s_lshl_b32 s99, s99, 3
    s_add_u32 s98, s98, s99
    s_lshl_b32 s98, s98, 3
    s_lshr_b32 s97, s97, {lg}
    s_add_u32 s98, s98, s97
    v_mov_b32 v3, s98
    ds_write_b32 v2, v3
    s_mov_b64 exec, -1
    s_waitcnt lgkmcnt(0)
    ''')
    a.label(f'{tag}_DW')
    a(f'''
    s_barrier
    ds_read_b32 v3, v2
    s_waitcnt lgkmcnt(0)
    v_readfirstlane_b32 s2, v3
    ''')
    a.label(f'{tag}_DX')

import os as _os
def code_pf(a, start, end, swave, nwaves, nbytes, sb=90, vt=2, woff=0):
    if _os.environ.get('NOPF'): return
    n = -(-nbytes // (8192 * nwaves))
    lbl = a.newlabel('PF')
    a(f's_getpc_b64 s[{sb}:{sb+1}]')
    a.raw(f'{lbl}:')
    if start is None or start == lbl:
        start = lbl
    else:
        a.raw(f'    s_add_u32 s{sb}, s{sb}, {start}-{lbl}')
        a.raw(f'    s_addc_u32 s{sb+1}, s{sb+1}, 0')
    a(f'''
    v_mbcnt_lo_u32_b32 v{vt}, -1, 0
    v_mbcnt_hi_u32_b32 v{vt}, -1, v{vt}
    v_lshlrev_b32 v{vt}, 7, v{vt}
    s_sub_u32 s{sb+2}, s{swave}, {woff}
    s_lshl_b32 s{sb+2}, s{sb+2}, 13
    v_add_u32 v{vt}, s{sb+2}, v{vt}
    ''')
    for i in range(n):
        if i:
            a(f'v_add_u32 v{vt}, {8192*nwaves}, v{vt}')
        a.raw(f'    v_min_u32 v{vt+1+2*i}, {end}-{start}-4, v{vt}')
        a.raw('    s_nop 0')
        a.raw(f'    global_load_dword v{vt+2+2*i}, v{vt+1+2*i}, s[{sb}:{sb+1}]')
```

```python
from k_common import *
import os
PFW = os.environ.get('PFW', '0') == '1'
PFD = int(os.environ.get('PFD', '9'))

STK = os.environ.get('STK', '')
def gstamp(a, prefix, idx):
    if STK != prefix: return
    a(f"""
    s_memtime s[82:83]
    s_waitcnt lgkmcnt(0)
    v_writelane_b32 v155, s82, {idx}
    """)
def gstamp_out(a, prefix):
    if STK != prefix: return
    a('s_waitcnt vmcnt(0)')
    gstamp(a, prefix, 63)
    srd(a, 72, 4, 5, 1 << 20, 0x7000000)
    a("""
    s_lshl_b32 s45, s2, 10
    s_lshl_b32 s50, s3, 8
    s_add_u32 s45, s45, s50
    v_and_b32 v1, 63, v0
    v_lshlrev_b32 v1, 2, v1
    buffer_store_dword v155, v1, s[72:75], s45 offen
    """)

def gemm_splitk(a, name, prefix, nmt, nnt, nstages, setup, lda, ldb, epilogue, bnorm=False, afrag=False, rbstride=262144, browmap=None, pf=None):
    kernel_header(a, name)
    END = prefix + '_END'
    gstamp(a, prefix, 0)
    a(f'''
    s_load_dwordx2 s[4:5], s[0:1], {ARG['ws']}
    ''')
    setup_loads = setup(a, 'load')
    dispense(a, nmt*nnt, 65536 if bnorm else 131072, prefix, extra_barrier=bnorm)
    gstamp(a, prefix, 1)
    a(f'''
    v_lshrrev_b32 v1, 6, v0
    s_waitcnt lgkmcnt(0)
    v_readfirstlane_b32 s3, v1
    s_cmp_ge_u32 s2, {nmt*nnt}
    s_cbranch_scc1 {END}
    ''')
    a(f'''
    s_and_b32 s40, s2, 7
    s_lshr_b32 s41, s2, 3
    s_mov_b32 s42, {(1 << 32) // nnt + 1}
    s_mul_hi_u32 s43, s41, s42
    s_mul_i32 s42, s43, {nnt}
    s_sub_u32 s41, s41, s42          ; ntile
    s_lshl_b32 s43, s43, 3
    s_add_u32 s40, s40, s43          ; mtile
    ''')
    setup(a, 'srd')
    if pf is not None and PFW:
        a(f'''
        s_cmp_lg_u32 s3, 4
        s_cbranch_scc1 {prefix}_MAIN
        v_and_b32 v1, 63, v0
        v_lshlrev_b32 v2, 7, v1          ; lane*128
        s_lshr_b32 s50, s2, 3            ; j
        s_and_b32 s51, s2, 7             ; y
        s_lshr_b32 s52, s50, 2           ; jj
        s_lshr_b32 s53, s52, 1
        s_lshl_b32 s53, s53, 3
        s_add_u32 s53, s53, s51
        s_lshl_b32 s53, s53, 1
        s_and_b32 s52, s52, 1
        s_add_u32 s53, s53, s52
        s_and_b32 s52, s50, 3            ; sub
        ''')
        if os.environ.get('PFX', '') != 'none':
            pf(a)
        a('''
        s_waitcnt vmcnt(0)
        s_endpgm
        ''')
        a.label(f'{prefix}_MAIN')
    ACC = 64
    FA, FB = 20, 36
    BR = 128
    a(f'''
    s_lshl_b32 s36, s3, 10
    v_and_b32 v1, 63, v0
    v_and_b32 v2, 31, v1
    v_lshrrev_b32 v3, 5, v1
    v_lshrrev_b32 v4, 4, v1          ; lane/16
    s_lshl_b32 s34, s3, 2
    v_add_u32 v4, s34, v4            ; row 0..15
    v_and_b32 v5, 15, v1
    v_xor_b32 v5, v5, v4
    s_lshl_b32 s35, s40, 6           ; m0
    v_add_u32 v4, s35, v4
    s_mov_b32 s34, {lda}
    v_mul_lo_u32 v4, v4, s34
    v_lshl_add_u32 v10, v5, 4, v4
    v_lshrrev_b32 v4, 3, v1          ; lane/8
    v_bfe_u32 v5, v4, 1, 1
    v_lshlrev_b32 v5, 2, v5
    v_and_b32 v6, 7, v1
    v_xor_b32 v5, v5, v6
    s_lshl_b32 s34, s3, 3
    v_add_u32 v4, s34, v4            ; krow 0..31
    v_mov_b32 v9, v4
    s_mov_b32 s34, {ldb}
    v_mul_lo_u32 v4, v4, s34
    v_lshl_add_u32 v11, v5, 4, v4
    s_lshl_b32 s34, s41, 7           ; n0*2
    v_add_u32 v11, s34, v11          ; B voffset
    ''')
    if afrag:
        a(f'''
        s_mul_i32 s34, s40, {2*rbstride}
        s_add_u32 s34, s34, s36
        v_lshl_add_u32 v10, v1, 4, s34
        ''')
    a('''
    v_and_b32 v5, 15, v2             ; row&15
    v_lshlrev_b32 v4, 8, v2          ; row*256
    s_lshl_b32 s34, s3, 2            ; w*4
    ''')
    for s in range(2):
        a(f'''
        v_or_b32 v6, {2*s}, v3
        v_or_b32 v6, s34, v6
        v_xor_b32 v6, v6, v5
        v_lshl_add_u32 v{12+s}, v6, 4, v4
        ''')
        if afrag:
            a(f'''
            s_lshl_b32 s37, s3, 11
            s_add_u32 s37, s37, {s*1024}
            v_lshl_add_u32 v{12+s}, v1, 4, s37
            ''')
    a('''
    v_bfe_u32 v4, v1, 2, 2           ; r
    v_and_b32 v5, 3, v1              ; c4
    v_bfe_u32 v6, v1, 4, 1           ; nsub
    v_lshlrev_b32 v7, HSH, v3
    v_add_u32 v7, v7, v4             ; 8half + r
    s_lshl_b32 s34, s3, 5
    v_add_u32 v7, s34, v7            ; + 32w
    v_lshlrev_b32 v7, 7, v7          ; *128
    v_lshl_add_u32 v7, v6, 5, v7
    v_lshl_add_u32 v7, v5, 3, v7
    v_add_u32 v7, 16384, v7
    v_lshrrev_b32 v4, 1, v4          ; (r>>1)&1
    '''.replace('HSH', '2' if afrag else '3'))
    for nb in range(2):
        a(f'''
        v_xor_b32 v6, {nb}, v4
        v_lshl_add_u32 v{14+nb}, v6, 6, v7
        ''')
    for i in range(64):
        a(f'v_mov_b32 v{ACC+i}, 0')
    setup(a, 'pre')
    NST = 2 if bnorm else 4
    def issueA(t, slot):
        for i in range(4):
            a(f'''
            s_add_u32 m0, s36, {slot*32768 + i*4096}
            s_mov_b32 s39, {(t*8192 + (i//2)*rbstride + (i%2)*4096) if afrag else (t*256 + i*16*lda)}
            buffer_load_dwordx4 v10, s[12:15], s39 offen lds
            ''')
    def issueB(t, slot):
        for i in range(4):
            if bnorm:
                a(f'''
                s_mov_b32 s39, {(t*128 + i*32)*ldb}
                buffer_load_dwordx4 v[{BR+4*i}:{BR+4*i+3}], v11, s[16:19], s39 offen
                ''')
            else:
                a(f'''
                s_add_u32 m0, s36, {slot*32768 + 16384 + i*4096}
                s_mov_b32 s39, {(browmap(t, i) if browmap else (t*128 + i*32))*ldb}
                buffer_load_dwordx4 v11, s[16:19], s39 offen lds
                ''')
    def writeB(t, slot):
        a('s_waitcnt vmcnt(0)')
        for i in range(4):
            a(f'ds_read_b64 v[{144+2*i}:{145+2*i}], v17 offset:{(t*128 + i*32)*8}')
        a('s_waitcnt lgkmcnt(0)')
        for i in range(4):
            for j in range(4):
                r = BR + 4*i + j
                a(f'''
                v_lshlrev_b32 v152, 16, v{r}
                v_and_b32 v153, 0xffff0000, v{r}
                v_sub_f32 v152, v152, v{144+2*i}
                v_sub_f32 v153, v153, v{144+2*i}
                v_mul_f32 v152, v152, v{145+2*i}
                v_mul_f32 v153, v153, v{145+2*i}
                v_cvt_pk_bf16_f32 v{r}, v152, v153
                ''')
            a(f'ds_write_b128 v16, v[{BR+4*i}:{BR+4*i+3}] offset:{slot*32768 + 16384 + i*4096}')
    def reads(slot, s, buf):
        sb = slot * 32768
        va, vb = 12, 14
        if sb >= 65536:
            sb -= 65536; va, vb = 156, 158
        for mb in range(2):
            a(f'ds_read_b128 v[{FA+buf*8+mb*4}:{FA+buf*8+mb*4+3}], v{va+s} offset:{sb + mb*8192}')
        for nb in range(2):
            for j in range(2):
                r = FB + buf*8 + nb*4 + j*2
                a(f'ds_read_b64_tr_b16 v[{r}:{r+1}], v{vb+nb} offset:{sb + s*2048 + j*(1024 if afrag else 512)}')
    if NST > 2:
        for i in range(4):
            a(f'v_add_u32 v{156+i}, 0x10000, v{12+i}')
    if bnorm:
        a(f'''
        v_lshlrev_b32 v16, 4, v1
        v_add_u32 v16, s36, v16
        v_lshlrev_b32 v17, 3, v9
        v_add_u32 v17, 65536, v17
        ''')
        issueA(0, 0); issueB(0, 0); writeB(0, 0)
    else:
        for t in range(NST - 1):
            issueA(t, t); issueB(t, t)
    gstamp(a, prefix, 2)
    for t in range(nstages):
        slot = t % NST
        if bnorm:
            a('s_waitcnt vmcnt(0) lgkmcnt(0)')
        else:
            inflight = min(NST - 2, nstages - 1 - t)
            a(f's_waitcnt vmcnt({8*inflight})')
        a('s_barrier')
        gstamp(a, prefix, 4 + t)
        tn = t + NST - 1
        if tn < nstages:
            issueA(tn, tn % NST); issueB(tn, tn % NST)
        reads(slot, 0, 0)
        reads(slot, 1, 1)
        for s in range(2):
            a(f's_waitcnt lgkmcnt({6 if s == 0 else 0})')
            for mb in range(2):
                for nb in range(2):
                    c = ACC + (mb*2+nb)*16
                    fa = FA + s*8 + mb*4
                    fb = FB + s*8 + nb*4
                    a(f'v_mfma_f32_32x32x16_bf16 v[{c}:{c+15}], v[{fb}:{fb+3}], v[{fa}:{fa+3}], v[{c}:{c+15}]')
        if bnorm and tn < nstages:
            writeB(tn, tn % NST)
    gstamp(a, prefix, 60)
    a(f'''
    s_waitcnt vmcnt(0) lgkmcnt(0)
    s_barrier
    s_lshl_b32 s34, s3, 14
    v_lshlrev_b32 v4, 4, v1
    v_add_u32 v5, s34, v4
    ''')
    for qd in range(16):
        a(f'ds_write_b128 v5, v[{ACC+4*qd}:{ACC+4*qd+3}] offset:{qd*1024}')
    a(f'''
    s_waitcnt lgkmcnt(0)
    s_barrier
    s_lshl_b32 s34, s3, 12
    v_add_u32 v5, s34, v4
    ''')
    for wv in range(4):
        for g in range(4):
            r = ACC + wv*16 + g*4
            a(f'ds_read_b128 v[{r}:{r+3}], v5 offset:{wv*16384 + g*1024}')
    a('s_waitcnt lgkmcnt(0)')
    for i in range(16):
        a(f'''
        v_add_f32 v{ACC+i}, v{ACC+i}, v{ACC+16+i}
        v_add_f32 v{ACC+32+i}, v{ACC+32+i}, v{ACC+48+i}
        v_add_f32 v{ACC+i}, v{ACC+i}, v{ACC+32+i}
        ''')
    a('''
    s_lshr_b32 s34, s3, 1
    s_lshl_b32 s34, s34, 5
    s_add_u32 s34, s34, s35
    v_add_u32 v4, s34, v2            ; row
    s_and_b32 s34, s3, 1
    s_lshl_b32 s34, s34, 5
    s_lshl_b32 s37, s41, 6
    s_add_u32 s34, s34, s37
    v_lshlrev_b32 v5, 2, v3
    v_add_u32 v5, s34, v5            ; col (g=0)
    ''')
    gstamp(a, prefix, 61)
    epilogue(a, ACC)
    gstamp(a, prefix, 62)
    gstamp_out(a, prefix)
    a.label(END)
    a('s_endpgm')
    lds = NST * 32768 + (16384 if bnorm else 64)
    return dict(name=name, grid=nmt*nnt, block=320 if (pf is not None and PFW) else 256, lds=lds, vgpr=160)

def rbf(a, r):
    a(f'''
    v_cvt_pk_bf16_f32 v{r}, v{r}, v{r}
    v_lshlrev_b32 v{r}, 16, v{r}
    ''')

def gen_oproj(a):
    def setup(a, ph):
        if ph == 'load':
            a(f'''
            s_load_dwordx2 s[6:7], s[0:1], {ARG['A_w_o']}
            s_load_dwordx2 s[8:9], s[0:1], {ARG['A_x']}
            ''')
        elif ph == 'srd':
            srd(a, 12, 4, 5, 2048*4096*2, WS_CTX)
            srd(a, 16, 6, 7, 4096*512*2)
            srd(a, 20, 8, 9, 2048*512*2)
            srd(a, 24, 4, 5, 2048*512*2, WS_X2)
            srd(a, 28, 4, 5, 3072*4, WS_MOD)
    def epi(a, ACC):
        a('''
        v_lshlrev_b32 v6, 10, v4
        v_lshl_add_u32 v6, v5, 1, v6
        v_lshlrev_b32 v7, 2, v5          ; col*4
        v_add_u32 v7, 4096, v7
        ''')
        for g in range(4):
            a(f'''
            buffer_load_dwordx2 v[{20+2*g}:{21+2*g}], v6, s[20:23], 0 offen offset:{g*16}
            buffer_load_dwordx4 v[{28+4*g}:{31+4*g}], v7, s[28:31], 0 offen offset:{g*32}
            ''')
        a('s_waitcnt vmcnt(0)')
        for g in range(4):
            for j in range(4):
                r = ACC + g*4 + j
                rbf(a, r)
                a(f'v_mul_f32 v{r}, v{r}, v{28+4*g+j}')
                rbf(a, r)
                xs = 20 + 2*g + j//2
                if j % 2 == 0:
                    a(f'v_lshlrev_b32 v44, 16, v{xs}')
                else:
                    a(f'v_and_b32 v44, 0xffff0000, v{xs}')
                a(f'v_add_f32 v{r}, v{r}, v44')
            a(f'''
            v_cvt_pk_bf16_f32 v{46+2*(g%2)}, v{ACC+g*4}, v{ACC+g*4+1}
            v_cvt_pk_bf16_f32 v{47+2*(g%2)}, v{ACC+g*4+2}, v{ACC+g*4+3}
            buffer_store_dwordx2 v[{46+2*(g%2)}:{47+2*(g%2)}], v6, s[24:27], 0 offen offset:{g*16}
            ''')
    def pf(a):
        a('''
        s_lshl_b32 s54, s50, 13          ; B: j*8192
        s_lshl_b32 s55, s53, 18
        s_lshl_b32 s56, s52, 13
        s_add_u32 s55, s55, s56
        s_lshl_b32 s57, s53, 15
        s_add_u32 s57, s57, s56
        ''')
        PX = os.environ.get('PFX', '')
        for q in range(8):
            a(f'''
            {'' if PX == 'B' else 'buffer_load_dword v3, v2, s[12:15], s55 offen'}
            {'' if PX == 'A' else 'buffer_load_dword v3, v2, s[16:19], s54 offen'}
            s_add_u32 s54, s54, 262144
            {'' if PX == 'A' else 'buffer_load_dword v3, v2, s[16:19], s54 offen'}
            s_add_u32 s54, s54, 262144
            s_add_u32 s55, s55, 32768
            s_waitcnt vmcnt({PFD})
            ''')
        a('buffer_load_dword v3, v2, s[20:23], s57 offen')
    return gemm_splitk(a, 'oproj_kernel', 'OP', 32, 8, 32, setup, 8192, 1024, epi, afrag=True, pf=pf)

def gen_wout(a):
    def setup(a, ph):
        if ph == 'load':
            a(f'''
            s_load_dwordx2 s[6:7], s[0:1], {ARG['B_w_out']}
            s_load_dwordx2 s[8:9], s[0:1], {ARG['out']}
            ''')
        elif ph == 'srd':
            srd(a, 12, 4, 5, 0x300000, WS_Y)
            srd(a, 16, 6, 7, 688*512*2)
            srd(a, 20, 4, 5, 2048*512*2, WS_X2)
            srd(a, 24, 8, 9, 2048*512*2)
            srd(a, 28, 4, 5, 3072*4, WS_MOD)
    def epi(a, ACC):
        a('''
        v_lshlrev_b32 v6, 10, v4
        v_lshl_add_u32 v6, v5, 1, v6
        v_lshlrev_b32 v7, 2, v5
        v_add_u32 v7, 10240, v7
        ''')
        for g in range(4):
            a(f'''
            buffer_load_dwordx2 v[{20+2*g}:{21+2*g}], v6, s[20:23], 0 offen offset:{g*16}
            buffer_load_dwordx4 v[{28+4*g}:{31+4*g}], v7, s[28:31], 0 offen offset:{g*32}
            ''')
        a('s_waitcnt vmcnt(0)')
        for g in range(4):
            for j in range(4):
                r = ACC + g*4 + j
                rbf(a, r)
                a(f'v_mul_f32 v{r}, v{r}, v{28+4*g+j}')
                rbf(a, r)
                xs = 20 + 2*g + j//2
                if j % 2 == 0:
                    a(f'v_lshlrev_b32 v44, 16, v{xs}')
                else:
                    a(f'v_and_b32 v44, 0xffff0000, v{xs}')
                a(f'v_add_f32 v{r}, v{r}, v44')
            a(f'''
            v_cvt_pk_bf16_f32 v{46+2*(g%2)}, v{ACC+g*4}, v{ACC+g*4+1}
            v_cvt_pk_bf16_f32 v{47+2*(g%2)}, v{ACC+g*4+2}, v{ACC+g*4+3}
            buffer_store_dwordx2 v[{46+2*(g%2)}:{47+2*(g%2)}], v6, s[24:27], 0 offen offset:{g*16}
            ''')
    def pf(a):
        a('''
        s_mul_i32 s54, s50, 22016        ; B share
        s_mul_i32 s55, s53, 49152
        s_mul_i32 s56, s52, 12288
        s_add_u32 s55, s55, s56
        s_lshl_b32 s56, s52, 13
        s_lshl_b32 s57, s53, 15
        s_add_u32 s57, s57, s56
        buffer_load_dword v3, v2, s[12:15], s55 offen
        buffer_load_dword v3, v2, s[16:19], s54 offen
        s_add_u32 s54, s54, 8192
        s_add_u32 s55, s55, 4096
        buffer_load_dword v3, v2, s[16:19], s54 offen
        buffer_load_dword v3, v2, s[12:15], s55 offen
        s_add_u32 s54, s54, 8192
        buffer_load_dword v3, v2, s[16:19], s54 offen
        buffer_load_dword v3, v2, s[20:23], s57 offen
        ''')
    return gemm_splitk(a, 'wout_kernel', 'WO', 32, 8, 6, setup, ZP*2, 1024, epi, afrag=True, rbstride=49152, pf=pf,
                       browmap=lambda t, i: 88*((8*t+2*i)//6) + 16*((8*t+2*i)%6))

def gen_sp(a):
    def setup(a, ph):
        if ph == 'load':
            a(f'''
            s_load_dwordx2 s[6:7], s[0:1], {ARG['B_w_sp']}
            s_load_dwordx2 s[8:9], s[0:1], {ARG['B_b_sp']}
            ''')
        elif ph == 'srd':
            srd(a, 12, 6, 7, 2048*2048*2)
            srd(a, 16, 4, 5, 2048*ZP*2, WS_Z2)
            srd(a, 20, 4, 5, 2048*ZP*2, WS_Z1)
            srd(a, 24, 4, 5, 2048*ZP*2, WS_Y)
            srd(a, 28, 8, 9, 2048*2)
            srd(a, 44, 4, 5, 6*2048*8, WS_STAT)
        elif ph == 'pre':
            a('v_lshlrev_b32 v16, 3, v0')
            a('v_add_u32 v17, 0x10000, v16')
            for i in range(8):
                for p in range(6):
                    a(f'''
                    s_mov_b32 s39, {p*16384 + i*2048}
                    buffer_load_dwordx2 v[{128+2*p}:{129+2*p}], v16, s[44:47], s39 offen
                    ''')
                a('s_waitcnt vmcnt(0)')
                a('''
                v_add_f32 v128, v128, v130
                v_add_f32 v129, v129, v131
                v_add_f32 v132, v132, v134
                v_add_f32 v133, v133, v135
                v_add_f32 v136, v136, v138
                v_add_f32 v137, v137, v139
                v_add_f32 v128, v128, v132
                v_add_f32 v129, v129, v133
                v_add_f32 v128, v128, v136
                v_add_f32 v129, v129, v137
                v_mul_f32 v128, 0x3abe82fa, v128     ; mean (1/688)
                v_mul_f32 v129, 0x3abe82fa, v129     ; E[x^2]
                v_fma_f32 v129, -v128, v128, v129
                v_max_f32 v129, 0, v129
                v_add_f32 v129, 0x3727c5ac, v129
                v_rsq_f32 v129, v129
                ''')
                a(f'ds_write_b64 v17, v[128:129] offset:{i*2048}')
            a('''
            s_waitcnt lgkmcnt(0)
            s_barrier
            ''')
    def epi(a, ACC):
        a(f'''
        s_mov_b32 s34, {ZP*2}
        v_mul_lo_u32 v6, v4, s34
        v_lshl_add_u32 v6, v5, 1, v6
        v_lshlrev_b32 v7, 1, v4
        buffer_load_ushort v44, v7, s[28:31], 0 offen
        ''')
        for g in range(4):
            a(f'buffer_load_dwordx2 v[{20+2*g}:{21+2*g}], v6, s[20:23], 0 offen offset:{g*16}')
        a('''
        s_waitcnt vmcnt(0)
        v_lshlrev_b32 v44, 16, v44
        ''')
        for g in range(4):
            for j in range(4):
                r = ACC + g*4 + j
                rbf(a, r)
                a(f'v_add_f32 v{r}, v{r}, v44')
                rbf(a, r)
                xs = 20 + 2*g + j//2
                if j % 2 == 0:
                    a(f'v_lshlrev_b32 v45, 16, v{xs}')
                else:
                    a(f'v_and_b32 v45, 0xffff0000, v{xs}')
                a(f'v_mul_f32 v{r}, v{r}, v45')
            a(f'''
            v_cvt_pk_bf16_f32 v{46+2*(g%2)}, v{ACC+g*4}, v{ACC+g*4+1}
            v_cvt_pk_bf16_f32 v{47+2*(g%2)}, v{ACC+g*4+2}, v{ACC+g*4+3}
            v_add_u32 v45, {8*g}, v5
            v_cmp_gt_u32 vcc, 688, v45
            v_cndmask_b32 v{46+2*(g%2)}, 0, v{46+2*(g%2)}, vcc
            v_cndmask_b32 v{47+2*(g%2)}, 0, v{47+2*(g%2)}, vcc
            buffer_store_dwordx2 v[{46+2*(g%2)}:{47+2*(g%2)}], v6, s[24:27], 0 offen offset:{g*16}
            ''')
    return gemm_splitk(a, 'sp_kernel', 'SP', 32, 11, 16, setup, 4096, ZP*2, epi, bnorm=True)

def gen_win(a):
    name = 'win_kernel'
    kernel_header(a, name)
    NNT = 11
    dispense(a, 16*NNT, 65536 + 4096, 'WI')
    a(f'''
    s_load_dwordx2 s[4:5], s[0:1], {ARG['ws']}
    s_load_dwordx2 s[6:7], s[0:1], {ARG['B_w_in']}
    v_lshrrev_b32 v1, 6, v0
    s_waitcnt lgkmcnt(0)
    v_readfirstlane_b32 s3, v1
    s_cmp_ge_u32 s2, {16*NNT}
    s_cbranch_scc1 WI_END
    s_and_b32 s40, s2, 15            ; mtile
    s_lshr_b32 s41, s2, 4            ; ntile
    ''')
    srd(a, 12, 4, 5, 2048*512*2, WS_X2)
    srd(a, 16, 6, 7, 512*1376*2)
    srd(a, 20, 4, 5, 0x400000 + 2048*ZP*2, WS_Z1)
    srd(a, 24, 4, 5, 6*2048*8, WS_STAT)
    srd(a, 32, 4, 5, 4096, WS_MOD + 6144)
    MODL = 65536
    X0 = 64; QT = 192
    a(f'''
    s_lshl_b32 s36, s3, 10
    v_and_b32 v1, 63, v0
    v_and_b32 v2, 31, v1
    v_lshrrev_b32 v3, 5, v1
    s_lshl_b32 s44, s40, 7
    s_lshl_b32 s45, s3, 5
    s_add_u32 s44, s44, s45          ; row0
    v_add_u32 v4, s44, v2
    v_lshlrev_b32 v5, 10, v4
    v_lshl_add_u32 v5, v3, 4, v5
    ''')
    for s in range(32):
        a(f'buffer_load_dwordx4 v[{X0+4*s}:{X0+4*s+3}], v5, s[12:15], 0 offen offset:{s*32}')
    a(f'''
    v_lshlrev_b32 v6, 4, v0
    buffer_load_dwordx4 v[8:11], v6, s[32:35], 0 offen offset:0
    ''')
    a.lines[-1] = a.lines[-1]
    a('''
    v_lshrrev_b32 v12, 4, v1
    v_and_b32 v13, 15, v1
    v_lshlrev_b32 v14, 2, v12
    v_xor_b32 v14, v14, v13
    s_lshl_b32 s45, s3, 2
    v_add_u32 v15, s45, v12
    s_mov_b32 s45, 2752
    v_mul_lo_u32 v15, v15, s45
    v_lshl_add_u32 v16, v14, 4, v15
    s_lshl_b32 s45, s41, 8
    v_add_u32 v16, s45, v16
    ''')
    def issue_w(c):
        slot = c % 4
        for i in range(4):
            a(f'''
            s_add_u32 m0, s36, {slot*16384 + i*4096}
            s_mov_b32 s39, {(c*64 + i*16)*2752}
            buffer_load_dwordx4 v16, s[16:19], s39 offen lds
            ''')
    for c in range(3):
        issue_w(c)
    a('''
    v_bfe_u32 v12, v1, 2, 2
    v_and_b32 v13, 3, v1
    v_bfe_u32 v14, v1, 4, 1
    v_lshlrev_b32 v15, 3, v3
    v_add_u32 v15, v15, v12
    v_lshlrev_b32 v15, 8, v15
    v_lshl_add_u32 v15, v14, 5, v15
    v_lshl_add_u32 v15, v13, 3, v15
    ''')
    for blk in range(4):
        a(f'''
        v_xor_b32 v17, {blk}, v12
        v_lshl_add_u32 v{20+blk}, v17, 6, v15
        ''')
    a(f'''
    s_waitcnt vmcnt(12)
    v_add_u32 v6, {MODL}, v6
    ds_write_b128 v6, v[8:11]
    v_mov_b32 v24, 0
    v_mov_b32 v25, 0
    ''')
    for r in range(128):
        a(f'''
        v_lshlrev_b32 v26, 16, v{X0+r}
        v_and_b32 v27, 0xffff0000, v{X0+r}
        v_add_f32 v24, v24, v26
        v_add_f32 v25, v25, v27
        ''')
    a('''
    v_add_f32 v24, v24, v25
    v_mov_b32 v25, v24
    v_permlane32_swap_b32 v24, v25
    v_add_f32 v24, v24, v25
    v_mul_f32 v24, 0x3b000000, v24
    v_mov_b32 v25, 0
    v_mov_b32 v28, 0
    ''')
    for r in range(128):
        a(f'''
        v_lshlrev_b32 v26, 16, v{X0+r}
        v_and_b32 v27, 0xffff0000, v{X0+r}
        v_sub_f32 v26, v26, v24
        v_sub_f32 v27, v27, v24
        v_fma_f32 v25, v26, v26, v25
        v_fma_f32 v28, v27, v27, v28
        ''')
    a(f'''
    v_add_f32 v25, v25, v28
    v_mov_b32 v26, v25
    v_permlane32_swap_b32 v25, v26
    v_add_f32 v25, v25, v26
    v_mov_b32 v26, 0x3727c5ac
    v_fmac_f32 v26, 0x3b000000, v25
    v_rsq_f32 v25, v26
    s_waitcnt lgkmcnt(0)
    s_barrier
    v_lshlrev_b32 v26, 5, v3
    v_add_u32 v26, {MODL}, v26
    ''')
    for s in range(32):
        a(f'''
        ds_read_b128 v[28:31], v26 offset:{s*64}
        ds_read_b128 v[32:35], v26 offset:{s*64+16}
        ds_read_b128 v[36:39], v26 offset:{2048+s*64}
        ds_read_b128 v[40:43], v26 offset:{2048+s*64+16}
        ''')
        for j in range(4):
            a(f'''
            v_lshlrev_b32 v{44+2*j}, 16, v{X0+4*s+j}
            v_and_b32 v{45+2*j}, 0xffff0000, v{X0+4*s+j}
            ''')
        for j in range(8):
            a(f'''
            v_sub_f32 v{44+j}, v{44+j}, v24
            v_mul_f32 v{44+j}, v{44+j}, v25
            ''')
        a('s_waitcnt lgkmcnt(0)')
        for j in range(8):
            a(f'''
            v_add_f32 v{36+j}, 1.0, v{36+j}
            v_fma_f32 v{44+j}, v{44+j}, v{36+j}, v{28+j}
            ''')
        for j in range(4):
            a(f'v_cvt_pk_bf16_f32 v{X0+4*s+j}, v{44+2*j}, v{45+2*j}')
    for i in range(64):
        a(f'v_mov_b32 v{QT+i}, 0')
    FW = 28
    def w_reads(slot, s, buf):
        for blk in range(4):
            for j in range(2):
                r = FW + buf*16 + blk*4 + j*2
                a(f'ds_read_b64_tr_b16 v[{r}:{r+1}], v{20+blk} offset:{slot*16384 + s*4096 + j*1024}')
    for c in range(8):
        slot = c % 4
        inflight = min(2, 7 - c)
        a(f's_waitcnt vmcnt({4*inflight})')
        a('s_barrier')
        if c + 3 < 8:
            issue_w(c + 3)
        w_reads(slot, 0, 0)
        for s in range(4):
            buf = s & 1
            if s < 3:
                w_reads(slot, s + 1, buf ^ 1)
                a('s_waitcnt lgkmcnt(8)')
            else:
                a('s_waitcnt lgkmcnt(0)')
            hx = X0 + 4*(c*4 + s)
            for blk in range(4):
                f = FW + buf*16 + blk*4
                q = QT + blk*16
                a(f'v_mfma_f32_32x32x16_bf16 v[{q}:{q+15}], v[{f}:{f+3}], v[{hx}:{hx+3}], v[{q}:{q+15}]')
    a(f'''
    v_add_u32 v4, s44, v2            ; row
    s_mov_b32 s34, {ZP*2}
    v_mul_lo_u32 v6, v4, s34         ; row*1408
    s_lshl_b32 s37, s41, 7
    v_lshlrev_b32 v5, 2, v3
    v_add_u32 v5, s37, v5
    v_mov_b32 v24, 0
    v_mov_b32 v25, 0
    s_mov_b32 s48, 1376
    s_mov_b32 s46, 0x3d372713        ; 0.044715
    s_mov_b32 s47, 0xc0135761        ; -2*0.7978845608*log2(e)
    ''')
    for blk in range(4):
        for g in range(4):
            for j in range(4):
                r = QT + blk*16 + g*4 + j
                rbf(a, r)
                a(f'''
                v_mul_f32 v26, v{r}, v{r}
                v_fma_f32 v26, v26, s46, 1.0
                v_mul_f32 v26, v26, v{r}
                v_mul_f32 v26, s47, v26
                v_exp_f32 v26, v26
                v_add_f32 v26, 1.0, v26
                v_rcp_f32 v26, v26
                v_mul_f32 v{r}, v{r}, v26
                ''')
                rbf(a, r)
            r = QT + blk*16 + g*4
            a(f'''
            v_cvt_pk_bf16_f32 v28, v{r}, v{r+1}
            v_cvt_pk_bf16_f32 v29, v{r+2}, v{r+3}
            v_add_u32 v26, {blk*32 + g*8}, v5        ; col
            v_lshl_add_u32 v27, v26, 1, v6           ; z1 offset
            v_add_u32 v30, {0x400000 - 688*2}, v27   ; z2 offset
            v_cmp_gt_u32 vcc, 688, v26
            v_cndmask_b32 v27, v30, v27, vcc
            v_mov_b32 v30, 0x7ffffff0
            v_cmp_gt_u32 s[50:51], s48, v26
            v_cndmask_b32 v27, v30, v27, s[50:51]
            buffer_store_dwordx2 v[28:29], v27, s[20:23], 0 offen
            s_andn2_b64 s[50:51], s[50:51], vcc
            v_cndmask_b32 v30, 0, v{r}, s[50:51]
            v_cndmask_b32 v31, 0, v{r+1}, s[50:51]
            v_cndmask_b32 v32, 0, v{r+2}, s[50:51]
            v_cndmask_b32 v33, 0, v{r+3}, s[50:51]
            v_add_f32 v24, v24, v30
            v_fma_f32 v25, v30, v30, v25
            v_add_f32 v24, v24, v31
            v_fma_f32 v25, v31, v31, v25
            v_add_f32 v24, v24, v32
            v_fma_f32 v25, v32, v32, v25
            v_add_f32 v24, v24, v33
            v_fma_f32 v25, v33, v33, v25
            ''')
    a(f'''
    s_cmp_lt_u32 s41, 5
    s_cbranch_scc1 WI_END
    v_mov_b32 v26, v24
    v_mov_b32 v27, v25
    v_permlane32_swap_b32 v24, v26
    v_permlane32_swap_b32 v25, v27
    v_add_f32 v24, v24, v26
    v_add_f32 v25, v25, v27
    v_lshlrev_b32 v6, 3, v4
    s_sub_u32 s34, s41, 5
    s_lshl_b32 s34, s34, 14
    v_add_u32 v6, s34, v6
    v_mov_b32 v7, 0x7ffffff0
    v_cmp_gt_u32 vcc, 32, v1
    v_cndmask_b32 v6, v7, v6, vcc
    buffer_store_dwordx2 v[24:25], v6, s[24:27], 0 offen
    ''')
    a.label('WI_END')
    a('s_endpgm')
    return dict(name=name, grid=16*NNT, block=256, lds=65536 + 4096 + 64, vgpr=256)

import k_win2, k_sp2
import importlib
k_gemm2 = importlib.import_module(os.environ.get('GEMM', 'k_gemm3'))
if os.environ.get('GEMM2', '1') == '1':
    GENS = [k_gemm2.gen_oproj, k_win2.gen_win, k_sp2.gen_sp, k_gemm2.gen_wout]
else:
    GENS = [gen_oproj, k_win2.gen_win, k_sp2.gen_sp, gen_wout]
```

```python
from k_common import *
import os
EXP = os.environ.get('SP_EXP', '')

def rbf(a, r):
    a(f'''
    v_cvt_pk_bf16_f32 v{r}, v{r}, v{r}
    v_lshlrev_b32 v{r}, 16, v{r}
    ''')

def gen_sp(a):
    name = 'sp_kernel'
    NST = 3; STG = 40960
    SCRL = NST * STG
    kernel_header(a, name)
    a(f'''
    s_load_dwordx2 s[4:5], s[0:1], {ARG['ws']}
    s_load_dwordx2 s[6:7], s[0:1], {ARG['B_w_sp']}
    s_load_dwordx2 s[8:9], s[0:1], {ARG['B_b_sp']}
    ''')
    dispense(a, 256, SCRL, 'SP')
    a(f'''
    v_lshrrev_b32 v1, 6, v0
    s_waitcnt lgkmcnt(0)
    v_readfirstlane_b32 s3, v1
    s_cmp_ge_u32 s2, 256
    s_cbranch_scc1 SP_END
    s_and_b32 s40, s2, 7
    s_lshr_b32 s41, s2, 3
    s_lshr_b32 s43, s41, 3           ; mg
    s_and_b32 s41, s41, 7            ; ntile
    s_lshl_b32 s43, s43, 3
    s_add_u32 s40, s40, s43          ; mtile
    ''')
    srd(a, 12, 6, 7, 2048*2048*2)
    srd(a, 16, 4, 5, 0x300000, WS_Z2)
    srd(a, 20, 4, 5, 0x300000, WS_Z1)
    srd(a, 24, 4, 5, 0x300000, WS_Y)
    srd(a, 28, 8, 9, 2048*2)
    ACC = 64
    FA, FB = 20, 36
    a(f'''
    s_lshl_b32 s36, s3, 10
    v_and_b32 v1, 63, v0
    v_and_b32 v2, 31, v1
    v_lshrrev_b32 v3, 5, v1
    v_lshlrev_b32 v17, 4, v1
    v_lshrrev_b32 v4, 4, v1          ; lane/16
    s_lshl_b32 s34, s3, 2
    v_add_u32 v4, s34, v4            ; row 0..15
    v_and_b32 v5, 15, v1
    v_xor_b32 v5, v5, v4
    s_lshl_b32 s35, s40, 6           ; m0
    v_add_u32 v4, s35, v4
    v_lshlrev_b32 v4, 12, v4
    v_lshl_add_u32 v10, v5, 4, v4
    s_mul_i32 s34, s41, {128*3072}
    s_add_u32 s34, s34, s36
    v_add_u32 v11, s34, v17
    v_and_b32 v5, 15, v2             ; row&15
    v_lshlrev_b32 v4, 8, v2          ; row*256
    s_lshl_b32 s34, s3, 2            ; w*4
    ''')
    for s in range(2):
        a(f'''
        v_or_b32 v6, {2*s}, v3
        v_or_b32 v6, s34, v6
        v_xor_b32 v6, v6, v5
        v_lshl_add_u32 v{12+s}, v6, 4, v4
        v_add_u32 v{160+s}, {2*STG}, v{12+s}
        ''')
    a(f'''
    s_mul_i32 s34, s3, 6144
    s_add_u32 s34, s34, 16384
    v_add_u32 v14, s34, v17
    v_add_u32 v162, {2*STG}, v14
    ''')
    def issue(t):
        slot = t % NST
        for i in range(4):
            a(f'''
            s_add_u32 m0, s36, {slot*STG + i*4096}
            s_mov_b32 s39, {t*256 + i*16*4096}
            buffer_load_dwordx4 v10, s[12:15], s39 offen lds
            ''')
        for i in range(6):
            a(f'''
            s_add_u32 m0, s36, {slot*STG + 16384 + i*4096}
            s_mov_b32 s39, {t*24576 + i*4096}
            buffer_load_dwordx4 v11, s[16:19], s39 offen lds
            ''')
    for t in range(NST - 1):
        issue(t)
    def reads(slot, s):
        sb = slot * STG
        va, vb = 12, 14
        if slot == 2:
            sb = 0; va, vb = 160, 162
        for mb in range(2):
            r = FA + s*8 + mb*4
            a(f'ds_read_b128 v[{r}:{r+3}], v{va+s} offset:{sb + mb*8192}')
        for blk in range(3):
            r = FB + s*12 + blk*4
            a(f'ds_read_b128 v[{r}:{r+3}], v{vb} offset:{sb + s*3072 + blk*1024}')
    nst = 16
    for t in range(nst):
        slot = t % NST
        inflight = min(NST - 2, nst - 1 - t)
        a(f's_waitcnt vmcnt({10*inflight})')
        a('s_barrier')
        reads(slot, 0)
        reads(slot, 1)
        tn = t + NST - 1
        if tn < nst:
            issue(tn)
        for s in range(2):
            a(f's_waitcnt lgkmcnt({5 if s == 0 else 0})')
            for mb in range(2):
                for blk in range(3):
                    c = ACC + (mb*3+blk)*16
                    fa = FA + s*8 + mb*4
                    fb = FB + s*12 + blk*4
                    cc = '0' if (t == 0 and s == 0) else f'v[{c}:{c+15}]'
                    a(f'v_mfma_f32_32x32x16_bf16 v[{c}:{c+15}], v[{fb}:{fb+3}], v[{fa}:{fa+3}], {cc}')
    a(f'''
    s_lshl_b32 s34, s40, 4
    s_add_u32 s34, s34, s41
    s_mul_i32 s34, s34, 6144
    s_mul_i32 s37, s3, 3             ; u0
    s_cmp_ge_u32 s3, 2
    s_cselect_b32 s38, 1, 0          ; mb
    s_mul_i32 s42, s38, 6
    s_sub_u32 s42, s37, s42
    s_mul_i32 s43, s38, 49152
    s_add_u32 s34, s34, s43
    s_lshl_b32 s43, s42, 10
    s_add_u32 s34, s34, s43
    v_add_u32 v6, s34, v17           ; z1f addr
    s_lshl_b32 s43, s38, 5
    s_add_u32 s43, s43, s35
    v_add_u32 v4, s43, v2            ; row t
    v_lshlrev_b32 v7, 1, v4
    buffer_load_ushort v44, v7, s[28:31], 0 offen
    ''')
    for k in range(3):
        a(f'buffer_load_dwordx4 v[{20+4*k}:{23+4*k}], v6, s[20:23], 0 offen offset:{k*1024}')
    a(f'''
    s_lshl_b32 s34, s40, 1
    s_add_u32 s34, s34, s38
    s_mul_i32 s34, s34, 49152
    s_mul_i32 s43, s41, 6
    s_add_u32 s43, s43, s42
    s_lshl_b32 s43, s43, 10
    s_add_u32 s34, s34, s43
    v_add_u32 v7, s34, v17
    s_barrier
    s_mul_i32 s34, s3, 24576
    v_add_u32 v5, s34, v17
    ''')
    for qd in range(24):
        a(f'ds_write_b128 v5, v[{ACC+4*qd}:{ACC+4*qd+3}] offset:{qd*1024}')
    a(f'''
    s_waitcnt lgkmcnt(0)
    s_barrier
    s_mul_i32 s34, s3, 6144          ; quads 6w..6w+5
    v_add_u32 v5, s34, v17
    v_add_u32 v8, 49152, v5
    ''')
    for wv in range(4):
        for g in range(6):
            r = ACC + wv*24 + g*4
            va, off = (5, wv*24576 + g*1024) if wv < 2 else (8, (wv-2)*24576 + g*1024)
            a(f'ds_read_b128 v[{r}:{r+3}], v{va} offset:{off}')
    a('s_waitcnt lgkmcnt(0)')
    for i in range(24):
        a(f'''
        v_add_f32 v{ACC+i}, v{ACC+i}, v{ACC+24+i}
        v_add_f32 v{ACC+48+i}, v{ACC+48+i}, v{ACC+72+i}
        v_add_f32 v{ACC+i}, v{ACC+i}, v{ACC+48+i}
        ''')
    a(f'''
    s_mul_i32 s34, s41, 88
    s_sub_u32 s34, 688, s34
    s_min_u32 s34, s34, 88
    s_lshl_b32 s43, s42, 4
    s_sub_u32 s34, s34, s43          ; limit - 16c0
    v_lshlrev_b32 v5, 2, v3
    v_sub_u32 v5, s34, v5
    s_waitcnt vmcnt(0)
    v_lshlrev_b32 v44, 16, v44
    ''')
    for k in range(3):
        for i in range(8):
            r = ACC + k*8 + i
            rbf(a, r)
            a(f'v_add_f32 v{r}, v{r}, v44')
            rbf(a, r)
            xs = 20 + 4*k + i//2
            if i % 2 == 0:
                a(f'v_lshlrev_b32 v45, 16, v{xs}')
            else:
                a(f'v_and_b32 v45, 0xffff0000, v{xs}')
            a(f'v_mul_f32 v{r}, v{r}, v45')
        t = 48 + 4*k
        for j in range(4):
            a(f'v_cvt_pk_bf16_f32 v{t+j}, v{ACC+k*8+2*j}, v{ACC+k*8+2*j+1}')
        for hq in range(2):
            a(f'''
            v_cmp_lt_i32 vcc, {16*k + 8*hq}, v5
            v_cndmask_b32 v{t+2*hq}, 0, v{t+2*hq}, vcc
            v_cndmask_b32 v{t+2*hq+1}, 0, v{t+2*hq+1}, vcc
            ''')
        a(f'buffer_store_dwordx4 v[{t}:{t+3}], v7, s[24:27], 0 offen offset:{k*1024}')
    code_pf(a, 'wout_kernel', 'CODE_END', 3, 4, 6000, vt=100)
    a.label('SP_END')
    a('s_endpgm')
    return dict(name=name, grid=256, block=256, lds=SCRL + 64, vgpr=168)
```

```python
from k_common import *
import os
EXP = os.environ.get('WIN_EXP', '')

def rbf(a, r):
    a(f'''
    v_cvt_pk_bf16_f32 v{r}, v{r}, v{r}
    v_lshlrev_b32 v{r}, 16, v{r}
    ''')

def red16(a, v, t):
    a(f'''
    v_add_f32_dpp v{t}, v{v}, v{v} quad_perm:[1,0,3,2] row_mask:0xf bank_mask:0xf
    v_add_f32_dpp v{v}, v{t}, v{t} quad_perm:[2,3,0,1] row_mask:0xf bank_mask:0xf
    v_add_f32_dpp v{t}, v{v}, v{v} row_half_mirror row_mask:0xf bank_mask:0xf
    v_add_f32_dpp v{v}, v{t}, v{t} row_mirror row_mask:0xf bank_mask:0xf
    ''')

def gen_win(a):
    name = 'win_kernel'
    RING = 32768; RST = 3072; NST = 5
    PART = RING + 8 * NST * RST
    TAB = PART + 2048
    SCRL = TAB + 256
    kernel_header(a, name)
    a(f'''
    s_load_dwordx2 s[4:5], s[0:1], {ARG['ws']}
    s_load_dwordx2 s[6:7], s[0:1], {ARG['B_w_in']}
    ''')
    dispense(a, 128, SCRL, 'WI')
    a(f'''
    v_lshrrev_b32 v1, 6, v0
    s_waitcnt lgkmcnt(0)
    v_readfirstlane_b32 s3, v1
    s_cmp_ge_u32 s2, 128
    s_cbranch_scc1 WI_END
    s_and_b32 s40, s2, 7
    s_lshr_b32 s41, s2, 3
    s_and_b32 s42, s41, 1            ; part
    s_lshr_b32 s41, s41, 1
    s_lshl_b32 s40, s40, 3
    s_add_u32 s40, s40, s41          ; rb
    ''')
    if 'X1' in EXP:
        a('s_xor_b32 s40, s40, 9')
    srd(a, 12, 4, 5, 2048*512*2, WS_X2)
    srd(a, 16, 6, 7, 512*1376*2)
    srd(a, 20, 4, 5, 0x300000, WS_Z1)
    srd(a, 24, 4, 5, 0x300000, WS_Z2)
    srd(a, 48, 4, 5, 4096, WS_MOD + 6144)
    XR = 64
    MR = 80
    a(f'''
    v_and_b32 v1, 63, v0
    v_and_b32 v2, 31, v1
    v_lshrrev_b32 v3, 5, v1
    v_lshlrev_b32 v17, 4, v1         ; lane*16
    v_lshrrev_b32 v4, 4, v0
    v_and_b32 v5, 15, v0             ; c
    s_lshl_b32 s34, s40, 15
    v_lshlrev_b32 v6, 10, v4
    v_lshl_add_u32 v6, v5, 4, v6
    v_add_u32 v6, s34, v6
    v_lshlrev_b32 v7, 5, v5          ; c*32 bytes
    ''')
    for i in range(4):
        a(f'buffer_load_dwordx4 v[{XR+4*i}:{XR+4*i+3}], v6, s[12:15], 0 offen offset:{i*256}')
    for i in range(4):
        a(f'''
        buffer_load_dwordx4 v[{MR+8*i}:{MR+8*i+3}], v7, s[48:51], 0 offen offset:{i*512}
        buffer_load_dwordx4 v[{MR+8*i+4}:{MR+8*i+7}], v7, s[48:51], 0 offen offset:{i*512+16}
        buffer_load_dwordx4 v[{MR+32+8*i}:{MR+32+8*i+3}], v7, s[48:51], 0 offen offset:{2048+i*512}
        buffer_load_dwordx4 v[{MR+32+8*i+4}:{MR+32+8*i+7}], v7, s[48:51], 0 offen offset:{2048+i*512+16}
        ''')
    a(f'''
    s_mul_i32 s34, s42, 1376
    s_mul_i32 s35, s3, 176
    s_add_u32 s34, s34, s35
    s_mul_i32 s36, s3, {NST*RST}
    s_add_u32 s36, s36, {RING}
    s_mov_b32 s35, 0x15555556
    ''')
    for i in range(3):
        a(f'''
        v_add_u32 v8, {i*64}, v1
        v_mul_hi_u32 v9, v8, s35         ; /12
        v_mul_u32_u24 v11, 12, v9
        v_sub_u32 v8, v8, v11
        v_mul_u32_u24 v9, 2752, v9
        v_lshl_add_u32 v9, v8, 4, v9
        v_add_u32 v{12+i}, s34, v9
        ''')
    def issue(ks):
        slot = ks % NST
        for i in range(3):
            a(f'''
            s_add_u32 m0, s36, {slot*RST + i*1024}
            s_mov_b32 s39, {ks*16*2752}
            buffer_load_dwordx4 v{12+i}, s[16:19], s39 offen lds
            ''')
    for ks in range(4):
        issue(ks)
    a(f'''
    v_bfe_u32 v8, v1, 2, 2           ; r
    v_and_b32 v9, 3, v1              ; c4
    v_bfe_u32 v10, v1, 4, 1          ; nsub
    v_lshl_add_u32 v11, v3, 3, v8    ; 8half + r
    v_mul_u32_u24 v11, 192, v11
    v_lshl_add_u32 v11, v10, 5, v11
    v_lshl_add_u32 v11, v9, 3, v11
    v_add_u32 v16, s36, v11
    s_waitcnt vmcnt(28)
    ''')
    XU = 144
    for i in range(16):
        a(f'''
        v_lshlrev_b32 v{XU+2*i}, 16, v{XR+i}
        v_and_b32 v{XU+2*i+1}, 0xffff0000, v{XR+i}
        ''')
    a(f'v_add_f32 v18, v{XU}, v{XU+1}')
    for i in range(2, 32):
        a(f'v_add_f32 v18, v18, v{XU+i}')
    red16(a, 18, 19)
    a('v_mul_f32 v18, 0x3b000000, v18')
    for i in range(32):
        a(f'v_sub_f32 v{XU+i}, v{XU+i}, v18')
    a(f'v_mul_f32 v18, v{XU}, v{XU}')
    for i in range(1, 32):
        a(f'v_fma_f32 v18, v{XU+i}, v{XU+i}, v18')
    red16(a, 18, 19)
    a(f'''
    v_mov_b32 v19, 0x3727c5ac
    v_fmac_f32 v19, 0x3b000000, v18
    v_rsq_f32 v18, v19
    v_lshrrev_b32 v8, 1, v5          ; c/2
    v_and_b32 v9, 1, v5
    v_lshlrev_b32 v8, 10, v8
    v_lshl_add_u32 v8, v9, 9, v8
    v_lshl_add_u32 v8, v4, 4, v8
    s_waitcnt vmcnt(12)
    ''')
    for i in range(4):
        for j in range(8):
            x = XU + 8*i + j
            a(f'''
            v_mul_f32 v{x}, v{x}, v18
            v_add_f32 v{MR+32+8*i+j}, 1.0, v{MR+32+8*i+j}
            v_fma_f32 v{x}, v{x}, v{MR+32+8*i+j}, v{MR+8*i+j}
            ''')
        for j in range(4):
            a(f'v_cvt_pk_bf16_f32 v{XR+4*i+j}, v{XU+8*i+2*j}, v{XU+8*i+2*j+1}')
        a(f'ds_write_b128 v8, v[{XR+4*i}:{XR+4*i+3}] offset:{i*8192}')
        if 'DH' in EXP:
            if i == 0:
                srd(a, 44, 4, 5, 2048*512*2, 0x6000000)
            a(f'buffer_store_dwordx4 v[{XR+4*i}:{XR+4*i+3}], v6, s[44:47], 0 offen offset:{i*256}')
    ACC = 64
    FA = 20
    FB = 28
    a('''
    s_waitcnt lgkmcnt(0)
    s_barrier
    ''')
    def reads(ks, buf):
        slot = ks % NST
        out = [f'ds_read_b128 v[{FA+buf*4}:{FA+buf*4+3}], v17 offset:{ks*1024}']
        for blk in range(3):
            for j in range(2):
                r = FB + buf*12 + blk*4 + j*2
                out.append(f'ds_read_b64_tr_b16 v[{r}:{r+1}], v16 offset:{slot*RST + j*768 + blk*64}')
        return out
    def mainloop(z2):
        a('s_waitcnt vmcnt(0)' if 'DH' in EXP else 's_waitcnt vmcnt(9)')
        for x in reads(0, 0):
            a(x)
        for ks in range(32):
            buf = ks & 1
            if ks + 1 < 32:
                infl = min(2, 31 - (ks + 1))
                a(f's_waitcnt vmcnt({3*infl}) lgkmcnt(0)')
                nx = reads(ks + 1, buf ^ 1)
            else:
                a('s_waitcnt lgkmcnt(0)')
                nx = []
            for blk in range(3):
                c = ACC + blk*16
                fa = FA + buf*4
                fb = FB + buf*12 + blk*4
                cc = '0' if ks == 0 else f'v[{c}:{c+15}]'
                if z2:
                    a(f'v_mfma_f32_32x32x16_bf16 v[{c}:{c+15}], v[{fa}:{fa+3}], v[{fb}:{fb+3}], {cc}')
                else:
                    a(f'v_mfma_f32_32x32x16_bf16 v[{c}:{c+15}], v[{fb}:{fb+3}], v[{fa}:{fa+3}], {cc}')
                for x in nx[blk*3:blk*3+3]:
                    a(x)
                if blk == 2 and ks + 4 < 32:
                    issue(ks + 4)
    def gelu():
        a('''
        s_mov_b32 s46, 0x3d372713        ; 0.044715
        s_mov_b32 s47, 0xc0135761        ; -2*0.7978845608*log2(e)
        ''')
        for i in range(0, 48, 4):
            for j in range(4):
                r = ACC + i + j
                rbf(a, r)
            for j in range(4):
                r = ACC + i + j; t = 20 + j
                a(f'''
                v_mul_f32 v{t}, v{r}, v{r}
                v_fma_f32 v{t}, v{t}, s46, 1.0
                v_mul_f32 v{t}, v{t}, v{r}
                v_mul_f32 v{t}, s47, v{t}
                ''')
            for j in range(4):
                a(f'v_exp_f32 v{20+j}, v{20+j}')
            for j in range(4):
                a(f'v_add_f32 v{20+j}, 1.0, v{20+j}')
            for j in range(4):
                a(f'v_rcp_f32 v{20+j}, v{20+j}')
            for j in range(4):
                r = ACC + i + j
                a(f'v_mul_f32 v{r}, v{r}, v{20+j}')
    a('''
    s_cmp_eq_u32 s42, 1
    s_cbranch_scc1 WI_Z2
    ''')
    mainloop(False)
    gelu()
    a('''
    s_lshl_b32 s34, s40, 3
    s_add_u32 s34, s34, s3
    s_mul_i32 s34, s34, 6144
    v_add_u32 v6, s34, v17
    v_add_u32 v7, 4096, v6
    ''')
    for blk in range(3):
        for q in range(2):
            t = 24 + 4*((blk*2+q) % 4)
            c = ACC + blk*16 + q*8
            for j in range(4):
                a(f'v_cvt_pk_bf16_f32 v{t+j}, v{c+2*j}, v{c+2*j+1}')
            off = blk*2048 + q*1024
            va = 6 if off < 4096 else 7
            a(f'buffer_store_dwordx4 v[{t}:{t+3}], v{va}, s[20:23], 0 offen offset:{off % 4096}')
    a('s_branch WI_FIN')
    a.label('WI_Z2')
    mainloop(True)
    gelu()
    for i in range(48):
        rbf(a, ACC + i)
    a('''
    s_mul_i32 s34, s3, 88
    s_sub_u32 s34, 688, s34
    s_min_u32 s34, s34, 88
    v_cmp_gt_u32 s[50:51], s34, v2
    v_add_u32 v4, 32, v2
    v_cmp_gt_u32 s[52:53], s34, v4
    v_add_u32 v4, 64, v2
    v_cmp_gt_u32 s[54:55], s34, v4
    ''')
    for blk in range(3):
        for r in range(16):
            a(f'v_cndmask_b32 v{ACC+blk*16+r}, 0, v{ACC+blk*16+r}, s[{50+2*blk}:{51+2*blk}]')
    SM = 112; SQ = 128
    for r in range(16):
        a(f'''
        v_add_f32 v{SM+r}, v{ACC+r}, v{ACC+16+r}
        v_mul_f32 v{SQ+r}, v{ACC+r}, v{ACC+r}
        v_add_f32 v{SM+r}, v{SM+r}, v{ACC+32+r}
        v_fma_f32 v{SQ+r}, v{ACC+16+r}, v{ACC+16+r}, v{SQ+r}
        v_fma_f32 v{SQ+r}, v{ACC+32+r}, v{ACC+32+r}, v{SQ+r}
        ''')
    for k in range(0, 32, 2):
        v0, v1 = SM + k, SM + k + 1
        a(f'''
        v_add_f32_dpp v20, v{v0}, v{v0} quad_perm:[1,0,3,2] row_mask:0xf bank_mask:0xf
        v_add_f32_dpp v21, v{v1}, v{v1} quad_perm:[1,0,3,2] row_mask:0xf bank_mask:0xf
        v_add_f32_dpp v{v0}, v20, v20 quad_perm:[2,3,0,1] row_mask:0xf bank_mask:0xf
        v_add_f32_dpp v{v1}, v21, v21 quad_perm:[2,3,0,1] row_mask:0xf bank_mask:0xf
        v_add_f32_dpp v20, v{v0}, v{v0} row_half_mirror row_mask:0xf bank_mask:0xf
        v_add_f32_dpp v21, v{v1}, v{v1} row_half_mirror row_mask:0xf bank_mask:0xf
        v_add_f32_dpp v{v0}, v20, v20 row_mirror row_mask:0xf bank_mask:0xf
        v_add_f32_dpp v{v1}, v21, v21 row_mirror row_mask:0xf bank_mask:0xf
        v_mov_b32 v20, v{v0}
        v_mov_b32 v21, v{v1}
        v_permlane16_swap_b32 v{v0}, v20
        v_permlane16_swap_b32 v{v1}, v21
        v_add_f32 v{v0}, v{v0}, v20
        v_add_f32 v{v1}, v{v1}, v21
        ''')
    a(f'''
    s_lshl_b32 s34, s3, 8
    s_add_u32 s34, s34, {PART}
    v_lshl_add_u32 v4, v3, 4, s34
    s_mov_b32 exec_lo, 1
    s_mov_b32 exec_hi, 1
    ''')
    for g in range(4):
        a(f'''
        ds_write_b128 v4, v[{SM+4*g}:{SM+4*g+3}] offset:{g*32}
        ds_write_b128 v4, v[{SQ+4*g}:{SQ+4*g+3}] offset:{128+g*32}
        ''')
    a(f'''
    s_mov_b64 exec, -1
    s_waitcnt lgkmcnt(0)
    s_barrier
    v_lshlrev_b32 v4, 2, v2
    v_add_u32 v4, {PART}, v4         ; row l%32
    ''')
    for w in range(8):
        a(f'''
        ds_read_b32 v{20+w}, v4 offset:{w*256}
        ds_read_b32 v{28+w}, v4 offset:{w*256+128}
        ''')
    a(f'''
    s_waitcnt lgkmcnt(0)
    v_add_f32 v20, v20, v21
    v_add_f32 v22, v22, v23
    v_add_f32 v24, v24, v25
    v_add_f32 v26, v26, v27
    v_add_f32 v28, v28, v29
    v_add_f32 v30, v30, v31
    v_add_f32 v32, v32, v33
    v_add_f32 v34, v34, v35
    v_add_f32 v20, v20, v22
    v_add_f32 v24, v24, v26
    v_add_f32 v28, v28, v30
    v_add_f32 v32, v32, v34
    v_add_f32 v20, v20, v24
    v_add_f32 v28, v28, v32
    v_mul_f32 v20, 0x3abe82fa, v20   ; mean
    v_mul_f32 v28, 0x3abe82fa, v28   ; E[x^2]
    v_fma_f32 v28, -v20, v20, v28
    v_max_f32 v28, 0, v28
    v_add_f32 v28, 0x3727c5ac, v28
    v_rsq_f32 v28, v28
    s_lshl_b32 s34, s3, 8
    s_add_u32 s34, s34, {RING}
    v_lshl_add_u32 v4, v2, 2, s34
    ds_write_b32 v4, v20
    ds_write_b32 v4, v28 offset:128
    v_lshl_add_u32 v4, v3, 4, s34
    s_waitcnt lgkmcnt(0)
    ''')
    for g in range(4):
        a(f'''
        ds_read_b128 v[{SM+4*g}:{SM+4*g+3}], v4 offset:{g*32}
        ds_read_b128 v[{SQ+4*g}:{SQ+4*g+3}], v4 offset:{128+g*32}
        ''')
    a(f'''
    s_lshl_b32 s34, s3, 7
    s_lshl_b32 s35, s40, 1
    s_add_u32 s34, s34, s35
    s_mul_i32 s34, s34, 3072
    v_add_u32 v6, s34, v17
    v_add_u32 v7, 3072, v6
    s_waitcnt lgkmcnt(0)
    ''')
    for blk in range(3):
        for r in range(16):
            x = ACC + blk*16 + r
            a(f'''
            v_sub_f32 v{x}, v{x}, v{SM+r}
            v_mul_f32 v{x}, v{x}, v{SQ+r}
            v_cndmask_b32 v{x}, 0, v{x}, s[{50+2*blk}:{51+2*blk}]
            ''')
        for gp in range(2):
            t = 20 + 4*((blk*2+gp) % 4)
            c = ACC + blk*16 + gp*8
            for j in range(4):
                a(f'v_cvt_pk_bf16_f32 v{t+j}, v{c+2*j}, v{c+2*j+1}')
            a(f'''
            v_permlane32_swap_b32 v{t}, v{t+2}
            v_permlane32_swap_b32 v{t+1}, v{t+3}
            ''')
            a(f'buffer_store_dwordx4 v[{t}:{t+3}], v{6+gp}, s[24:27], 0 offen offset:{blk*1024}')
    a.label('WI_FIN')
    code_pf(a, 'sp_kernel', 'CODE_END', 3, 8, 16000, vt=100)
    a.label('WI_END')
    a('s_endpgm')
    return dict(name=name, grid=128, block=512, lds=SCRL + 64, vgpr=176)
```

```python
import sys
from k_common import *
import os, importlib
k_kv = importlib.import_module(os.environ.get('KV', 'k_kv4'))
mods = [k_kv.gen_kv]
try:
    import os, importlib; k_attn = importlib.import_module(os.environ.get('ATTN', 'k_attn6')); mods.append(k_attn.gen_attn)
    import k_rest3; mods += k_rest3.GENS
except ImportError as e:
    print('partial build:', e)

HEAD = open('adaLN_cond__compressed_kv_cla__mixer_gmlp__prompt.s.ref').read().split('\n')
hdr = [l for l in HEAD if l.startswith(';') and '@launch' not in l and 'Override launch' not in l and 'grid=ceil' not in l]
import os
if os.environ.get('NK'):
    mods = mods[:int(os.environ['NK'])]
a = Asm()
infos = []
for g in mods:
    infos.append(g(a))
out = '\n'.join(hdr) + '\n'
for k in infos:
    out += f"; @launch kernel={k['name']} grid=({k['grid']},1,1) block=({k['block']},1,1) lds={k['lds']}\n"
out += '.amdgcn_target "amdgcn-amd-amdhsa--gfx950"\n.text\n'
out += a.text()
for nm in ['attn_kernel', 'oproj_kernel', 'win_kernel', 'sp_kernel', 'wout_kernel']:
    if nm not in [k['name'] for k in infos]: out += nm + ':\n.fill 64, 4, 0xBF800000\n'
out += 'CODE_END:\n    s_endpgm\n'
out += '.section .rodata,"a"\n'
for k in infos:
    out += '.p2align 6\n' + kernel_desc(k['name'], k['vgpr'], accum=k.get('accum'))
dst = sys.argv[1] if len(sys.argv) > 1 else 'adaLN_cond__compressed_kv_cla__mixer_gmlp__prompt.s'
open(dst, 'w').write(out)
print('wrote', dst, len(out))
```

```python
import sys
from k_common import *
def gen(a, name, pat, nrep=50, unroll=64):
    kernel_header(a, name)
    a(f'''
    s_load_dwordx2 s[4:5], s[0:1], {ARG['ws']}
    s_waitcnt lgkmcnt(0)
    s_cmp_ge_u32 s2, 256
    s_cbranch_scc1 {name}_END
    ''')
    srd(a, 8, 4, 5, 1<<20)
    for i in range(8, 128):
        a(f'v_mov_b32 v{i}, 0')
    for i in range(128):
        a(f'v_accvgpr_write_b32 a{i}, 0')
    a(f'''
    v_and_b32 v1, 63, v0
    v_lshlrev_b32 v4, 4, v1
    s_mov_b32 s48, 0x3e0293ee
    s_mov_b32 m0, 0x8000
    s_memtime s[20:21]
    s_memrealtime s[22:23]
    s_waitcnt lgkmcnt(0)
    s_mov_b32 s30, {nrep}
    s_cmp_eq_u32 s30, s30
    ''')
    a.label(f'{name}_L')
    cnt = {}
    def nx(k, n):
        cnt[k] = cnt.get(k, -1) + 1
        return cnt[k] % n
    for u in range(unroll):
        for ch in pat:
            if ch == 'M':
                c = nx('M', 8) * 16
                a.raw(f'v_mfma_f32_32x32x16_bf16 a[{c}:{c+15}], v[8:11], v[12:15], a[{c}:{c+15}]')
            elif ch == 'E':
                r = 16 + nx('E', 16)
                a.raw(f'v_exp_f32 v{r}, v{r}')
            elif ch == 'A':
                r = 32 + nx('A', 16)
                a.raw(f'v_add_f32 v{r}, v{r}, v{r}')
            elif ch == 'P':
                r = 48 + 2*nx('P', 8)
                a.raw(f'v_pk_add_f32 v[{r}:{r+1}], v[{r}:{r+1}], v[{r}:{r+1}]')
            elif ch == 'S':
                r = 60 + nx('S', 8)
                a.raw(f's_mov_b32 s{r}, 5')
            elif ch == 'L':
                r = 64 + 4*nx('L', 8)
                a.raw(f'ds_read_b128 v[{r}:{r+3}], v4')
            elif ch == 'C':
                r = 96 + nx('C', 16)
                a.raw(f'v_cvt_pk_bf16_f32 v{r}, v8, v9')
            elif ch == 'X':
                r = 112 + nx('X', 8)
                a.raw(f'v_max3_f32 v{r}, v{r}, v8, v9')
            elif ch == 'F':
                r = 32 + nx('A', 16)
                a.raw(f'v_fma_f32 v{r}, v{r}, s48, v8')
            elif ch == 'D':
                r = 112 + nx('X', 8)
                a.raw(f'v_dot2_f32_bf16 v{r}, v8, v9, v{r}')
            elif ch == 'd':
                r = 112 + nx('X', 8)
                a.raw(f'v_dot2c_f32_bf16 v{r}, v8, v9')
            elif ch == 'l':
                r = 64 + 4*nx('L', 8)
                a.raw(f'ds_read_b64 v[{r}:{r+1}], v4')
            elif ch == 'G':
                r = 64 + 4*nx('L', 8)
                a.raw(f'ds_read_b128 a[{r}:{r+3}], v4')
            elif ch == 'B':
                a.raw(f'buffer_load_dwordx4 v4, s[8:11], 0 offen lds')
            elif ch == 'm':
                c = nx('m', 4) * 16
                a.raw(f'v_mfma_f32_32x32x16_bf16 a[{c}:{c+15}], v[8:11], v[12:15], a[{c}:{c+15}]')
            elif ch == 'q':
                r = 120 + 4*nx('q', 2)
                a.raw(f'v_mfma_f32_4x4x4_16b_bf16 v[{r}:{r+3}], v[8:9], v[12:13], v[{r}:{r+3}]')
            elif ch == 'x':
                r = 32 + nx('A', 16)
                a.raw(f'v_fma_mix_f32 v{r}, v8, v9, v10 op_sel:[1,0,0] op_sel_hi:[1,0,0]')
            elif ch == 'r':
                r = 32 + nx('A', 16)
                a.raw(f'v_accvgpr_read_b32 v{r}, a{127}')
            elif ch == 'b':
                a.raw(f's_cbranch_scc0 {name}_END')
            elif ch == 'T':
                r = 64 + 4*nx('L', 8)
                a.raw(f'ds_read_b64_tr_b16 v[{r}:{r+1}], v4')
            elif ch == 'W':
                a.raw('s_waitcnt lgkmcnt(4)')
            elif ch == 'N':
                a.raw('s_nop 0')
    a.raw(f'''
    s_sub_u32 s30, s30, 1
    s_cmp_lg_u32 s30, 0
    s_cbranch_scc1 {name}_L
    s_nop 7
    s_nop 7
    s_waitcnt lgkmcnt(0)
    s_memtime s[24:25]
    s_memrealtime s[26:27]
    s_waitcnt lgkmcnt(0)
    s_sub_u32 s24, s24, s20
    s_sub_u32 s26, s26, s22
    v_mov_b32 v6, s24
    v_mov_b32 v7, s26
    v_lshrrev_b32 v3, 6, v0
    s_lshl_b32 s31, s2, 6
    v_lshl_add_u32 v3, v3, 3, s31
    v_and_b32 v4, 63, v0
    v_cmp_eq_u32 vcc, 0, v4
    s_and_b64 exec, exec, vcc
    buffer_store_dwordx2 v[6:7], v3, s[8:11], 0 offen
    s_waitcnt vmcnt(0)
    ''')
    a.label(f'{name}_END')
    a('s_endpgm')
HEAD = open('adaLN_cond__compressed_kv_cla__mixer_gmlp__prompt.s.ref').read().split('\n')
hdr = [l for l in HEAD if l.startswith(';') and '@launch' not in l and 'Override launch' not in l and 'grid=ceil' not in l]
nw = int(sys.argv[1])
for pat in sys.argv[2:]:
    a = Asm()
    gen(a, 'mb_kernel', pat)
    out = '\n'.join(hdr) + '\n'
    out += f"; @launch kernel=mb_kernel grid=(256,1,1) block=({nw*64},1,1) lds=131072\n"
    out += '.amdgcn_target "amdgcn-amd-amdhsa--gfx950"\n.text\n' + a.text() + '.section .rodata,"a"\n.p2align 6\n' + kernel_desc('mb_kernel', 256, accum=128)
    open(f'm7_{nw}_{pat}.s', 'w').write(out)
```

```python
from asmlib import Asm

WS_MOD  = 0x0
WS_STAT = 0x10000
WS_K    = 0x1000000
WS_VT   = 0x2000000
WS_CTX  = 0x3000000
WS_X2   = 0x4000000
WS_Z1   = 0x4400000
WS_Z2   = 0x4800000
WS_Y    = 0x4C00000
WS_N1   = 0x5000000
WS_WO   = 0x5400000
WS_WOUT = 0x5800000
WS_WIN  = 0x5C00000
ZP = 704

ARG = dict(A_x=0, A_c_kv=8, A_w_q=16, A_w_uk=24, A_w_uv=32, A_w_o=40, B_x=48, B_w_in=56, B_w_sp=64,
           B_b_sp=72, B_w_out=80, c=88, w_mod=96, out=104, dbg=112, ws=120)

def kernel_header(a, name):
    a.raw(f'.globl {name}')
    a.raw('.p2align 8')
    a.raw(f'.type {name},@function')
    a.raw(f'{name}:')
    a.hist = []

def kernel_desc(name, vgpr, sgpr=102, accum=None):
    if accum is None:
        accum = (vgpr + 3) // 4 * 4
    return f'''.amdhsa_kernel {name}
  .amdhsa_next_free_vgpr {vgpr}
  .amdhsa_next_free_sgpr {sgpr}
  .amdhsa_accum_offset {accum}
  .amdhsa_group_segment_fixed_size 0
  .amdhsa_kernarg_size 128
  .amdhsa_user_sgpr_count 2
  .amdhsa_user_sgpr_kernarg_segment_ptr 1
  .amdhsa_system_sgpr_workgroup_id_x 1
.end_amdhsa_kernel
'''

def srd(a, d, lo, hi, nbytes, off=0):
    if off:
        a(f's_add_u32 s{d}, s{lo}, {off}')
        a(f's_addc_u32 s{d+1}, s{hi}, 0')
    else:
        a(f's_mov_b32 s{d}, s{lo}')
        a(f's_mov_b32 s{d+1}, s{hi}')
    a(f's_mov_b32 s{d+2}, {nbytes}')
    a(f's_mov_b32 s{d+3}, 0x00020000')

def dispense(a, nitems, ldsoff, tag, extra_barrier=False, side=None):
    assert nitems % 8 == 0
    Q = nitems // 8
    import os
    nd = os.environ.get('NODISP', '')
    if nd == 'all' or tag in nd.split(','):
        return
    if tag != 'KV' and os.environ.get('DISP2', '1') == '1':
        assert not extra_barrier
        return dispense2(a, nitems, ldsoff, tag, side)
    a(f'''
    s_load_dwordx2 s[92:93], s[0:1], {ARG['dbg']}
    s_getreg_b32 s90, hwreg(HW_REG_XCC_ID, 0, 4)
    v_lshrrev_b32 v1, 6, v0
    v_mov_b32 v2, {ldsoff}
    s_and_b32 s90, s90, 7
    v_readfirstlane_b32 s91, v1
    s_mov_b32 s94, 256
    s_mov_b32 s95, 0x00020000
    s_waitcnt lgkmcnt(0)
    s_cmp_lg_u32 s91, 0
    s_cbranch_scc1 {tag}_DW
    s_mov_b64 exec, 1
    s_mov_b32 s96, 0
    ''')
    a.label(f'{tag}_DL')
    a(f'''
    s_add_u32 s97, s90, s96
    s_and_b32 s97, s97, 7
    s_lshl_b32 s98, s97, 5
    v_mov_b32 v1, s98
    v_mov_b32 v3, 1
    buffer_atomic_add v3, v1, s[92:95], 0 offen sc0 sc1
    s_waitcnt vmcnt(0)
    v_readfirstlane_b32 s98, v3
    s_cmp_lt_u32 s98, {Q}
    s_cbranch_scc1 {tag}_DF
    s_add_u32 s96, s96, 1
    s_cmp_lt_u32 s96, 8
    s_cbranch_scc1 {tag}_DL
    s_mov_b32 s98, 0x0fffffff
    ''')
    a.label(f'{tag}_DF')
    a(f'''
    s_lshl_b32 s98, s98, 3
    s_add_u32 s98, s98, s97
    v_mov_b32 v3, s98
    ds_write_b32 v2, v3
    s_mov_b64 exec, -1
    s_waitcnt lgkmcnt(0)
    ''')
    a.label(f'{tag}_DW')
    a(f'''
    s_barrier
    ds_read_b32 v3, v2
    s_waitcnt lgkmcnt(0)
    v_readfirstlane_b32 s2, v3
    ''')
    if extra_barrier:
        a('s_barrier')

WS_CNT = 0x20000
KIDX = dict(AT=0, OP=1, WI=2, SP=3, WO=4)
def dispense2(a, nitems, ldsoff, tag, side=None):
    nsub = nitems // 64
    lg = nsub.bit_length() - 1
    ncnt = 8 * nsub
    a(f'''
    s_load_dwordx2 s[92:93], s[0:1], {ARG['ws']}
    s_getreg_b32 s90, hwreg(HW_REG_XCC_ID, 0, 4)
    v_lshrrev_b32 v1, 6, v0
    v_mov_b32 v2, {ldsoff}
    s_cmp_ge_u32 s2, {nitems}
    s_cbranch_scc1 {tag}_DX
    s_and_b32 s90, s90, 7
    v_readfirstlane_b32 s91, v1
    s_lshl_b32 s90, s90, {lg}
    s_lshr_b32 s96, s2, 6
    s_add_u32 s90, s90, s96
    s_mov_b32 s94, 8192
    s_mov_b32 s95, 0x00020000
    s_cmp_lg_u32 s91, 0
    s_cbranch_scc1 {tag}_{'DS' if side else 'DW'}
    s_mov_b64 exec, 1
    s_mov_b32 s96, 0
    s_waitcnt lgkmcnt(0)
    s_add_u32 s92, s92, {WS_CNT + KIDX[tag] * 8192}
    s_addc_u32 s93, s93, 0
    ''')
    a.label(f'{tag}_DL')
    a(f'''
    s_add_u32 s97, s90, s96
    s_and_b32 s97, s97, {ncnt - 1}
    s_lshl_b32 s98, s97, 8
    v_mov_b32 v1, s98
    v_mov_b32 v3, 1
    buffer_atomic_add v3, v1, s[92:95], 0 offen sc0 sc1
    s_waitcnt vmcnt(0)
    v_readfirstlane_b32 s98, v3
    s_cmp_lt_u32 s98, 8
    s_cbranch_scc1 {tag}_DF
    s_add_u32 s96, s96, 1
    s_cmp_lt_u32 s96, {ncnt}
    s_cbranch_scc1 {tag}_DL
    s_mov_b32 s98, 0x00ffffff
    ''')
    a.label(f'{tag}_DF')
    a(f'''
    s_and_b32 s99, s97, {nsub - 1}
    s_lshl_b32 s99, s99, 3
    s_add_u32 s98, s98, s99
    s_lshl_b32 s98, s98, 3
    s_lshr_b32 s97, s97, {lg}
    s_add_u32 s98, s98, s97
    v_mov_b32 v3, s98
    ds_write_b32 v2, v3
    s_mov_b64 exec, -1
    s_waitcnt lgkmcnt(0)
    ''')
    if side:
        a(f's_branch {tag}_DW')
        a.label(f'{tag}_DS')
        side(a)
    a.label(f'{tag}_DW')
    a(f'''
    s_barrier
    ds_read_b32 v3, v2
    s_waitcnt lgkmcnt(0)
    v_readfirstlane_b32 s2, v3
    ''')
    a.label(f'{tag}_DX')

import os as _os
def code_pf(a, start, end, swave, nwaves, nbytes, sb=90, vt=2, woff=0):
    if _os.environ.get('NOPF'): return
    n = -(-nbytes // (8192 * nwaves))
    lbl = a.newlabel('PF')
    a(f's_getpc_b64 s[{sb}:{sb+1}]')
    a.raw(f'{lbl}:')
    if start is None or start == lbl:
        start = lbl
    else:
        a.raw(f'    s_add_u32 s{sb}, s{sb}, {start}-{lbl}')
        a.raw(f'    s_addc_u32 s{sb+1}, s{sb+1}, 0')
    a(f'''
    v_mbcnt_lo_u32_b32 v{vt}, -1, 0
    v_mbcnt_hi_u32_b32 v{vt}, -1, v{vt}
    v_lshlrev_b32 v{vt}, 7, v{vt}
    s_sub_u32 s{sb+2}, s{swave}, {woff}
    s_lshl_b32 s{sb+2}, s{sb+2}, 13
    v_add_u32 v{vt}, s{sb+2}, v{vt}
    ''')
    for i in range(n):
        if i:
            a(f'v_add_u32 v{vt}, {8192*nwaves}, v{vt}')
        a.raw(f'    v_min_u32 v{vt+1+2*i}, {end}-{start}-4, v{vt}')
        a.raw('    s_nop 0')
        a.raw(f'    global_load_dword v{vt+2+2*i}, v{vt+1+2*i}, s[{sb}:{sb+1}]')
```

```python
from k_common import *
import os
PFW = os.environ.get('PFW', '0') == '1'
PFD = int(os.environ.get('PFD', '9'))

STK = os.environ.get('STK', '')
def gstamp(a, prefix, idx):
    if STK != prefix: return
    a(f"""
    s_memtime s[82:83]
    s_waitcnt lgkmcnt(0)
    v_writelane_b32 v155, s82, {idx}
    """)
def gstamp_out(a, prefix):
    if STK != prefix: return
    a('s_waitcnt vmcnt(0)')
    gstamp(a, prefix, 63)
    srd(a, 72, 4, 5, 1 << 20, 0x7000000)
    a("""
    s_lshl_b32 s45, s2, 10
    s_lshl_b32 s50, s3, 8
    s_add_u32 s45, s45, s50
    v_and_b32 v1, 63, v0
    v_lshlrev_b32 v1, 2, v1
    buffer_store_dword v155, v1, s[72:75], s45 offen
    """)

def gemm_splitk(a, name, prefix, nmt, nnt, nstages, setup, lda, ldb, epilogue, bnorm=False, afrag=False, rbstride=262144, browmap=None, pf=None):
    kernel_header(a, name)
    END = prefix + '_END'
    gstamp(a, prefix, 0)
    a(f'''
    s_load_dwordx2 s[4:5], s[0:1], {ARG['ws']}
    ''')
    setup_loads = setup(a, 'load')
    dispense(a, nmt*nnt, 65536 if bnorm else 131072, prefix, extra_barrier=bnorm)
    gstamp(a, prefix, 1)
    a(f'''
    v_lshrrev_b32 v1, 6, v0
    s_waitcnt lgkmcnt(0)
    v_readfirstlane_b32 s3, v1
    s_cmp_ge_u32 s2, {nmt*nnt}
    s_cbranch_scc1 {END}
    ''')
    a(f'''
    s_and_b32 s40, s2, 7
    s_lshr_b32 s41, s2, 3
    s_mov_b32 s42, {(1 << 32) // nnt + 1}
    s_mul_hi_u32 s43, s41, s42
    s_mul_i32 s42, s43, {nnt}
    s_sub_u32 s41, s41, s42          ; ntile
    s_lshl_b32 s43, s43, 3
    s_add_u32 s40, s40, s43          ; mtile
    ''')
    setup(a, 'srd')
    if pf is not None and PFW:
        a(f'''
        s_cmp_lg_u32 s3, 4
        s_cbranch_scc1 {prefix}_MAIN
        v_and_b32 v1, 63, v0
        v_lshlrev_b32 v2, 7, v1          ; lane*128
        s_lshr_b32 s50, s2, 3            ; j
        s_and_b32 s51, s2, 7             ; y
        s_lshr_b32 s52, s50, 2           ; jj
        s_lshr_b32 s53, s52, 1
        s_lshl_b32 s53, s53, 3
        s_add_u32 s53, s53, s51
        s_lshl_b32 s53, s53, 1
        s_and_b32 s52, s52, 1
        s_add_u32 s53, s53, s52
        s_and_b32 s52, s50, 3            ; sub
        ''')
        if os.environ.get('PFX', '') != 'none':
            pf(a)
        a('''
        s_waitcnt vmcnt(0)
        s_endpgm
        ''')
        a.label(f'{prefix}_MAIN')
    ACC = 64
    FA, FB = 20, 36
    BR = 128
    a(f'''
    s_lshl_b32 s36, s3, 10
    v_and_b32 v1, 63, v0
    v_and_b32 v2, 31, v1
    v_lshrrev_b32 v3, 5, v1
    v_lshrrev_b32 v4, 4, v1          ; lane/16
    s_lshl_b32 s34, s3, 2
    v_add_u32 v4, s34, v4            ; row 0..15
    v_and_b32 v5, 15, v1
    v_xor_b32 v5, v5, v4
    s_lshl_b32 s35, s40, 6           ; m0
    v_add_u32 v4, s35, v4
    s_mov_b32 s34, {lda}
    v_mul_lo_u32 v4, v4, s34
    v_lshl_add_u32 v10, v5, 4, v4
    v_lshrrev_b32 v4, 3, v1          ; lane/8
    v_bfe_u32 v5, v4, 1, 1
    v_lshlrev_b32 v5, 2, v5
    v_and_b32 v6, 7, v1
    v_xor_b32 v5, v5, v6
    s_lshl_b32 s34, s3, 3
    v_add_u32 v4, s34, v4            ; krow 0..31
    v_mov_b32 v9, v4
    s_mov_b32 s34, {ldb}
    v_mul_lo_u32 v4, v4, s34
    v_lshl_add_u32 v11, v5, 4, v4
    s_lshl_b32 s34, s41, 7           ; n0*2
    v_add_u32 v11, s34, v11          ; B voffset
    ''')
    if afrag:
        a(f'''
        s_mul_i32 s34, s40, {2*rbstride}
        s_add_u32 s34, s34, s36
        v_lshl_add_u32 v10, v1, 4, s34
        ''')
    a('''
    v_and_b32 v5, 15, v2             ; row&15
    v_lshlrev_b32 v4, 8, v2          ; row*256
    s_lshl_b32 s34, s3, 2            ; w*4
    ''')
    for s in range(2):
        a(f'''
        v_or_b32 v6, {2*s}, v3
        v_or_b32 v6, s34, v6
        v_xor_b32 v6, v6, v5
        v_lshl_add_u32 v{12+s}, v6, 4, v4
        ''')
        if afrag:
            a(f'''
            s_lshl_b32 s37, s3, 11
            s_add_u32 s37, s37, {s*1024}
            v_lshl_add_u32 v{12+s}, v1, 4, s37
            ''')
    a('''
    v_bfe_u32 v4, v1, 2, 2           ; r
    v_and_b32 v5, 3, v1              ; c4
    v_bfe_u32 v6, v1, 4, 1           ; nsub
    v_lshlrev_b32 v7, HSH, v3
    v_add_u32 v7, v7, v4             ; 8half + r
    s_lshl_b32 s34, s3, 5
    v_add_u32 v7, s34, v7            ; + 32w
    v_lshlrev_b32 v7, 7, v7          ; *128
    v_lshl_add_u32 v7, v6, 5, v7
    v_lshl_add_u32 v7, v5, 3, v7
    v_add_u32 v7, 16384, v7
    v_lshrrev_b32 v4, 1, v4          ; (r>>1)&1
    '''.replace('HSH', '2' if afrag else '3'))
    for nb in range(2):
        a(f'''
        v_xor_b32 v6, {nb}, v4
        v_lshl_add_u32 v{14+nb}, v6, 6, v7
        ''')
    for i in range(64):
        a(f'v_mov_b32 v{ACC+i}, 0')
    setup(a, 'pre')
    NST = 2 if bnorm else 4
    def issueA(t, slot):
        for i in range(4):
            a(f'''
            s_add_u32 m0, s36, {slot*32768 + i*4096}
            s_mov_b32 s39, {(t*8192 + (i//2)*rbstride + (i%2)*4096) if afrag else (t*256 + i*16*lda)}
            buffer_load_dwordx4 v10, s[12:15], s39 offen lds
            ''')
    def issueB(t, slot):
        for i in range(4):
            if bnorm:
                a(f'''
                s_mov_b32 s39, {(t*128 + i*32)*ldb}
                buffer_load_dwordx4 v[{BR+4*i}:{BR+4*i+3}], v11, s[16:19], s39 offen
                ''')
            else:
                a(f'''
                s_add_u32 m0, s36, {slot*32768 + 16384 + i*4096}
                s_mov_b32 s39, {(browmap(t, i) if browmap else (t*128 + i*32))*ldb}
                buffer_load_dwordx4 v11, s[16:19], s39 offen lds
                ''')
    def writeB(t, slot):
        a('s_waitcnt vmcnt(0)')
        for i in range(4):
            a(f'ds_read_b64 v[{144+2*i}:{145+2*i}], v17 offset:{(t*128 + i*32)*8}')
        a('s_waitcnt lgkmcnt(0)')
        for i in range(4):
            for j in range(4):
                r = BR + 4*i + j
                a(f'''
                v_lshlrev_b32 v152, 16, v{r}
                v_and_b32 v153, 0xffff0000, v{r}
                v_sub_f32 v152, v152, v{144+2*i}
                v_sub_f32 v153, v153, v{144+2*i}
                v_mul_f32 v152, v152, v{145+2*i}
                v_mul_f32 v153, v153, v{145+2*i}
                v_cvt_pk_bf16_f32 v{r}, v152, v153
                ''')
            a(f'ds_write_b128 v16, v[{BR+4*i}:{BR+4*i+3}] offset:{slot*32768 + 16384 + i*4096}')
    def reads(slot, s, buf):
        sb = slot * 32768
        va, vb = 12, 14
        if sb >= 65536:
            sb -= 65536; va, vb = 156, 158
        for mb in range(2):
            a(f'ds_read_b128 v[{FA+buf*8+mb*4}:{FA+buf*8+mb*4+3}], v{va+s} offset:{sb + mb*8192}')
        for nb in range(2):
            for j in range(2):
                r = FB + buf*8 + nb*4 + j*2
                a(f'ds_read_b64_tr_b16 v[{r}:{r+1}], v{vb+nb} offset:{sb + s*2048 + j*(1024 if afrag else 512)}')
    if NST > 2:
        for i in range(4):
            a(f'v_add_u32 v{156+i}, 0x10000, v{12+i}')
    if bnorm:
        a(f'''
        v_lshlrev_b32 v16, 4, v1
        v_add_u32 v16, s36, v16
        v_lshlrev_b32 v17, 3, v9
        v_add_u32 v17, 65536, v17
        ''')
        issueA(0, 0); issueB(0, 0); writeB(0, 0)
    else:
        for t in range(NST - 1):
            issueA(t, t); issueB(t, t)
    gstamp(a, prefix, 2)
    for t in range(nstages):
        slot = t % NST
        if bnorm:
            a('s_waitcnt vmcnt(0) lgkmcnt(0)')
        else:
            inflight = min(NST - 2, nstages - 1 - t)
            a(f's_waitcnt vmcnt({8*inflight})')
        a('s_barrier')
        gstamp(a, prefix, 4 + t)
        tn = t + NST - 1
        if tn < nstages:
            issueA(tn, tn % NST); issueB(tn, tn % NST)
        reads(slot, 0, 0)
        reads(slot, 1, 1)
        for s in range(2):
            a(f's_waitcnt lgkmcnt({6 if s == 0 else 0})')
            for mb in range(2):
                for nb in range(2):
                    c = ACC + (mb*2+nb)*16
                    fa = FA + s*8 + mb*4
                    fb = FB + s*8 + nb*4
                    a(f'v_mfma_f32_32x32x16_bf16 v[{c}:{c+15}], v[{fb}:{fb+3}], v[{fa}:{fa+3}], v[{c}:{c+15}]')
        if bnorm and tn < nstages:
            writeB(tn, tn % NST)
    gstamp(a, prefix, 60)
    a(f'''
    s_waitcnt vmcnt(0) lgkmcnt(0)
    s_barrier
    s_lshl_b32 s34, s3, 14
    v_lshlrev_b32 v4, 4, v1
    v_add_u32 v5, s34, v4
    ''')
    for qd in range(16):
        a(f'ds_write_b128 v5, v[{ACC+4*qd}:{ACC+4*qd+3}] offset:{qd*1024}')
    a(f'''
    s_waitcnt lgkmcnt(0)
    s_barrier
    s_lshl_b32 s34, s3, 12
    v_add_u32 v5, s34, v4
    ''')
    for wv in range(4):
        for g in range(4):
            r = ACC + wv*16 + g*4
            a(f'ds_read_b128 v[{r}:{r+3}], v5 offset:{wv*16384 + g*1024}')
    a('s_waitcnt lgkmcnt(0)')
    for i in range(16):
        a(f'''
        v_add_f32 v{ACC+i}, v{ACC+i}, v{ACC+16+i}
        v_add_f32 v{ACC+32+i}, v{ACC+32+i}, v{ACC+48+i}
        v_add_f32 v{ACC+i}, v{ACC+i}, v{ACC+32+i}
        ''')
    a('''
    s_lshr_b32 s34, s3, 1
    s_lshl_b32 s34, s34, 5
    s_add_u32 s34, s34, s35
    v_add_u32 v4, s34, v2            ; row
    s_and_b32 s34, s3, 1
    s_lshl_b32 s34, s34, 5
    s_lshl_b32 s37, s41, 6
    s_add_u32 s34, s34, s37
    v_lshlrev_b32 v5, 2, v3
    v_add_u32 v5, s34, v5            ; col (g=0)
    ''')
    gstamp(a, prefix, 61)
    epilogue(a, ACC)
    gstamp(a, prefix, 62)
    gstamp_out(a, prefix)
    a.label(END)
    a('s_endpgm')
    lds = NST * 32768 + (16384 if bnorm else 64)
    return dict(name=name, grid=nmt*nnt, block=320 if (pf is not None and PFW) else 256, lds=lds, vgpr=160)

def rbf(a, r):
    a(f'''
    v_cvt_pk_bf16_f32 v{r}, v{r}, v{r}
    v_lshlrev_b32 v{r}, 16, v{r}
    ''')

def gen_oproj(a):
    def setup(a, ph):
        if ph == 'load':
            a(f'''
            s_load_dwordx2 s[6:7], s[0:1], {ARG['A_w_o']}
            s_load_dwordx2 s[8:9], s[0:1], {ARG['A_x']}
            ''')
        elif ph == 'srd':
            srd(a, 12, 4, 5, 2048*4096*2, WS_CTX)
            srd(a, 16, 6, 7, 4096*512*2)
            srd(a, 20, 8, 9, 2048*512*2)
            srd(a, 24, 4, 5, 2048*512*2, WS_X2)
            srd(a, 28, 4, 5, 3072*4, WS_MOD)
    def epi(a, ACC):
        a('''
        v_lshlrev_b32 v6, 10, v4
        v_lshl_add_u32 v6, v5, 1, v6
        v_lshlrev_b32 v7, 2, v5          ; col*4
        v_add_u32 v7, 4096, v7
        ''')
        for g in range(4):
            a(f'''
            buffer_load_dwordx2 v[{20+2*g}:{21+2*g}], v6, s[20:23], 0 offen offset:{g*16}
            buffer_load_dwordx4 v[{28+4*g}:{31+4*g}], v7, s[28:31], 0 offen offset:{g*32}
            ''')
        a('s_waitcnt vmcnt(0)')
        for g in range(4):
            for j in range(4):
                r = ACC + g*4 + j
                rbf(a, r)
                a(f'v_mul_f32 v{r}, v{r}, v{28+4*g+j}')
                rbf(a, r)
                xs = 20 + 2*g + j//2
                if j % 2 == 0:
                    a(f'v_lshlrev_b32 v44, 16, v{xs}')
                else:
                    a(f'v_and_b32 v44, 0xffff0000, v{xs}')
                a(f'v_add_f32 v{r}, v{r}, v44')
            a(f'''
            v_cvt_pk_bf16_f32 v{46+2*(g%2)}, v{ACC+g*4}, v{ACC+g*4+1}
            v_cvt_pk_bf16_f32 v{47+2*(g%2)}, v{ACC+g*4+2}, v{ACC+g*4+3}
            buffer_store_dwordx2 v[{46+2*(g%2)}:{47+2*(g%2)}], v6, s[24:27], 0 offen offset:{g*16}
            ''')
    def pf(a):
        a('''
        s_lshl_b32 s54, s50, 13          ; B: j*8192
        s_lshl_b32 s55, s53, 18
        s_lshl_b32 s56, s52, 13
        s_add_u32 s55, s55, s56
        s_lshl_b32 s57, s53, 15
        s_add_u32 s57, s57, s56
        ''')
        PX = os.environ.get('PFX', '')
        for q in range(8):
            a(f'''
            {'' if PX == 'B' else 'buffer_load_dword v3, v2, s[12:15], s55 offen'}
            {'' if PX == 'A' else 'buffer_load_dword v3, v2, s[16:19], s54 offen'}
            s_add_u32 s54, s54, 262144
            {'' if PX == 'A' else 'buffer_load_dword v3, v2, s[16:19], s54 offen'}
            s_add_u32 s54, s54, 262144
            s_add_u32 s55, s55, 32768
            s_waitcnt vmcnt({PFD})
            ''')
        a('buffer_load_dword v3, v2, s[20:23], s57 offen')
    return gemm_splitk(a, 'oproj_kernel', 'OP', 32, 8, 32, setup, 8192, 1024, epi, afrag=True, pf=pf)

def gen_wout(a):
    def setup(a, ph):
        if ph == 'load':
            a(f'''
            s_load_dwordx2 s[6:7], s[0:1], {ARG['B_w_out']}
            s_load_dwordx2 s[8:9], s[0:1], {ARG['out']}
            ''')
        elif ph == 'srd':
            srd(a, 12, 4, 5, 0x300000, WS_Y)
            srd(a, 16, 6, 7, 688*512*2)
            srd(a, 20, 4, 5, 2048*512*2, WS_X2)
            srd(a, 24, 8, 9, 2048*512*2)
            srd(a, 28, 4, 5, 3072*4, WS_MOD)
    def epi(a, ACC):
        a('''
        v_lshlrev_b32 v6, 10, v4
        v_lshl_add_u32 v6, v5, 1, v6
        v_lshlrev_b32 v7, 2, v5
        v_add_u32 v7, 10240, v7
        ''')
        for g in range(4):
            a(f'''
            buffer_load_dwordx2 v[{20+2*g}:{21+2*g}], v6, s[20:23], 0 offen offset:{g*16}
            buffer_load_dwordx4 v[{28+4*g}:{31+4*g}], v7, s[28:31], 0 offen offset:{g*32}
            ''')
        a('s_waitcnt vmcnt(0)')
        for g in range(4):
            for j in range(4):
                r = ACC + g*4 + j
                rbf(a, r)
                a(f'v_mul_f32 v{r}, v{r}, v{28+4*g+j}')
                rbf(a, r)
                xs = 20 + 2*g + j//2
                if j % 2 == 0:
                    a(f'v_lshlrev_b32 v44, 16, v{xs}')
                else:
                    a(f'v_and_b32 v44, 0xffff0000, v{xs}')
                a(f'v_add_f32 v{r}, v{r}, v44')
            a(f'''
            v_cvt_pk_bf16_f32 v{46+2*(g%2)}, v{ACC+g*4}, v{ACC+g*4+1}
            v_cvt_pk_bf16_f32 v{47+2*(g%2)}, v{ACC+g*4+2}, v{ACC+g*4+3}
            buffer_store_dwordx2 v[{46+2*(g%2)}:{47+2*(g%2)}], v6, s[24:27], 0 offen offset:{g*16}
            ''')
    def pf(a):
        a('''
        s_mul_i32 s54, s50, 22016        ; B share
        s_mul_i32 s55, s53, 49152
        s_mul_i32 s56, s52, 12288
        s_add_u32 s55, s55, s56
        s_lshl_b32 s56, s52, 13
        s_lshl_b32 s57, s53, 15
        s_add_u32 s57, s57, s56
        buffer_load_dword v3, v2, s[12:15], s55 offen
        buffer_load_dword v3, v2, s[16:19], s54 offen
        s_add_u32 s54, s54, 8192
        s_add_u32 s55, s55, 4096
        buffer_load_dword v3, v2, s[16:19], s54 offen
        buffer_load_dword v3, v2, s[12:15], s55 offen
        s_add_u32 s54, s54, 8192
        buffer_load_dword v3, v2, s[16:19], s54 offen
        buffer_load_dword v3, v2, s[20:23], s57 offen
        ''')
    return gemm_splitk(a, 'wout_kernel', 'WO', 32, 8, 6, setup, ZP*2, 1024, epi, afrag=True, rbstride=49152, pf=pf,
                       browmap=lambda t, i: 88*((8*t+2*i)//6) + 16*((8*t+2*i)%6))

def gen_sp(a):
    def setup(a, ph):
        if ph == 'load':
            a(f'''
            s_load_dwordx2 s[6:7], s[0:1], {ARG['B_w_sp']}
            s_load_dwordx2 s[8:9], s[0:1], {ARG['B_b_sp']}
            ''')
        elif ph == 'srd':
            srd(a, 12, 6, 7, 2048*2048*2)
            srd(a, 16, 4, 5, 2048*ZP*2, WS_Z2)
            srd(a, 20, 4, 5, 2048*ZP*2, WS_Z1)
            srd(a, 24, 4, 5, 2048*ZP*2, WS_Y)
            srd(a, 28, 8, 9, 2048*2)
            srd(a, 44, 4, 5, 6*2048*8, WS_STAT)
        elif ph == 'pre':
            a('v_lshlrev_b32 v16, 3, v0')
            a('v_add_u32 v17, 0x10000, v16')
            for i in range(8):
                for p in range(6):
                    a(f'''
                    s_mov_b32 s39, {p*16384 + i*2048}
                    buffer_load_dwordx2 v[{128+2*p}:{129+2*p}], v16, s[44:47], s39 offen
                    ''')
                a('s_waitcnt vmcnt(0)')
                a('''
                v_add_f32 v128, v128, v130
                v_add_f32 v129, v129, v131
                v_add_f32 v132, v132, v134
                v_add_f32 v133, v133, v135
                v_add_f32 v136, v136, v138
                v_add_f32 v137, v137, v139
                v_add_f32 v128, v128, v132
                v_add_f32 v129, v129, v133
                v_add_f32 v128, v128, v136
                v_add_f32 v129, v129, v137
                v_mul_f32 v128, 0x3abe82fa, v128     ; mean (1/688)
                v_mul_f32 v129, 0x3abe82fa, v129     ; E[x^2]
                v_fma_f32 v129, -v128, v128, v129
                v_max_f32 v129, 0, v129
                v_add_f32 v129, 0x3727c5ac, v129
                v_rsq_f32 v129, v129
                ''')
                a(f'ds_write_b64 v17, v[128:129] offset:{i*2048}')
            a('''
            s_waitcnt lgkmcnt(0)
            s_barrier
            ''')
    def epi(a, ACC):
        a(f'''
        s_mov_b32 s34, {ZP*2}
        v_mul_lo_u32 v6, v4, s34
        v_lshl_add_u32 v6, v5, 1, v6
        v_lshlrev_b32 v7, 1, v4
        buffer_load_ushort v44, v7, s[28:31], 0 offen
        ''')
        for g in range(4):
            a(f'buffer_load_dwordx2 v[{20+2*g}:{21+2*g}], v6, s[20:23], 0 offen offset:{g*16}')
        a('''
        s_waitcnt vmcnt(0)
        v_lshlrev_b32 v44, 16, v44
        ''')
        for g in range(4):
            for j in range(4):
                r = ACC + g*4 + j
                rbf(a, r)
                a(f'v_add_f32 v{r}, v{r}, v44')
                rbf(a, r)
                xs = 20 + 2*g + j//2
                if j % 2 == 0:
                    a(f'v_lshlrev_b32 v45, 16, v{xs}')
                else:
                    a(f'v_and_b32 v45, 0xffff0000, v{xs}')
                a(f'v_mul_f32 v{r}, v{r}, v45')
            a(f'''
            v_cvt_pk_bf16_f32 v{46+2*(g%2)}, v{ACC+g*4}, v{ACC+g*4+1}
            v_cvt_pk_bf16_f32 v{47+2*(g%2)}, v{ACC+g*4+2}, v{ACC+g*4+3}
            v_add_u32 v45, {8*g}, v5
            v_cmp_gt_u32 vcc, 688, v45
            v_cndmask_b32 v{46+2*(g%2)}, 0, v{46+2*(g%2)}, vcc
            v_cndmask_b32 v{47+2*(g%2)}, 0, v{47+2*(g%2)}, vcc
            buffer_store_dwordx2 v[{46+2*(g%2)}:{47+2*(g%2)}], v6, s[24:27], 0 offen offset:{g*16}
            ''')
    return gemm_splitk(a, 'sp_kernel', 'SP', 32, 11, 16, setup, 4096, ZP*2, epi, bnorm=True)

def gen_win(a):
    name = 'win_kernel'
    kernel_header(a, name)
    NNT = 11
    dispense(a, 16*NNT, 65536 + 4096, 'WI')
    a(f'''
    s_load_dwordx2 s[4:5], s[0:1], {ARG['ws']}
    s_load_dwordx2 s[6:7], s[0:1], {ARG['B_w_in']}
    v_lshrrev_b32 v1, 6, v0
    s_waitcnt lgkmcnt(0)
    v_readfirstlane_b32 s3, v1
    s_cmp_ge_u32 s2, {16*NNT}
    s_cbranch_scc1 WI_END
    s_and_b32 s40, s2, 15            ; mtile
    s_lshr_b32 s41, s2, 4            ; ntile
    ''')
    srd(a, 12, 4, 5, 2048*512*2, WS_X2)
    srd(a, 16, 6, 7, 512*1376*2)
    srd(a, 20, 4, 5, 0x400000 + 2048*ZP*2, WS_Z1)
    srd(a, 24, 4, 5, 6*2048*8, WS_STAT)
    srd(a, 32, 4, 5, 4096, WS_MOD + 6144)
    MODL = 65536
    X0 = 64; QT = 192
    a(f'''
    s_lshl_b32 s36, s3, 10
    v_and_b32 v1, 63, v0
    v_and_b32 v2, 31, v1
    v_lshrrev_b32 v3, 5, v1
    s_lshl_b32 s44, s40, 7
    s_lshl_b32 s45, s3, 5
    s_add_u32 s44, s44, s45          ; row0
    v_add_u32 v4, s44, v2
    v_lshlrev_b32 v5, 10, v4
    v_lshl_add_u32 v5, v3, 4, v5
    ''')
    for s in range(32):
        a(f'buffer_load_dwordx4 v[{X0+4*s}:{X0+4*s+3}], v5, s[12:15], 0 offen offset:{s*32}')
    a(f'''
    v_lshlrev_b32 v6, 4, v0
    buffer_load_dwordx4 v[8:11], v6, s[32:35], 0 offen offset:0
    ''')
    a.lines[-1] = a.lines[-1]
    a('''
    v_lshrrev_b32 v12, 4, v1
    v_and_b32 v13, 15, v1
    v_lshlrev_b32 v14, 2, v12
    v_xor_b32 v14, v14, v13
    s_lshl_b32 s45, s3, 2
    v_add_u32 v15, s45, v12
    s_mov_b32 s45, 2752
    v_mul_lo_u32 v15, v15, s45
    v_lshl_add_u32 v16, v14, 4, v15
    s_lshl_b32 s45, s41, 8
    v_add_u32 v16, s45, v16
    ''')
    def issue_w(c):
        slot = c % 4
        for i in range(4):
            a(f'''
            s_add_u32 m0, s36, {slot*16384 + i*4096}
            s_mov_b32 s39, {(c*64 + i*16)*2752}
            buffer_load_dwordx4 v16, s[16:19], s39 offen lds
            ''')
    for c in range(3):
        issue_w(c)
    a('''
    v_bfe_u32 v12, v1, 2, 2
    v_and_b32 v13, 3, v1
    v_bfe_u32 v14, v1, 4, 1
    v_lshlrev_b32 v15, 3, v3
    v_add_u32 v15, v15, v12
    v_lshlrev_b32 v15, 8, v15
    v_lshl_add_u32 v15, v14, 5, v15
    v_lshl_add_u32 v15, v13, 3, v15
    ''')
    for blk in range(4):
        a(f'''
        v_xor_b32 v17, {blk}, v12
        v_lshl_add_u32 v{20+blk}, v17, 6, v15
        ''')
    a(f'''
    s_waitcnt vmcnt(12)
    v_add_u32 v6, {MODL}, v6
    ds_write_b128 v6, v[8:11]
    v_mov_b32 v24, 0
    v_mov_b32 v25, 0
    ''')
    for r in range(128):
        a(f'''
        v_lshlrev_b32 v26, 16, v{X0+r}
        v_and_b32 v27, 0xffff0000, v{X0+r}
        v_add_f32 v24, v24, v26
        v_add_f32 v25, v25, v27
        ''')
    a('''
    v_add_f32 v24, v24, v25
    v_mov_b32 v25, v24
    v_permlane32_swap_b32 v24, v25
    v_add_f32 v24, v24, v25
    v_mul_f32 v24, 0x3b000000, v24
    v_mov_b32 v25, 0
    v_mov_b32 v28, 0
    ''')
    for r in range(128):
        a(f'''
        v_lshlrev_b32 v26, 16, v{X0+r}
        v_and_b32 v27, 0xffff0000, v{X0+r}
        v_sub_f32 v26, v26, v24
        v_sub_f32 v27, v27, v24
        v_fma_f32 v25, v26, v26, v25
        v_fma_f32 v28, v27, v27, v28
        ''')
    a(f'''
    v_add_f32 v25, v25, v28
    v_mov_b32 v26, v25
    v_permlane32_swap_b32 v25, v26
    v_add_f32 v25, v25, v26
    v_mov_b32 v26, 0x3727c5ac
    v_fmac_f32 v26, 0x3b000000, v25
    v_rsq_f32 v25, v26
    s_waitcnt lgkmcnt(0)
    s_barrier
    v_lshlrev_b32 v26, 5, v3
    v_add_u32 v26, {MODL}, v26
    ''')
    for s in range(32):
        a(f'''
        ds_read_b128 v[28:31], v26 offset:{s*64}
        ds_read_b128 v[32:35], v26 offset:{s*64+16}
        ds_read_b128 v[36:39], v26 offset:{2048+s*64}
        ds_read_b128 v[40:43], v26 offset:{2048+s*64+16}
        ''')
        for j in range(4):
            a(f'''
            v_lshlrev_b32 v{44+2*j}, 16, v{X0+4*s+j}
            v_and_b32 v{45+2*j}, 0xffff0000, v{X0+4*s+j}
            ''')
        for j in range(8):
            a(f'''
            v_sub_f32 v{44+j}, v{44+j}, v24
            v_mul_f32 v{44+j}, v{44+j}, v25
            ''')
        a('s_waitcnt lgkmcnt(0)')
        for j in range(8):
            a(f'''
            v_add_f32 v{36+j}, 1.0, v{36+j}
            v_fma_f32 v{44+j}, v{44+j}, v{36+j}, v{28+j}
            ''')
        for j in range(4):
            a(f'v_cvt_pk_bf16_f32 v{X0+4*s+j}, v{44+2*j}, v{45+2*j}')
    for i in range(64):
        a(f'v_mov_b32 v{QT+i}, 0')
    FW = 28
    def w_reads(slot, s, buf):
        for blk in range(4):
            for j in range(2):
                r = FW + buf*16 + blk*4 + j*2
                a(f'ds_read_b64_tr_b16 v[{r}:{r+1}], v{20+blk} offset:{slot*16384 + s*4096 + j*1024}')
    for c in range(8):
        slot = c % 4
        inflight = min(2, 7 - c)
        a(f's_waitcnt vmcnt({4*inflight})')
        a('s_barrier')
        if c + 3 < 8:
            issue_w(c + 3)
        w_reads(slot, 0, 0)
        for s in range(4):
            buf = s & 1
            if s < 3:
                w_reads(slot, s + 1, buf ^ 1)
                a('s_waitcnt lgkmcnt(8)')
            else:
                a('s_waitcnt lgkmcnt(0)')
            hx = X0 + 4*(c*4 + s)
            for blk in range(4):
                f = FW + buf*16 + blk*4
                q = QT + blk*16
                a(f'v_mfma_f32_32x32x16_bf16 v[{q}:{q+15}], v[{f}:{f+3}], v[{hx}:{hx+3}], v[{q}:{q+15}]')
    a(f'''
    v_add_u32 v4, s44, v2            ; row
    s_mov_b32 s34, {ZP*2}
    v_mul_lo_u32 v6, v4, s34         ; row*1408
    s_lshl_b32 s37, s41, 7
    v_lshlrev_b32 v5, 2, v3
    v_add_u32 v5, s37, v5
    v_mov_b32 v24, 0
    v_mov_b32 v25, 0
    s_mov_b32 s48, 1376
    s_mov_b32 s46, 0x3d372713        ; 0.044715
    s_mov_b32 s47, 0xc0135761        ; -2*0.7978845608*log2(e)
    ''')
    for blk in range(4):
        for g in range(4):
            for j in range(4):
                r = QT + blk*16 + g*4 + j
                rbf(a, r)
                a(f'''
                v_mul_f32 v26, v{r}, v{r}
                v_fma_f32 v26, v26, s46, 1.0
                v_mul_f32 v26, v26, v{r}
                v_mul_f32 v26, s47, v26
                v_exp_f32 v26, v26
                v_add_f32 v26, 1.0, v26
                v_rcp_f32 v26, v26
                v_mul_f32 v{r}, v{r}, v26
                ''')
                rbf(a, r)
            r = QT + blk*16 + g*4
            a(f'''
            v_cvt_pk_bf16_f32 v28, v{r}, v{r+1}
            v_cvt_pk_bf16_f32 v29, v{r+2}, v{r+3}
            v_add_u32 v26, {blk*32 + g*8}, v5        ; col
            v_lshl_add_u32 v27, v26, 1, v6           ; z1 offset
            v_add_u32 v30, {0x400000 - 688*2}, v27   ; z2 offset
            v_cmp_gt_u32 vcc, 688, v26
            v_cndmask_b32 v27, v30, v27, vcc
            v_mov_b32 v30, 0x7ffffff0
            v_cmp_gt_u32 s[50:51], s48, v26
            v_cndmask_b32 v27, v30, v27, s[50:51]
            buffer_store_dwordx2 v[28:29], v27, s[20:23], 0 offen
            s_andn2_b64 s[50:51], s[50:51], vcc
            v_cndmask_b32 v30, 0, v{r}, s[50:51]
            v_cndmask_b32 v31, 0, v{r+1}, s[50:51]
            v_cndmask_b32 v32, 0, v{r+2}, s[50:51]
            v_cndmask_b32 v33, 0, v{r+3}, s[50:51]
            v_add_f32 v24, v24, v30
            v_fma_f32 v25, v30, v30, v25
            v_add_f32 v24, v24, v31
            v_fma_f32 v25, v31, v31, v25
            v_add_f32 v24, v24, v32
            v_fma_f32 v25, v32, v32, v25
            v_add_f32 v24, v24, v33
            v_fma_f32 v25, v33, v33, v25
            ''')
    a(f'''
    s_cmp_lt_u32 s41, 5
    s_cbranch_scc1 WI_END
    v_mov_b32 v26, v24
    v_mov_b32 v27, v25
    v_permlane32_swap_b32 v24, v26
    v_permlane32_swap_b32 v25, v27
    v_add_f32 v24, v24, v26
    v_add_f32 v25, v25, v27
    v_lshlrev_b32 v6, 3, v4
    s_sub_u32 s34, s41, 5
    s_lshl_b32 s34, s34, 14
    v_add_u32 v6, s34, v6
    v_mov_b32 v7, 0x7ffffff0
    v_cmp_gt_u32 vcc, 32, v1
    v_cndmask_b32 v6, v7, v6, vcc
    buffer_store_dwordx2 v[24:25], v6, s[24:27], 0 offen
    ''')
    a.label('WI_END')
    a('s_endpgm')
    return dict(name=name, grid=16*NNT, block=256, lds=65536 + 4096 + 64, vgpr=256)

import k_sp2
import importlib
k_win2 = importlib.import_module(os.environ.get('WIN', 'k_win4'))
k_gemm2 = importlib.import_module(os.environ.get('GEMM', 'k_gemm4'))
if os.environ.get('GEMM2', '1') == '1':
    GENS = [k_gemm2.gen_oproj, k_win2.gen_win, k_sp2.gen_sp, k_gemm2.gen_wout]
else:
    GENS = [gen_oproj, k_win2.gen_win, k_sp2.gen_sp, gen_wout]
```

```python
from k_common import *
import os
EXP = os.environ.get('ATT_EXP', '')
import k_tail2 as TL
from k_prep import WS_WOF

class VMT:
    def __init__(self, a):
        self.a = a; self.base = len(a.vm_seq); self.done = self.base
    def wait(self, tag):
        seq = self.a.vm_seq
        last = max(i for i in range(self.base, len(seq)) if seq[i] == tag)
        if last < self.done:
            return
        assert len(seq) - self.done <= 63, (tag, len(seq) - self.done)
        n = len(seq) - 1 - last
        self.a(f's_waitcnt vmcnt({n})')
        self.done = last + 1

def cost(x):
    c = 0
    for l in x.strip().split('\n'):
        l = l.split(';')[0].strip()
        if not l: continue
        mn = l.split()[0]
        c += 16 if mn in ('v_exp_f32', 'v_rcp_f32') or mn.startswith('buffer_') else 4
    return c

def merge_items(main, extra, start, end):
    out = []; acc = 0; k = 0
    n = len(extra)
    for x in main:
        while k < n and acc >= start + (end - start) * k / n:
            out.append(extra[k]); k += 1
        out.append(x); acc += cost(x)
    out += extra[k:]
    return out

def weave(a, mf, items, lead=0, tail_free=2):
    tot = sum(cost(x) for x in items)
    k = 0; acc = 0
    while k < len(items) and acc < lead:
        a(items[k]); acc += cost(items[k]); k += 1
    n = max(1, len(mf) - tail_free)
    per = max(0, tot - acc) / n
    base = acc
    for i, f in enumerate(mf):
        f()
        while k < len(items) and acc < base + per * (i + 1):
            a(items[k]); acc += cost(items[k]); k += 1
    while k < len(items):
        a(items[k]); k += 1

def check_p(lines):
    import re
    written = set()
    for l in lines:
        m = re.match(r'\s*v_cvt_pk_bf16_f32 v(\d+),', l)
        if m:
            written.add(int(m.group(1)))
        m = re.match(r'\s*v_mfma_f32_32x32x16_bf16 a\[\d+:\d+\], a\[\d+:\d+\], v\[(\d+):(\d+)\]', l)
        if m:
            for r in range(int(m.group(1)), int(m.group(2)) + 1):
                assert r in written, l

def stamp(a, idx):
    if 'ST' not in EXP: return
    a('''
    s_memtime s[82:83]
    s_waitcnt lgkmcnt(0)
    ''')
    if isinstance(idx, int) and idx <= 0:
        a(f's_mov_b32 s{85-idx}, s82')
    elif isinstance(idx, int):
        a(f'v_writelane_b32 v48, s82, {idx}')
    else:
        a(idx)
        a('''
        v_mov_b32 v49, s82
        v_cmp_eq_u32 vcc, s84, v1
        v_cndmask_b32 v48, v48, v49, vcc
        ''')


TRANS = ('v_exp_f32', 'v_log_f32', 'v_rcp_f32', 'v_rsq_f32', 'v_sqrt_f32')
import re as _re
def vcost(x):
    mn = x.split()[0]
    if mn in TRANS: return 8
    if mn.startswith('buffer_') or mn.startswith('ds_'): return 12
    return 4
class VQ:
    def __init__(self, items, earliest=0, marks=None, needs=None):
        self.items = list(items); self.k = 0; self.earliest = earliest; self.marks = marks; self.needs = needs
        self.lag = []
    def head(self, slot):
        if self.k >= len(self.items) or slot < self.earliest: return None
        x = self.items[self.k]
        if self.needs is not None:
            r = int(_re.findall(r'v(\d+)', x)[-1])
            if r not in self.needs: return None
        return x
    def pop(self):
        x = self.items[self.k]; self.k += 1
        if self.marks is not None:
            for r in self.lag: self.marks.add(r)
            self.lag = []
            if x.startswith('v_exp'):
                self.lag = [int(_re.findall(r'v(\d+)', x)[0])]
            if self.k >= len(self.items):
                for r in self.lag: self.marks.add(r)
        return x
    def left(self):
        return len(self.items) - self.k
def slots(a, mf, spec, sq, mem, vqs, cap=24, pre=None, post=None, caps=None):
    pre = pre or {}; post = post or {}; caps = caps or {}
    sq = [[lo, hi, list(it)] for lo, hi, it in sq]
    for k, m in enumerate(mf):
        a(m)
        used = 0
        sp = spec.get(k, [])
        for j, x in enumerate(sp):
            a(x); used += 4 if j else 0
        for q in sq:
            lo, hi, it = q
            if it and lo <= k:
                n = 0 if sp else 1
                free_later = sum(1 for kk in range(k + 1, hi + 1) if not spec.get(kk))
                n = max(n, len(it) - free_later) if k <= hi else len(it)
                for j in range(min(n, len(it))):
                    a(it.pop(0)); used += 4 if (sp or j) else 0
                break
        if k in pre:
            used += pre[k]()
        for x in mem.get(k, []):
            a(x); used += 4
        c = caps.get(k, cap)
        while True:
            for q in vqs:
                x = q.head(k)
                if x is not None and used + vcost(x) <= c:
                    a(q.pop()); used += vcost(x)
                    break
            else:
                break
        if k in post:
            post[k]()
    for q in sq:
        assert not q[2]
    rest = 0
    while any(q.left() for q in vqs):
        for q in vqs:
            x = q.head(1000)
            if x is not None:
                a(q.pop()); rest += vcost(x)
                break
        else:
            assert False
    if os.environ.get('VERB'): print('slots', len(mf), 'leftover', rest)

def gen_attn(a):
    name = 'attn_kernel'
    WQL = 65536
    MODL = 147456
    QST = 131072
    SCRL = 163840 - 64
    kernel_header(a, name)
    stamp(a, 0)
    if TL.STK == 'TL': a('s_memtime s[100:101]')
    a(f'''
    s_load_dwordx2 s[6:7], s[0:1], {ARG['A_w_q']}
    s_load_dwordx2 s[8:9], s[0:1], {ARG['ws']}
    ''')
    dispense(a, 256, SCRL, 'AT')
    stamp(a, -1)
    a(f'''
    v_lshrrev_b32 v1, 6, v0
    s_waitcnt lgkmcnt(0)
    v_readfirstlane_b32 s55, v1      ; wave 0..3
    s_cmp_ge_u32 s2, 256
    s_cbranch_scc1 AT_END
    s_and_b32 s3, s55, 1
    s_and_b32 s40, s2, 7
    s_lshr_b32 s41, s2, 3
    s_and_b32 s42, s41, 3
    s_lshl_b32 s40, s40, 2
    s_add_u32 s40, s40, s42          ; head
    s_lshr_b32 s56, s41, 2           ; pair p 0..7
    s_sub_u32 s42, 15, s56
    s_cmp_lt_u32 s55, 2
    s_cselect_b32 s41, s42, s56
    ''')
    srd(a, 12, 8, 9, 2048 * 512 * 2, WS_N1)
    srd(a, 16, 6, 7, 512 * 4096 * 2)
    a(f'''
    s_lshl_b32 s42, s40, 19
    s_add_u32 s43, s42, {WS_K}
    s_add_u32 s20, s8, s43
    s_addc_u32 s21, s9, 0
    s_mov_b32 s22, 524288
    s_mov_b32 s23, 0x00020000
    s_add_u32 s43, s42, {WS_VT}
    s_add_u32 s24, s8, s43
    s_addc_u32 s25, s9, 0
    s_mov_b32 s26, 524288
    s_mov_b32 s27, 0x00020000
    ''')
    srd(a, 28, 8, 9, 2048 * 4096 * 2, WS_CTX)
    srd(a, 32, 8, 9, 3072 * 4, WS_MOD)
    QT = 64
    HS = 192
    MB = 224
    DKV = 16
    L16 = 17
    vm = VMT(a)
    a(f'''
    s_lshl_b32 s36, s55, 12          ; wave*4096
    s_lshl_b32 s37, s55, 10          ; wave*1024
    v_and_b32 v1, 63, v0             ; lane
    v_and_b32 v2, 31, v1             ; l%32
    v_lshrrev_b32 v3, 5, v1          ; half
    v_lshlrev_b32 v{L16}, 4, v1
    s_lshl_b32 s44, s41, 7
    s_lshl_b32 s45, s3, 6
    s_add_u32 s44, s44, s45          ; q0 = qblock*128 + w*64
    s_lshl_b32 s45, s44, 10          ; rb*32768
    v_add_u32 v5, s45, v{L16}        ; n1 offset
    v_add_u32 v{DKV}, s36, v{L16}
    v_lshlrev_b32 v6, 4, v0
    buffer_load_dwordx4 v[8:11], v6, s[32:35], 0 offen  ; T:mod
    v_lshrrev_b32 v12, 4, v1         ; lane/16
    v_and_b32 v13, 15, v1
    v_lshlrev_b32 v14, 2, v12
    v_xor_b32 v14, v14, v13
    s_lshl_b32 s45, s55, 2
    v_add_u32 v15, s45, v12          ; row 0..15
    v_lshlrev_b32 v18, 13, v15
    v_lshl_add_u32 v19, v14, 4, v18
    s_lshl_b32 s45, s40, 8
    v_add_u32 v19, s45, v19
    ''')
    def wq_items(c):
        slot = c % 5
        return [f"""
            s_add_u32 m0, s37, {WQL + slot*16384 + i*4096}
            s_mov_b32 s39, {(c*64 + i*16)*8192}
            buffer_load_dwordx4 v19, s[16:19], s39 offen lds  ; T:wq{c}
            """ for i in range(4)]
    def n1_items(c):
        out = []
        for qb in range(2):
            for s in range(4):
                r = qb*128 + 4*(c*4 + s)
                x = f'buffer_load_dwordx4 a[{r}:{r+3}], v5, s[12:15], s38 offen offset:{s*1024}  ; T:n1{c}'
                if s == 0:
                    x = f's_mov_b32 s38, {qb*32768 + c*4096}\n' + x
                out.append(x)
        return out
    def kv_items(t, isv, tag):
        base = (16384 if isv else 0) + (t % 4)*32768
        sr = 24 if isv else 20
        out = []
        for h in range(2):
            out.append(f"""
            s_add_u32 m0, s36, {base}
            s_mov_b32 s50, {t*16384}
            buffer_load_dwordx4 v{DKV}, s[{sr}:{sr+3}], s50 offen offset:{h*2048} lds  ; T:{tag}
            buffer_load_dwordx4 v{DKV}, s[{sr}:{sr+3}], s50 offen offset:{h*2048+1024} lds  ; T:{tag}
            """)
        return out
    for x in wq_items(0) + n1_items(0):
        a(x)
    a(f'''
    v_bfe_u32 v12, v1, 2, 2          ; r
    v_and_b32 v13, 3, v1             ; c4
    v_bfe_u32 v14, v1, 4, 1          ; nsub
    v_lshlrev_b32 v15, 3, v3
    v_add_u32 v15, v15, v12
    v_lshlrev_b32 v15, 8, v15
    v_lshl_add_u32 v15, v14, 5, v15
    v_lshl_add_u32 v15, v13, 3, v15
    v_add_u32 v15, {WQL}, v15
    ''')
    for blk in range(4):
        a(f'''
        v_xor_b32 v18, {blk}, v12
        v_lshl_add_u32 v{20+blk}, v18, 6, v15
        v_add_u32 v{24+blk}, 0x8000, v{20+blk}
        ''')
    vm.wait('mod')
    a(f'''
    s_cmp_lt_u32 s55, 2
    s_cselect_b32 s45, 0, 1.0
    s_mov_b32 s48, 0x3e0293ee        ; c = 128^-0.5 * log2(e)
    v_add_f32 v8, s45, v8
    v_add_f32 v9, s45, v9
    v_add_f32 v10, s45, v10
    v_add_f32 v11, s45, v11
    v_mul_f32 v8, s48, v8
    v_mul_f32 v9, s48, v9
    v_mul_f32 v10, s48, v10
    v_mul_f32 v11, s48, v11
    v_add_u32 v6, {MODL}, v6
    ds_write_b128 v6, v[8:11]
    v_lshlrev_b32 v18, 5, v3
    v_add_u32 v18, {MODL}, v18
    ''')
    vm.wait('wq0')
    a('''
    s_waitcnt lgkmcnt(0)
    s_barrier
    ''')
    FW = 28
    stamp(a, -2)
    def wq_reads(g):
        c, s = g // 4, g % 4
        slot = c % 5; buf = g & 1
        out = []
        vb, so = (20, slot) if slot < 2 else (24, slot - 2)
        for blk in range(4):
            for j in range(2):
                r = FW + buf*16 + blk*4 + j*2
                out.append(f'ds_read_b64_tr_b16 v[{r}:{r+1}], v{vb+blk} offset:{so*16384 + s*4096 + j*1024}')
        return out
    def mod_reads(g):
        b = MB + (g % 2) * 16
        return [f'ds_read_b128 v[{b}:{b+3}], v18 offset:{g*64}',
                f'ds_read_b128 v[{b+4}:{b+7}], v18 offset:{g*64+16}',
                f'ds_read_b128 v[{b+8}:{b+11}], v18 offset:{2048+g*64}',
                f'ds_read_b128 v[{b+12}:{b+15}], v18 offset:{2048+g*64+16}']
    def modulate(g):
        b = MB + (g % 2) * 16
        out = []
        for qb in range(2):
            for j in range(4):
                t = 60 + 2 * (j & 1)
                out += [f'v_accvgpr_read_b32 v{t}, a{qb*128 + 4*g + j}',
                        f'v_lshlrev_b32 v{t+1}, 16, v{t}',
                        f'v_and_b32 v{t}, 0xffff0000, v{t}',
                        f'v_fma_f32 v{t+1}, v{t+1}, v{b+8+2*j}, v{b+2*j}',
                        f'v_fma_f32 v{t}, v{t}, v{b+9+2*j}, v{b+1+2*j}',
                        f'v_cvt_pk_bf16_f32 v{HS + (g%4)*8 + qb*4 + j}, v{t+1}, v{t}']
        return out
    for x in mod_reads(0) + mod_reads(1) + wq_reads(0):
        a(x)
    for x in wq_items(1) + n1_items(1):
        a(x)
    vm.wait('n10')
    a('s_waitcnt lgkmcnt(12)')
    for x in merge_items(modulate(0), wq_items(2), 0, 190):
        a(x)
    a('s_waitcnt lgkmcnt(8)')
    for x in mod_reads(2):
        a(x)
    for x in merge_items(modulate(1), n1_items(2), 0, 190):
        a(x)
    stamp(a, -3)
    for g in range(32):
        c, s = g // 4, g % 4
        a('s_waitcnt lgkmcnt(0)')
        if s == 3 and c < 7:
            vm.wait(f'wq{c+1}')
            a('s_barrier')
        if (g + 2) % 4 == 0 and g + 2 < 32:
            vm.wait(f'n1{(g + 2) // 4}')
        if c + 3 < 8:
            ld = (wq_items(c + 3) + n1_items(c + 3))[s*3:s*3+3]
        else:
            ld = (kv_items(0, False, 'k0') + kv_items(1, False, 'k1') + kv_items(0, True, 'v0') + kv_items(1, True, 'v1'))[(g-20):(g-20)+1]
        items = []
        if g + 1 < 32:
            items += wq_reads(g + 1)
        if g + 3 < 32:
            items += mod_reads(g + 3)
        if g + 2 < 32:
            items += modulate(g + 2)
        items = merge_items(items, ld, 48, 230)
        mf = []
        for blk in range(4):
            for qb in range(2):
                def f(blk=blk, qb=qb):
                    fr = FW + (g & 1)*16 + blk*4
                    q = QT + qb*64 + blk*16
                    hx = HS + (g % 4)*8 + qb*4
                    cc = '0' if g == 0 else f'v[{q}:{q+15}]'
                    a(f'v_mfma_f32_32x32x16_bf16 v[{q}:{q+15}], v[{fr}:{fr+3}], v[{hx}:{hx+3}], {cc}')
                mf.append(f)
        weave(a, mf, items, tail_free=0)
    stamp(a, -4)
    QF = 128
    SB = [[64, 96], [128, 160]]
    PF = [192, 208]
    RING = 192
    RA = [4, 5]
    DKV2 = 33
    PFA = [7, 34]
    PFV = 35
    PFR = 40
    VM = [18, 20]; VL = [19, 21]; VMC = [22, 23]; VT0 = [24, 25]; VT1 = [26, 27]; VDF = [28, 29]; VAL = 30; VLS = [31, 32]
    RS = [76, 78]
    CA = 44
    TQ = 224
    NM = [224, 240]
    a(f'''
    s_lshl_b32 s45, s3, 14
    s_add_u32 s45, s45, {QST}
    v_add_u32 v6, s45, v{L16}
    ''')
    for qb in range(2):
        for s in range(8):
            blk, hf = s // 2, s % 2
            for j in range(4):
                r = QT + qb*64 + blk*16 + hf*8 + j*2
                a(f'v_cvt_pk_bf16_f32 v{TQ+4*s+j}, v{r}, v{r+1}')
        for i in range(32):
            a(f'v_accvgpr_write_b32 a{QF+qb*32+i}, v{TQ+i}')
    def zero_items():
        return [f'v_accvgpr_write_b32 a{i}, 0' for i in range(128)]
    def set_rows():
        a(f'''
        v_add_u32 v{VDF[0]}, s44, v2        ; q
        v_lshlrev_b32 v{VT0[0]}, 2, v3
        v_sub_u32 v{VDF[0]}, v{VDF[0]}, v{VT0[0]}    ; q - 4*half
        v_add_u32 v{VDF[1]}, 32, v{VDF[0]}
        s_lshr_b32 s53, s44, 6
        v_mov_b32 v{VL[0]}, 0
        v_mov_b32 v{VL[1]}, 0
        v_mov_b32 v{VM[0]}, 0xf149f2ca
        v_mov_b32 v{VM[1]}, 0xf149f2ca
        ''')
    set_rows()
    a(f"""
    s_lshl_b32 s59, s56, 1           ; 2p
    s_mov_b32 s47, 0
    s_mov_b32 s80, 0                 ; next
    s_mov_b32 s54, 0x41000000
    s_add_u32 s45, s59, 1
    s_bfm_b32 s45, s45, 0
    s_and_b32 s60, s45, 0x5555
    s_andn2_b32 s45, 0x7fff, s45
    s_or_b32 s60, s60, s45           ; KE
    s_add_u32 s45, s59, 2
    s_bfm_b32 s45, s45, 0
    s_and_b32 s61, s45, 0xaaaa
    s_andn2_b32 s45, 0xffff, s45
    s_or_b32 s61, s61, s45           ; VE
    s_add_u32 s62, s36, 65536
    s_mov_b32 s63, 32768
    s_add_u32 s64, s36, {65536 + 16384}
    s_mov_b32 s65, 32768
    s_or_b32 s60, s60, 0x18000
    s_or_b32 s61, s61, 0x10000
    v_add_u32 v{DKV2}, 16384, v{DKV}
    v_mov_b32 v{RA[1]}, v{L16}
    """)
    TL.touch_setup(a, PFA, PFV)
    def rd(j, base):
        out = []
        for h in range(2):
            r = RING + (j % 8)*8 + h*4
            if j < 8:
                off = h*8192 + j*1024
            else:
                n = j - 8; u, dbp = n // 2, n % 2
                off = 16384 + (dbp*2 + h)*4096 + u*1024
            out.append(f'ds_read_b128 a[{r}:{r+3}], v{base} offset:{off}')
        return out
    def grp(g, base):
        return rd(2*g, base) + rd(2*g + 1, base)
    def s_mf(S, first):
        mf = []
        for s in range(8):
            for kvb in range(2):
                for qb in range(2):
                    r = RING + s*8 + kvb*4
                    c = S[qb] + kvb*16
                    cc = ('0' if first else f'v[{NM[qb]}:{NM[qb]+15}]') if s == 0 else f'v[{c}:{c+15}]'
                    q = QF + qb*32 + 4*s
                    mf.append(f'v_mfma_f32_32x32x16_bf16 v[{c}:{c+15}], a[{r}:{r+3}], a[{q}:{q+3}], {cc}')
        return mf
    def pv_mf():
        mf = []
        for n in range(8):
            u, dbp = n // 2, n % 2
            for i in range(2):
                for qb in range(2):
                    db = dbp*2 + i
                    r = RING + n*8 + i*4
                    c = qb*64 + db*16
                    mf.append(f'v_mfma_f32_32x32x16_bf16 a[{c}:{c+15}], a[{r}:{r+3}], v[{PF[qb]+4*u}:{PF[qb]+4*u+3}], a[{c}:{c+15}]')
        return mf
    def mask_body(S):
        a(f"""
        s_lshl_b32 s51, s53, 6
        v_subrev_u32 v{VT0[0]}, s51, v{VDF[0]}
        v_subrev_u32 v{VT0[1]}, s51, v{VDF[1]}
        v_mov_b32 v{VT1[0]}, 0xf149f2ca
        """)
        for qb, kvb in ((0, 0), (1, 1)):
            for r in range(16):
                off = 32*kvb + 8*(r//4) + r % 4
                a(f"""
                v_cmp_gt_i32 vcc, {off}, v{VT0[qb]}
                v_cndmask_b32 v{S[qb]+kvb*16+r}, v{S[qb]+kvb*16+r}, v{VT1[0]}, vcc
                """)
        for r in range(16):
            a(f'v_mov_b32 v{S[0]+16+r}, v{VT1[0]}')
    def max_valu(S):
        v = []
        for qb in range(2):
            s = S[qb]; t0 = VT0[qb]
            v.append(f'v_max3_f32 v{t0}, v{s}, v{s+1}, v{s+2}')
            for i in range(3, 31, 2):
                v.append(f'v_max3_f32 v{t0}, v{t0}, v{s+i}, v{s+i+1}')
            v += [f'v_max_f32 v{t0}, v{t0}, v{s+31}',
                  f'v_cmp_lt_f32 s[{RS[qb]}:{RS[qb]+1}], s54, v{t0}']
        return v
    def adopt(S, qb, first):
        t0, t1 = VT0[qb], VT1[qb]
        a(f'''
        v_mov_b32 v{t1}, v{t0}
        v_permlane32_swap_b32 v{t0}, v{t1}
        ''')
        if first:
            a(f'''
            v_max_f32 v{t0}, v{t0}, v{t1}
            v_mov_b32 v{VM[qb]}, v{t0}
            ''')
        else:
            a(f'''
            v_max3_f32 v{t0}, v{t0}, v{t1}, 0
            v_add_f32 v{VM[qb]}, v{VM[qb]}, v{t0}
            ''')
        a(f'v_sub_f32 v{t1}, 0, v{VM[qb]}')
        for i in range(16):
            a(f'v_mov_b32 v{NM[qb]+i}, v{t1}')
        for i in range(32):
            a(f'v_sub_f32 v{S[qb]+i}, v{S[qb]+i}, v{t0}')
        a(f's_mov_b64 s[{RS[qb]}:{RS[qb]+1}], 0')
    def first_tile(S, items, base):
        for x in grp(0, base) + grp(1, base):
            a(x)
        mf = s_mf(S, True)
        spec = {}; mem = {}
        for g in range(2):
            for k, x in enumerate(grp(g + 2, base)):
                mem[8*g + k] = [x]
        spec[7] = ['s_waitcnt lgkmcnt(4)']; spec[15] = ['s_waitcnt lgkmcnt(4)']; spec[23] = ['s_waitcnt lgkmcnt(0)']
        nlead = min(len(items), 24)
        for x in items[:nlead]:
            a(x)
        a('s_waitcnt lgkmcnt(4)')
        slots(a, mf, spec, [], mem, [VQ(items[nlead:])])
        lnm = a.newlabel('AT_NOMASK')
        a(f"""
        s_cmp_lg_u32 s80, s53
        s_cbranch_scc1 {lnm}
        """)
        mask_body(S)
        a.label(lnm)
        for x in max_valu(S):
            if not x.startswith('v_cmp'):
                a(x)
        for qb in range(2):
            adopt(S, qb, True)
    def rescale_code(Sc, Sn):
        for qb in range(2):
            lnr = a.newlabel('AT_NORS')
            a(f"""
            s_cmp_eq_u64 s[{RS[qb]}:{RS[qb]+1}], 0
            s_cbranch_scc1 {lnr}
            """)
            adopt(Sc, qb, False)
            a(f"""
            v_sub_f32 v{VAL}, 0, v{VT0[qb]}
            v_exp_f32 v{VAL}, v{VAL}
            v_mul_f32 v{VL[qb]}, v{VL[qb]}, v{VAL}
            """)
            T = Sn[0]
            for i0 in range(0, 64, 16):
                for i in range(16):
                    a(f'v_accvgpr_read_b32 v{T+i}, a{qb*64+i0+i}')
                for i in range(16):
                    a(f'v_mul_f32 v{T+i}, v{T+i}, v{VAL}')
                for i in range(16):
                    a(f'v_accvgpr_write_b32 a{qb*64+i0+i}, v{T+i}')
            a.label(lnr)
    def exp_valu(S):
        out = []
        for u in range(4):
            for qb in range(2):
                s = S[qb] + u*8
                for j in range(8):
                    out.append(f'v_exp_f32 v{s+j}, v{s+j}')
                for j in range(4):
                    out.append(f'v_cvt_pk_bf16_f32 v{PF[qb]+4*u+j}, v{s+2*j}, v{s+2*j+1}')
        return out
    def sum_valu(S):
        out = []
        for u in range(4):
            for qb in range(2):
                for j in range(8):
                    out.append(f'v_add_f32 v{VL[qb]}, v{VL[qb]}, v{S[qb]+u*8+j}')
        return out
    def ctx_addr():
        a(f'''
        s_lshl_b32 s45, s44, 13
        s_lshl_b32 s50, s40, 13
        s_add_u32 s45, s45, s50
        v_add_u32 v{CA}, s45, v{L16}
        v_add_u32 v{CA+1}, 4096, v{CA}
        v_add_u32 v{CA+2}, 0x40000, v{CA}
        v_add_u32 v{CA+3}, 0x40000, v{CA+1}
        ''')
    def store_items(qb, db, R, T):
        out = []
        for gp in range(2):
            c = R + gp*8
            t = T + gp*4
            for j in range(4):
                out.append(f'v_cvt_pk_bf16_f32 v{t+j}, v{c+2*j}, v{c+2*j+1}')
            va = CA + qb*2 + (0 if db < 2 else 1)
            out.append(f'buffer_store_dwordx4 v[{t}:{t+3}], v{va}, s[28:31], 0 offen offset:{(db%2)*2048 + gp*1024} sc1 ; T:ctx')
        return out
    def store_regs(qb, db, R, T):
        for x in store_items(qb, db, R, T):
            a(x)
    def dctl():
        out = []
        for (E, m, o, d) in ((60, 62, 63, 90), (61, 64, 65, 93)):
            sr = 20 if E == 60 else 24
            out += [f's_cmp_eq_u32 s47, {15 if E == 60 else 16}',
                    f's_cselect_b64 s[{sr}:{sr+1}], s[68:69], s[{sr}:{sr+1}]',
                    f's_cselect_b32 s{o}, {0 if E == 60 else 65536}, s{o}',
                    f's_bitcmp1_b32 s{E}, s47',
                    f's_cselect_b32 s{d}, s{m}, 0x28000',
                    f's_cselect_b32 s{d+2}, s{o}, 0x80000',
                    f's_cselect_b32 s96, 0x8000, 0',
                    f's_add_u32 s{o}, s{o}, s96',
                    f's_lshl_b32 s96, s96, 1',
                    f's_xor_b32 s{m}, s{m}, s96',
                    f's_add_u32 s{d+1}, s{d}, 32768']
        return out
    def nctl():
        return ['s_mov_b32 s57, s80',
                's_add_u32 s52, s59, 2',
                's_cmp_ge_u32 s47, s52',
                's_addc_u32 s80, s57, 1',
                's_and_b32 s50, s80, 3',
                's_cmp_gt_u32 s80, s53',
                's_cselect_b64 s[98:99], -1, 0',
                's_cmp_eq_u32 s47, s66',
                f's_cselect_b32 s81, s67, {TL.OOB}']
    def dma(k):
        t, i = k // 4, k % 4
        sr = 20 if t < 2 else 24
        d = 90 + 3*(t // 2)
        m = f's_mov_b32 m0, s{d + t % 2}' if i == 0 else None
        return m, f'buffer_load_dwordx4 v{DKV2 if t % 2 else DKV}, s[{sr}:{sr+3}], s{d+2} offen offset:{i*1024} lds'
    FLST = f'buffer_store_dword v{DKV2}, off, s[72:75], s81 sc1'
    def pf_loads():
        return [f'buffer_load_dword v{PFR}, v{PFV}, s[72:75], s70 offen',
                f'buffer_load_dword v{PFR-4}, v{PFV}, s[72:75], s71 offen']
    def pf_adv():
        return [f'v_readlane_b32 s70, v{PFA[0]}, s47', f'v_readlane_b32 s71, v{PFA[1]}, s47']
    NB0 = int(os.environ.get('NB0', '6'))
    BST = int(os.environ.get('BST', '2'))
    def place_dma(spec, mem, ks, slot_list):
        for k, sl in zip(ks, slot_list):
            m, ld = dma(k)
            if m:
                if any(x.startswith('buffer_') for x in mem.get(sl - 1, [])):
                    spec.setdefault(sl, []).append(m)
                else:
                    spec.setdefault(sl - 1, []).append(m)
            mem.setdefault(sl, []).append(ld)
    vm.wait('k0')
    a('''
    s_waitcnt lgkmcnt(0)
    s_barrier
    ''')
    a('''
    s_cmp_ge_u32 s55, 2
    s_cbranch_scc1 AT_NOSTASH
    ''')
    for i in range(16):
        a(f'ds_write_b128 v6, a[{QF+4*i}:{QF+4*i+3}] offset:{i*1024}')
    a('s_waitcnt lgkmcnt(0)')
    a.label('AT_NOSTASH')
    first_tile(SB[0], zero_items(), RA[1])
    for x in dctl():
        a(x)
    a('s_waitcnt vmcnt(0)')
    if 'ST' in EXP:
        a('v_mov_b32 v48, 0')
        for i in range(5):
            a(f'v_writelane_b32 v48, s{85+i}, {i}')
    stamp(a, 5)
    a('s_branch AT_BAR1')
    def full(p):
        Sc, Sn = SB[p], SB[p ^ 1]
        a.raw(f'AT_FULL{p}:')
        mark0 = len(a.lines)
        mf = s_mf(Sn, False) + pv_mf()
        spec = {}; mem = {}; post = {}; pre = {}
        for g in range(6):
            for k, x in enumerate(grp(g + 2, RA[p] if g + 2 < 4 else RA[p ^ 1])):
                mem.setdefault(8*g + k, []).append(x)
        for g in range(1, 7):
            spec[8*g - 1] = ['s_waitcnt lgkmcnt(4)']
        sl = [1 + BST*j for j in range(16 - NB0)]
        sl = [s + 1 if (s % 8) == 0 else s for s in sl]
        place_dma(spec, mem, range(NB0, 16), sl)
        lastb = sl[-1]
        pfs = max(lastb + 2, 44)
        mem.setdefault(pfs, []).append(pf_loads()[0]); mem.setdefault(pfs + 1, []).append(pf_loads()[1])
        spec[32] = ['s_cmp_eq_u32 s80, s53']
        def mk():
            a(f's_cbranch_scc1 AT_MASK{p}')
            a.raw(f'AT_MRET{p}:')
            return 10
        pre[32] = mk
        g0, g1 = grp(0, RA[p ^ 1]), grp(1, RA[p ^ 1])
        def bar():
            a(f'v_lshl_add_u32 v{RA[p^1]}, s50, 15, v{L16}')
            stamp(a, 's_lshl_b32 s84, s47, 1\ns_add_u32 s84, s84, 8')
            a(f'''
            s_waitcnt vmcnt(2) lgkmcnt(0)
            s_barrier
            ''')
            stamp(a, 's_add_u32 s84, s84, 1')
            a(g0[0]); a(g0[1])
            a(FLST)
        post[55] = bar
        for k, x in enumerate(g0[2:] + g1):
            mem.setdefault(56 + k, []).append(x)
        bsl = [57 + j for j in range(NB0)]
        place_dma(spec, mem, range(NB0), bsl)
        spec.setdefault(63, []).append('s_waitcnt lgkmcnt(4)')
        sq = [(lastb + 1, 31, ['s_add_u32 s47, s47, 1'] + dctl()[:11]), (33, 54, dctl()[11:] + nctl())]
        caps = {55: 8, 62: 16, 63: 0}
        done = set()
        q1 = VQ(exp_valu(Sc), marks=done)
        q2 = VQ(max_valu(Sn), earliest=34)
        q3 = VQ(sum_valu(Sc), needs=done)
        q4 = VQ(pf_adv(), earliest=pfs + 2)
        slots(a, mf, spec, sq, mem, [q1, q2, q4, q3], pre=pre, post=post, caps=caps, cap=int(os.environ.get('CAP', '20')))
        check_p(a.lines[mark0:])
        a(f'''
        s_or_b64 s[98:99], s[98:99], s[{RS[0]}:{RS[0]+1}]
        s_or_b64 s[98:99], s[98:99], s[{RS[1]}:{RS[1]+1}]
        s_cbranch_scc1 AT_EXC{p^1}
        ''')
    full(0)
    full(1)
    a('s_branch AT_FULL0')
    def other(p):
        Sc, Sn = SB[p], SB[p ^ 1]
        a.label(f'AT_MASK{p}')
        a.nop(16)
        mask_body(Sn)
        a.nop(4)
        a(f's_branch AT_MRET{p}')
        a.label(f'AT_EXC{p}')
        a.nop(16)
        a(f"""
        s_cmp_gt_u32 s57, s53
        s_cbranch_scc1 AT_IDLE{p}
        """)
        rescale_code(Sc, Sn)
        a.nop(8)
        a(f"""
        s_cmp_le_u32 s80, s53
        s_cbranch_scc1 AT_FULL{p}
        """)
        mark0 = len(a.lines)
        a('s_waitcnt lgkmcnt(0)')
        for x in grp(4, RA[p ^ 1]) + grp(5, RA[p ^ 1]):
            a(x)
        ex = exp_valu(Sc)
        done = set()
        q1 = VQ(ex, marks=done)
        k = NB0
        for j in range(24):
            a(q1.pop())
            if j % 6 == 5 and k < 16:
                m, ld = dma(k); k += 1
                if m: a(m)
                a('s_nop 0')
                a(ld)
        a('s_waitcnt lgkmcnt(4)')
        mf = pv_mf()
        spec = {}; mem = {}
        for g in range(2):
            for kk, x in enumerate(grp(g + 6, RA[p ^ 1])):
                mem.setdefault(8*g + kk, []).append(x)
        spec[7] = ['s_waitcnt lgkmcnt(4)']; spec[15] = ['s_waitcnt lgkmcnt(4)']; spec[23] = ['s_waitcnt lgkmcnt(0)']
        sl = [1 + 2*j for j in range(16 - k)]
        place_dma(spec, mem, range(k, 16), sl)
        lastb = sl[-1] if sl else 0
        q3 = VQ(sum_valu(Sc), needs=done)
        slots(a, mf, spec, [], mem, [q1, q3], cap=32)
        check_p(a.lines[mark0:])
        a(f's_branch AT_POST{p}')
        a.label(f'AT_IDLE{p}')
        for k in range(NB0, 16):
            m, ld = dma(k)
            if m: a(m)
            a(ld)
        a.label(f'AT_POST{p}')
        for x in pf_loads() + ['s_add_u32 s47, s47, 1'] + pf_adv() + dctl():
            a(x)
        if p == 0:
            a(f"""
            s_cmp_eq_u32 s47, 17
            s_cbranch_scc1 AT_MERGE
            """)
        else:
            a(f"""
            s_add_u32 s52, s59, 2
            s_cmp_lg_u32 s47, s52
            s_cbranch_scc1 AT_BAR1
            s_cmp_lt_u32 s55, 2
            s_cbranch_scc1 AT_BAR1
            s_waitcnt lgkmcnt(0)
            """)
            for i in range(16):
                a(f'ds_read_b128 a[{QF+4*i}:{QF+4*i+3}], v6 offset:{i*1024}')
            for qb in range(2):
                a(f'''
                v_mov_b32 v{VT0[qb]}, v{VL[qb]}
                v_permlane32_swap_b32 v{VL[qb]}, v{VT0[qb]}
                v_add_f32 v{VL[qb]}, v{VL[qb]}, v{VT0[qb]}
                v_rcp_f32 v{VLS[qb]}, v{VL[qb]}
                ''')
            ctx_addr()
            st = []
            for qb in range(2):
                for db in range(4):
                    R = Sc[0] + (db % 2) * 16
                    T = Sc[1] + ((qb*4 + db) % 4) * 8
                    for i in range(16):
                        st.append(f'v_accvgpr_read_b32 v{R+i}, a{qb*64+db*16+i}')
                    for i in range(16):
                        st.append(f'v_mul_f32 v{R+i}, v{R+i}, v{VLS[qb]}')
                    st += store_items(qb, db, R, T)
                    for i in range(16):
                        st.append(f'v_accvgpr_write_b32 a{qb*64+db*16+i}, 0')
            lsw2 = a.newlabel('AT_SW2')
            a(f"""
            s_sub_u32 s44, 15, s56
            s_lshl_b32 s44, s44, 7
            s_lshl_b32 s45, s3, 6
            s_add_u32 s44, s44, s45
            """)
            set_rows()
            a(f"""
            s_add_u32 s80, s59, 3
            s_and_b32 s50, s80, 3
            v_lshl_add_u32 v{RA[p]}, s50, 15, v{L16}
            s_waitcnt vmcnt(2) lgkmcnt(0)
            s_cmp_gt_u32 s80, s53
            s_cbranch_scc1 {lsw2}
            """)
            first_tile(Sn, st, RA[p])
            a(f's_branch AT_BARW')
            a.label(lsw2)
            for x in st:
                a(x)
            a(f's_branch AT_BARW')
        a.label(f'AT_BAR{p}')
        a('s_waitcnt vmcnt(2)')
        if p == 1:
            a.label('AT_BARW')
        for x in nctl():
            a(x)
        a(f'v_lshl_add_u32 v{RA[p^1]}, s50, 15, v{L16}')
        stamp(a, 's_lshl_b32 s84, s47, 1\ns_add_u32 s84, s84, 8')
        a(f'''
        s_waitcnt lgkmcnt(0)
        s_barrier
        ''')
        stamp(a, 's_add_u32 s84, s84, 1')
        for x in grp(0, RA[p ^ 1]) + grp(1, RA[p ^ 1]):
            a(x)
        a(FLST)
        for k in range(NB0):
            m, ld = dma(k)
            if m: a(m)
            a(ld)
        a(f'''
        s_waitcnt lgkmcnt(4)
        s_branch AT_EXC{p^1}
        ''')
    other(0)
    other(1)
    a.label('AT_MERGE')
    stamp(a, 6)
    if 'ST' in EXP:
        a('''
        s_lshl_b32 s45, s2, 10
        s_lshl_b32 s50, s55, 8
        s_add_u32 s45, s45, s50
        s_add_u32 s45, s45, 0x7100000
        v_lshlrev_b32 v49, 2, v1
        buffer_store_dword v48, v49, s[72:75], s45 offen
        ''')
    TL.st(a, 0)
    for qb in range(2):
        a(f'''
        v_mov_b32 v{VT0[qb]}, v{VL[qb]}
        v_permlane32_swap_b32 v{VL[qb]}, v{VT0[qb]}
        v_add_f32 v{VL[qb]}, v{VL[qb]}, v{VT0[qb]}
        ''')
    a(f'''
    s_sub_u32 s64, s64, s36          ; q3 base
    s_sub_u32 s62, s62, s36          ; q0 base
    s_lshl_b32 s45, s3, 15
    s_add_u32 s45, s45, s64
    s_lshl_b32 s50, s3, 14
    s_add_u32 s50, s50, 0x20000
    s_cmp_lt_u32 s55, 2
    s_cselect_b32 s52, s45, s50
    s_cselect_b32 s53, s50, s45
    v_add_u32 v8, s52, v{L16}
    v_add_u32 v10, s53, v{L16}
    s_xor_b32 s45, s64, 0x10000
    s_add_u32 s45, s45, s36
    v_add_u32 v9, s45, v{L16}        ; own m/l (+3072)
    v_xor_b32 v11, 8192, v9          ; partner m/l
    ''')
    T = TL.pre(a, DKV2)
    a('''
    s_barrier
    s_cmp_ge_u32 s55, 2
    s_cbranch_scc1 AT_MG1
    ''')
    MO = 64
    OW = 128
    snap = T.snap()
    def merge(keep, send, tag):
        T.restore(snap)
        TL.poll_l(a, T, DKV2)
        for qb in range(2):
            for k in range(8):
                r = qb*64 + send*16 + k*4
                a(f'ds_write_b128 v8, a[{r}:{r+3}] offset:{(qb*8+k)*1024}')
        a(f'''
        ds_write_b128 v9, v[18:21] offset:3072
        s_waitcnt lgkmcnt(0)
        s_barrier
        ds_read_b128 v[24:27], v11 offset:3072
        ''')
        for k in range(8):
            a(f'ds_read_b128 v[{MO+k*4}:{MO+k*4+3}], v10 offset:{k*1024}')
        ctx_addr()
        TL.early(a, T, tag)
        for qb in range(2):
            for i in range(32):
                a(f'v_accvgpr_read_b32 v{OW+qb*32+i}, a{qb*64+keep*16+i}')
        a('s_waitcnt lgkmcnt(8)')
        for k in range(8, 16):
            a(f'ds_read_b128 v[{MO+k*4}:{MO+k*4+3}], v10 offset:{k*1024}')
        for qb in range(2):
            pm, pl = 24 + 2*qb, 25 + 2*qb
            a(f'''
            v_max_f32 v{VMC[qb]}, v{VM[qb]}, v{pm}
            v_sub_f32 v{VM[qb]}, v{VM[qb]}, v{VMC[qb]}
            v_sub_f32 v{pm}, v{pm}, v{VMC[qb]}
            v_exp_f32 v{VM[qb]}, v{VM[qb]}
            v_exp_f32 v{pm}, v{pm}
            v_mul_f32 v{VL[qb]}, v{VL[qb]}, v{VM[qb]}
            v_fma_f32 v{VL[qb]}, v{pl}, v{pm}, v{VL[qb]}
            v_rcp_f32 v{VL[qb]}, v{VL[qb]}
            v_mul_f32 v{VM[qb]}, v{VM[qb]}, v{VL[qb]}
            v_mul_f32 v{pm}, v{pm}, v{VL[qb]}
            ''')
        for qb in range(2):
            pm = 24 + 2*qb
            a(f's_waitcnt lgkmcnt({8 if qb == 0 else 0})')
            for i in range(32):
                r = OW + qb*32 + i
                a(f'''
                v_mul_f32 v{r}, v{r}, v{VM[qb]}
                v_fma_f32 v{r}, v{MO+qb*32+i}, v{pm}, v{r}
                ''')
            for d in range(2):
                store_regs(qb, keep + d, OW + qb*32 + d*16, 192 + (qb*2 + d) * 8)
        T.ddone = len(a.ds_seq)
    merge(0, 2, 'a')
    a('s_branch AT_END2')
    a.label('AT_MG1')
    merge(2, 0, 'b')
    a.label('AT_END2')
    TL.main(a, T)
    a.label('AT_END')
    a('s_endpgm')
    TL.ool(a)
    return dict(name=name, grid=256, block=256, lds=163840, vgpr=512, accum=256)
```

```python
from k_common import *
import os
EXP = os.environ.get('KV_EXP', '')

def wave_sum(a, v, t):
    a(f'''
    v_add_f32_dpp v{t}, v{v}, v{v} quad_perm:[1,0,3,2] row_mask:0xf bank_mask:0xf
    v_add_f32_dpp v{v}, v{t}, v{t} quad_perm:[2,3,0,1] row_mask:0xf bank_mask:0xf
    v_add_f32_dpp v{t}, v{v}, v{v} row_half_mirror row_mask:0xf bank_mask:0xf
    v_add_f32_dpp v{v}, v{t}, v{t} row_mirror row_mask:0xf bank_mask:0xf
    v_mov_b32 v{t}, v{v}
    v_permlane16_swap_b32 v{v}, v{t}
    v_add_f32 v{v}, v{v}, v{t}
    v_mov_b32 v{t}, v{v}
    v_permlane32_swap_b32 v{v}, v{t}
    v_add_f32 v{v}, v{v}, v{t}
    ''')

STK = os.environ.get('STK', '')
def kst(a, idx):
    if STK != 'KV': return
    a(f"""
    s_memtime s[88:89]
    s_waitcnt lgkmcnt(0)
    v_writelane_b32 v250, s88, {idx}
    """)
def kst_out(a):
    if STK != 'KV': return
    a('s_waitcnt vmcnt(0)')
    kst(a, 63)
    srd(a, 72, 10, 11, 1 << 20, 0x7000000)
    lb = a.newlabel('KV_NOST')
    a("""
    s_lshl_b32 s45, s2, 10
    s_and_b32 s50, s3, 3
    s_lshl_b32 s50, s50, 8
    s_add_u32 s45, s45, s50
    v_and_b32 v1, 63, v0
    v_lshlrev_b32 v1, 2, v1
    s_cmp_ge_u32 s3, 4
    s_cbranch_scc1 %s
    buffer_store_dword v250, v1, s[72:75], s45 offen
    """ % lb)
    a.label(lb)

def gen_kv(a):
    name = 'kv_kernel'
    RING = 131072
    SCR = RING + 64
    def touch(r, va, vb, sg=42):
        la, lb = a.newlabel('KV_PA'), a.newlabel('KV_PB')
        a(f'''
        s_mul_i32 s90, s{sg}, 1366
        s_lshr_b32 s90, s90, 16          ; j
        s_mul_i32 s91, s90, 48
        s_sub_u32 s91, s{sg}, s91        ; q
        s_cmp_ge_u32 s91, 32
        s_cbranch_scc1 {la}
        s_lshl_b32 s91, s91, 16          ; q*64 rows
        s_lshl_b32 s90, s90, 7
        s_add_u32 s91, s91, s90
        buffer_load_dword v248, v{va}, s[16:19], s91 offen
        s_branch {lb}
        ''')
        a.label(la)
        a(f'''
        s_sub_u32 s91, s91, 32
        s_lshl_b32 s91, s91, 15          ; 4 rows * 8192
        s_lshl_b32 s90, s90, 19          ; 64 rows * 8192
        s_add_u32 s91, s91, s90
        buffer_load_dword v248, v{vb}, s[20:23], s91 offen
        ''')
        a.label(lb)
    kernel_header(a, name)
    if 'EMPTY' in EXP:
        a('s_endpgm')
    kst(a, 0)
    a(f'''
    s_load_dwordx2 s[4:5], s[0:1], {ARG['A_c_kv']}
    s_load_dwordx2 s[6:7], s[0:1], {ARG['A_w_uk']}
    s_load_dwordx2 s[8:9], s[0:1], {ARG['A_w_uv']}
    s_load_dwordx2 s[10:11], s[0:1], {ARG['ws']}
    s_load_dwordx2 s[12:13], s[0:1], {ARG['c']}
    s_load_dwordx2 s[14:15], s[0:1], {ARG['w_mod']}
    s_load_dwordx2 s[60:61], s[0:1], {ARG['A_x']}
    s_load_dwordx2 s[62:63], s[0:1], {ARG['A_w_o']}
    s_load_dwordx2 s[58:59], s[0:1], {ARG['B_w_out']}
    ''')
    a('''
    v_lshrrev_b32 v1, 6, v0
    v_readfirstlane_b32 s3, v1
    s_cmp_eq_u32 s3, 0
    s_cbranch_scc1 KV_PFX
    s_cmp_ge_u32 s2, 256
    s_cbranch_scc1 KV_PFX
    ''')
    if not os.environ.get('NOPF'):
        a('''
        s_cmp_ge_u32 s3, 4
        s_cbranch_scc1 KV_PFY
        ''')
        code_pf(a, None, 'attn_kernel', 3, 3, 18000, sb=36, vt=252, woff=1)
        a.label('KV_PFY')
    if os.environ.get('PFK', '1') == '1':
        a('''
        s_getreg_b32 s40, hwreg(HW_REG_XCC_ID, 0, 4)
        s_getreg_b32 s41, hwreg(HW_REG_HW_ID, 13, 2)
        s_and_b32 s40, s40, 7
        s_lshr_b32 s42, s2, 6
        s_lshl_b32 s42, s42, 2
        s_add_u32 s42, s42, s41          ; portion 0..15
        s_mul_i32 s42, s42, 7
        s_add_u32 s42, s42, s3
        s_sub_u32 s42, s42, 1            ; g (round 0)
        v_and_b32 v1, 63, v0
        v_lshlrev_b32 v2, 10, v1         ; A: lane*1024
        v_lshrrev_b32 v3, 4, v1
        v_lshlrev_b32 v3, 13, v3
        v_and_b32 v4, 15, v1
        v_lshl_add_u32 v3, v4, 7, v3     ; B: (lane/16)*8192 + (lane%16)*128
        s_and_b32 s41, s40, 3
        s_lshl_b32 s41, s41, 11
        v_add_u32 v3, s41, v3
        s_waitcnt lgkmcnt(0)
        s_cmp_lt_u32 s40, 4
        s_cselect_b32 s20, s6, s8
        s_cselect_b32 s21, s7, s9
        s_mov_b32 s22, 4194304
        s_mov_b32 s23, 0x00020000
        ''')
        srd(a, 16, 4, 5, 2048 * 512 * 2)
        a('''
        s_cmp_ge_u32 s42, 96
        s_cbranch_scc1 KV_PFX
        ''')
        touch(0, 2, 3)
    a.label('KV_PFX')
    dispense(a, 256, RING, 'KV')
    if 'DISP' in EXP:
        a('s_endpgm')
    kst(a, 1)
    a(f'''
    v_lshrrev_b32 v1, 6, v0
    s_waitcnt lgkmcnt(0)
    v_readfirstlane_b32 s3, v1
    s_cmp_ge_u32 s2, 256
    s_cbranch_scc1 KV_END
    s_and_b32 s29, s2, 7
    s_lshr_b32 s30, s2, 3
    s_and_b32 s31, s30, 3
    s_lshl_b32 s29, s29, 2
    s_add_u32 s29, s29, s31          ; ntile 0..31
    s_lshr_b32 s30, s30, 2           ; mtile 0..7
    ''')
    srd(a, 16, 4, 5, 2048 * 512 * 2)
    a(f'''
    s_cmp_lt_u32 s29, 16
    s_cselect_b32 s20, s6, s8
    s_cselect_b32 s21, s7, s9
    s_mov_b32 s22, 4194304
    s_mov_b32 s23, 0x00020000
    s_and_b32 s31, s29, 15
    s_cmp_lt_u32 s29, 16
    s_mov_b32 s32, {WS_K}
    s_mov_b32 s33, {WS_VT}
    s_cselect_b32 s32, s32, s33
    s_lshl_b32 s33, s31, 20
    s_add_u32 s32, s32, s33
    s_add_u32 s24, s10, s32
    s_addc_u32 s25, s11, 0
    s_mov_b32 s26, 1048576
    s_mov_b32 s27, 0x00020000
    ''')
    srd(a, 64, 60, 61, 2048 * 512 * 2)
    srd(a, 68, 10, 11, 2048 * 512 * 2, WS_N1)
    srd(a, 72, 12, 13, 1024)
    srd(a, 76, 14, 15, 512 * 3072 * 2)
    srd(a, 80, 10, 11, 3072 * 4, WS_MOD)
    srd(a, 84, 10, 11, 0x50000, WS_CNT)
    a('''
    v_mov_b32 v2, 0
    v_mov_b32 v3, 0
    v_mov_b32 v4, 0
    v_mov_b32 v5, 0
    v_lshlrev_b32 v6, 4, v0
    v_cmp_gt_u32 vcc, 32, v0
    s_lshl_b32 s34, s2, 8
    s_lshl_b32 s35, s2, 9
    s_add_u32 s35, s35, 0x20000
    s_mov_b64 exec, 1
    buffer_store_dword v2, v2, s[84:87], s34 offen
    s_mov_b64 exec, vcc
    buffer_store_dwordx4 v[2:5], v6, s[84:87], s35 offen sc0 sc1
    v_cmp_gt_u32 vcc, 16, v0
    s_lshl_b32 s35, s2, 8
    s_add_u32 s35, s35, 0x40000
    s_mov_b64 exec, vcc
    buffer_store_dwordx4 v[2:5], v6, s[84:87], s35 offen sc0 sc1
    s_mov_b64 exec, -1
    ''')
    kst(a, 30)
    SX, SO, SC, SW = 200, 204, 212, 216
    a('v_and_b32 v1, 63, v0             ; lane')
    a('''
    v_lshrrev_b32 v2, 2, v1          ; l/4
    v_lshrrev_b32 v3, 2, v2          ; (row>>2) (row%16)
    v_and_b32 v3, 3, v3
    v_and_b32 v4, 3, v1
    v_xor_b32 v3, v3, v4             ; chunk
    s_lshl_b32 s34, s3, 4
    s_lshl_b32 s35, s30, 8           ; m0
    s_add_u32 s34, s34, s35
    v_add_u32 v2, s34, v2
    v_lshlrev_b32 v2, 10, v2
    v_lshl_add_u32 v10, v3, 4, v2
    v_lshrrev_b32 v2, 5, v1          ; l/32
    s_lshl_b32 s34, s3, 1
    v_add_u32 v2, s34, v2
    v_and_b32 v3, 3, v2
    v_lshlrev_b32 v3, 2, v3
    v_and_b32 v4, 31, v1
    v_xor_b32 v3, v3, v4
    v_lshlrev_b32 v2, 13, v2
    v_lshl_add_u32 v11, v3, 4, v2
    s_lshl_b32 s34, s31, 9
    v_add_u32 v11, s34, v11
    s_lshl_b32 s36, s3, 10
    s_lshr_b32 s37, s3, 1            ; wm
    s_and_b32 s38, s3, 1             ; wn
    ''')
    def issue(t):
        slot = t % 4
        for i in range(2):
            a(f'''
            s_add_u32 m0, s36, {slot*32768 + i*8192}
            s_mov_b32 s39, {t*64 + i*131072}
            buffer_load_dwordx4 v10, s[16:19], s39 offen lds
            ''')
        for i in range(2):
            a(f'''
            s_add_u32 m0, s36, {slot*32768 + 16384 + i*8192}
            s_mov_b32 s39, {(t*32 + i*16)*8192}
            buffer_load_dwordx4 v11, s[20:23], s39 offen lds
            ''')
    kst(a, 31)
    for t in range(3):
        issue(t)
    kst(a, 32)
    srd(a, 40, 62, 63, 4096 * 512 * 2)
    srd(a, 44, 10, 11, 4096 * 512 * 2, WS_WO)
    srd(a, 48, 10, 11, 688 * 512 * 2, WS_WOUT)
    a(f'''
    s_lshl_b32 s34, s2, 3
    s_add_u32 s34, s34, s3
    s_lshl_b32 s34, s34, 10
    v_lshl_add_u32 v2, v1, 4, s34    ; x offset
    buffer_load_dwordx4 v[{SX}:{SX+3}], v2, s[64:67], 0 offen
    s_lshl_b32 s34, s2, 14
    v_lshl_add_u32 v2, v0, 4, s34
    v_add_u32 v3, 8192, v2
    buffer_load_dwordx4 v[{SO}:{SO+3}], v2, s[40:43], 0 offen
    buffer_load_dwordx4 v[{SO+4}:{SO+7}], v3, s[40:43], 0 offen
    v_lshrrev_b32 v4, 3, v0
    v_lshlrev_b32 v5, 4, v4
    buffer_load_dwordx4 v[{SC}:{SC+3}], v5, s[72:75], 0 offen
    v_mul_u32_u24 v4, {8*6144}, v4
    v_and_b32 v5, 7, v0
    v_lshl_add_u32 v4, v5, 4, v4
    s_lshl_b32 s34, s2, 7
    v_add_u32 v4, s34, v4            ; wmod offset (row 8*(tid/8), col wg*64 + (tid%8)*8)
    s_sub_u32 s34, s2, 48
    s_lshl_b32 s34, s34, 14
    v_lshl_add_u32 v5, v0, 4, s34
    s_cmp_lt_u32 s2, 48
    s_cselect_b32 s52, s76, s58
    s_cselect_b32 s53, s77, s59
    s_cselect_b32 s54, s78, s50
    s_mov_b32 s55, 0x00020000
    s_mov_b32 s56, 8192
    s_cselect_b32 s56, 6144, s56
    s_cselect_b32 s78, s78, 0
    s_cselect_b64 vcc, -1, 0
    v_cndmask_b32 v4, v5, v4, vcc
    buffer_load_dwordx4 v[{SW}:{SW+3}], v4, s[52:55], 0 offen
    buffer_load_dwordx4 v[{SW+4}:{SW+7}], v4, s[52:55], s56 offen
    ''')
    for i in range(2, 8):
        a(f'''
        s_mov_b32 s34, {i*6144}
        buffer_load_dwordx4 v[{SW+4*i}:{SW+4*i+3}], v4, s[76:79], s34 offen
        ''')
    NSIDE = 12
    PFK = os.environ.get('PFK', '1') == '1'
    if PFK:
        NSIDE = 13
        a('''
        v_lshlrev_b32 v249, 10, v1       ; A: lane*1024
        v_lshrrev_b32 v251, 4, v1
        v_lshlrev_b32 v251, 13, v251
        v_and_b32 v4, 15, v1
        v_lshl_add_u32 v251, v4, 7, v251
        s_and_b32 s34, s2, 3
        s_lshl_b32 s34, s34, 11
        v_add_u32 v251, s34, v251
        s_and_b32 s57, s2, 0xf8          ; idx*8
        s_add_u32 s57, s57, s3           ; u
        s_min_u32 s57, s57, 143
        s_add_u32 s57, s57, 96
        ''')
        touch(1, 249, 251, 57)
        a('s_add_u32 s57, s57, 144')
    a('''
    v_and_b32 v2, 31, v1
    v_lshrrev_b32 v3, 5, v1          ; half
    v_lshrrev_b32 v5, 2, v2
    v_and_b32 v5, 3, v5
    s_lshl_b32 s34, s37, 6
    v_add_u32 v4, s34, v2
    v_lshlrev_b32 v4, 6, v4          ; row*64
    ''')
    for s in range(2):
        a(f'''
        v_or_b32 v6, {2*s}, v3
        v_xor_b32 v6, v6, v5
        v_lshl_add_u32 v{12+s}, v6, 4, v4
        v_add_u32 v{14+s}, 0x10000, v{12+s}
        ''')
    a('''
    v_bfe_u32 v2, v1, 2, 2           ; r
    v_and_b32 v4, 3, v1              ; c4
    v_bfe_u32 v5, v1, 4, 1           ; nsub
    v_lshlrev_b32 v6, 3, v3
    v_add_u32 v6, v6, v2
    v_lshlrev_b32 v6, 9, v6
    v_lshl_add_u32 v6, v5, 5, v6
    v_lshl_add_u32 v6, v4, 3, v6
    v_add_u32 v6, 16384, v6
    ''')
    for nb in range(4):
        a(f'''
        s_lshl_b32 s34, s38, 2
        s_add_u32 s34, s34, {nb}
        v_xor_b32 v7, s34, v2
        v_lshl_add_u32 v{16+nb}, v7, 6, v6
        v_add_u32 v{20+nb}, 0x10000, v{16+nb}
        ''')
    ACC = 72
    FA = 24
    FB = 40
    for i in range(128):
        a(f'v_mov_b32 v{ACC+i}, 0')
    kst(a, 33)

    def reads(t, s, buf):
        out = []
        if 'NOREADS' in EXP: return out
        slot = t % 4
        sb = (slot % 2) * 32768
        va, vb = (12, 16) if slot < 2 else (14, 20)
        for mb in range(2):
            r = FA + buf*8 + mb*4
            out.append(f'ds_read_b128 v[{r}:{r+3}], v{va+s} offset:{sb + mb*2048}')
        for nb in range(4):
            for j in range(2):
                r = FB + buf*16 + nb*4 + j*2
                out.append(f'ds_read_b64_tr_b16 v[{r}:{r+1}], v{vb+nb} offset:{sb + s*8192 + j*2048}')
        return out
    def issue_l(t):
        slot = t % 4
        out = []
        for i in range(2):
            out.append(f"""
            s_add_u32 m0, s36, {slot*32768 + i*8192}
            s_mov_b32 s39, {t*64 + i*131072}
            buffer_load_dwordx4 v10, s[16:19], s39 offen lds
            """)
        for i in range(2):
            out.append(f"""
            s_add_u32 m0, s36, {slot*32768 + 16384 + i*8192}
            s_mov_b32 s39, {(t*32 + i*16)*8192}
            buffer_load_dwordx4 v11, s[20:23], s39 offen lds
            """)
        return out
    def mfmas(buf, swapped):
        out = []
        for mb in range(2):
            for nb in range(4):
                c = ACC + (mb*4+nb)*16
                fa = FA + buf*8 + mb*4
                fb = FB + buf*16 + nb*4
                if swapped:
                    out.append(f'v_mfma_f32_32x32x16_bf16 v[{c}:{c+15}], v[{fb}:{fb+3}], v[{fa}:{fa+3}], v[{c}:{c+15}]')
                else:
                    out.append(f'v_mfma_f32_32x32x16_bf16 v[{c}:{c+15}], v[{fa}:{fa+3}], v[{fb}:{fb+3}], v[{c}:{c+15}]')
        return out
    def sched(mf, slots):
        for i, m in enumerate(mf):
            if 'NOMFMA' not in EXP:
                a(m)
            for x in slots.get(i, []):
                a(x)
    def spread(items, g0, per, slots):
        g = g0
        for i in range(0, len(items), per):
            slots.setdefault(g, []).extend(items[i:i+per]); g += 1
        return slots
    PFT = int(os.environ.get('PFT', '2'))
    def mainloop(swapped):
        if 'LOOP0' in EXP:
            a('s_waitcnt vmcnt(0) lgkmcnt(0)')
            a('s_barrier')
            return
        kst(a, 2)
        a(f's_waitcnt vmcnt({8+NSIDE}) lgkmcnt(0)')
        a('s_barrier')
        kst(a, 3)
        for x in reads(0, 0, 0):
            a(x)
        for t in range(16):
            a('s_waitcnt lgkmcnt(0)')
            kst(a, 4 + t)
            sl = spread(reads(t, 1, 1), 0, 2, {})
            if t + 1 < 16:
                infl = min(1, 14 - t)
                sl.setdefault(5, []).append(f's_waitcnt vmcnt({4*infl + (NSIDE if t < 2 else 0) + (1 if (PFK and t == PFT + 1) else 0)})')
                if 'NOBAR' not in EXP:
                    sl[5].append('s_barrier')
            sched(mfmas(0, swapped), sl)
            a('s_waitcnt lgkmcnt(0)')
            if PFK and t == PFT:
                touch(2, 249, 251, 57)
            sl = {}
            if t + 1 < 16:
                spread(reads(t + 1, 0, 0), 0, 2, sl)
            if t + 3 < 16 and 'NODMA' not in EXP:
                spread(issue_l(t + 3), 4, 1, sl)
            sched(mfmas(1, swapped), sl)
        kst(a, 60)
    def side_store():
        kst(a, 61)
        a('s_branch KV_SIDE')
    def side_work():
        a.label('KV_SIDE')
        T = 24
        a(f'''
        v_lshrrev_b32 v2, 6, v0
        s_lshl_b32 s34, s2, 4
        v_add_u32 v2, s34, v2            ; row (i=0)
        v_lshlrev_b32 v2, 7, v2
        v_lshrrev_b32 v3, 3, v1          ; ntile
        v_and_b32 v4, 7, v1
        v_lshl_add_u32 v2, v4, 4, v2
        v_lshl_add_u32 v5, v3, 19, v2
        buffer_store_dwordx4 v[{SO}:{SO+3}], v5, s[44:47], 0 offen
        buffer_store_dwordx4 v[{SO+4}:{SO+7}], v5, s[44:47], 0 offen offset:1024
        ''')
        a(f'''
        s_lshl_b32 s34, s2, 3
        s_add_u32 s34, s34, s3
        s_lshr_b32 s35, s34, 5
        s_lshl_b32 s35, s35, 15          ; rb*32768
        s_and_b32 s34, s34, 31
        s_lshl_b32 s34, s34, 4
        s_add_u32 s34, s34, s35
        v_lshrrev_b32 v6, 1, v1
        v_lshlrev_b32 v6, 10, v6
        v_and_b32 v7, 1, v1
        v_lshl_add_u32 v6, v7, 9, v6
        v_add_u32 v6, s34, v6
        ''')
        for j in range(4):
            a(f'''
            v_lshlrev_b32 v{T+2*j}, 16, v{SX+j}
            v_and_b32 v{T+2*j+1}, 0xffff0000, v{SX+j}
            ''')
        a(f'''
        v_add_f32 v{T+8}, v{T}, v{T+1}
        v_add_f32 v{T+9}, v{T+2}, v{T+3}
        v_add_f32 v{T+10}, v{T+4}, v{T+5}
        v_add_f32 v{T+11}, v{T+6}, v{T+7}
        v_add_f32 v{T+8}, v{T+8}, v{T+9}
        v_add_f32 v{T+10}, v{T+10}, v{T+11}
        v_add_f32 v{T+8}, v{T+8}, v{T+10}
        ''')
        wave_sum(a, T+8, T+9)
        a(f'v_mul_f32 v{T+8}, 0x3b000000, v{T+8}')
        for j in range(8):
            a(f'v_sub_f32 v{T+j}, v{T+j}, v{T+8}')
        a(f'v_mul_f32 v{T+8}, v{T}, v{T}')
        for j in range(1, 8):
            a(f'v_fma_f32 v{T+8}, v{T+j}, v{T+j}, v{T+8}')
        wave_sum(a, T+8, T+9)
        a(f'''
        v_mov_b32 v{T+9}, 0x3727c5ac
        v_fmac_f32 v{T+9}, 0x3b000000, v{T+8}
        v_rsq_f32 v{T+8}, v{T+9}
        ''')
        for j in range(8):
            a(f'v_mul_f32 v{T+j}, v{T+j}, v{T+8}')
        for j in range(4):
            a(f'v_cvt_pk_bf16_f32 v{SX+j}, v{T+2*j}, v{T+2*j+1}')
        a(f'''
        buffer_store_dwordx4 v[{SX}:{SX+3}], v6, s[68:71], 0 offen
        s_cmp_lt_u32 s2, 48
        s_cbranch_scc1 KV_MOD
        s_cmp_ge_u32 s2, 91
        s_cbranch_scc1 KV_FIN
        s_sub_u32 s34, s2, 48
        s_lshl_b32 s34, s34, 11          ; 16 rows * 128
        s_lshl_b32 s35, s2, 11
        s_sub_u32 s34, s34, s35
        v_add_u32 v2, s34, v2
        s_mov_b32 s34, {688*128}
        v_mul_lo_u32 v3, v3, s34
        v_add_u32 v5, v3, v2
        buffer_store_dwordx4 v[{SW}:{SW+3}], v5, s[48:51], 0 offen
        buffer_store_dwordx4 v[{SW+4}:{SW+7}], v5, s[48:51], 0 offen offset:1024
        s_branch KV_FIN
        ''')
        a.label('KV_MOD')
        for j in range(4):
            a(f'''
            v_lshlrev_b32 v{T+2*j}, 16, v{SC+j}
            v_and_b32 v{T+2*j+1}, 0xffff0000, v{SC+j}
            ''')
        for j in range(8):
            a(f'v_mul_f32 v{T+8+j}, 0xbfb8aa3b, v{T+j}')
        for j in range(8):
            a(f'v_exp_f32 v{T+8+j}, v{T+8+j}')
        for j in range(8):
            a(f'v_add_f32 v{T+8+j}, 1.0, v{T+8+j}')
        for j in range(8):
            a(f'v_rcp_f32 v{T+8+j}, v{T+8+j}')
        for j in range(8):
            a(f'v_mul_f32 v{T+j}, v{T+j}, v{T+8+j}')
        for j in range(8):
            a(f'v_cvt_pk_bf16_f32 v{T+j}, v{T+j}, v{T+j}')
        for j in range(8):
            a(f'v_lshlrev_b32 v{T+j}, 16, v{T+j}')
        AC = T + 16
        U = T + 24
        for i in range(8):
            for j in range(4):
                a(f'''
                v_lshlrev_b32 v{U+2*j}, 16, v{SW+4*i+j}
                v_and_b32 v{U+2*j+1}, 0xffff0000, v{SW+4*i+j}
                ''')
            for j in range(8):
                if i == 0:
                    a(f'v_mul_f32 v{AC+j}, v{U+j}, v{T}')
                else:
                    a(f'v_fmac_f32 v{AC+j}, v{U+j}, v{T+i}')
        for j in range(8):
            a(f'v_add_f32_dpp v{U+j}, v{AC+j}, v{AC+j} row_ror:8 row_mask:0xf bank_mask:0xf')
        for j in range(8):
            a(f'v_mov_b32 v{AC+j}, v{U+j}')
        for j in range(8):
            a(f'v_permlane16_swap_b32 v{U+j}, v{AC+j}')
        for j in range(8):
            a(f'v_add_f32 v{U+j}, v{U+j}, v{AC+j}')
        for j in range(8):
            a(f'v_mov_b32 v{AC+j}, v{U+j}')
        for j in range(8):
            a(f'v_permlane32_swap_b32 v{U+j}, v{AC+j}')
        for j in range(8):
            a(f'v_add_f32 v{U+j}, v{U+j}, v{AC+j}')
        a(f'''
        s_lshl_b32 s34, s3, 8
        v_lshl_add_u32 v2, v1, 5, s34
        s_barrier
        s_mov_b64 exec, 0xff
        ds_write_b128 v2, v[{U}:{U+3}]
        ds_write_b128 v2, v[{U+4}:{U+7}] offset:16
        s_mov_b64 exec, -1
        s_waitcnt lgkmcnt(0)
        s_barrier
        s_cmp_lg_u32 s3, 0
        s_cbranch_scc1 KV_FIN
        v_lshlrev_b32 v2, 2, v1
        ''')
        for w in range(8):
            a(f'ds_read_b32 v{4+w}, v2 offset:{w*256}')
        a(f'''
        s_waitcnt lgkmcnt(0)
        v_add_f32 v4, v4, v5
        v_add_f32 v6, v6, v7
        v_add_f32 v8, v8, v9
        v_add_f32 v10, v10, v11
        v_add_f32 v4, v4, v6
        v_add_f32 v8, v8, v10
        v_add_f32 v4, v4, v8
        v_cvt_pk_bf16_f32 v4, v4, v4
        v_lshlrev_b32 v4, 16, v4
        s_lshl_b32 s34, s2, 8
        buffer_store_dword v4, v2, s[80:83], s34 offen
        s_cmp_lt_u32 s2, 24
        s_cbranch_scc1 KV_FIN
        s_cmp_ge_u32 s2, 40
        s_cbranch_scc1 KV_FIN
        s_cmp_ge_u32 s2, 32
        s_cselect_b32 s34, 1.0, 0
        s_cselect_b32 s35, 0, 16
        v_add_f32 v4, s34, v4
        v_cvt_pk_bf16_f32 v4, v4, v4
        s_and_b32 s34, s2, 7
        s_lshl_b32 s34, s34, 11
        s_add_u32 s34, s34, s35
        v_lshrrev_b32 v5, 4, v1
        v_lshlrev_b32 v5, 9, v5
        v_bfe_u32 v6, v1, 2, 1           ; h
        v_lshl_add_u32 v5, v6, 8, v5
        v_and_b32 v6, 3, v1
        v_lshl_add_u32 v5, v6, 1, v5
        v_bfe_u32 v6, v1, 3, 1
        v_lshl_add_u32 v5, v6, 3, v5
        ''')
        srd(a, 80, 10, 11, 16384, 0x6700000)
        for r in range(4):
            a(f'buffer_store_short v4, v5, s[80:83], s34 offen offset:{r*64}')
        a.label('KV_FIN')
        code_pf(a, 'attn_kernel', 'oproj_kernel', 3, 8, int(os.environ.get('PFN', '100000')), vt=100)
        kst_out(a)
    a('''
    s_cmp_ge_u32 s29, 16
    s_cbranch_scc1 KV_VPART
    ''')
    mainloop(True)
    a('''
    s_lshr_b32 s34, s35, 5
    s_lshl_b32 s39, s37, 1
    s_add_u32 s34, s34, s39
    s_lshl_b32 s34, s34, 13
    s_lshl_b32 s39, s38, 19
    s_add_u32 s34, s34, s39
    v_lshl_add_u32 v2, v1, 4, s34
    v_add_u32 v3, 4096, v2
    v_add_u32 v8, 8192, v2
    v_add_u32 v9, 12288, v2
    ''')
    for mb in range(2):
        for nb in range(4):
            c = ACC + (mb*4+nb)*16
            for gp in range(2):
                va = [2, 3, 8, 9][mb*2 + nb//2]
                t = 24 + 4 * ((nb*2+gp) % 4)
                for j in range(4):
                    a(f'v_cvt_pk_bf16_f32 v{t+j}, v{c+gp*8+2*j}, v{c+gp*8+2*j+1}')
                if 'NOST' not in EXP:
                    a(f'buffer_store_dwordx4 v[{t}:{t+3}], v{va}, s[24:27], 0 offen offset:{(nb%2)*2048 + gp*1024}')
    side_store()
    a.label('KV_VPART')
    mainloop(False)
    a('''
    s_lshr_b32 s34, s35, 6
    s_add_u32 s34, s34, s37
    s_lshl_b32 s34, s34, 14
    s_lshl_b32 s39, s38, 19
    s_add_u32 s34, s34, s39
    v_lshl_add_u32 v2, v1, 4, s34
    v_add_u32 v8, 4096, v2
    v_add_u32 v9, 8192, v2
    v_add_u32 v10, 12288, v2
    ''')
    for mb in range(2):
        for nb in range(4):
            c = ACC + (mb*4+nb)*16
            for gp in range(2):
                va = [2, 8, 9, 10][nb]
                t = 24 + 4 * ((nb*2+gp) % 4)
                for j in range(4):
                    a(f'v_cvt_pk_bf16_f32 v{t+j}, v{c+gp*8+2*j}, v{c+gp*8+2*j+1}')
                if 'NOST' not in EXP:
                    a(f'buffer_store_dwordx4 v[{t}:{t+3}], v{va}, s[24:27], 0 offen offset:{(mb*2+gp)*1024}')
    kst(a, 61)
    side_work()
    a.label('KV_END')
    a('s_endpgm')
    return dict(name=name, grid=256, block=512, lds=RING + 64 + 448, vgpr=256)
```

```python
from k_common import *
import os
WS_WOF   = 0x6000000
WS_WINF  = 0x6400000
WS_WOUTF = 0x6600000
WS_MODF  = 0x6700000
WS_WSPF  = 0x6800000
WT = [(1,0),(1,1),(0,0),(1,2),(1,3),(0,1),(1,4),(0,2),(0,3),(1,5),(0,4),(0,5)]
WTC = 0
for i, (p, c) in enumerate(WT): WTC |= (p*8 + c) << (4*i)

def tr8(a, R, D):
    for j in range(4):
        a(f'v_perm_b32 v{D+j}, v{R+2*j+1}, v{R+2*j}, s30')
        a(f'v_perm_b32 v{D+4+j}, v{R+2*j+1}, v{R+2*j}, s31')

def gen_prep(a):
    name = 'prep_kernel'
    kernel_header(a, name)
    a(f'''
    s_load_dwordx2 s[4:5], s[0:1], {ARG['ws']}
    s_load_dwordx2 s[6:7], s[0:1], {ARG['A_w_o']}
    s_load_dwordx2 s[8:9], s[0:1], {ARG['B_w_in']}
    s_load_dwordx2 s[10:11], s[0:1], {ARG['B_w_out']}
    s_load_dwordx2 s[32:33], s[0:1], {ARG['B_w_sp']}
    v_lshrrev_b32 v1, 6, v0
    v_readfirstlane_b32 s3, v1
    s_cmp_ge_u32 s2, 256
    s_cbranch_scc1 PR_END
    s_lshl_b32 s34, s2, 3
    s_add_u32 s34, s34, s3           ; gw
    v_and_b32 v1, 63, v0
    s_mov_b32 s30, 0x05040100
    s_mov_b32 s31, 0x07060302
    s_waitcnt lgkmcnt(0)
    ''')
    srd(a, 12, 4, 5, 0x10000000)
    srd(a, 16, 6, 7, 4096*512*2)
    srd(a, 20, 8, 9, 512*1376*2)
    srd(a, 24, 10, 11, 688*512*2)
    srd(a, 36, 32, 33, 2048*2048*2)
    a(f'''
    v_and_b32 v2, 15, v1             ; cp
    v_bfe_u32 v3, v1, 4, 1           ; h
    v_lshrrev_b32 v4, 5, v1          ; hi
    v_lshlrev_b32 v5, 12, v3         ; 4h*1024
    v_lshl_add_u32 v5, v4, 6, v5
    v_lshl_add_u32 v5, v2, 2, v5
    v_add_u32 v6, 8192, v5
    s_lshr_b32 s40, s34, 9           ; ks
    s_lshl_b32 s40, s40, 20
    s_bfe_u32 s41, s34, 0x60001      ; kstep
    s_lshl_b32 s41, s41, 14
    s_add_u32 s40, s40, s41
    s_bfe_u32 s41, s34, 0x20007      ; nt
    s_lshl_b32 s41, s41, 8
    s_add_u32 s40, s40, s41
    s_and_b32 s41, s34, 1
    s_lshl_b32 s41, s41, 7
    s_add_u32 s40, s40, s41
    ''')
    for j in range(8):
        a(f'buffer_load_dword v{16+j}, v{5 + j//4}, s[16:19], s40 offen offset:{(j&3)*1024}')
    a(f'''
    v_and_b32 v7, 31, v1
    v_lshlrev_b32 v7, 12, v7         ; t*4096
    v_lshl_add_u32 v7, v4, 3, v7     ; + h*8
    ''')
    if os.environ.get('PREPV', '2') == '1':
        a(f'''
        s_lshr_b32 s40, s34, 6           ; rb
        s_lshl_b32 s40, s40, 18          ; 64 rows * 4096
        s_and_b32 s41, s34, 63           ; w*16 + P
        s_lshl_b32 s41, s41, 6           ; *32 s * 2B
        s_add_u32 s40, s40, s41
        s_add_u32 s41, s40, {32*4096}
        ''')
    else:
        a(f'''
        s_lshr_b32 s40, s34, 6           ; 4y + rbi
        s_bfe_u32 s41, s34, 0x20006      ; rbi
        s_lshl_b32 s41, s41, 1
        s_add_u32 s41, s41, 60
        s_sub_u32 s41, s41, s40          ; 60 - 4y + rbi
        s_lshl_b32 s40, s40, 17
        s_lshl_b32 s41, s41, 17
        s_bfe_u32 s42, s34, 0x20004      ; w
        s_lshl_b32 s42, s42, 3
        s_and_b32 s43, s34, 7
        s_add_u32 s42, s42, s43
        s_bfe_u32 s43, s34, 0x10003
        s_lshl_b32 s43, s43, 5
        s_add_u32 s42, s42, s43          ; Pg
        s_lshl_b32 s42, s42, 6
        s_add_u32 s40, s40, s42
        s_add_u32 s41, s41, s42
        ''')
    for ksl in range(2):
        for rbk in range(2):
            r = 32 + (ksl*2 + rbk)*4
            a(f'''
            buffer_load_dwordx2 v[{r}:{r+1}], v7, s[36:39], s{40+rbk} offen offset:{ksl*16}
            buffer_load_dwordx2 v[{r+2}:{r+3}], v7, s[36:39], s{40+rbk} offen offset:{ksl*16+32}
            ''')
    a(f'''
    v_lshlrev_b32 v8, 5, v1          ; lane*32
    v_lshlrev_b32 v9, 4, v1          ; lane*16
    s_lshl_b32 s40, s34, 11
    s_add_u32 s40, s40, {WS_WOF}
    s_waitcnt vmcnt(8)
    ''')
    tr8(a, 16, 24)
    a(f'''
    buffer_store_dwordx4 v[24:27], v8, s[12:15], s40 offen
    buffer_store_dwordx4 v[28:31], v8, s[12:15], s40 offen offset:16
    s_lshl_b32 s40, s34, 12
    s_add_u32 s40, s40, {WS_WSPF}
    s_waitcnt vmcnt(2)
    ''')
    for i in range(4):
        a(f'buffer_store_dwordx4 v[{32+4*i}:{35+4*i}], v9, s[12:15], s40 offen offset:{i*1024}')
    a(f'''
    s_cmp_ge_u32 s34, 1152
    s_cbranch_scc1 PR_END
    s_cmp_ge_u32 s34, 768
    s_cbranch_scc1 PR_T3
    s_lshr_b32 s40, s34, 3           ; x = n8*12 + w*3 + t
    s_mul_i32 s41, s40, 43691
    s_lshr_b32 s41, s41, 19          ; n8
    s_mul_i32 s42, s41, 12
    s_sub_u32 s42, s40, s42          ; wt
    s_lshl_b32 s42, s42, 2
    s_mov_b32 s44, {WTC & 0xffffffff}
    s_mov_b32 s45, {WTC >> 32}
    s_lshr_b64 s[44:45], s[44:45], s42
    s_and_b32 s42, s44, 7            ; c
    s_lshl_b32 s42, s42, 4
    s_mul_i32 s41, s41, 88
    s_add_u32 s41, s41, s42
    s_bitcmp1_b32 s44, 3
    s_cselect_b32 s42, 688, 0
    s_add_u32 s41, s41, s42          ; colbase
    s_lshl_b32 s41, s41, 1
    s_and_b32 s42, s34, 7
    s_mul_i32 s42, s42, {64*2752}
    s_add_u32 s41, s41, s42          ; soffset
    v_and_b32 v2, 7, v1              ; cp
    v_bfe_u32 v3, v1, 3, 1           ; kq&1
    v_lshlrev_b32 v3, 2, v3
    v_lshrrev_b32 v4, 4, v1          ; (l>>5)*2 + (kq>>1)
    v_lshl_add_u32 v3, v4, 4, v3     ; row
    v_mul_u32_u24 v3, 2752, v3
    v_lshl_add_u32 v3, v2, 2, v3
    ''')
    for j in range(8):
        ro = ((j & 3) + 8*(j >> 2)) * 2752
        a(f'''
        s_add_u32 s42, s41, {ro}
        v_add_u32 v{40+j}, s42, v3
        buffer_load_dword v{16+j}, v{40+j}, s[20:23], 0 offen
        ''')
    a(f'''
    s_lshl_b32 s40, s34, 11
    s_add_u32 s40, s40, {WS_WINF}
    s_branch PR_ST
    ''')
    a.label('PR_T3')
    a(f'''
    s_sub_u32 s35, s34, 768          ; u = n8*48 + w*12 + ks
    s_mul_i32 s41, s35, 43691
    s_lshr_b32 s41, s41, 21          ; n8
    s_mul_i32 s42, s41, 48
    s_sub_u32 s42, s35, s42
    s_mul_i32 s43, s42, 43691
    s_lshr_b32 s43, s43, 18          ; p
    s_mul_i32 s44, s43, 6
    s_sub_u32 s44, s42, s44          ; kf
    s_lshl_b32 s44, s44, 4           ; 16 kf
    s_cmp_eq_u32 s43, 7
    s_cselect_b32 s45, 16, 0
    s_sub_u32 s45, 88, s45           ; lim
    s_mul_i32 s43, s43, 88
    s_add_u32 s43, s43, s44          ; f0
    s_lshl_b32 s43, s43, 10
    s_lshl_b32 s41, s41, 7
    s_add_u32 s41, s41, s43          ; soffset
    s_cmp_lt_u32 s44, s45
    s_cselect_b32 s46, 0, 0x40000000
    s_add_u32 s44, s44, 8
    s_cmp_lt_u32 s44, s45
    s_cselect_b32 s47, 0, 0x40000000
    v_add_u32 v5, s46, v5
    v_add_u32 v6, s47, v6
    ''')
    for j in range(8):
        a(f'buffer_load_dword v{16+j}, v{5 + j//4}, s[24:27], s41 offen offset:{(j&3)*1024}')
    a(f'''
    s_lshl_b32 s40, s35, 11
    s_add_u32 s40, s40, {WS_WOUTF}
    ''')
    a.label('PR_ST')
    a('s_waitcnt vmcnt(0)')
    tr8(a, 16, 24)
    a(f'''
    buffer_store_dwordx4 v[24:27], v8, s[12:15], s40 offen
    buffer_store_dwordx4 v[28:31], v8, s[12:15], s40 offen offset:16
    ''')
    a.label('PR_END')
    a('s_endpgm')
    return dict(name=name, grid=256, block=512, lds=0, vgpr=64)
```

```python
from k_common import *
from k_prep import WS_WOF, WS_WINF, WS_WOUTF, WS_MODF, WS_WSPF
from sched import *
import os
E = os.environ.get
STK = E('STK', '')
HA = int(E('HAB', str(WS_K)), 0)
HP = WS_VT - WS_K
H_XS, H_X2, H_YF, H_ST, H_PX = 0x38000, 0x30000, 0x40000, 0x2C000, 0x40000
WS_Z2F = 0x4800000
LOC = 0x40000; LOCS = 0x5000
L_ZST, FXC, FX2, FY, FD = 0, 0x4000, 0x4800, 0x4C00, 0x4E00
FAL, FAH, FZ = 0x68000, 0x68800, 0x6A000
OOB = 0x40000000
LB = 131072; Z1S = 200
def L_QS(P): return 16384 + P*2048
def L_FS(P): return 20480 + P*2048
def L_PS(P): return 24576 + P*2048
def L_FS2(P): return 28672 + P*2048
L_RX = 0; L_RX2 = 73728
SC = E('TSC', 'sc1'); SF = E('TSF', 'sc1'); SZ = E('TSZ', 'sc0 sc1'); SG = 'sc1'; SL = 'sc1'
SPIN = 0x8000
CKH = int(E('CKH', '24'))
TCH = E('TCH', '0:11:wi0,0:12:wi1,1:14:ha,1:15:lf')
VST = 63
SW = 55; SY = 42; SIDX = 41; SN8 = 43; SRBI = 46; SNT = 47; SKS = 48; SHA = 49; SAO = 51; SC16 = 57; SGF = 58; SOK = 79
SPX = 84
SLOC = 80
_ool = []

def st(a, idx, T=None):
    if STK != 'TL': return
    if idx == 0:
        a(f'v_mov_b32 v{VST}, 0\nv_writelane_b32 v{VST}, s100, 0')
        idx = 1
    a(f"""
    s_memtime s[82:83]
    s_waitcnt lgkmcnt(0)
    v_writelane_b32 v{VST}, s82, {idx}
    """)
    if T is not None: T.ddone = len(a.ds_seq)

def touch_setup(a, PFA, PFV):
    srd(a, 72, 8, 9, 0x10000000)
    a(f'''
    s_lshr_b32 s45, s56, 1
    s_lshl_b32 s45, s45, 2
    s_and_b32 s50, s40, 3
    s_add_u32 s45, s45, s50
    s_lshl_b32 s45, s45, 1
    s_and_b32 s50, s56, 1
    s_add_u32 s45, s45, s50
    s_lshl_b32 s45, s45, 17
    s_add_u32 s45, s45, {WS_WOF}     ; w_o slice
    s_add_u32 s68, s8, s45
    s_addc_u32 s69, s9, 0
    s_add_u32 s66, s59, 3
    s_cmp_lt_u32 s55, 2
    s_cselect_b32 s66, 99, s66
    s_lshl_b32 s67, s56, 1
    s_add_u32 s67, s67, s3
    s_lshl_b32 s67, s67, 5
    s_add_u32 s67, s67, s40
    s_lshl_b32 s67, s67, 2
    s_add_u32 s67, s67, {FAL}
    s_mov_b32 s70, {OOB}
    s_mov_b32 s71, {OOB}
    s_mov_b32 s81, {OOB}
    v_mov_b32 v{PFA[0]}, {OOB}
    v_mov_b32 v{PFA[1]}, {OOB}
    s_lshl_b32 s50, s55, 13
    v_lshlrev_b32 v{PFV}, 7, v1
    v_add_u32 v{PFV}, s50, v{PFV}
    s_and_b32 s90, s2, 7             ; y
    s_lshr_b32 s91, s2, 3            ; idx
    s_and_b32 s92, s91, 7            ; n8
    s_lshr_b32 s93, s91, 3           ; rbi
    ''')
    for ent in [x for x in TCH.split(',') if x]:
        sm, it, kind = ent.split(':')
        k2, c = kind[:2], int(kind[2:] or 0)
        if k2 == 'wo':
            a(f's_add_u32 s50, s45, {c*32768}')
        elif k2 == 'px':
            a(f'''
            s_lshl_b32 s50, s40, 19
            s_and_b32 s94, s56, 3
            s_lshl_b32 s94, s94, 16
            s_add_u32 s50, s50, s94
            s_lshr_b32 s94, s56, 2
            s_lshl_b32 s94, s94, 24
            s_add_u32 s50, s50, s94
            s_add_u32 s50, s50, {HA + H_PX + c*32768}
            ''')
        elif k2 == 'ha':
            a(f'''
            s_lshl_b32 s50, s40, 19
            s_and_b32 s94, s56, 3
            s_lshl_b32 s94, s94, 15
            s_add_u32 s50, s50, s94
            s_lshr_b32 s94, s56, 2
            s_lshl_b32 s94, s94, 24
            s_add_u32 s50, s50, s94
            s_add_u32 s50, s50, {HA + 0x20000}
            ''')
        elif k2 == 'lf':
            a(f'''
            s_mul_i32 s50, s90, {LOCS}
            s_add_u32 s50, s50, {LOC}
            ''')
        elif k2 == 'wi':
            a(f'''
            s_lshl_b32 s50, s92, 2
            s_add_u32 s50, s50, s93
            s_mul_i32 s50, s50, {48*1024}
            s_add_u32 s50, s50, {WS_WINF + c*16384}
            ''')
        elif k2 == 'sp':
            a(f'''
            s_lshl_b32 s50, s90, 5
            s_add_u32 s50, s50, s91
            s_lshl_b32 s50, s50, 15
            s_add_u32 s50, s50, {WS_WSPF}
            ''')
        elif k2 == 'wu':
            a(f'''
            s_lshl_b32 s50, s92, 2
            s_add_u32 s50, s50, s93
            s_mul_i32 s50, s50, {24*1024}
            s_add_u32 s50, s50, {WS_WOUTF}
            ''')
        else:
            assert False, ent
        a(f'v_writelane_b32 v{PFA[int(sm)]}, s50, {it}')

def pre(a, VNZ):
    a(f'''
    s_load_dwordx2 s[4:5], s[0:1], {ARG['A_x']}
    s_load_dwordx2 s[10:11], s[0:1], {ARG['out']}
    s_load_dwordx2 s[6:7], s[0:1], {ARG['B_b_sp']}
    s_mov_b64 s[12:13], s[72:73]
    s_mov_b64 s[14:15], s[74:75]
    s_and_b32 s{SY}, s2, 7
    s_lshr_b32 s{SIDX}, s2, 3
    s_and_b32 s{SN8}, s{SIDX}, 7
    s_lshr_b32 s{SRBI}, s{SIDX}, 3
    s_and_b32 s{SNT}, s{SIDX}, 3
    s_lshr_b32 s{SKS}, s{SIDX}, 2
    s_lshl_b32 s{SHA}, s{SY}, 21
    s_add_u32 s{SHA}, s{SHA}, {HA}
    s_mul_i32 s{SLOC}, s{SY}, {LOCS}
    s_add_u32 s{SLOC}, s{SLOC}, {LOC}
    s_lshl_b32 s78, s{SIDX}, 2
    s_add_u32 s78, s78, s{SLOC}
    s_add_u32 s78, s78, {FD}
    s_cmp_eq_u32 s{SW}, 0
    s_cselect_b32 s78, s78, {OOB}
    s_lshl_b32 s{SC16}, s{SNT}, 3
    s_add_u32 s{SC16}, s{SC16}, s{SKS}
    s_lshl_b32 s34, s{SY}, 2
    s_add_u32 s34, s34, s{SW}        ; rb32 (L)
    s_lshl_b32 s{SAO}, s34, 18
    s_lshl_b32 s35, s{SKS}, 15
    s_add_u32 s{SAO}, s{SAO}, s35
    s_add_u32 s{SAO}, s{SAO}, {WS_CTX}
    s_lshl_b32 s35, s{SY}, 1
    s_lshr_b32 s34, s{SW}, 1
    s_add_u32 s35, s35, s34
    s_lshl_b32 s37, s35, 8           ; (y*2+w2)*256
    s_lshl_b32 s35, s35, 7
    s_lshl_b32 s34, s{SKS}, 4
    s_add_u32 s35, s35, s34
    s_add_u32 s35, s35, {FAL}
    s_add_u32 s37, s37, s34
    s_add_u32 s37, s37, {FAH}
    v_and_b32 v56, 3, v1
    v_lshlrev_b32 v56, 2, v56
    s_cmp_lt_u32 s{SW}, 2
    s_cselect_b32 s81, {OOB}, s67
    s_waitcnt vmcnt(0)
    buffer_store_dword v{VNZ}, off, s[72:75], s81 sc1
    ''')
    return Trk(a)

def poll_l(a, T, VNZ):
    a(f'buffer_store_dword v{VNZ}, off, s[12:15], s78 {SF}')
    a('buffer_load_dword v57, v56, s[12:15], s35 offen sc1 ; T:pl')

def aload(g, va=2):
    r = 128 + (g % 32)*4
    x = f'buffer_load_dwordx4 a[{r}:{r+3}], v{va}, s[12:15], s{SAO} offen offset:{(g % 4)*1024} ; T:a{g}'
    if g % 4 == 3: x += f'\ns_add_u32 s{SAO}, s{SAO}, 4096'
    return x

def early(a, T, tag):
    T.wait(v='pl')
    a(f'''
    v_cmp_ne_u32 vcc, 0, v57
    s_cmp_eq_u64 vcc, -1
    s_cselect_b32 s{SOK}, 1, 0
    s_cbranch_scc0 TL_E{tag}
    ''')
    for g in range(32): a(aload(g, 17))
    a.raw(f'TL_E{tag}:')

def ool(a):
    for f in _ool: f()

def spin(a, tag, va, so, need, T, vd=57):
    def f():
        a.label(f'{tag}_S')
        a('s_mov_b32 s39, 0')
        a.label(f'{tag}_L')
        n0 = len(a.vm_seq)
        a(f'''
        buffer_load_dword v{vd}, v{va}, s[12:15], s{so} offen sc1
        s_add_u32 s39, s39, 1
        s_waitcnt vmcnt(0)
        v_cmp_le_u32 vcc, {need}, v{vd}
        s_cmp_eq_u64 vcc, -1
        s_cbranch_scc1 {tag}_R
        s_cmp_lt_u32 s39, {SPIN}
        s_cbranch_scc1 {tag}_L
        s_branch {tag}_R
        ''')
    _ool.append(f)

def poll_items(a, T, tag, va, so, need=1, vd=57):
    iss = f'buffer_load_dword v{vd}, v{va}, s[12:15], s{so} offen sc1 ; T:{tag}'
    def chk():
        T.wait(v=tag)
        a(f'''
        v_cmp_le_u32 vcc, {need}, v{vd}
        s_cmp_eq_u64 vcc, -1
        s_cbranch_scc0 {tag}_S
        ''')
        a.raw(f'{tag}_R:')
    chk.cost = 12
    spin(a, tag, va, so, need, T, vd)
    return iss, chk

def flag(so, val, fl, vd=58):
    return f'''
    v_mov_b32 v{vd}, {val}
    s_mov_b64 exec, 1
    buffer_store_dword v{vd}, off, s[12:15], s{so} {fl}
    s_mov_b64 exec, -1
    '''

def main(a, T):
    S = lambda i: st(a, i, T)
    S(2)
    ACC = [64, 128]; FB = 192; BA = 4
    XT = 32; GA = 40; CB = 48
    a(f'''
    v_mov_b32 v2, v17
    s_barrier
    s_add_u32 m0, s64, s36
    s_mov_b32 s34, {3*32768}
    v_add_u32 v3, s36, v2
    v_add_u32 v56, 16384, v3
    s_mov_b64 s[24:25], s[68:69]
    ''')
    for i in range(4):
        a(f'buffer_load_dwordx4 v3, s[24:27], s34 offen offset:{i*1024} lds ; T:b3')
    a('s_add_u32 m0, m0, 32768')
    for i in range(4):
        a(f'buffer_load_dwordx4 v56, s[24:27], s34 offen offset:{i*1024} lds ; T:b3')
    a(f'''
    s_xor_b32 s65, s64, 0x10000      ; q2 base
    s_add_u32 m0, s65, s36
    s_mov_b32 s34, {2*32768}
    buffer_load_dwordx4 v3, s[24:27], s34 offen offset:3072 lds ; T:b3
    s_add_u32 m0, s36, {LB}
    s_add_u32 s34, s36, {WS_MODF}
    ''')
    for i in range(4):
        a(f'buffer_load_dwordx4 v2, s[12:15], s34 offen offset:{i*1024} lds ; T:b3')
    a(f'''
    s_and_b32 s34, s{SKS}, 1
    s_lshl_b32 s34, s34, 8
    v_xor_b32 v3, s34, v2            ; (lane ^ 16b)*16
    s_lshr_b32 s38, s{SKS}, 1
    s_xor_b32 s63, s62, 0x10000      ; q1 base
    ''')
    for j in range(4):
        a(f'''
        s_xor_b32 s34, s38, {j}
        s_lshl_b32 s34, s34, 10
        v_add_u32 v56, s34, v3
        ''')
        for q in range(4):
            a(f'v_add_u32 v{BA+4*q+j}, s{[62,63,65,64][q]}, v56')
    def breads(g):
        k = g % 32
        out = []
        for j in range(4):
            r = FB + (g & 1)*16 + j*4
            out.append(f'ds_read_b128 v[{r}:{r+3}], v{BA + 4*(k//8) + j} offset:{((k % 8)//4)*32768 + (k % 4)*4096} ; T:f{g}')
        return out
    for x in breads(0): a(x)
    a(f'''
    s_lshl_b32 s34, s56, 1
    s_add_u32 s34, s34, s3
    s_lshl_b32 s34, s34, 1
    s_lshr_b32 s38, s{SW}, 1
    s_add_u32 s34, s34, s38
    s_lshl_b32 s34, s34, 5
    s_add_u32 s34, s34, s40
    s_lshl_b32 s34, s34, 2
    s_add_u32 s34, s34, {FAH}
    s_waitcnt lgkmcnt(0)
    ''')
    T.ddone = len(a.ds_seq)
    srd(a, 16, 4, 5, 2048*512*2)
    srd(a, 20, 10, 11, 2048*512*2)
    srd(a, 24, 6, 7, 4096)
    T.wait(v='ctx')
    S(3)
    a(flag(34, 1, 'sc1'))
    a(f'''
    s_cmp_eq_u32 s{SOK}, 0
    s_cbranch_scc1 TL_LATE
    ''')
    a.raw('TL_LATER:')
    def late():
        a.label('TL_LATE')
        a('s_mov_b32 s39, 0\nv_and_b32 v56, 3, v1\nv_lshlrev_b32 v56, 2, v56')
        a.label('TL_LATEL')
        a(f'''
        buffer_load_dword v57, v56, s[12:15], s35 offen sc1
        s_add_u32 s39, s39, 1
        s_waitcnt vmcnt(0)
        v_cmp_ne_u32 vcc, 0, v57
        s_cmp_eq_u64 vcc, -1
        s_cbranch_scc1 TL_LATED
        s_cmp_lt_u32 s39, {SPIN}
        s_cbranch_scc1 TL_LATEL
        ''')
        a.label('TL_LATED')
        for g in range(32): a(aload(g))
        a('s_waitcnt vmcnt(0)\ns_branch TL_LATER')
    _ool.append(late)
    qs = Q('setup')
    qs.add(f'''
    v_and_b32 v20, 31, v1            ; row
    v_lshrrev_b32 v21, 5, v1         ; h
    v_lshlrev_b32 v22, 10, v20
    v_lshl_add_u32 v22, v21, 3, v22  ; row*1024 + h*8
    v_lshlrev_b32 v23, 4, v21        ; h*16
    s_lshl_b32 s34, s{SY}, 2
    s_add_u32 s34, s34, s{SW}        ; rb32 L
    s_sub_u32 s38, 60, s34
    s_add_u32 s38, s38, s{SW}
    s_add_u32 s38, s38, s{SW}        ; rb32 H = 60 - 4y + w
    s_lshl_b32 s60, s38, 18
    s_lshl_b32 s61, s{SKS}, 15
    s_add_u32 s60, s60, s61
    s_add_u32 s60, s60, {WS_CTX}     ; A soffset (H)
    s_lshl_b32 s61, s{SC16}, 5
    s_lshl_b32 s34, s34, 15
    s_add_u32 s34, s34, s61
    s_lshl_b32 s38, s38, 15
    s_add_u32 s38, s38, s61
    s_lshl_b32 s61, s{SC16}, 6
    s_add_u32 s59, s61, {WS_MOD + 1024*4}
    s_add_u32 s61, s61, {WS_MOD + 2048*4}
    ''')
    for P in range(2):
        for q in range(2):
            qs.add(f'buffer_load_dwordx2 v[{XT+4*P+2*q}:{XT+4*P+2*q+1}], v22, s[16:19], s{[34,38][P]} offen offset:{q*16} ; T:cst')
    for q in range(2):
        qs.add(f'buffer_load_dwordx4 v[{GA+4*q}:{GA+4*q+3}], v23, s[12:15], s59 offen offset:{q*32} ; T:cst')
        qs.add(f'buffer_load_dwordx4 v[{CB+4*q}:{CB+4*q+3}], v23, s[12:15], s61 offen offset:{q*32} ; T:cst')
    qs.add(f'''
    s_lshl_b32 s{SGF}, s{SNT}, 2
    s_add_u32 s{SGF}, s{SGF}, s{SW}
    s_lshl_b32 s{SGF}, s{SGF}, 7
    s_add_u32 s{SGF}, s{SGF}, s{SLOC}
    s_add_u32 s{SGF}, s{SGF}, {FXC}
    s_lshl_b32 s34, s{SNT}, 19
    s_lshl_b32 s38, s{SW}, 11
    s_add_u32 s34, s34, s38
    s_add_u32 s34, s34, s{SHA}
    s_add_u32 s34, s34, {H_PX}
    s_and_b32 s91, s{SKS}, 3
    s_lshl_b32 s91, s91, 16
    s_lshr_b32 s38, s{SKS}, 2
    s_lshl_b32 s38, s38, 24
    s_add_u32 s38, s38, s91
    s_add_u32 s91, s38, s34
    s_add_u32 s78, s{SLOC}, {FD}
    ''')
    for i in range(1, 8):
        qs.add(f'''
        s_xor_b32 s{SPX+i-1}, s38, {((i & 3) << 16) | ((i >> 2) << 24)}
        s_add_u32 s{SPX+i-1}, s{SPX+i-1}, s34
        s_add_u32 s{SPX+i-1}, s{SPX+i-1}, {i*8192}
        ''')
    qs.add(f'''
    s_lshl_b32 s92, s{SKS}, 2
    s_add_u32 s92, s92, s{SGF}       ; own FX word
    s_add_u32 s93, s92, 32           ; own FC word
    s_add_u32 s94, s{SGF}, 32
    v_and_b32 v24, 7, v1
    v_lshlrev_b32 v24, 2, v24        ; (lane&7)*4
    v_and_b32 v25, 3, v1
    v_lshlrev_b32 v25, 2, v25
    v_bfe_u32 v26, v1, 2, 1
    v_lshl_add_u32 v25, v26, 7, v25
    v_bfe_u32 v26, v1, 4, 1
    v_lshlrev_b32 v26, 14, v26
    v_lshl_add_u32 v26, v21, 8, v26
    v_and_b32 v27, 15, v1
    v_lshl_add_u32 v26, v27, 4, v26
    v_lshlrev_b32 v27, 6, v20
    s_lshl_b32 s30, s{SN8}, 2
    s_add_u32 s30, s30, s{SW}
    s_mul_i32 s30, s30, {48*1024}
    s_add_u32 s30, s30, {WS_WINF}
    s_lshl_b32 s34, s{SW}, 19
    s_add_u32 s34, s34, s{SHA}
    s_lshl_b32 s38, s{SC16}, 9
    s_add_u32 s95, s34, s38
    s_add_u32 s96, s95, s38
    s_add_u32 s95, s95, {H_XS}
    s_add_u32 s96, s96, {H_X2}       ; x2 soffset (L)
    s_lshl_b32 s97, s{SNT}, 11
    s_lshl_b32 s38, s{SKS}, 3
    s_add_u32 s97, s97, s38
    s_add_u32 s97, s97, s34
    s_add_u32 s97, s97, {H_ST}
    s_lshl_b32 s98, s{SW}, 7
    s_lshl_b32 s38, s{SC16}, 2
    s_add_u32 s98, s98, s38
    s_add_u32 s98, s98, s{SLOC}
    s_add_u32 s98, s98, {FX2}        ; own FX2 word (L)   [lr][c16]
    v_lshlrev_b32 v28, 2, v20
    ''')
    def wil(i):
        r = 4*i
        x = f'buffer_load_dwordx4 a[{r}:{r+3}], v2, s[12:15], s30 offen offset:{(i % 4)*1024} ; T:wi{i}'
        if i % 4 == 3: x += '\ns_add_u32 s30, s30, 4096'
        return x
    def px_stores(P):
        out = []
        for i in range(1, 8):
            r = ACC[P] + 8*i
            for q in range(2):
                out.append(f'buffer_store_dwordx4 v[{r+4*q}:{r+4*q+3}], v2, s[12:15], s{SPX+i-1} offen offset:{q*1024} {SC} ; T:px{P}')
        return out
    def px_loads(P):
        out = []
        for i in range(1, 8):
            r = ACC[P] + 8*i
            x = f's_add_u32 s38, s91, {i*8192}\n'
            for q in range(2):
                x += f'buffer_load_dwordx4 v[{r+4*q}:{r+4*q+3}], v2, s[12:15], s38 offen offset:{q*1024} {SL} ; T:pr{P}_{i}\n'
            out.append(x)
        return out
    def W(**k):
        f = lambda: T.wait(**k)
        return f
    def fin(P, first):
        O = ACC[P]
        out = []
        if first:
            out.append(W(v='cst'))
            for i in range(8): out.append(f'v_add_f32 v{CB+i}, 1.0, v{CB+i}')
            for i in range(0, 8, 2):
                out += [f'v_cvt_pk_bf16_f32 v59, v{CB+i}, v{CB+i+1}', f'v_lshlrev_b32 v{CB+i}, 16, v59', f'v_and_b32 v{CB+i+1}, 0xffff0000, v59']
        for i in range(1, 8):
            out.append(W(v=f'pr{P}_{i}'))
            for r in range(8):
                out.append(f'v_add_f32 v{O+r}, v{O+r}, v{O+8*i+r}')
            if i == 2:
                for r in range(4):
                    out += [f'v_lshlrev_b32 v{O+8+2*r}, 16, v{XT+4*P+r}', f'v_and_b32 v{O+9+2*r}, 0xffff0000, v{XT+4*P+r}']
        marker = len(out)
        XU = O + 8; X2P = O + 16; XSP = O + 20; SS = O + 24
        for r in range(8): out.append(f'v_fma_f32 v{O+r}, v{O+r}, v{GA+r}, v{XU+r}')
        for r in range(4): out.append(f'v_cvt_pk_bf16_f32 v{X2P+r}, v{O+2*r}, v{O+2*r+1}')
        for r in range(4):
            out += [f'v_lshlrev_b32 v{O+2*r}, 16, v{X2P+r}', f'v_and_b32 v{O+2*r+1}, 0xffff0000, v{X2P+r}']
        for r in range(8): out.append(f'v_mul_f32 v{XU+r}, v{O+r}, v{CB+r}')
        for r in range(4): out.append(f'v_cvt_pk_bf16_f32 v{XSP+r}, v{XU+2*r}, v{XU+2*r+1}')
        out.append(f'buffer_store_dwordx4 v[{XSP}:{XSP+3}], v26, s[12:15], s95 offen {SC} ; T:xs{P}')
        out += [f'v_add_f32 v{SS}, v{O}, v{O+1}', f'v_mul_f32 v{SS+1}, v{O}, v{O}', f'v_add_f32 v{SS+2}, v{O+2}, v{O+3}', f'v_mul_f32 v{SS+3}, v{O+1}, v{O+1}']
        for r in range(2, 8): out.append(f'v_fmac_f32 v{SS+1+2*(r&1)}, v{O+r}, v{O+r}')
        for r in range(4, 8): out.append(f'v_add_f32 v{SS+2*(r&1)}, v{SS+2*(r&1)}, v{O+r}')
        out += [f'v_add_f32 v{SS}, v{SS}, v{SS+2}', f'v_add_f32 v{SS+1}, v{SS+1}, v{SS+3}',
                f'v_mov_b32 v{SS+2}, v{SS}', f'v_mov_b32 v{SS+3}, v{SS+1}',
                f'v_permlane32_swap_b32 v{SS}, v{SS+2}', f'v_permlane32_swap_b32 v{SS+1}, v{SS+3}',
                f'v_add_f32 v{SS}, v{SS}, v{SS+2}', f'v_add_f32 v{SS+1}, v{SS+1}, v{SS+3}',
                f'buffer_store_dwordx2 v[{SS}:{SS+1}], v27, s[12:15], s97 offen {SC} ; T:xs{P}',
                f'buffer_store_dwordx4 v[{X2P}:{X2P+3}], v2, s[12:15], s96 offen {SC} ; T:x2{P}']
        return out, marker
    adv = f'''
    s_add_u32 s95, s95, {HP}
    s_add_u32 s96, s96, {HP}
    s_add_u32 s97, s97, {HP}
    '''
    mfl = []; pre_ = {}; pins = {}
    for g in range(64):
        P = g // 32
        for j in range(4):
            c = ACC[P] + 16*j
            fb = FB + (g & 1)*16 + j*4
            ar = 128 + (g % 32)*4
            cc = '0' if g % 32 == 0 else f'v[{c}:{c+15}]'
            mfl.append(f'v_mfma_f32_32x32x16_bf16 v[{c}:{c+15}], v[{fb}:{fb+3}], a[{ar}:{ar+3}], {cc}')
        pre_[4*g] = [lambda g=g: T.wait(v=f'a{g}', d=f'f{g}')]
        if g + 1 < 64:
            br = breads(g + 1)
            if g == 15:
                pins[4*g] = [W(v='b3'), 's_barrier']
                pins[4*g+1] = br[:2]; pins[4*g+2] = br[2:]
            elif g == 50:
                pins[4*g] = ['s_barrier'] + br[:1]
                pins[4*g+1] = br[1:3]; pins[4*g+2] = br[3:]
            else:
                pins[4*g] = br[:2]; pins[4*g+1] = br[2:]
        if STK == 'TL' and g % 8 == 0 and g:
            pre_[4*g].insert(0, lambda g=g: S(3 + g // 8))
    qa = Q('A')
    iss, chk = poll_items(a, T, 'TPH', 25, 37)
    qa.at(4*(CKH - 6)); qa.add(iss); qa.at(4*CKH); qa.add(chk)
    qa.add(f's_mov_b32 s{SAO}, s60')
    for g in range(32, 64):
        qa.at(4*(g - 32) + 4); qa.atom(aload(g))
    qw = Q('wi')
    WI0 = int(E('WI0', '6')); WIS = int(E('WIS', '2')); WI2 = int(E('WI2', '50'))
    for i in range(32):
        qw.at(4*WI0 + WIS*i); qw.atom(wil(i))
    for i in range(32, 48):
        qw.at(max(4*WI2 + 2*(i - 32), 4*(32 + i - 32) + 4)); qw.atom(wil(i))
    qf = Q('fin')
    F1 = int(E('F1', '40')); F2 = int(E('F2', '43')); F3 = int(E('F3', '47')); F4 = int(E('F4', '50')); F5 = int(E('F5', '58')); F6 = int(E('F6', '62'))
    iss, chk = poll_items(a, T, 'TPD', 28, 78, 1, vd=29)
    qf.at(4*int(E('F0', '27'))); qf.add(iss)
    qf.at(128 + 3)
    qf.add(chk)
    qf.add(px_stores(0))
    qf.at(4*F1); qf.add(W(v='px0')); qf.atom(flag(92, 1, SF))
    iss, chk = poll_items(a, T, 'TPX0', 24, SGF, 1)
    qf.at(4*F2); qf.add(iss); qf.at(4*F3); qf.add(chk)
    for x in px_loads(0): qf.atom(x)
    qf.at(4*F4)
    fl, mk = fin(0, True)
    qf.add(fl[:mk]); qf.atom(flag(93, 1, SF)); qf.add(fl[mk:])
    iss, chk2 = poll_items(a, T, 'TPC', 24, 94, 1)
    qf.at(4*F5); qf.add(iss)
    qf.at(4*F6); qf.add(W(v='xs0')); qf.atom(flag(98, 1, SF)); qf.add(adv)
    run(a, mfl, 0, pre_, pins, [qa, qf, qs, qw], cap=int(E('OCAP', '20')))
    S(11)
    drain(a, [qa, qf, qs])
    chk2()
    for x in px_stores(1): a(x)
    S(12)
    drain(a, [qw])
    import k_tail2b
    k_tail2b.rest(a, T, S, locals())
```

```python
from k_common import *
from k_prep import WS_WOF, WS_WINF, WS_WOUTF, WS_MODF, WS_WSPF
from sched import *
import k_tail2 as K
from k_tail2 import *
import os
E = os.environ.get
I = lambda k, d: int(E(k, str(d)))

UVD = 4; UB = 64; NM = 80; RS = 88; Z1M = 96
PP = [100, 212]
XAB = [192, 128]; NXA = [8, 16]
TMB = [224, 32]
NM2 = 236; RS2 = 244
VC1 = 60; MK = 61; VZ1 = 0
VX = [16, 17]; VMF = 18; VST2 = 19; VQW = 22; VQR = 23; VFW = 25; VFR = 28; VZW = 29; VPW = 30; VZP = 31; VZ0 = 3
SF2 = 28; SXD = 29; SS2 = 30; SSP = [31, 33]; SC0 = 44; SZS = 45; SZP = 50; SZ2 = 54; SFZ = 59; SRB = [70, 71]

def spreg(i):
    return 192 + 4*i if i < 16 else (4*(i - 16) if i < 48 else 128 + 4*(i - 48))
def spl(i):
    r = spreg(i)
    x = f'buffer_load_dwordx4 a[{r}:{r+3}], v2, s[12:15], s{SSP[i & 1]} offen offset:{((i >> 1) & 1)*2048} ; T:sp{i}'
    if i % 4 == 3: x += f'\ns_add_u32 s{SSP[0]}, s{SSP[0]}, 4096\ns_add_u32 s{SSP[1]}, s{SSP[1]}, 4096'
    return x
def spd(i):
    j = i - 16
    base = [65, 65, 64, 64][j // 4]; hi = (j // 4) & 1
    off = ((i >> 1) & 1)*2048
    x = f's_add_u32 s38, s{base}, s36\ns_add_u32 m0, s38, {hi*32768 + (i & 1)*1024}\n'
    x += f'buffer_load_dwordx4 v2, s[12:15], s{SSP[i & 1]} offen offset:{off} lds ; T:sd{i}'
    if i % 4 == 3: x += f'\ns_add_u32 s{SSP[0]}, s{SSP[0]}, 4096\ns_add_u32 s{SSP[1]}, s{SSP[1]}, 4096'
    return x
def spr(i, va):
    j = i - 16
    r = spreg(i)
    return f'ds_read_b128 a[{r}:{r+3}], v{va[(j // 8)]} offset:{((j // 4) & 1)*32768 + ((i >> 1) & 1)*2048 + (i & 1)*1024} ; T:sr{i}'

def rest(a, T, S, L):
    fin = L['fin']; px_loads = L['px_loads']; W = L['W']
    a(f'''
    s_lshl_b32 s34, s{SY}, 2
    s_add_u32 s{SRB[0]}, s34, s{SRBI}          ; rb32 L
    s_sub_u32 s{SRB[1]}, 60, s34
    s_add_u32 s{SRB[1]}, s{SRB[1]}, s{SRBI}    ; rb32 H
    s_lshl_b32 s34, s{SRB[0]}, 2
    s_add_u32 s34, s34, s{SW}
    s_lshl_b32 s34, s34, 16
    s_add_u32 s34, s34, {WS_WSPF}
    s_lshr_b32 s38, s{SW}, 1
    s_lshl_b32 s38, s38, 10
    s_add_u32 s{SSP[0]}, s34, s38
    s_xor_b32 s{SSP[1]}, s{SSP[0]}, 1024
    v_add_u32 v{VMF}, {LB}, v2
    ''')
    NSE = I('NSE', 16)
    for i in range(NSE): a(spl(i))
    for ks in range(4):
        r = XAB[0] + 4*ks
        a(f'ds_read_b128 v[{r}:{r+3}], v{VMF} offset:{ks*1024} ; T:m{ks}')
    a(f'''
    s_lshl_b32 s34, s{SRBI}, 7
    s_lshl_b32 s38, s{SW}, 5
    s_add_u32 s34, s34, s38
    s_add_u32 s34, s34, s{SLOC}
    s_add_u32 s{SF2}, s34, {FX2}
    s_lshl_b32 s34, s{SRBI}, 19
    s_add_u32 s{SHA}, s34, s{SHA}
    s_add_u32 s{SXD}, s{SHA}, s36
    s_add_u32 s{SXD}, s{SXD}, {H_XS}
    s_lshl_b32 s34, s{SW}, 11
    s_add_u32 s34, s34, s{SHA}
    s_add_u32 s{SS2}, s34, {H_ST}
    s_mov_b32 s{SC0}, 0xc0135761
    v_mov_b32 v{VC1}, 0xbdd2d3e8
    v_add_u32 v{VX[0]}, s62, v2
    v_add_u32 v{VX[1]}, s63, v2
    v_lshlrev_b32 v{VST2}, 5, v1
    s_cmp_ge_u32 s{SW}, 2
    s_cbranch_scc1 TL_WB
    ''')
    snap = T.snap()
    def zpoll(tag, t0=56, t1=57):
        G = NM2
        ld = f'''
        buffer_load_dwordx4 v[{G}:{G+3}], v{VZP}, s[12:15], s{SZP} offen sc0 sc1 ; T:{tag}
        buffer_load_dwordx4 v[{G+4}:{G+7}], v{VZP}, s[12:15], s{SZP} offen offset:16 sc0 sc1 ; T:{tag}
        '''
        ck = f'''
        v_and_b32 v{t1}, v{G+1}, v{G+3}
        v_and_b32 v{t0}, v{G+5}, v{G+7}
        v_and_b32 v{t1}, v{t1}, v{t0}
        v_cmp_gt_i32 vcc, 0, v{t1}
        s_cmp_eq_u64 vcc, -1
        '''
        def chk():
            T.wait(v=tag)
            a(ck + f's_cbranch_scc0 {tag}_S')
            a.raw(f'{tag}_R:')
        chk.cost = 20
        def f():
            a.label(f'{tag}_S')
            a('s_mov_b32 s39, 0')
            a.label(f'{tag}_L')
            a(ld + 's_add_u32 s39, s39, 1\ns_waitcnt vmcnt(0)' + ck + f'''
            s_cbranch_scc1 {tag}_R
            s_cmp_lt_u32 s39, {SPIN}
            s_cbranch_scc1 {tag}_L
            s_branch {tag}_R
            ''')
        K._ool.append(f)
        return ld, chk
    def znorm(P, tag):
        G = NM2
        out = lines(f'''
        v_add_f32 v{G}, v{G}, v{G+2}
        v_add_f32 v{G+1}, v{G+1}, v{G+3}
        v_add_f32 v{G+4}, v{G+4}, v{G+6}
        v_add_f32 v{G+5}, v{G+5}, v{G+7}
        v_add_f32 v{G}, v{G}, v{G+4}
        v_add_f32 v{G+1}, v{G+1}, v{G+5}
        v_mov_b32 v{G+2}, v{G}
        v_mov_b32 v{G+3}, v{G+1}
        v_permlane32_swap_b32 v{G}, v{G+2}
        v_permlane32_swap_b32 v{G+1}, v{G+3}
        v_add_f32 v{G}, v{G}, v{G+2}
        v_add_f32 v{G+1}, v{G+1}, v{G+3}
        v_mul_f32 v{G}, 0xbabe82fa, v{G}
        v_mul_f32 v{G+1}, 0xbabe82fa, v{G+1}
        v_fma_f32 v{G+1}, -v{G}, v{G}, v{G+1}
        v_max_f32 v{G+1}, 0, v{G+1}
        v_add_f32 v{G+1}, 0x3727c5ac, v{G+1}
        v_rsq_f32 v{G+1}, v{G+1}
        v_mul_f32 v{G}, v{G}, v{G+1}
        ds_write_b32 v{VFW}, v{G} offset:{L_FS2(P)}
        ds_write_b32 v{VFW}, v{G+1} offset:{L_FS2(P)+256} ; T:f2w{tag}
        ''')
        out.append(W(d=f'f2w{tag}'))
        for rt in range(2):
            out += [f'ds_read_b128 v[{NM2+4*rt}:{NM2+4*rt+3}], v{VFR} offset:{L_FS2(P) + rt*64} ; T:g{tag}',
                    f'ds_read_b128 v[{RS2+4*rt}:{RS2+4*rt+3}], v{VFR} offset:{L_FS2(P) + 256 + rt*64} ; T:g{tag}']
        out.append(W(d=f'g{tag}'))
        for t in range(2):
            c = PP[P] + 8*t
            for i in range(8):
                out.append(f'v_fma_f32 v{c+i}, v{c+i}, v{RS2+i}, v{NM2+i}')
            for i in range(4):
                out.append(f'v_cvt_pk_bf16_f32 v{c+i}, v{c+2*i}, v{c+2*i+1}')
            out.append(f'buffer_store_dwordx4 v[{c}:{c+3}], v{[VZ0, VZ1][t]}, s[12:15], s{SZ2} offen {SG} ; T:z2s{P}')
        return out
    def zaddr(P):
        return f'''
        s_lshl_b32 s{SZP}, s{SRBI}, 11
        s_add_u32 s{SZP}, s{SZP}, s{SLOC}
        s_add_u32 s{SZP}, s{SZP}, {L_ZST + P*8192}
        s_lshl_b32 s{SZS}, s{SN8}, 3
        s_add_u32 s{SZS}, s{SZS}, s{SZP}
        '''
    def z2addr(P):
        return f'''
        s_lshl_b32 s34, s{SN8}, 6
        s_add_u32 s34, s34, s{SRB[P]}
        s_lshl_b32 s{SFZ}, s34, 4
        s_mul_i32 s34, s34, 6144
        s_add_u32 s{SZ2}, s34, {WS_Z2F}
        s_lshl_b32 s34, s{SW}, 2
        s_add_u32 s{SFZ}, s{SFZ}, s34
        s_add_u32 s{SFZ}, s{SFZ}, {FZ}
        '''
    SA = 32; ZB = 128; NZ = I('NZ', 7)
    VZL = [16, 17]; VFP = 18; SZL = 29; SFP = 28
    def zl(ks):
        out = []
        for blk in range(3):
            r = ZB + (ks % NZ)*12 + 4*blk
            x = f'buffer_load_dwordx4 v[{r}:{r+3}], v{VZL[blk == 2]}, s[12:15], s{SZL} offen offset:{blk*1024} ; T:z{ks}'
            if blk == 2: x += f'\ns_add_u32 s{SZL}, s{SZL}, {3072 if ks != 15 else 3072*49}'
            out.append(x)
        return out
    def wphase(kinds, tg):
        T.restore(snap)
        def mf(t, ks, x, c, first):
            w = (t*16 + ks)*4
            cc = '0' if first else f'v[{c}:{c+3}]'
            if kinds[t] == 2:
                return f'v_mfma_f32_16x16x32_bf16 v[{c}:{c+3}], v[{x}:{x+3}], a[{w}:{w+3}], {cc}'
            return f'v_mfma_f32_16x16x32_bf16 v[{c}:{c+3}], a[{w}:{w+3}], v[{x}:{x+3}], {cc}'
        ub = {}; n = 0
        for t in range(3):
            if kinds[t] == 1:
                ub[t] = UB + 8*n; n += 1
        qs = Q('s')
        qs.add(f'''
        s_lshl_b32 s34, s{SW}, 8
        s_add_u32 s34, s34, {LB}
        v_lshrrev_b32 v56, 1, v1
        v_lshl_add_u32 v{VQW}, v56, 3, s34         ; LB + w*256 + (l>>1)*8
        v_lshlrev_b32 v{VQR}, 3, v20
        v_add_u32 v{VQR}, {LB}, v{VQR}
        v_bfe_u32 v56, v1, 2, 1
        v_lshlrev_b32 v56, 7, v56
        v_lshrrev_b32 v59, 4, v1                   ; g
        v_lshl_add_u32 v56, v59, 5, v56
        v_and_b32 v{VPW}, 3, v1
        v_lshl_add_u32 v56, v{VPW}, 3, v56
        v_bfe_u32 v{VPW}, v1, 3, 1
        v_lshl_add_u32 v56, v{VPW}, 2, v56
        v_add_u32 v{VPW}, s34, v56
        s_lshl_b32 s34, s{SW}, 9
        s_add_u32 s34, s34, {LB}
        v_lshl_add_u32 v{VFW}, v20, 2, s34
        v_lshl_add_u32 v{VFR}, v59, 4, s34         ; LB + w*512 + g*16
        v_and_b32 v56, 15, v1
        v_mul_u32_u24 v{VZW}, {Z1S}, v56
        v_lshl_add_u32 v{VZW}, v59, 3, v{VZW}      ; (l%16)*Z1S + g*8
        v_lshl_add_u32 v{VZP}, v21, 5, v27         ; row*64 + h*32
        v_mul_u32_u24 v{VZ0}, 3072, v21
        v_bfe_u32 v59, v1, 4, 1
        v_lshl_add_u32 v{VZ0}, v59, 9, v{VZ0}
        v_lshl_add_u32 v{VZ0}, v56, 4, v{VZ0}
        s_mov_b32 s52, 0xcccccccc
        s_mov_b32 s53, 0xcccccccc
        s_mov_b32 s60, 0xaaaaaaaa
        s_mov_b32 s61, 0xaaaaaaaa
        s_lshl_b32 s34, s{SW}, 3
        s_mov_b64 s[66:67], 0xff
        s_lshl_b64 s[66:67], s[66:67], s34
        ''')
        if kinds[1] == 2:
            qs.add(f'''
            s_lshl_b32 s34, s{SW}, 5
            s_add_u32 s34, s34, {LB}
            v_add_u32 v{VZW}, s34, v{VZW}
            s_lshl_b32 s34, s{SW}, 10
            v_add_u32 v{VZ0}, s34, v{VZ0}
            v_add_u32 v{VZ1}, 256, v{VZ0}
            ''')
        else:
            qs.add(f'''
            s_lshl_b32 s34, s{SW}, 6
            s_add_u32 s34, s34, {LB - 64}
            v_add_u32 v{VZW}, s34, v{VZW}
            s_cmp_eq_u32 s{SN8}, 7
            s_cselect_b32 s34, 8, 16
            s_lshl_b32 s38, s{SW}, 3
            s_sub_u32 s38, s38, 16
            s_sub_u32 s34, s34, s38
            v_cmp_gt_u32 vcc, s34, v56
            v_cndmask_b32 v{MK}, 0, 1.0, vcc
            s_lshl_b32 s34, s3, 8
            s_add_u32 s34, s34, 2048
            v_add_u32 v{VZ0}, s34, v{VZ0}
            v_mov_b32 v{VZ1}, {OOB}
            ''')
        qs.add(zaddr(0)); qs.add(z2addr(0))
        XA = XAB[0]
        mfl = []; pre = {}; pins = {}
        for ks in range(16):
            for t in range(3):
                sl = len(mfl)
                mfl.append(mf(t, ks, XA + 4*(ks % 8), UVD + 4*t, ks == 0))
                if t == 0:
                    pre[sl] = [W(d=f'm{ks}', v=f'wi{32+ks}')]
                    if ks + 4 < 16:
                        r = XA + 4*((ks + 4) % 8)
                        pins[sl] = [f'ds_read_b128 v[{r}:{r+3}], v{VMF} offset:{(ks+4)*1024} ; T:m{ks+4}']
        iss, chkL = poll_items(a, T, tg + 'X2L', 24, SF2, 1)
        pins.setdefault(I('U1', 40), []).append(iss)
        run(a, mfl, 0, pre, pins, [qs], cap=12)
        drain(a, [qs])
        for t in ub:
            for r in range(4):
                a(f'''
                v_mov_b32_dpp v{ub[t]+r}, v{UVD+4*t+r} row_newbcast:0 row_mask:0xf bank_mask:0xf
                v_mov_b32_dpp v{ub[t]+4+r}, v{UVD+4*t+r} row_newbcast:1 row_mask:0xf bank_mask:0xf
                ''')
        S(13)
        T.wait(v='px1')
        S(14)
        a(flag(92, 2, SF))
        def xdma(P):
            TM = TMB[P]
            out = []
            for rt in range(2):
                x = f's_add_u32 s38, s{62+P}, s36\n' if rt == 0 else ''
                x += f's_add_u32 m0, s38, {rt*32768}\n'
                for i in range(4):
                    x += f'buffer_load_dwordx4 v2, s[12:15], s{SXD} offen offset:{i*1024} {SL} lds ; T:xd{P}\n'
                x += f's_add_u32 s{SXD}, s{SXD}, {16384 if rt == 0 else HP - 16384}\n'
                if rt == 0:
                    x += f'''
                    buffer_load_dwordx4 v[{TM}:{TM+3}], v{VST2}, s[12:15], s{SS2} offen {SL} ; T:qs{P}
                    buffer_load_dwordx4 v[{TM+4}:{TM+7}], v{VST2}, s[12:15], s{SS2} offen offset:16 {SL} ; T:qs{P}
                    s_add_u32 s{SS2}, s{SS2}, {HP}
                    '''
                out.append(x)
            return out
        def xstat(P):
            TM = TMB[P]
            return [W(v=f'qs{P}')] + lines(f'''
            v_add_f32 v{TM}, v{TM}, v{TM+2}
            v_add_f32 v{TM+1}, v{TM+1}, v{TM+3}
            v_add_f32 v{TM+4}, v{TM+4}, v{TM+6}
            v_add_f32 v{TM+5}, v{TM+5}, v{TM+7}
            v_add_f32 v{TM}, v{TM}, v{TM+4}
            v_add_f32 v{TM+1}, v{TM+1}, v{TM+5}
            v_add_f32_dpp v{TM+2}, v{TM}, v{TM} quad_perm:[1,0,3,2] row_mask:0xf bank_mask:0xf
            v_add_f32_dpp v{TM+3}, v{TM+1}, v{TM+1} quad_perm:[1,0,3,2] row_mask:0xf bank_mask:0xf
            ds_write_b64 v{VQW}, v[{TM+2}:{TM+3}] offset:{L_QS(P)} ; T:qw{P}
            ''')
        def rowstat(P, q):
            TM = TMB[P]
            for i in range(4):
                q.add(f'ds_read_b64 v[{TM+2*i}:{TM+2*i+1}], v{VQR} offset:{L_QS(P) + i*256} ; T:q4{P}')
            q.at(6)
            q.add(W(d=f'q4{P}'))
            q.add(f'''
            v_add_f32 v{TM}, v{TM}, v{TM+2}
            v_add_f32 v{TM+1}, v{TM+1}, v{TM+3}
            v_add_f32 v{TM+4}, v{TM+4}, v{TM+6}
            v_add_f32 v{TM+5}, v{TM+5}, v{TM+7}
            v_add_f32 v{TM}, v{TM}, v{TM+4}
            v_add_f32 v{TM+1}, v{TM+1}, v{TM+5}
            v_mul_f32 v{Z1M}, 0xbb000000, v{TM}
            v_mul_f32 v{TM+1}, 0x3b000000, v{TM+1}
            v_fma_f32 v{TM+1}, -v{Z1M}, v{Z1M}, v{TM+1}
            v_max_f32 v{TM+1}, 0, v{TM+1}
            v_add_f32 v{TM+1}, 0x3727c5ac, v{TM+1}
            v_rsq_f32 v{Z1M+1}, v{TM+1}
            ds_write_b32 v{VFW}, v{Z1M} offset:{L_FS(P)}
            ds_write_b32 v{VFW}, v{Z1M+1} offset:{L_FS(P)+256} ; T:fw{P}
            v_mov_b32 v{Z1M+2}, v{Z1M}
            v_mov_b32 v{Z1M+3}, v{Z1M+1}
            ''')
            q.at(16)
            q.add(W(d=f'fw{P}'))
            for rt in range(2):
                q.add(f'''
                ds_read_b128 v[{NM+4*rt}:{NM+4*rt+3}], v{VFR} offset:{L_FS(P) + rt*64} ; T:fs{P}
                ds_read_b128 v[{RS+4*rt}:{RS+4*rt+3}], v{VFR} offset:{L_FS(P) + 256 + rt*64} ; T:fs{P}
                ''')
            q.add(f'''
            v_permlane16_swap_b32 v{Z1M}, v{Z1M+2}
            v_permlane16_swap_b32 v{Z1M+1}, v{Z1M+3}
            ''')
            q.at(26)
            q.add(W(d=f'fs{P}'))
        def epi(P, items, tb):
            out = []
            regs = [(t, rt, PP[P] + 8*t + 4*rt, tb + 4*n_) for n_, (t, rt) in enumerate(items)]
            for (t, rt, c, x) in regs:
                for i in range(4):
                    if kinds[t] == 2:
                        out.append(f'v_fma_f32 v{c+i}, v{NM+4*rt+i}, v{UVD+4*t}, v{c+i}')
                    else:
                        out.append(f'v_fma_f32 v{c+i}, v{Z1M+2*rt}, v{ub[t]+i}, v{c+i}')
            for (t, rt, c, x) in regs:
                for i in range(4):
                    if kinds[t] == 2:
                        out.append(f'v_fma_f32 v{c+i}, v{RS+4*rt+i}, v{c+i}, v{UVD+4*t+1}')
                    else:
                        out.append(f'v_fma_f32 v{c+i}, v{Z1M+2*rt+1}, v{c+i}, v{ub[t]+4+i}')
            for f in ('v_mul_f32 v{x}, v{c}, v{c}', f'v_fma_f32 v{{x}}, v{{x}}, v{VC1}, s{SC0}', 'v_mul_f32 v{x}, v{x}, v{c}',
                      'v_exp_f32 v{x}, v{x}', 'v_add_f32 v{x}, 1.0, v{x}', 'v_rcp_f32 v{x}, v{x}', 'v_mul_f32 v{c}, v{c}, v{x}'):
                for (t, rt, c, x) in regs:
                    for i in range(4):
                        out.append(f.format(x=x+i, c=c+i))
            for (t, rt, c, x) in regs:
                if kinds[t] == 1:
                    co = 32 if (kinds[1] == 1 and t == 2) else 0
                    out += [f'v_cvt_pk_bf16_f32 v{x}, v{c}, v{c+1}', f'v_cvt_pk_bf16_f32 v{x+1}, v{c+2}, v{c+3}',
                            f'ds_write_b64 v{VZW}, v[{x}:{x+1}] offset:{(P*32 + rt*16)*Z1S + co} ; T:z1w']
            return out
        def stat(P, rt, SQ):
            c0 = PP[P] + 4*rt; c1 = c0 + 8
            out = []
            for i in range(4):
                s = SQ + 4*rt + i; qq = SQ + 8 + 4*rt + i
                if kinds[1] == 2:
                    out += [f'v_add_f32 v{s}, v{c0+i}, v{c1+i}', f'v_mul_f32 v{qq}, v{c0+i}, v{c0+i}']
                else:
                    out += [f'v_mul_f32 v{s}, v{c0+i}, v{MK}']
            for i in range(4):
                s = SQ + 4*rt + i; qq = SQ + 8 + 4*rt + i
                if kinds[1] == 2:
                    out += [f'v_fmac_f32 v{qq}, v{c1+i}, v{c1+i}']
                else:
                    out += [f'v_mul_f32 v{qq}, v{s}, v{s}']
            return out
        def zpub(P, SQ, B, st0):
            out = []
            for i in range(8):
                out.append(f'v_add_f32_dpp v{B+i}, v{SQ+i}, v{SQ+i} row_ror:8 row_mask:0xf bank_mask:0x3')
            for i in range(8):
                out.append(f'v_add_f32_dpp v{B+i}, v{SQ+8+i}, v{SQ+8+i} row_ror:8 row_mask:0xf bank_mask:0xc')
            for i in range(4):
                out.append(f'v_add_f32_dpp v{SQ+i}, v{B+i}, v{B+i} row_half_mirror row_mask:0xf bank_mask:0x5')
            for i in range(4):
                out.append(f'v_add_f32_dpp v{SQ+i}, v{B+4+i}, v{B+4+i} row_half_mirror row_mask:0xf bank_mask:0xa')
            for i in range(2):
                out.append(f'v_cndmask_b32_e64 v{B+i}, v{SQ+i}, v{SQ+2+i}, s[52:53]')
                out.append(f'v_cndmask_b32_e64 v{B+2+i}, v{SQ+2+i}, v{SQ+i}, s[52:53]')
            for i in range(2):
                out.append(f'v_add_f32_dpp v{SQ+i}, v{B+2+i}, v{B+i} quad_perm:[2,3,0,1] row_mask:0xf bank_mask:0xf')
            out += [f'v_cndmask_b32_e64 v{B}, v{SQ}, v{SQ+1}, s[60:61]',
                    f'v_cndmask_b32_e64 v{B+1}, v{SQ+1}, v{SQ}, s[60:61]',
                    f'v_add_f32_dpp v{SQ}, v{B+1}, v{B} quad_perm:[1,0,3,2] row_mask:0xf bank_mask:0xf',
                    f'ds_write_b32 v{VPW}, v{SQ} offset:{L_PS(P)} ; T:psw{P}']
            def bar():
                T.wait(d=f'psw{P}'); S(st0); a('s_barrier')
            out.append(bar)
            for i in range(4):
                out.append(f'ds_read_b64 v[{B+2*i}:{B+2*i+1}], v{VQR} offset:{L_PS(P) + i*256} ; T:psr{P}')
            out.append(W(d=f'psr{P}'))
            out += lines(f'''
            v_add_f32 v{B}, v{B}, v{B+2}
            v_add_f32 v{B+1}, v{B+1}, v{B+3}
            v_add_f32 v{B+4}, v{B+4}, v{B+6}
            v_add_f32 v{B+5}, v{B+5}, v{B+7}
            v_add_f32 v{B}, v{B}, v{B+4}
            v_add_f32 v{B+1}, v{B+1}, v{B+5}
            v_or_b32 v{B+1}, 0x80000000, v{B+1}
            ''')
            out.append([f'''
            s_mov_b64 exec, s[66:67]
            buffer_store_dwordx2 v[{B}:{B+1}], v27, s[12:15], s{SZS} offen {SZ}
            s_mov_b64 exec, -1
            '''])
            out.append(lambda: S(st0 + 1))
            return out
        def qadd(q, items):
            for x in items:
                if isinstance(x, list): q.atom(x[0])
                else: q.add(x)
        z2t = [t for t in range(3) if kinds[t] == 2]
        z1t = [t for t in range(3) if kinds[t] == 1]
        def wmf(P, order, D=10):
            XA = XAB[P]; NX = NXA[P]
            mfl = []; pre = {}; pins = {}; last = {}
            reads = []; use = []
            prev = None; rbase = 0
            for (rt, ts) in order:
                if rt != prev:
                    rbase = len(reads)
                    for ks in range(16): reads.append((rt, ks)); use.append([])
                prev = rt
                for ks in range(16):
                    for t in ts:
                        j = rbase + ks
                        use[j].append(len(mfl))
                        mfl.append(mf(t, ks, XA + 4*(j % NX), PP[P] + 8*t + 4*rt, ks == 0))
                        last[(t, rt)] = len(mfl) - 1
            head = []
            for j, (rt, ks) in enumerate(reads):
                r = XA + 4*(j % NX)
                x = f'ds_read_b128 v[{r}:{r+3}], v{VX[P]} offset:{rt*32768 + ks*1024} ; T:x{P}_{j}'
                sl = use[j][0] - D
                if j >= NX: sl = max(sl, use[j - NX][-1])
                assert sl < use[j][0]
                if sl < 0: head.append(x)
                else: pins.setdefault(sl, []).append(x)
                pre.setdefault(use[j][0], []).append(W(d=f'x{P}_{j}'))
            return mfl, pre, pins, last, head
        chkL()
        S(15)
        for x in xdma(0): a(x)
        iss, chkX = poll_items(a, T, tg + 'PX1', 24, SGF, 2)
        for x in xstat(0): emit(a, x)
        if I('PXE', 1): a(iss)
        T.wait(v='xd0', d='qw0')
        S(16)
        a('s_barrier')
        mfl, pre, pins, last, head = wmf(0, [(0, [0, 1, 2]), (1, [0, 1, 2])])
        for x in head: a(x)
        TM = TMB[0]
        q0 = Q('st'); rowstat(0, q0)
        qf = Q('fin')
        if not I('PXE', 1): qf.add(iss)
        qf.at(I('G1', 4)); qf.add(chkX); qf.add(lambda: S(17))
        for x in px_loads(1): qf.atom(x)
        qf.at(I('G2', 40))
        fl, mk = fin(1, False)
        qf.add(fl); qf.add(lambda: S(18))
        qb = Q('bg')
        qb.at(I('G3', 20))
        for i in range(NSE, 16): qb.atom(spl(i))
        for i in range(16, 32): qb.atom(spd(i))
        q1 = Q('epi')
        SQ = TM + 8; B = TM + 24
        q1.at(last[(2, 0)] + 2)
        q1.add(epi(0, [(t, 0) for t in z2t], TM)); q1.add(stat(0, 0, SQ)); q1.add(epi(0, [(t, 0) for t in z1t], TM))
        q1.at(last[(2, 1)] + 2)
        q1.add(epi(0, [(t, 1) for t in z2t], TM)); q1.add(stat(0, 1, SQ))
        qadd(q1, zpub(0, SQ, B, 20))
        q1.add(epi(0, [(t, 1) for t in z1t], TM))
        run(a, mfl, 0, pre, pins, [q0, qf, qb, q1], cap=I('WCAP', 12))
        S(19)
        drain(a, [q0, qf, qb])
        G4 = I('G4', 60)
        for i in range(G4):
            x = q1.head(10**9)
            if x is None: break
            emit(a, q1.pop())
        T.wait(v='xs1')
        a('s_add_u32 s98, s98, 512\n' + flag(98, 1, SF))
        S(22)
        a(f's_add_u32 s{SF2}, s{SF2}, 512')
        drain(a, [q1])
        S(23)
        iss, chkH = poll_items(a, T, tg + 'X2H', 24, SF2, 1)
        zi, zc = zpoll(tg + 'ZL')
        a(iss); a(zi)
        chkH()
        S(24)
        for x in xdma(1): a(x)
        zc()
        S(25)
        zn = znorm(0, tg + 'L')
        for x in zn: emit(a, x)
        S(26)
        for x in xstat(1): emit(a, x)
        T.wait(v='xd1', d='qw1')
        S(27)
        a('s_barrier')
        mfl, pre, pins, last, head = wmf(1, [(0, [0, 1, 2]), (1, z2t), (1, z1t)])
        for x in head: a(x)
        TM = TMB[1]
        q0 = Q('st'); rowstat(1, q0)
        qf = Q('fz')
        qf.add(zaddr(1))
        qf.at(I('H1', 60)); qf.add(W(v='z2s0')); qf.atom(flag(SFZ, 1, SG)); qf.add(lambda: S(28)); qf.add(z2addr(1))
        q1 = Q('epi')
        SQ = TM + 8; B = PP[0]
        q1.at(last[(2, 0)] + 2)
        q1.add(epi(1, [(t, 0) for t in z2t], TM)); q1.add(stat(1, 0, SQ))
        q1.at(last[(z2t[-1], 1)] + 2)
        q1.add(epi(1, [(t, 1) for t in z2t], TM)); q1.add(stat(1, 1, SQ))
        qadd(q1, zpub(1, SQ, B, 30))
        q2 = Q('epi1')
        q2.at(last[(2, 0)] + 2)
        q2.add(epi(1, [(t, 0) for t in z1t], 192))
        q2.at(last[(2, 1)] + 2)
        q2.add(epi(1, [(t, 1) for t in z1t], 192))
        run(a, mfl, 0, pre, pins, [q0, qf, q1, q2], cap=I('WCAP', 12))
        S(29)
        drain(a, [q0, qf])
        a(f'''
        v_add_u32 v56, s36, v2
        v_add_u32 v59, s64, v56
        v_add_u32 v56, s65, v56
        ''')
        T.wait(v='sd31')
        for i in range(16, 32): a(spr(i, [56, 59]))
        a(f'''
        s_lshl_b32 s34, s{SN8}, 10
        s_lshl_b32 s38, s{SW}, 7
        s_add_u32 s34, s34, s38
        s_add_u32 s{SFP}, s34, {FZ}
        v_lshlrev_b32 v{VFP}, 2, v20
        ''')
        iss, chkZ = poll_items(a, T, tg + 'FZL', VFP, SFP, 1)
        a(iss)
        a(f'''
        s_lshl_b32 s34, s3, 4
        v_xor_b32 v58, s34, v20          ; col'
        v_lshlrev_b32 v{VZL[0]}, 4, v58
        v_lshl_add_u32 v{VZL[0]}, v21, 9, v{VZL[0]}
        s_cmp_eq_u32 s{SN8}, 7
        s_cselect_b32 s34, 8, 24
        v_cmp_gt_u32 vcc, s34, v58
        v_mov_b32 v{VZL[1]}, {OOB}
        v_cndmask_b32 v{VZL[1]}, v{VZL[1]}, v{VZL[0]}, vcc
        s_lshl_b32 s34, s{SN8}, 7
        s_lshl_b32 s38, s{SW}, 4
        s_add_u32 s34, s34, s38
        s_mul_i32 s34, s34, 3072
        s_add_u32 s{SZL}, s34, {WS_Z2F}
        ''')
        drain(a, [q1])
        chkZ()
        S(32)
        NZE = I('NZE', 5)
        for ks in range(NZE):
            for x in zl(ks): a(x)
        drain(a, [q2])
        for ks in range(NZE, NZ):
            for x in zl(ks): a(x)
        T.all_d()
        S(33)
    wphase([2, 2, 1], 'TA')
    sA = T.snap(); seqA = list(a.vm_seq[snap[0]:])
    a('s_branch TL_S')
    a.label('TL_WB')
    wphase([2, 1, 1], 'TB')
    sB = T.snap(); seqB = list(a.vm_seq[snap[0]:])
    ta = [x for x in seqA[sA[1] - snap[0]:]]; tb = [x for x in seqB[sB[1] - snap[0]:]]
    assert ta == tb, (ta, tb)
    a.label('TL_S')
    if STK == 'TL':
        a(f'v_mov_b32 v12, v{K.VST}')
        K.VST = 12
    GB = 212; X2R = 228; BS = 252
    SWO = [60, 61]
    def wol(i):
        r = (192 + 4*i) % 256
        x = f'buffer_load_dwordx4 a[{r}:{r+3}], v2, s[12:15], s{SWO[i & 1]} offen offset:{((i >> 1) & 1)*2048} ; T:wo{i}'
        if i % 4 == 3: x += f'\ns_add_u32 s{SWO[0]}, s{SWO[0]}, 4096\ns_add_u32 s{SWO[1]}, s{SWO[1]}, 4096'
        return x
    mfl = []; pre = {}; pins = {}
    for ks in range(32):
        for blk in range(3):
            for sl in range(2):
                c = SA + (sl*3 + blk)*16
                zb = ZB + (ks % NZ)*12 + 4*blk
                w = spreg(2*ks + sl)
                cc = '0' if ks == 0 else f'v[{c}:{c+15}]'
                mfl.append(f'v_mfma_f32_32x32x16_bf16 v[{c}:{c+15}], v[{zb}:{zb+3}], a[{w}:{w+3}], {cc}')
        pw = [W(v=f'z{ks}')]
        if ks < 8 or ks >= 16: pw.append(W(v=f'sp{2*ks+1}'))
        pre[6*ks] = pw
        k2 = ks - 1 + NZ
        if ks >= 1 and (k2 < 16 or (ks > 16 and k2 < 32)):
            for i, x in enumerate(zl(k2)): pins.setdefault(6*ks + i, []).append(x)
    qz = Q('z')
    zi, zc = zpoll('TZH', 11, 15)
    qz.at(I('S1', 4)); qz.atom(zi); qz.at(I('S2', 20)); qz.add(zc); qz.add(lambda: S(34))
    qz.add(znorm(1, 'H')); qz.add(lambda: S(35))
    qz.at(I('S3', 70)); qz.add(W(v='z2s1')); qz.atom(flag(SFZ, 1, SG, vd=14)); qz.add(lambda: S(36))
    qb = Q('bg')
    qb.at(I('S4', 40))
    for i in range(32, 64): qb.atom(spl(i))
    qb.add(f'''
    s_lshl_b32 s34, s{SN8}, 2
    s_add_u32 s34, s34, s{SW}
    s_mul_i32 s34, s34, {24*1024}
    s_add_u32 s34, s34, {WS_WOUTF}
    s_lshl_b32 s38, s3, 10
    s_add_u32 s{SWO[0]}, s34, s38
    s_xor_b32 s38, s38, 1024
    s_add_u32 s{SWO[1]}, s34, s38
    s_add_u32 s{SFP}, s{SFP}, 512
    ''')
    qb.at(6*12 + 2)
    for i in range(24): qb.atom(wol(i))
    qb.add(f'''
    s_cmp_lt_u32 s{SW}, 2
    s_cselect_b32 s52, s{SRB[0]}, s{SRB[1]}
    s_lshr_b32 s53, s{SW}, 1
    s_lshl_b32 s53, s53, 24
    s_xor_b32 s81, s53, {HP}
    s_add_u32 s53, s53, s{SHA}
    s_add_u32 s81, s81, s{SHA}
    s_lshl_b32 s34, s{SN8}, 1
    s_add_u32 s34, s34, s3           ; c32 (U)
    s_lshl_b32 s35, s34, 7
    s_add_u32 s35, s35, {WS_MOD + 2560*4}
    s_lshl_b32 s37, s34, 11
    s_add_u32 s37, s37, s53
    s_add_u32 s37, s37, {H_X2}
    v_lshlrev_b32 v4, 4, v21
    v_lshlrev_b32 v5, 1, v20
    s_lshl_b32 s38, s52, 6
    buffer_load_ushort v{BS}, v5, s[24:27], s38 offen ; T:mi
    ''')
    run(a, mfl[:96], 0, pre, pins, [qz, qb], cap=I('SCAP', 20))
    S(37)
    drain(a, [qz, qb])
    for q in range(4):
        a(f'buffer_load_dwordx4 v[{GB+4*q}:{GB+4*q+3}], v4, s[12:15], s35 offen offset:{q*32} ; T:mi')
    S(38)
    a('s_mov_b32 s39, 0')
    a.label('TL_FZH')
    a(f'''
    buffer_load_dword v15, v{VFP}, s[12:15], s{SFP} offen sc1
    s_add_u32 s39, s39, 1
    s_waitcnt vmcnt(0)
    v_cmp_ne_u32 vcc, 0, v15
    s_cmp_eq_u64 vcc, -1
    s_cbranch_scc1 TL_FZHD
    s_cmp_lt_u32 s39, {SPIN}
    s_cbranch_scc1 TL_FZH
    ''')
    a.label('TL_FZHD')
    T.vdone = len(a.vm_seq)
    S(39)
    for ks in range(16, 16 + NZ):
        for x in zl(ks): a(x)
    qc = Q('c')
    qc.at(6*27)
    for qp in range(2):
        qc.add(f'buffer_load_dwordx4 v[{X2R+4*qp}:{X2R+4*qp+3}], v2, s[12:15], s37 offen offset:{qp*1024} {SL} ; T:mi')
    for d in range(1, 4):
        qc.add(f'''
        s_xor_b32 s34, s{SW}, {d}
        s_mul_i32 s34, s34, 18432
        v_add_u32 v{5+d}, s34, v2
        ''')
    qc.add(f'''
    s_mul_i32 s34, s{SW}, 18432
    v_add_u32 v9, s34, v2
    s_lshr_b32 s34, s{SW}, 1
    s_lshl_b32 s34, s34, 5
    v_add_u32 v10, s34, v20
    v_mul_u32_u24 v10, {Z1S}, v10
    v_lshl_add_u32 v10, v21, 3, v10
    s_lshl_b32 s34, s3, 5
    s_add_u32 s34, s34, {LB}
    v_add_u32 v10, s34, v10
    s_mul_i32 s34, s{SN8}, 6144
    s_lshl_b32 s38, s3, 10
    s_add_u32 s34, s34, s38
    s_add_u32 s34, s34, s53
    s_add_u32 s28, s34, {H_YF}       ; y store
    s_add_u32 s29, s28, 4096
    s_lshl_b32 s34, s{SRBI}, 7
    s_add_u32 s34, s34, s{SLOC}
    s_add_u32 s34, s34, {FY}
    s_lshl_b32 s30, s{SN8}, 4
    s_lshl_b32 s38, s{SW}, 2
    s_add_u32 s30, s30, s38
    s_add_u32 s30, s30, s34
    s_lshl_b32 s38, s{SW}, 5
    s_add_u32 s31, s34, s38
    s_mul_i32 s34, s{SW}, 12288
    s_add_u32 s34, s34, {H_YF}
    s_add_u32 s32, s34, s53
    s_add_u32 s33, s34, s81          ; y slot 1
    v_lshlrev_b32 v{BS}, 16, v{BS}
    ''')
    pre[96].append(lambda: S(40))
    run(a, mfl[96:], 96, pre, pins, [qc], cap=I('SCAP', 20))
    S(41)
    drain(a, [qc])
    a('s_barrier')
    for d, (sl, ro) in enumerate([(0, 8), (1, 0), (1, 8)]):
        for blk in range(3):
            for i in range(2):
                r = SA + (sl*3 + blk)*16 + ro + 4*i
                a(f'ds_write_b128 v{6+d}, v[{r}:{r+3}] offset:{L_RX + d*6144 + blk*2048 + i*1024} ; T:rxw')
    Z1R = 200
    for blk in range(3):
        for q in range(2):
            a(f'ds_read_b64 v[{Z1R+4*blk+2*q}:{Z1R+4*blk+2*q+1}], v10 offset:{blk*64 + q*16} ; T:z1r')
    for blk in range(3):
        for i in range(8):
            a(f'v_add_f32 v{SA+blk*16+i}, v{SA+blk*16+i}, v{BS}')
    T.wait(d='z1r')
    a('s_barrier')
    S(42)
    RR = 128
    for blk in range(3):
        for d in range(3):
            for i in range(2):
                r = RR + (blk*3 + d)*8 + 4*i
                a(f'ds_read_b128 v[{r}:{r+3}], v9 offset:{L_RX + d*6144 + blk*2048 + i*1024} ; T:rr{blk}')
    for blk in range(3):
        c = SA + blk*16
        for i in range(4):
            z = Z1R + 4*blk + i
            a(f'''
            v_lshlrev_b32 v{c+8+2*i}, 16, v{z}
            v_and_b32 v{c+9+2*i}, 0xffff0000, v{z}
            ''')
    for blk in range(3):
        T.wait(d=f'rr{blk}')
        c = SA + blk*16
        R0 = RR + blk*24
        for i in range(0, 8, 2):
            a(f'''
            v_pk_add_f32 v[{c+i}:{c+i+1}], v[{c+i}:{c+i+1}], v[{R0+i}:{R0+i+1}]
            v_pk_add_f32 v[{R0+8+i}:{R0+9+i}], v[{R0+8+i}:{R0+9+i}], v[{R0+16+i}:{R0+17+i}]
            ''')
        for i in range(0, 8, 2):
            a(f'v_pk_add_f32 v[{c+i}:{c+i+1}], v[{c+i}:{c+i+1}], v[{R0+8+i}:{R0+9+i}]')
        for i in range(0, 8, 2):
            a(f'v_pk_mul_f32 v[{c+i}:{c+i+1}], v[{c+i}:{c+i+1}], v[{c+8+i}:{c+9+i}]')
        for i in range(0, 8, 2):
            a(f'v_cvt_pk_bf16_f32 v{R0+i//2}, v{c+i}, v{c+i+1}')
        if blk < 2:
            a(f'buffer_store_dwordx4 v[{R0}:{R0+3}], v2, s[12:15], s28 offen offset:{blk*2048} {SC} ; T:ys')
        else:
            a(f'buffer_store_dwordx4 v[{R0}:{R0+3}], v2, s[12:15], s29 offen {SC} ; T:ys')
    S(43)
    XV = 236
    T.wait(v='mi')
    for i in range(8):
        a(f'''
        v_lshlrev_b32 v{XV+2*i}, 16, v{X2R+i}
        v_and_b32 v{XV+2*i+1}, 0xffff0000, v{X2R+i}
        ''')
    for d in range(1, 4):
        a(f'''
        s_xor_b32 s39, s{SW}, {d}
        s_mul_i32 s39, s39, 12288
        s_add_u32 s39, s39, {L_RX2}
        v_add_u32 v{5+d}, s39, v2
        ''')
    a(f'''
    s_mul_i32 s39, s{SW}, 12288
    s_add_u32 s39, s39, {L_RX2}
    v_add_u32 v9, s39, v2
    v_lshlrev_b32 v13, 10, v20
    v_lshl_add_u32 v13, v21, 4, v13  ; row*1024 + h*16
    s_lshl_b32 s34, s52, 15
    s_lshl_b32 s35, s{SN8}, 7
    s_add_u32 s34, s34, s35
    s_lshl_b32 s35, s3, 6
    s_add_u32 s34, s34, s35
    ''')
    T.wait(v='ys')
    S(44)
    a(flag(30, 1, SF, vd=14))
    a('s_mov_b32 s39, 0')
    a.label('TL_FY')
    a(f'''
    buffer_load_dword v15, v24, s[12:15], s31 offen sc1
    s_add_u32 s39, s39, 1
    s_waitcnt vmcnt(0)
    v_cmp_ne_u32 vcc, 0, v15
    s_cmp_eq_u64 vcc, -1
    s_cbranch_scc1 TL_FYD
    s_cmp_lt_u32 s39, {SPIN}
    s_cbranch_scc1 TL_FY
    ''')
    a.label('TL_FYD')
    T.vdone = len(a.vm_seq)
    S(45)
    UA = 64; YR = [128, 32]
    def yreg(ks, sl):
        n = 2*ks + sl
        return 128 + 4*n if n < 18 else 32 + 4*(n - 18)
    for ks in range(12):
        for sl in range(2):
            r = yreg(ks, sl)
            a(f'buffer_load_dwordx4 v[{r}:{r+3}], v2, s[12:15], s{32+sl} offen offset:{(ks % 4)*1024} {SL} ; T:yl{ks}')
        if ks % 4 == 3 and ks < 11:
            a('s_add_u32 s32, s32, 4096\ns_add_u32 s33, s33, 4096')
    for ks in range(12):
        T.wait(v=f'yl{ks}')
        if ks == 0: S(46)
        for sl in (1, 0):
            for c_ in (1, 0):
                c = UA + (sl*2 + c_)*16
                y = yreg(ks, sl)
                w = (192 + 4*(2*ks + c_)) % 256
                cc = '0' if ks == 0 else f'v[{c}:{c+15}]'
                a(f'v_mfma_f32_32x32x16_bf16 v[{c}:{c+15}], a[{w}:{w+3}], v[{y}:{y+3}], {cc}')
    S(47)
    for d in (3, 2, 1):
        for q in range(4):
            r = UA + d*16 + 4*q
            a(f'ds_write_b128 v{5+d}, v[{r}:{r+3}] offset:{(d-1)*4096 + q*1024} ; T:r2w')
    T.wait(d='r2w')
    a('s_barrier')
    S(48)
    for q in range(4):
        for d in range(3):
            r = RR + d*16 + 4*q
            a(f'ds_read_b128 v[{r}:{r+3}], v9 offset:{d*4096 + q*1024} ; T:r2r{q}')
    OP_ = 176
    for q in range(4):
        T.wait(d=f'r2r{q}')
        for i in (0, 2):
            o = UA + 4*q + i; p = RR + 4*q + i
            a(f'''
            v_pk_add_f32 v[{o}:{o+1}], v[{o}:{o+1}], v[{p}:{p+1}]
            v_pk_add_f32 v[{p+16}:{p+17}], v[{p+16}:{p+17}], v[{p+32}:{p+33}]
            ''')
        for i in (0, 2):
            o = UA + 4*q + i; p = RR + 4*q + i
            a(f'v_pk_add_f32 v[{o}:{o+1}], v[{o}:{o+1}], v[{p+16}:{p+17}]')
        for i in (0, 2):
            o = UA + 4*q + i
            a(f'v_pk_fma_f32 v[{o}:{o+1}], v[{o}:{o+1}], v[{GB+4*q+i}:{GB+4*q+i+1}], v[{XV+4*q+i}:{XV+4*q+i+1}]')
        for i in (0, 2):
            o = UA + 4*q + i
            a(f'v_cvt_pk_bf16_f32 v{OP_+2*q+i//2}, v{o}, v{o+1}')
        if q % 2 == 1:
            p = OP_ + 2*(q - 1)
            a(f'''
            v_permlane32_swap_b32 v{p}, v{p+2}
            v_permlane32_swap_b32 v{p+1}, v{p+3}
            buffer_store_dwordx4 v[{p}:{p+3}], v13, s[20:23], s34 offen offset:{(q//2)*32}
            ''')
    if STK == 'TL':
        S(49)
        a('s_waitcnt vmcnt(0)')
        S(50)
        a(f'''
        s_lshl_b32 s34, s2, 10
        s_lshl_b32 s35, s{SW}, 8
        s_add_u32 s34, s34, s35
        s_add_u32 s34, s34, 0x7000000
        v_lshlrev_b32 v3, 2, v1
        buffer_store_dword v{K.VST}, v3, s[12:15], s34 offen
        ''')
```

```python
import re
TRANS = ('v_exp_f32', 'v_log_f32', 'v_rcp_f32', 'v_rsq_f32', 'v_sqrt_f32')

class Trk:
    def __init__(self, a):
        self.a = a
        self.vbase = len(a.vm_seq); self.vdone = self.vbase
        self.dbase = len(a.ds_seq); self.ddone = self.dbase
    def snap(self):
        return (len(self.a.vm_seq), self.vdone, len(self.a.ds_seq), self.ddone)
    def restore(self, s):
        del self.a.vm_seq[s[0]:]; self.vdone = s[1]
        del self.a.ds_seq[s[2]:]; self.ddone = s[3]
    def _n(self, seq, base, done, tag):
        idx = [i for i in range(base, len(seq)) if seq[i] == tag]
        assert idx, tag
        last = idx[-1]
        if last < done: return None, done
        return len(seq) - 1 - last, last + 1
    def wait(self, v=None, d=None):
        parts = []
        if v is not None:
            n, self.vdone = self._n(self.a.vm_seq, self.vbase, self.vdone, v)
            if n is not None: parts.append(f'vmcnt({min(n, 63)})')
        if d is not None:
            n, self.ddone = self._n(self.a.ds_seq, self.dbase, self.ddone, d)
            if n is not None: parts.append(f'lgkmcnt({min(n, 15)})')
        if parts:
            self.a('s_waitcnt ' + ' '.join(parts))
            return 4
        return 0
    def all_v(self):
        self.a('s_waitcnt vmcnt(0)'); self.vdone = len(self.a.vm_seq)
    def all_d(self):
        self.a('s_waitcnt lgkmcnt(0)'); self.ddone = len(self.a.ds_seq)

def icost(x):
    if callable(x): return getattr(x, 'cost', 4)
    c = 0
    for l in x.strip().split('\n'):
        l = l.split(';')[0].strip()
        if not l: continue
        mn = l.split()[0]
        if mn in TRANS: c += 8
        elif mn.startswith('buffer_') or mn.startswith('global_'): c += 8
        elif mn.startswith('s_'): c += 2
        else: c += 4
    return c

def lines(txt):
    return [l.strip() for l in txt.strip().split('\n') if l.strip()]

class Q:
    def __init__(self, name=''):
        self.items = []; self.k = 0; self.name = name; self.log = []
    def at(self, slot):
        self.items.append(('at', slot)); return self
    def add(self, x):
        if isinstance(x, str): self.items += lines(x)
        elif callable(x): self.items.append(x)
        else:
            for y in x: self.add(y)
        return self
    def atom(self, x):
        self.items.append(x); return self
    def head(self, slot):
        while self.k < len(self.items) and isinstance(self.items[self.k], tuple):
            if slot < self.items[self.k][1]: return None
            self.k += 1
        return self.items[self.k] if self.k < len(self.items) else None
    def pop(self):
        x = self.items[self.k]; self.k += 1; return x
    def left(self):
        return sum(1 for x in self.items[self.k:] if not isinstance(x, tuple))

def emit(a, x):
    if callable(x):
        x()
    else:
        a(x)

def run(a, mf, base, pre, pins, queues, cap=24, caps=None, marks=None):
    caps = caps or {}
    for k, m in enumerate(mf):
        slot = base + k
        for x in pre.get(slot, []): emit(a, x)
        a(m)
        used = 0
        for x in pins.get(slot, []):
            emit(a, x); used += icost(x)
        c = caps.get(slot, cap)
        while True:
            for q in queues:
                x = q.head(slot)
                if x is not None and (used + icost(x) <= c or (used == 0 and c > 0)):
                    emit(a, q.pop()); used += icost(x)
                    if q.left() == 0: q.log.append(slot)
                    break
            else:
                break

def drain(a, queues, slot=10**9):
    n = 0
    for q in queues:
        while True:
            x = q.head(slot)
            if x is None: break
            emit(a, q.pop()); n += icost(x)
    return n
```

```python
import sys, os, importlib
from k_common import *
import k_kv7, k_prep, k_at
mods = [k_prep.gen_prep, k_kv7.gen_kv, k_at.gen_attn]
HEAD = open('adaLN_cond__compressed_kv_cla__mixer_gmlp__prompt.s.ref').read().split('\n')
hdr = [l for l in HEAD if l.startswith(';') and '@launch' not in l and 'Override launch' not in l and 'grid=ceil' not in l]
a = Asm()
infos = []
for g in mods:
    infos.append(g(a))
out = '\n'.join(hdr) + '\n'
for k in infos:
    out += f"; @launch kernel={k['name']} grid=({k['grid']},1,1) block=({k['block']},1,1) lds={k['lds']}\n"
out += '.amdgcn_target "amdgcn-amd-amdhsa--gfx950"\n.text\n'
out += a.text()
for nm in ['oproj_kernel', 'win_kernel', 'sp_kernel', 'wout_kernel']:
    out += nm + ':\n'
out += 'CODE_END:\n    s_endpgm\n'
out += '.section .rodata,"a"\n'
for k in infos:
    out += '.p2align 6\n' + kernel_desc(k['name'], k['vgpr'], accum=k.get('accum'))
dst = sys.argv[1]
open(dst, 'w').write(out)
print('wrote', dst, len(out))
```

```python
from k_common import *
from k_prep import WS_WOF, WS_WINF, WS_WOUTF, WS_MODF, WS_WSPF
from sched import *
import os
E = os.environ.get
STK = E('STK', '')
HA = int(E('HAB', str(WS_K)), 0)
HP = WS_VT - WS_K
H_XS, H_X2, H_YF, H_ST, H_PX = 0x38000, 0x30000, 0x40000, 0x2C000, 0x40000
WS_Z2F = 0x4800000
LOC = 0x40000; LOCS = 0x5000
L_ZST, FAH, FX2, FY, FD, HM = 0, 0x4000, 0x4800, 0x4C00, 0x4E00, 0x4F00
FAL, FZ, FXG = 0x68000, 0x6A000, 0x6C000
WS_PX = 0x8000000
SAH = 8
OOB = 0x40000000
LB = 131072; Z1S = 200
def L_QS(P): return 16384 + P*2048
def L_FS(P): return 20480 + P*2048
def L_PS(P): return 24576 + P*2048
def L_FS2(P): return 28672 + P*2048
L_RX = 0; L_RX2 = 73728
SC = ''; SG = 'sc1'; SL = 'sc1'
FORCE = int(E('FORCE', '0'))
SPIN = 0x8000
CKH = int(E('CKH', '24'))
TCH = E('TCH', '0:11:wi0,0:12:wi1,1:13:cx,1:14:ha,1:15:lf')
VST = 63
SW = 55; SY = 42; SIDX = 41; SN8 = 43; SRBI = 46; SNT = 47; SKS = 48; SHA = 49; SAO = 51; SC16 = 57; SGF = 58; SOK = 79
SPX = 84
SLOC = 80
WV = [52, 53]
PL = 'buffer_load_dword v57, v56, s[72:75], s35 offen sc1'
def kap(g):
    g %= 32
    c, sl = g // 8, g % 8
    return [2, 16, 0, 18][c] + (sl & 1) + ((sl >> 1) & 1)*4 + (sl >> 2)*8
_ool = []

def st(a, idx, T=None):
    if STK != 'TL': return
    if idx == 0:
        a(f'v_mov_b32 v{VST}, 0\nv_writelane_b32 v{VST}, s100, 0')
        idx = 1
    a(f"""
    s_memtime s[82:83]
    s_waitcnt lgkmcnt(0)
    v_writelane_b32 v{VST}, s82, {idx}
    """)
    if T is not None: T.ddone = len(a.ds_seq)

def home(a):
    srd(a, 72, 8, 9, 0x10000000)
    a(f'''
    s_getreg_b32 s45, hwreg(HW_REG_XCC_ID, 0, 4)
    s_xor_b32 s45, s45, s2
    s_and_b32 s45, s45, 7
    s_cmp_eq_u32 s45, 0
    s_cselect_b32 s45, {2 if FORCE else 1}, 2
    v_mov_b32 v2, s45
    s_and_b32 s45, s2, 7
    s_mul_i32 s45, s45, {LOCS}
    s_lshr_b32 s50, s2, 3
    s_lshl_b32 s50, s50, 2
    s_add_u32 s45, s45, s50
    s_add_u32 s45, s45, {LOC + HM}
    s_cmp_eq_u32 s55, 0
    s_cselect_b32 s45, s45, {OOB}
    buffer_store_dword v2, off, s[72:75], s45 sc1
    ''')

def home2(a, PFA):
    a(f'''
    v_cmp_eq_u32 vcc, 1, v59
    s_cmp_eq_u64 vcc, -1
    s_cselect_b32 s{SAH}, 1, 0
    s_cbranch_scc1 TL_HOME
    v_mov_b32 v{PFA[0]}, {OOB}
    v_mov_b32 v{PFA[1]}, {OOB}
    ''')
    a.label('TL_HOME')

def touch_setup(a, PFA, PFV):
    a(f'''
    s_and_b32 s90, s2, 7             ; y
    s_mul_i32 s94, s90, {LOCS}
    s_add_u32 s94, s94, {LOC + HM}
    v_lshlrev_b32 v58, 2, v2
    buffer_load_dword v59, v58, s[72:75], s94 offen sc1
    s_lshl_b32 s45, s90, 19
    s_and_b32 s50, s40, 3
    s_lshl_b32 s50, s50, 8
    s_add_u32 s45, s45, s50          ; w_o slice
    s_add_u32 s68, s68, s45
    s_addc_u32 s69, s69, 0
    s_lshl_b32 s35, s56, 1
    s_lshr_b32 s34, s55, 1
    s_add_u32 s35, s35, s34
    s_lshl_b32 s37, s35, 5           ; (p*2+w2)*32
    s_lshl_b32 s35, s35, 7
    s_lshl_b32 s34, s90, 4
    s_add_u32 s35, s35, s34
    s_add_u32 s35, s35, {FAL}
    s_add_u32 s37, s37, s94
    s_sub_u32 s37, s37, {HM - FAH}
    v_and_b32 v56, 3, v1
    v_lshlrev_b32 v56, 2, v56
    s_add_u32 s66, s59, 3
    s_cmp_lt_u32 s55, 2
    s_cselect_b32 s66, 99, s66
    s_lshl_b32 s67, s56, 1
    s_add_u32 s67, s67, s3
    s_lshl_b32 s67, s67, 5
    s_add_u32 s67, s67, s40
    s_lshl_b32 s67, s67, 2
    s_add_u32 s67, s67, {FAL}
    s_mov_b32 s70, {OOB}
    s_mov_b32 s71, {OOB}
    s_mov_b32 s81, {OOB}
    v_mov_b32 v{PFA[0]}, {OOB}
    v_mov_b32 v{PFA[1]}, {OOB}
    s_lshl_b32 s50, s55, 13
    v_lshlrev_b32 v{PFV}, 7, v1
    v_add_u32 v{PFV}, s50, v{PFV}
    s_lshr_b32 s91, s2, 3            ; idx
    s_and_b32 s92, s91, 7            ; n8
    s_lshr_b32 s93, s91, 3           ; rbi
    ''')
    for ent in [x for x in TCH.split(',') if x]:
        sm, it, kind = ent.split(':')
        k2, c = kind[:2], int(kind[2:] or 0)
        if k2 == 'cx' or k2 == 'cl':
            a(f'''
            s_sub_u32 s94, 15, s56
            s_lshl_b32 s94, {'s94' if k2 == 'cx' else 's56'}, 20
            s_lshl_b32 s50, s40, 15
            s_add_u32 s50, s50, s94
            s_add_u32 s50, s50, {WS_CTX}
            ''')
            if k2 == 'cl':
                a(f'''
                s_add_u32 s94, s59, {int(it) & 0xffffffff}
                s_max_i32 s94, s94, 0
                ''')
                it = 's94'
        elif k2 == 'ha':
            a(f'''
            s_lshl_b32 s50, s40, 19
            s_and_b32 s94, s56, 3
            s_lshl_b32 s94, s94, 15
            s_add_u32 s50, s50, s94
            s_lshr_b32 s94, s56, 2
            s_lshl_b32 s94, s94, 24
            s_add_u32 s50, s50, s94
            s_add_u32 s50, s50, {HA + 0x20000}
            ''')
        elif k2 == 'lf':
            a(f'''
            s_mul_i32 s50, s90, {LOCS}
            s_add_u32 s50, s50, {LOC}
            ''')
        elif k2 == 'wi':
            a(f'''
            s_lshl_b32 s50, s92, 2
            s_add_u32 s50, s50, s93
            s_mul_i32 s50, s50, {48*1024}
            s_add_u32 s50, s50, {WS_WINF + c*16384}
            ''')
        elif k2 == 'sp':
            a(f'''
            s_lshl_b32 s50, s90, 5
            s_add_u32 s50, s50, s91
            s_lshl_b32 s50, s50, 15
            s_add_u32 s50, s50, {WS_WSPF}
            ''')
        elif k2 == 'wu':
            a(f'''
            s_lshl_b32 s50, s92, 2
            s_add_u32 s50, s50, s93
            s_mul_i32 s50, s50, {24*1024}
            s_add_u32 s50, s50, {WS_WOUTF}
            ''')
        else:
            assert False, ent
        a(f'v_writelane_b32 v{PFA[int(sm)]}, s50, {it}')

NA0 = int(E('NA0', '4'))
def pre(a, VNZ):
    T = Trk(a)
    a.vm_seq += ['pl0'] + ['dma16']*10 + [None]*2
    a(f'''
    s_load_dwordx2 s[4:5], s[0:1], {ARG['A_x']}
    s_load_dwordx2 s[10:11], s[0:1], {ARG['out']}
    s_load_dwordx2 s[6:7], s[0:1], {ARG['B_b_sp']}
    s_mov_b64 s[12:13], s[72:73]
    s_mov_b64 s[14:15], s[74:75]
    s_and_b32 s{SY}, s2, 7
    s_lshr_b32 s{SIDX}, s2, 3
    s_and_b32 s{SN8}, s{SIDX}, 7
    s_lshr_b32 s{SRBI}, s{SIDX}, 3
    s_and_b32 s{SNT}, s{SIDX}, 3
    s_lshr_b32 s{SKS}, s{SIDX}, 2
    s_lshl_b32 s{SHA}, s{SY}, 21
    s_add_u32 s{SHA}, s{SHA}, {HA}
    s_mul_i32 s{SLOC}, s{SY}, {LOCS}
    s_add_u32 s{SLOC}, s{SLOC}, {LOC}
    s_lshl_b32 s78, s{SIDX}, 2
    s_add_u32 s78, s78, s{SLOC}
    s_add_u32 s78, s78, {FD}
    s_cmp_eq_u32 s{SW}, 0
    s_cselect_b32 s78, s78, {OOB}
    s_lshl_b32 s{SC16}, s{SNT}, 3
    s_add_u32 s{SC16}, s{SC16}, s{SKS}
    s_lshl_b32 s34, s{SY}, 17
    s_lshl_b32 s{SAO}, s{SW}, 13
    s_add_u32 s34, s34, s{SAO}
    s_add_u32 s34, s34, {WS_CTX}
    s_lshl_b32 s60, s56, 20
    s_add_u32 s{SAO}, s34, s60       ; A soffset (L)
    s_sub_u32 s60, s34, s60
    s_add_u32 s60, s60, {15 << 20}   ; A soffset (H)
    s_cmp_lt_u32 s{SW}, 2
    s_cselect_b32 s81, {OOB}, s67
    s_mov_b32 s59, s{SAO}
    ''')
    T.wait(v='pl0')
    a(f'''
    buffer_store_dword v{VNZ}, off, s[72:75], s81 sc1
    v_cmp_ne_u32 vcc, 0, v57
    s_cmp_eq_u64 vcc, -1
    s_cselect_b32 s{SOK}, 1, 0
    s_cselect_b32 s{SAO}, s{SAO}, {OOB}
    ''')
    for g in range(NA0): a(aload(g, 17))
    return T

def poll_l(a, T, VNZ):
    lflag(a, 78, 1)()
def poll2(a):
    a('buffer_load_dword v57, v56, s[12:15], s35 offen sc1 ; T:pl')

def aload(g, va=2):
    r = 128 + (g % 32)*4
    x = f'buffer_load_dwordx4 a[{r}:{r+3}], v{va}, s[12:15], s{SAO} offen offset:{(kap(g) % 4)*1024} ; T:a{g}'
    fo = lambda k: (k // 8)*32768 + ((k % 8)//4)*4096
    d = fo(kap(g + 1)) - fo(kap(g))
    if g % 32 != 31 and d > 0: x += f'\ns_add_u32 s{SAO}, s{SAO}, {d}'
    if g % 32 != 31 and d < 0: x += f'\ns_sub_u32 s{SAO}, s{SAO}, {-d}'
    return x

def ool(a):
    for f in _ool: f()

def spin(a, tag, va, so, need, T, vd=57):
    def f():
        a.label(f'{tag}_S')
        a('s_mov_b32 s39, 0')
        a.label(f'{tag}_L')
        n0 = len(a.vm_seq)
        a(f'''
        buffer_load_dword v{vd}, v{va}, s[12:15], s{so} offen sc1
        s_add_u32 s39, s39, 1
        s_waitcnt vmcnt(0)
        v_cmp_le_u32 vcc, {need}, v{vd}
        s_cmp_eq_u64 vcc, -1
        s_cbranch_scc1 {tag}_R
        s_cmp_lt_u32 s39, {SPIN}
        s_cbranch_scc1 {tag}_L
        s_branch {tag}_R
        ''')
    _ool.append(f)

def poll_items(a, T, tag, va, so, need=1, vd=57):
    iss = f'buffer_load_dword v{vd}, v{va}, s[12:15], s{so} offen sc1 ; T:{tag}'
    def chk():
        T.wait(v=tag)
        a(f'''
        v_cmp_le_u32 vcc, {need}, v{vd}
        s_cmp_eq_u64 vcc, -1
        s_cbranch_scc0 {tag}_S
        ''')
        a.raw(f'{tag}_R:')
    chk.cost = 12
    spin(a, tag, va, so, need, T, vd)
    return iss, chk

def flag(so, val, fl, vd=58):
    return f'''
    v_mov_b32 v{vd}, {val}
    s_mov_b64 exec, 1
    buffer_store_dword v{vd}, off, s[12:15], s{so} {fl}
    s_mov_b64 exec, -1
    '''

def lstore(a, txt):
    def f():
        lb = a.newlabel('TL_LF')
        a(f'''
        s_cmp_eq_u32 s{SAH}, 0
        s_cbranch_scc1 {lb}
        ''' + txt.replace('@', ''))
        a.raw(f'{lb}_R:')
        def o():
            a.label(lb)
            a('''
            s_waitcnt vmcnt(0)
            buffer_wbl2 sc1
            s_waitcnt vmcnt(0)
            ''' + txt.replace('@', 'sc0 sc1') + f'\ns_branch {lb}_R')
        _ool.append(o)
    f.cost = 20
    return f

def lflag(a, so, val, vd=58):
    return lstore(a, flag(so, val, '@', vd))

def main(a, T):
    S = lambda i: st(a, i, T)
    S(2)
    ACC = [64, 128]; FB = 192; BA = 4
    XT = 32; GA = 40; CB = 48
    a(f'''
    v_mov_b32 v2, v17
    ''')
    T.wait(v='dma16')
    a(f'''
    s_barrier
    s_add_u32 m0, s64, s36
    s_mov_b32 s34, {262144 + 32768}
    s_mov_b64 s[24:25], s[68:69]
    ''')
    for i in range(4):
        a(f'buffer_load_dwordx4 v{WV[0]}, s[24:27], s34 offen offset:{i*1024} lds ; T:b3')
    a('s_add_u32 m0, m0, 32768')
    for i in range(4):
        a(f'buffer_load_dwordx4 v{WV[1]}, s[24:27], s34 offen offset:{i*1024} lds ; T:b3')
    a(f'''
    s_mov_b32 s65, s62
    s_xor_b32 s62, s62, 0x10000
    s_xor_b32 s63, s64, 0x10000
    s_add_u32 m0, s65, s36
    s_add_u32 s34, s36, {WS_MODF}
    buffer_load_dwordx4 v{WV[0]}, s[24:27], 0 offen offset:3072 lds ; T:b3
    s_add_u32 m0, s36, {LB}
    ''')
    for i in range(4):
        a(f'buffer_load_dwordx4 v2, s[12:15], s34 offen offset:{i*1024} lds ; T:b3')
    a(f'''
    v_bfe_u32 v58, v1, 2, 2          ; r
    v_lshrrev_b32 v3, 5, v1
    v_lshlrev_b32 v3, 10, v3
    v_lshl_add_u32 v3, v58, 8, v3
    v_and_b32 v56, 3, v1
    v_lshl_add_u32 v3, v56, 3, v3
    v_bfe_u32 v56, v1, 4, 1
    v_lshl_add_u32 v3, v56, 5, v3
    ''')
    for j in range(4):
        a(f'''
        v_xor_b32 v56, {j}, v58
        v_lshl_add_u32 v56, v56, 6, v3
        ''')
        for q in range(4):
            a(f'v_add_u32 v{BA+4*q+j}, s{[62,63,65,64][q]}, v56')
    def breads(g):
        k = g % 32
        out = []
        for j in range(4):
            for jj in range(2):
                r = FB + (g & 1)*16 + j*4 + jj*2
                out.append(f'ds_read_b64_tr_b16 v[{r}:{r+1}], v{BA + 4*(k//8) + j} offset:{((k % 8)//4)*32768 + (k % 4)*4096 + jj*2048} ; T:f{g}')
        return out
    for x in breads(0): a(x)
    a(f'''
    s_lshl_b32 s34, s56, 1
    s_add_u32 s34, s34, s3
    s_lshl_b32 s34, s34, 1
    s_lshr_b32 s38, s{SW}, 1
    s_add_u32 s34, s34, s38
    s_lshl_b32 s34, s34, 2
    s_add_u32 s34, s34, s{SNT}
    s_lshl_b32 s34, s34, 2
    s_add_u32 s34, s34, s{SLOC}
    s_add_u32 s99, s34, {FAH}
    s_waitcnt lgkmcnt(0)
    ''')
    T.ddone = len(a.ds_seq)
    srd(a, 16, 4, 5, 2048*512*2)
    srd(a, 20, 10, 11, 2048*512*2)
    srd(a, 24, 6, 7, 4096)
    FH0 = int(E('FH0', '8'))
    if FH0 < 0:
        T.wait(v='ctx')
        lflag(a, 99, 1)()
    S(3)
    a(f'''
    s_cmp_eq_u32 s{SOK}, 0
    s_cbranch_scc1 TL_LATE
    ''')
    a.raw('TL_LATER:')
    def late():
        a.label('TL_LATE')
        a('s_mov_b32 s39, 0\nv_and_b32 v56, 3, v1\nv_lshlrev_b32 v56, 2, v56')
        a('s_waitcnt vmcnt(0)')
        lflag(a, 99, 1)()
        a.label('TL_LATEL')
        a(f'''
        v_cmp_ne_u32 vcc, 0, v57
        s_cmp_eq_u64 vcc, -1
        s_cbranch_scc1 TL_LATED
        buffer_load_dword v57, v56, s[12:15], s35 offen sc1
        s_add_u32 s39, s39, 1
        s_waitcnt vmcnt(0)
        s_cmp_lt_u32 s39, {SPIN}
        s_cbranch_scc1 TL_LATEL
        ''')
        a.label('TL_LATED')
        a(f's_mov_b32 s{SAO}, s59')
        for g in range(32): a(aload(g))
        a('s_waitcnt vmcnt(0)\ns_branch TL_LATER')
    _ool.append(late)
    qs = Q('setup')
    qs.add(f'''
    v_and_b32 v20, 31, v1            ; row
    v_lshrrev_b32 v21, 5, v1         ; h
    v_lshlrev_b32 v22, 10, v20
    v_lshl_add_u32 v22, v21, 3, v22  ; row*1024 + h*8
    v_lshlrev_b32 v23, 4, v21        ; h*16
    s_lshl_b32 s34, s{SY}, 2
    s_add_u32 s34, s34, s{SW}        ; rb32 L
    s_sub_u32 s38, 60, s34
    s_add_u32 s38, s38, s{SW}
    s_add_u32 s38, s38, s{SW}        ; rb32 H = 60 - 4y + w
    s_lshl_b32 s61, s{SC16}, 5
    s_lshl_b32 s34, s34, 15
    s_add_u32 s34, s34, s61
    s_lshl_b32 s38, s38, 15
    s_add_u32 s38, s38, s61
    s_lshl_b32 s61, s{SC16}, 6
    s_add_u32 s59, s61, {WS_MOD + 1024*4}
    s_add_u32 s61, s61, {WS_MOD + 2048*4}
    ''')
    for P in range(2):
        for q in range(2):
            qs.add(f'buffer_load_dwordx2 v[{XT+4*P+2*q}:{XT+4*P+2*q+1}], v22, s[16:19], s{[34,38][P]} offen offset:{q*16} ; T:cst')
    for q in range(2):
        qs.add(f'buffer_load_dwordx4 v[{GA+4*q}:{GA+4*q+3}], v23, s[12:15], s59 offen offset:{q*32} ; T:cst')
        qs.add(f'buffer_load_dwordx4 v[{CB+4*q}:{CB+4*q+3}], v23, s[12:15], s61 offen offset:{q*32} ; T:cst')
    qs.add(f'''
    s_lshl_b32 s34, s{SNT}, 2
    s_add_u32 s34, s34, s{SW}
    s_lshl_b32 s34, s34, 7
    s_add_u32 s34, s34, {FXG}
    s_lshl_b32 s{SGF}, s{SY}, 11
    s_add_u32 s{SGF}, s{SGF}, s34
    s_lshl_b32 s92, s56, 11
    s_add_u32 s92, s92, s34
    s_lshl_b32 s34, s{SY}, 2
    s_add_u32 s92, s92, s34
    s_lshl_b32 s34, s{SW}, 13
    s_add_u32 s34, s34, {WS_PX}
    s_lshl_b32 s84, s56, 20
    s_add_u32 s84, s84, s34
    s_lshl_b32 s38, s{SNT}, 18
    s_add_u32 s84, s84, s38
    s_lshl_b32 s38, s{SY}, 10
    s_add_u32 s84, s84, s38
    s_lshl_b32 s91, s{SY}, 20
    s_add_u32 s91, s91, s34
    s_lshl_b32 s38, s{SC16}, 15
    s_add_u32 s91, s91, s38
    s_add_u32 s78, s{SLOC}, {FD}
    v_and_b32 v24, 7, v1
    v_lshlrev_b32 v24, 2, v24        ; (lane&7)*4
    v_bfe_u32 v26, v1, 4, 1
    v_lshlrev_b32 v26, 14, v26
    v_lshl_add_u32 v26, v21, 8, v26
    v_and_b32 v27, 15, v1
    v_lshl_add_u32 v26, v27, 4, v26
    v_lshlrev_b32 v27, 6, v20
    s_lshl_b32 s30, s{SN8}, 2
    s_add_u32 s30, s30, s{SW}
    s_mul_i32 s30, s30, {48*1024}
    s_add_u32 s30, s30, {WS_WINF}
    s_lshl_b32 s34, s{SW}, 19
    s_add_u32 s34, s34, s{SHA}
    s_lshl_b32 s38, s{SC16}, 9
    s_add_u32 s95, s34, s38
    s_add_u32 s96, s95, s38
    s_add_u32 s95, s95, {H_XS}
    s_add_u32 s96, s96, {H_X2}       ; x2 soffset (L)
    s_lshl_b32 s97, s{SNT}, 11
    s_lshl_b32 s38, s{SKS}, 3
    s_add_u32 s97, s97, s38
    s_add_u32 s97, s97, s34
    s_add_u32 s97, s97, {H_ST}
    s_lshl_b32 s98, s{SW}, 7
    s_lshl_b32 s38, s{SC16}, 2
    s_add_u32 s98, s98, s38
    s_add_u32 s98, s98, s{SLOC}
    s_add_u32 s98, s98, {FX2}
    v_lshlrev_b32 v28, 2, v20
    ''')
    def wil(i):
        r = 4*i
        x = f'buffer_load_dwordx4 a[{r}:{r+3}], v2, s[12:15], s30 offen offset:{(i % 4)*1024} ; T:wi{i}'
        if i % 4 == 3: x += '\ns_add_u32 s30, s30, 4096'
        return x
    def px_stores(P):
        out = []
        for i in range(8):
            r = ACC[P] + 8*i
            for j in range(4):
                out.append(f'v_cvt_pk_bf16_f32 v{r+j}, v{r+2*j}, v{r+2*j+1}')
            out.append([f'buffer_store_dwordx4 v[{r}:{r+3}], v2, s[12:15], s84 offen {SG} ; T:px{P}\n'
                        f's_add_u32 s84, s84, {32768 if i < 7 else 0x800000 - 7*32768}'])
        return out
    def px_loads(P):
        out = []
        for i in range(8):
            r = ACC[P] + 32 + 4*i
            x = f'buffer_load_dwordx4 v[{r}:{r+3}], v2, s[12:15], s91 offen offset:{(i % 4)*1024} ; T:pr{P}_{i}\n'
            if i % 4 == 3: x += f's_add_u32 s91, s91, {4096 if i < 7 else 0x800000 - 4096}'
            out.append(x)
        return out
    def qadd(q, items):
        for x in items:
            if isinstance(x, list): q.atom(x[0])
            else: q.add(x)
    def W(**k):
        f = lambda: T.wait(**k)
        return f
    def fin(P, first):
        O = ACC[P]
        out = []
        if first:
            out.append(W(v='cst'))
            for i in range(8): out.append(f'v_add_f32 v{CB+i}, 1.0, v{CB+i}')
            for i in range(0, 8, 2):
                out += [f'v_cvt_pk_bf16_f32 v59, v{CB+i}, v{CB+i+1}', f'v_lshlrev_b32 v{CB+i}, 16, v59', f'v_and_b32 v{CB+i+1}, 0xffff0000, v59']
        for r in range(4):
            out += [f'v_lshlrev_b32 v{O+8+2*r}, 16, v{XT+4*P+r}', f'v_and_b32 v{O+9+2*r}, 0xffff0000, v{XT+4*P+r}']
        for i in range(8):
            out.append(W(v=f'pr{P}_{i}'))
            D = O if i == 0 else O + 16
            for r in range(4):
                out += [f'v_lshlrev_b32 v{D+2*r}, 16, v{O+32+4*i+r}', f'v_and_b32 v{D+2*r+1}, 0xffff0000, v{O+32+4*i+r}']
            if i:
                for r in range(8):
                    out.append(f'v_add_f32 v{O+r}, v{O+r}, v{D+r}')
        marker = len(out)
        XU = O + 8; X2P = O + 16; XSP = O + 20; SS = O + 24
        for r in range(8): out.append(f'v_fma_f32 v{O+r}, v{O+r}, v{GA+r}, v{XU+r}')
        for r in range(4): out.append(f'v_cvt_pk_bf16_f32 v{X2P+r}, v{O+2*r}, v{O+2*r+1}')
        for r in range(4):
            out += [f'v_lshlrev_b32 v{O+2*r}, 16, v{X2P+r}', f'v_and_b32 v{O+2*r+1}, 0xffff0000, v{X2P+r}']
        for r in range(8): out.append(f'v_mul_f32 v{XU+r}, v{O+r}, v{CB+r}')
        for r in range(4): out.append(f'v_cvt_pk_bf16_f32 v{XSP+r}, v{XU+2*r}, v{XU+2*r+1}')
        out.append(f'buffer_store_dwordx4 v[{XSP}:{XSP+3}], v26, s[12:15], s95 offen {SC} ; T:xs{P}')
        out += [f'v_add_f32 v{SS}, v{O}, v{O+1}', f'v_mul_f32 v{SS+1}, v{O}, v{O}', f'v_add_f32 v{SS+2}, v{O+2}, v{O+3}', f'v_mul_f32 v{SS+3}, v{O+1}, v{O+1}']
        for r in range(2, 8): out.append(f'v_fmac_f32 v{SS+1+2*(r&1)}, v{O+r}, v{O+r}')
        for r in range(4, 8): out.append(f'v_add_f32 v{SS+2*(r&1)}, v{SS+2*(r&1)}, v{O+r}')
        out += [f'v_add_f32 v{SS}, v{SS}, v{SS+2}', f'v_add_f32 v{SS+1}, v{SS+1}, v{SS+3}',
                f'v_mov_b32 v{SS+2}, v{SS}', f'v_mov_b32 v{SS+3}, v{SS+1}',
                f'v_permlane32_swap_b32 v{SS}, v{SS+2}', f'v_permlane32_swap_b32 v{SS+1}, v{SS+3}',
                f'v_add_f32 v{SS}, v{SS}, v{SS+2}', f'v_add_f32 v{SS+1}, v{SS+1}, v{SS+3}',
                f'buffer_store_dwordx2 v[{SS}:{SS+1}], v27, s[12:15], s97 offen {SC} ; T:xs{P}',
                f'buffer_store_dwordx4 v[{X2P}:{X2P+3}], v2, s[12:15], s96 offen {SC} ; T:x2{P}']
        return out, marker
    adv = f'''
    s_add_u32 s95, s95, {HP}
    s_add_u32 s96, s96, {HP}
    s_add_u32 s97, s97, {HP}
    '''
    mfl = []; pre_ = {}; pins = {}
    for g in range(64):
        P = g // 32
        for j in range(4):
            c = ACC[P] + 16*j
            fb = FB + (g & 1)*16 + j*4
            ar = 128 + (g % 32)*4
            cc = '0' if g % 32 == 0 else f'v[{c}:{c+15}]'
            mfl.append(f'v_mfma_f32_32x32x16_bf16 v[{c}:{c+15}], v[{fb}:{fb+3}], a[{ar}:{ar+3}], {cc}')
        pre_[4*g] = [lambda g=g: T.wait(v=f'a{g}', d=f'f{g}')]
        if g + 1 < 64:
            br = breads(g + 1)
            if g == 15:
                pins[4*g] = [W(v='b3'), 's_barrier'] + br[:2]
                pins[4*g+1] = br[2:5]; pins[4*g+2] = br[5:]
            elif g == 50:
                pins[4*g] = ['s_barrier'] + br[:2]
                pins[4*g+1] = br[2:5]; pins[4*g+2] = br[5:]
            else:
                pins[4*g] = br[:3]; pins[4*g+1] = br[3:6]; pins[4*g+2] = br[6:]
        if STK == 'TL' and g % 8 == 0 and g:
            pre_[4*g].insert(0, lambda g=g: S(3 + g // 8))
    qa = Q('A')
    if FH0 >= 0:
        qa.at(4*FH0); qa.add(W(v='ctx')); qa.add(lflag(a, 99, 1))
    iss, chk = poll_items(a, T, 'TPH', 24, 37)
    qa.at(4*(CKH - 6)); qa.add(iss); qa.at(4*CKH); qa.add(chk)
    qa.add(f's_mov_b32 s{SAO}, s60')
    for g in range(32, 64):
        qa.at(4*(g - 32) + 4); qa.atom(aload(g))
    qw = Q('wi')
    WI0 = int(E('WI0', '6')); WIS = int(E('WIS', '2')); WI2 = int(E('WI2', '50'))
    for i in range(32):
        qw.at(4*WI0 + WIS*i); qw.atom(wil(i))
    for i in range(32, 48):
        qw.at(max(4*WI2 + 2*(i - 32), 4*(32 + i - 32) + 4)); qw.atom(wil(i))
    qf = Q('fin')
    F1 = int(E('F1', '44')); F2 = int(E('F2', '50')); F3 = int(E('F3', '56')); F4 = int(E('F4', '62'))
    iss, chkD = poll_items(a, T, 'TPD', 28, 78, 1, vd=29)
    qf.at(4*int(E('F0', '27'))); qf.add(iss)
    qf.at(128 + 3)
    qadd(qf, px_stores(0))
    qf.add(chkD)
    qf.at(4*F1); qf.add(W(v='px0')); qf.atom(flag(92, 1, SG))
    iss, chk = poll_items(a, T, 'TPX0', 24, SGF, 1)
    qf.at(4*F2); qf.add(iss); qf.at(4*F3); qf.add(chk)
    for x in px_loads(0): qf.atom(x)
    qf.at(4*F4)
    fl, mk = fin(0, True)
    qf.add(fl)
    run(a, mfl, 0, pre_, pins, [qa, qf, qs, qw], cap=int(E('OCAP', '20')))
    S(11)
    drain(a, [qa, qs])
    a.flush()
    for x in px_stores(1): a(x[0] if isinstance(x, list) else x)
    S(12)
    drain(a, [qf])
    S(51)
    drain(a, [qw])
    import k_tail2b
    k_tail2b.rest(a, T, S, locals())
```

```python
from k_common import *
from k_prep import WS_WOF, WS_WINF, WS_WOUTF, WS_MODF, WS_WSPF
from sched import *
import k_tail2 as K
from k_tail2 import *
import os
E = os.environ.get
I = lambda k, d: int(E(k, str(d)))

UVD = 4; UB = 64; NM = 80; RS = 88; Z1M = 96
PP = [100, 212]
XAB = [192, 128]; NXA = [8, 16]
TMB = [224, 32]
NM2 = 236; RS2 = 244
VC1 = 60; MK = 61; VZ1 = 0
VX = [16, 17]; VMF = 18; VST2 = 19; VQW = 22; VQR = 23; VFW = 25; VFR = 28; VZW = 29; VPW = 30; VZP = 31; VZ0 = 3
SF2 = 28; SXD = 29; SS2 = 30; SSP = [31, 33]; SC0 = 44; SZS = 45; SZP = 50; SZ2 = 54; SFZ = 59; SRB = [70, 71]

def spreg(i):
    return 192 + 4*i if i < 16 else (4*(i - 16) if i < 48 else 128 + 4*(i - 48))
def spl(i):
    r = spreg(i)
    x = f'buffer_load_dwordx4 a[{r}:{r+3}], v2, s[12:15], s{SSP[i & 1]} offen offset:{((i >> 1) & 1)*2048} ; T:sp{i}'
    if i % 4 == 3: x += f'\ns_add_u32 s{SSP[0]}, s{SSP[0]}, 4096\ns_add_u32 s{SSP[1]}, s{SSP[1]}, 4096'
    return x
def spd(i):
    j = i - 16
    base = [65, 65, 64, 64][j // 4]; hi = (j // 4) & 1
    off = ((i >> 1) & 1)*2048
    x = f's_add_u32 s38, s{base}, s36\ns_add_u32 m0, s38, {hi*32768 + (i & 1)*1024}\n'
    x += f'buffer_load_dwordx4 v2, s[12:15], s{SSP[i & 1]} offen offset:{off} lds ; T:sd{i}'
    if i % 4 == 3: x += f'\ns_add_u32 s{SSP[0]}, s{SSP[0]}, 4096\ns_add_u32 s{SSP[1]}, s{SSP[1]}, 4096'
    return x
def spr(i, va):
    j = i - 16
    r = spreg(i)
    return f'ds_read_b128 a[{r}:{r+3}], v{va[(j // 8)]} offset:{((j // 4) & 1)*32768 + ((i >> 1) & 1)*2048 + (i & 1)*1024} ; T:sr{i}'

def rest(a, T, S, L):
    fin = L['fin']; px_loads = L['px_loads']; W = L['W']
    a(f'''
    s_lshl_b32 s34, s{SY}, 2
    s_add_u32 s{SRB[0]}, s34, s{SRBI}          ; rb32 L
    s_sub_u32 s{SRB[1]}, 60, s34
    s_add_u32 s{SRB[1]}, s{SRB[1]}, s{SRBI}    ; rb32 H
    s_lshl_b32 s34, s{SRB[0]}, 2
    s_add_u32 s34, s34, s{SW}
    s_lshl_b32 s34, s34, 16
    s_add_u32 s34, s34, {WS_WSPF}
    s_lshr_b32 s38, s{SW}, 1
    s_lshl_b32 s38, s38, 10
    s_add_u32 s{SSP[0]}, s34, s38
    s_xor_b32 s{SSP[1]}, s{SSP[0]}, 1024
    v_add_u32 v{VMF}, {LB}, v2
    ''')
    NSE = I('NSE', 16)
    for i in range(NSE): a(spl(i))
    for ks in range(4):
        r = XAB[0] + 4*ks
        a(f'ds_read_b128 v[{r}:{r+3}], v{VMF} offset:{ks*1024} ; T:m{ks}')
    a(f'''
    s_lshl_b32 s34, s{SRBI}, 7
    s_lshl_b32 s38, s{SW}, 5
    s_add_u32 s34, s34, s38
    s_add_u32 s34, s34, s{SLOC}
    s_add_u32 s{SF2}, s34, {FX2}
    s_lshl_b32 s34, s{SRBI}, 19
    s_add_u32 s{SHA}, s34, s{SHA}
    s_add_u32 s{SXD}, s{SHA}, s36
    s_add_u32 s{SXD}, s{SXD}, {H_XS}
    s_lshl_b32 s34, s{SW}, 11
    s_add_u32 s34, s34, s{SHA}
    s_add_u32 s{SS2}, s34, {H_ST}
    s_mov_b32 s{SC0}, 0xc0135761
    v_mov_b32 v{VC1}, 0xbdd2d3e8
    v_add_u32 v{VX[0]}, s62, v2
    v_add_u32 v{VX[1]}, s63, v2
    v_lshlrev_b32 v{VST2}, 5, v1
    s_cmp_ge_u32 s{SW}, 2
    s_cbranch_scc1 TL_WB
    ''')
    snap = T.snap()
    def zpoll(tag, t0=56, t1=57):
        G = NM2
        ld = f'''
        buffer_load_dwordx4 v[{G}:{G+3}], v{VZP}, s[12:15], s{SZP} offen sc0 sc1 ; T:{tag}
        buffer_load_dwordx4 v[{G+4}:{G+7}], v{VZP}, s[12:15], s{SZP} offen offset:16 sc0 sc1 ; T:{tag}
        '''
        ck = f'''
        v_and_b32 v{t1}, v{G+1}, v{G+3}
        v_and_b32 v{t0}, v{G+5}, v{G+7}
        v_and_b32 v{t1}, v{t1}, v{t0}
        v_cmp_gt_i32 vcc, 0, v{t1}
        s_cmp_eq_u64 vcc, -1
        '''
        def chk():
            T.wait(v=tag)
            a(ck + f's_cbranch_scc0 {tag}_S')
            a.raw(f'{tag}_R:')
        chk.cost = 20
        def f():
            a.label(f'{tag}_S')
            a('s_mov_b32 s39, 0')
            a.label(f'{tag}_L')
            a(ld + 's_add_u32 s39, s39, 1\ns_waitcnt vmcnt(0)' + ck + f'''
            s_cbranch_scc1 {tag}_R
            s_cmp_lt_u32 s39, {SPIN}
            s_cbranch_scc1 {tag}_L
            s_branch {tag}_R
            ''')
        K._ool.append(f)
        return ld, chk
    def znorm(P, tag):
        G = NM2
        out = lines(f'''
        v_add_f32 v{G}, v{G}, v{G+2}
        v_add_f32 v{G+1}, v{G+1}, v{G+3}
        v_add_f32 v{G+4}, v{G+4}, v{G+6}
        v_add_f32 v{G+5}, v{G+5}, v{G+7}
        v_add_f32 v{G}, v{G}, v{G+4}
        v_add_f32 v{G+1}, v{G+1}, v{G+5}
        v_mov_b32 v{G+2}, v{G}
        v_mov_b32 v{G+3}, v{G+1}
        v_permlane32_swap_b32 v{G}, v{G+2}
        v_permlane32_swap_b32 v{G+1}, v{G+3}
        v_add_f32 v{G}, v{G}, v{G+2}
        v_add_f32 v{G+1}, v{G+1}, v{G+3}
        v_mul_f32 v{G}, 0xbabe82fa, v{G}
        v_mul_f32 v{G+1}, 0xbabe82fa, v{G+1}
        v_fma_f32 v{G+1}, -v{G}, v{G}, v{G+1}
        v_max_f32 v{G+1}, 0, v{G+1}
        v_add_f32 v{G+1}, 0x3727c5ac, v{G+1}
        v_rsq_f32 v{G+1}, v{G+1}
        v_mul_f32 v{G}, v{G}, v{G+1}
        ds_write_b32 v{VFW}, v{G} offset:{L_FS2(P)}
        ds_write_b32 v{VFW}, v{G+1} offset:{L_FS2(P)+256} ; T:f2w{tag}
        ''')
        out.append(W(d=f'f2w{tag}'))
        for rt in range(2):
            out += [f'ds_read_b128 v[{NM2+4*rt}:{NM2+4*rt+3}], v{VFR} offset:{L_FS2(P) + rt*64} ; T:g{tag}',
                    f'ds_read_b128 v[{RS2+4*rt}:{RS2+4*rt+3}], v{VFR} offset:{L_FS2(P) + 256 + rt*64} ; T:g{tag}']
        out.append(W(d=f'g{tag}'))
        for t in range(2):
            c = PP[P] + 8*t
            for i in range(8):
                out.append(f'v_fma_f32 v{c+i}, v{c+i}, v{RS2+i}, v{NM2+i}')
            for i in range(4):
                out.append(f'v_cvt_pk_bf16_f32 v{c+i}, v{c+2*i}, v{c+2*i+1}')
            out.append(f'buffer_store_dwordx4 v[{c}:{c+3}], v{[VZ0, VZ1][t]}, s[12:15], s{SZ2} offen {SG} ; T:z2s{P}')
        return out
    def zaddr(P):
        return f'''
        s_lshl_b32 s{SZP}, s{SRBI}, 11
        s_add_u32 s{SZP}, s{SZP}, s{SLOC}
        s_add_u32 s{SZP}, s{SZP}, {L_ZST + P*8192}
        s_lshl_b32 s{SZS}, s{SN8}, 3
        s_add_u32 s{SZS}, s{SZS}, s{SZP}
        '''
    def z2addr(P):
        return f'''
        s_lshl_b32 s34, s{SN8}, 6
        s_add_u32 s34, s34, s{SRB[P]}
        s_lshl_b32 s{SFZ}, s34, 4
        s_mul_i32 s34, s34, 6144
        s_add_u32 s{SZ2}, s34, {WS_Z2F}
        s_lshl_b32 s34, s{SW}, 2
        s_add_u32 s{SFZ}, s{SFZ}, s34
        s_add_u32 s{SFZ}, s{SFZ}, {FZ}
        '''
    SA = 32; ZB = 128; NZ = I('NZ', 7)
    VZL = [16, 17]; VFP = 18; SZL = 29; SFP = 28
    def zl(ks):
        out = []
        for blk in range(3):
            r = ZB + (ks % NZ)*12 + 4*blk
            x = f'buffer_load_dwordx4 v[{r}:{r+3}], v{VZL[blk == 2]}, s[12:15], s{SZL} offen offset:{blk*1024} ; T:z{ks}'
            if blk == 2: x += f'\ns_add_u32 s{SZL}, s{SZL}, {3072 if ks != 15 else 3072*49}'
            out.append(x)
        return out
    def wphase(kinds, tg):
        T.restore(snap)
        def mf(t, ks, x, c, first):
            w = (t*16 + ks)*4
            cc = '0' if first else f'v[{c}:{c+3}]'
            if kinds[t] == 2:
                return f'v_mfma_f32_16x16x32_bf16 v[{c}:{c+3}], v[{x}:{x+3}], a[{w}:{w+3}], {cc}'
            return f'v_mfma_f32_16x16x32_bf16 v[{c}:{c+3}], a[{w}:{w+3}], v[{x}:{x+3}], {cc}'
        ub = {}; n = 0
        for t in range(3):
            if kinds[t] == 1:
                ub[t] = UB + 8*n; n += 1
        qs = Q('s')
        qs.add(f'''
        s_lshl_b32 s34, s{SW}, 8
        s_add_u32 s34, s34, {LB}
        v_lshrrev_b32 v56, 1, v1
        v_lshl_add_u32 v{VQW}, v56, 3, s34         ; LB + w*256 + (l>>1)*8
        v_lshlrev_b32 v{VQR}, 3, v20
        v_add_u32 v{VQR}, {LB}, v{VQR}
        v_bfe_u32 v56, v1, 2, 1
        v_lshlrev_b32 v56, 7, v56
        v_lshrrev_b32 v59, 4, v1                   ; g
        v_lshl_add_u32 v56, v59, 5, v56
        v_and_b32 v{VPW}, 3, v1
        v_lshl_add_u32 v56, v{VPW}, 3, v56
        v_bfe_u32 v{VPW}, v1, 3, 1
        v_lshl_add_u32 v56, v{VPW}, 2, v56
        v_add_u32 v{VPW}, s34, v56
        s_lshl_b32 s34, s{SW}, 9
        s_add_u32 s34, s34, {LB}
        v_lshl_add_u32 v{VFW}, v20, 2, s34
        v_lshl_add_u32 v{VFR}, v59, 4, s34         ; LB + w*512 + g*16
        v_and_b32 v56, 15, v1
        v_mul_u32_u24 v{VZW}, {Z1S}, v56
        v_lshl_add_u32 v{VZW}, v59, 3, v{VZW}      ; (l%16)*Z1S + g*8
        v_lshl_add_u32 v{VZP}, v21, 5, v27         ; row*64 + h*32
        v_mul_u32_u24 v{VZ0}, 3072, v21
        v_bfe_u32 v59, v1, 4, 1
        v_lshl_add_u32 v{VZ0}, v59, 9, v{VZ0}
        v_lshl_add_u32 v{VZ0}, v56, 4, v{VZ0}
        s_mov_b32 s52, 0xcccccccc
        s_mov_b32 s53, 0xcccccccc
        s_mov_b32 s60, 0xaaaaaaaa
        s_mov_b32 s61, 0xaaaaaaaa
        s_lshl_b32 s34, s{SW}, 3
        s_mov_b64 s[66:67], 0xff
        s_lshl_b64 s[66:67], s[66:67], s34
        ''')
        if kinds[1] == 2:
            qs.add(f'''
            s_lshl_b32 s34, s{SW}, 5
            s_add_u32 s34, s34, {LB}
            v_add_u32 v{VZW}, s34, v{VZW}
            s_lshl_b32 s34, s{SW}, 10
            v_add_u32 v{VZ0}, s34, v{VZ0}
            v_add_u32 v{VZ1}, 256, v{VZ0}
            ''')
        else:
            qs.add(f'''
            s_lshl_b32 s34, s{SW}, 6
            s_add_u32 s34, s34, {LB - 64}
            v_add_u32 v{VZW}, s34, v{VZW}
            s_cmp_eq_u32 s{SN8}, 7
            s_cselect_b32 s34, 8, 16
            s_lshl_b32 s38, s{SW}, 3
            s_sub_u32 s38, s38, 16
            s_sub_u32 s34, s34, s38
            v_cmp_gt_u32 vcc, s34, v56
            v_cndmask_b32 v{MK}, 0, 1.0, vcc
            s_lshl_b32 s34, s3, 8
            s_add_u32 s34, s34, 2048
            v_add_u32 v{VZ0}, s34, v{VZ0}
            v_mov_b32 v{VZ1}, {OOB}
            ''')
        qs.add(zaddr(0)); qs.add(z2addr(0))
        XA = XAB[0]
        mfl = []; pre = {}; pins = {}
        for ks in range(16):
            for t in range(3):
                sl = len(mfl)
                mfl.append(mf(t, ks, XA + 4*(ks % 8), UVD + 4*t, ks == 0))
                if t == 0:
                    pre[sl] = [W(d=f'm{ks}', v=f'wi{32+ks}')]
                    if ks + 4 < 16:
                        r = XA + 4*((ks + 4) % 8)
                        pins[sl] = [f'ds_read_b128 v[{r}:{r+3}], v{VMF} offset:{(ks+4)*1024} ; T:m{ks+4}']
        iss, chkL = poll_items(a, T, tg + 'X2L', 24, SF2, 1)
        pins.setdefault(I('U0', 20), []).extend([W(v='xs0'), lflag(a, 98, 1), L['adv']])
        pins.setdefault(I('U1', 40), []).append(iss)
        run(a, mfl, 0, pre, pins, [qs], cap=12)
        drain(a, [qs])
        for t in ub:
            for r in range(4):
                a(f'''
                v_mov_b32_dpp v{ub[t]+r}, v{UVD+4*t+r} row_newbcast:0 row_mask:0xf bank_mask:0xf
                v_mov_b32_dpp v{ub[t]+4+r}, v{UVD+4*t+r} row_newbcast:1 row_mask:0xf bank_mask:0xf
                ''')
        S(13)
        T.wait(v='px1')
        S(14)
        a(flag(92, 2, SG))
        def xdma(P):
            TM = TMB[P]
            out = []
            for rt in range(2):
                x = f's_add_u32 s38, s{62+P}, s36\n' if rt == 0 else ''
                x += f's_add_u32 m0, s38, {rt*32768}\n'
                for i in range(4):
                    x += f'buffer_load_dwordx4 v2, s[12:15], s{SXD} offen offset:{i*1024} {SL} lds ; T:xd{P}\n'
                x += f's_add_u32 s{SXD}, s{SXD}, {16384 if rt == 0 else HP - 16384}\n'
                if rt == 0:
                    x += f'''
                    buffer_load_dwordx4 v[{TM}:{TM+3}], v{VST2}, s[12:15], s{SS2} offen {SL} ; T:qs{P}
                    buffer_load_dwordx4 v[{TM+4}:{TM+7}], v{VST2}, s[12:15], s{SS2} offen offset:16 {SL} ; T:qs{P}
                    s_add_u32 s{SS2}, s{SS2}, {HP}
                    '''
                out.append(x)
            return out
        def xstat(P):
            TM = TMB[P]
            return [W(v=f'qs{P}')] + lines(f'''
            v_add_f32 v{TM}, v{TM}, v{TM+2}
            v_add_f32 v{TM+1}, v{TM+1}, v{TM+3}
            v_add_f32 v{TM+4}, v{TM+4}, v{TM+6}
            v_add_f32 v{TM+5}, v{TM+5}, v{TM+7}
            v_add_f32 v{TM}, v{TM}, v{TM+4}
            v_add_f32 v{TM+1}, v{TM+1}, v{TM+5}
            v_add_f32_dpp v{TM+2}, v{TM}, v{TM} quad_perm:[1,0,3,2] row_mask:0xf bank_mask:0xf
            v_add_f32_dpp v{TM+3}, v{TM+1}, v{TM+1} quad_perm:[1,0,3,2] row_mask:0xf bank_mask:0xf
            ds_write_b64 v{VQW}, v[{TM+2}:{TM+3}] offset:{L_QS(P)} ; T:qw{P}
            ''')
        def rowstat(P, q):
            TM = TMB[P]
            for i in range(4):
                q.add(f'ds_read_b64 v[{TM+2*i}:{TM+2*i+1}], v{VQR} offset:{L_QS(P) + i*256} ; T:q4{P}')
            q.at(6)
            q.add(W(d=f'q4{P}'))
            q.add(f'''
            v_add_f32 v{TM}, v{TM}, v{TM+2}
            v_add_f32 v{TM+1}, v{TM+1}, v{TM+3}
            v_add_f32 v{TM+4}, v{TM+4}, v{TM+6}
            v_add_f32 v{TM+5}, v{TM+5}, v{TM+7}
            v_add_f32 v{TM}, v{TM}, v{TM+4}
            v_add_f32 v{TM+1}, v{TM+1}, v{TM+5}
            v_mul_f32 v{Z1M}, 0xbb000000, v{TM}
            v_mul_f32 v{TM+1}, 0x3b000000, v{TM+1}
            v_fma_f32 v{TM+1}, -v{Z1M}, v{Z1M}, v{TM+1}
            v_max_f32 v{TM+1}, 0, v{TM+1}
            v_add_f32 v{TM+1}, 0x3727c5ac, v{TM+1}
            v_rsq_f32 v{Z1M+1}, v{TM+1}
            ds_write_b32 v{VFW}, v{Z1M} offset:{L_FS(P)}
            ds_write_b32 v{VFW}, v{Z1M+1} offset:{L_FS(P)+256} ; T:fw{P}
            v_mov_b32 v{Z1M+2}, v{Z1M}
            v_mov_b32 v{Z1M+3}, v{Z1M+1}
            ''')
            q.at(16)
            q.add(W(d=f'fw{P}'))
            for rt in range(2):
                q.add(f'''
                ds_read_b128 v[{NM+4*rt}:{NM+4*rt+3}], v{VFR} offset:{L_FS(P) + rt*64} ; T:fs{P}
                ds_read_b128 v[{RS+4*rt}:{RS+4*rt+3}], v{VFR} offset:{L_FS(P) + 256 + rt*64} ; T:fs{P}
                ''')
            q.add(f'''
            v_permlane16_swap_b32 v{Z1M}, v{Z1M+2}
            v_permlane16_swap_b32 v{Z1M+1}, v{Z1M+3}
            ''')
            q.at(26)
            q.add(W(d=f'fs{P}'))
        def epi(P, items, tb):
            out = []
            regs = [(t, rt, PP[P] + 8*t + 4*rt, tb + 4*n_) for n_, (t, rt) in enumerate(items)]
            for (t, rt, c, x) in regs:
                for i in range(4):
                    if kinds[t] == 2:
                        out.append(f'v_fma_f32 v{c+i}, v{NM+4*rt+i}, v{UVD+4*t}, v{c+i}')
                    else:
                        out.append(f'v_fma_f32 v{c+i}, v{Z1M+2*rt}, v{ub[t]+i}, v{c+i}')
            for (t, rt, c, x) in regs:
                for i in range(4):
                    if kinds[t] == 2:
                        out.append(f'v_fma_f32 v{c+i}, v{RS+4*rt+i}, v{c+i}, v{UVD+4*t+1}')
                    else:
                        out.append(f'v_fma_f32 v{c+i}, v{Z1M+2*rt+1}, v{c+i}, v{ub[t]+4+i}')
            for f in ('v_mul_f32 v{x}, v{c}, v{c}', f'v_fma_f32 v{{x}}, v{{x}}, v{VC1}, s{SC0}', 'v_mul_f32 v{x}, v{x}, v{c}',
                      'v_exp_f32 v{x}, v{x}', 'v_add_f32 v{x}, 1.0, v{x}', 'v_rcp_f32 v{x}, v{x}', 'v_mul_f32 v{c}, v{c}, v{x}'):
                for (t, rt, c, x) in regs:
                    for i in range(4):
                        out.append(f.format(x=x+i, c=c+i))
            for (t, rt, c, x) in regs:
                if kinds[t] == 1:
                    co = 32 if (kinds[1] == 1 and t == 2) else 0
                    out += [f'v_cvt_pk_bf16_f32 v{x}, v{c}, v{c+1}', f'v_cvt_pk_bf16_f32 v{x+1}, v{c+2}, v{c+3}',
                            f'ds_write_b64 v{VZW}, v[{x}:{x+1}] offset:{(P*32 + rt*16)*Z1S + co} ; T:z1w']
            return out
        def stat(P, rt, SQ):
            c0 = PP[P] + 4*rt; c1 = c0 + 8
            out = []
            for i in range(4):
                s = SQ + 4*rt + i; qq = SQ + 8 + 4*rt + i
                if kinds[1] == 2:
                    out += [f'v_add_f32 v{s}, v{c0+i}, v{c1+i}', f'v_mul_f32 v{qq}, v{c0+i}, v{c0+i}']
                else:
                    out += [f'v_mul_f32 v{s}, v{c0+i}, v{MK}']
            for i in range(4):
                s = SQ + 4*rt + i; qq = SQ + 8 + 4*rt + i
                if kinds[1] == 2:
                    out += [f'v_fmac_f32 v{qq}, v{c1+i}, v{c1+i}']
                else:
                    out += [f'v_mul_f32 v{qq}, v{s}, v{s}']
            return out
        def zpub(P, SQ, B, st0):
            out = []
            for i in range(8):
                out.append(f'v_add_f32_dpp v{B+i}, v{SQ+i}, v{SQ+i} row_ror:8 row_mask:0xf bank_mask:0x3')
            for i in range(8):
                out.append(f'v_add_f32_dpp v{B+i}, v{SQ+8+i}, v{SQ+8+i} row_ror:8 row_mask:0xf bank_mask:0xc')
            for i in range(4):
                out.append(f'v_add_f32_dpp v{SQ+i}, v{B+i}, v{B+i} row_half_mirror row_mask:0xf bank_mask:0x5')
            for i in range(4):
                out.append(f'v_add_f32_dpp v{SQ+i}, v{B+4+i}, v{B+4+i} row_half_mirror row_mask:0xf bank_mask:0xa')
            for i in range(2):
                out.append(f'v_cndmask_b32_e64 v{B+i}, v{SQ+i}, v{SQ+2+i}, s[52:53]')
                out.append(f'v_cndmask_b32_e64 v{B+2+i}, v{SQ+2+i}, v{SQ+i}, s[52:53]')
            for i in range(2):
                out.append(f'v_add_f32_dpp v{SQ+i}, v{B+2+i}, v{B+i} quad_perm:[2,3,0,1] row_mask:0xf bank_mask:0xf')
            out += [f'v_cndmask_b32_e64 v{B}, v{SQ}, v{SQ+1}, s[60:61]',
                    f'v_cndmask_b32_e64 v{B+1}, v{SQ+1}, v{SQ}, s[60:61]',
                    f'v_add_f32_dpp v{SQ}, v{B+1}, v{B} quad_perm:[1,0,3,2] row_mask:0xf bank_mask:0xf',
                    f'ds_write_b32 v{VPW}, v{SQ} offset:{L_PS(P)} ; T:psw{P}']
            def bar():
                T.wait(d=f'psw{P}'); S(st0); a('s_barrier')
            out.append(bar)
            for i in range(4):
                out.append(f'ds_read_b64 v[{B+2*i}:{B+2*i+1}], v{VQR} offset:{L_PS(P) + i*256} ; T:psr{P}')
            out.append(W(d=f'psr{P}'))
            out += lines(f'''
            v_add_f32 v{B}, v{B}, v{B+2}
            v_add_f32 v{B+1}, v{B+1}, v{B+3}
            v_add_f32 v{B+4}, v{B+4}, v{B+6}
            v_add_f32 v{B+5}, v{B+5}, v{B+7}
            v_add_f32 v{B}, v{B}, v{B+4}
            v_add_f32 v{B+1}, v{B+1}, v{B+5}
            v_or_b32 v{B+1}, 0x80000000, v{B+1}
            ''')
            out.append(lstore(a, f'''
            s_mov_b64 exec, s[66:67]
            buffer_store_dwordx2 v[{B}:{B+1}], v27, s[12:15], s{SZS} offen @
            s_mov_b64 exec, -1
            '''))
            out.append(lambda: S(st0 + 1))
            return out
        def qadd(q, items):
            for x in items:
                if isinstance(x, list): q.atom(x[0])
                else: q.add(x)
        z2t = [t for t in range(3) if kinds[t] == 2]
        z1t = [t for t in range(3) if kinds[t] == 1]
        def wmf(P, order, D=10):
            XA = XAB[P]; NX = NXA[P]
            mfl = []; pre = {}; pins = {}; last = {}
            reads = []; use = []
            prev = None; rbase = 0
            for (rt, ts) in order:
                if rt != prev:
                    rbase = len(reads)
                    for ks in range(16): reads.append((rt, ks)); use.append([])
                prev = rt
                for ks in range(16):
                    for t in ts:
                        j = rbase + ks
                        use[j].append(len(mfl))
                        mfl.append(mf(t, ks, XA + 4*(j % NX), PP[P] + 8*t + 4*rt, ks == 0))
                        last[(t, rt)] = len(mfl) - 1
            head = []
            for j, (rt, ks) in enumerate(reads):
                r = XA + 4*(j % NX)
                x = f'ds_read_b128 v[{r}:{r+3}], v{VX[P]} offset:{rt*32768 + ks*1024} ; T:x{P}_{j}'
                sl = use[j][0] - D
                if j >= NX: sl = max(sl, use[j - NX][-1])
                assert sl < use[j][0]
                if sl < 0: head.append(x)
                else: pins.setdefault(sl, []).append(x)
                pre.setdefault(use[j][0], []).append(W(d=f'x{P}_{j}'))
            return mfl, pre, pins, last, head
        chkL()
        S(15)
        for x in xdma(0): a(x)
        iss, chkX = poll_items(a, T, tg + 'PX1', 24, SGF, 2)
        for x in xstat(0): emit(a, x)
        if I('PXE', 1): a(iss)
        T.wait(v='xd0', d='qw0')
        S(16)
        a('s_barrier')
        mfl, pre, pins, last, head = wmf(0, [(0, [0, 1, 2]), (1, [0, 1, 2])])
        for x in head: a(x)
        TM = TMB[0]
        q0 = Q('st'); rowstat(0, q0)
        qf = Q('fin')
        if not I('PXE', 1): qf.add(iss)
        qf.at(I('G1', 4)); qf.add(chkX); qf.add(lambda: S(17))
        for x in px_loads(1): qf.atom(x)
        qf.at(I('G2', 40))
        fl, mk = fin(1, False)
        qf.add(fl); qf.add(lambda: S(18))
        qb = Q('bg')
        qb.at(I('G3', 20))
        for i in range(NSE, 16): qb.atom(spl(i))
        for i in range(16, 32): qb.atom(spd(i))
        q1 = Q('epi')
        SQ = TM + 8; B = TM + 24
        q1.at(last[(2, 0)] + 2)
        q1.add(epi(0, [(t, 0) for t in z2t], TM)); q1.add(stat(0, 0, SQ)); q1.add(epi(0, [(t, 0) for t in z1t], TM))
        q1.at(last[(2, 1)] + 2)
        q1.add(epi(0, [(t, 1) for t in z2t], TM)); q1.add(stat(0, 1, SQ))
        qadd(q1, zpub(0, SQ, B, 20))
        q1.add(epi(0, [(t, 1) for t in z1t], TM))
        run(a, mfl, 0, pre, pins, [q0, qf, qb, q1], cap=I('WCAP', 12))
        S(19)
        drain(a, [q0, qf, qb])
        G4 = I('G4', 60)
        for i in range(G4):
            x = q1.head(10**9)
            if x is None: break
            emit(a, q1.pop())
        T.wait(v='xs1')
        a('s_add_u32 s98, s98, 512')
        lflag(a, 98, 1)()
        S(22)
        a(f's_add_u32 s{SF2}, s{SF2}, 512')
        drain(a, [q1])
        S(23)
        iss, chkH = poll_items(a, T, tg + 'X2H', 24, SF2, 1)
        zi, zc = zpoll(tg + 'ZL')
        a(iss); a(zi)
        chkH()
        S(24)
        for x in xdma(1): a(x)
        zc()
        S(25)
        zn = znorm(0, tg + 'L')
        for x in zn: emit(a, x)
        S(26)
        for x in xstat(1): emit(a, x)
        T.wait(v='xd1', d='qw1')
        S(27)
        a('s_barrier')
        mfl, pre, pins, last, head = wmf(1, [(0, [0, 1, 2]), (1, z2t), (1, z1t)])
        for x in head: a(x)
        TM = TMB[1]
        q0 = Q('st'); rowstat(1, q0)
        qf = Q('fz')
        qf.add(zaddr(1))
        qf.at(I('H1', 60)); qf.add(W(v='z2s0')); qf.atom(flag(SFZ, 1, SG)); qf.add(lambda: S(28)); qf.add(z2addr(1))
        q1 = Q('epi')
        SQ = TM + 8; B = PP[0]
        q1.at(last[(2, 0)] + 2)
        q1.add(epi(1, [(t, 0) for t in z2t], TM)); q1.add(stat(1, 0, SQ))
        q1.at(last[(z2t[-1], 1)] + 2)
        q1.add(epi(1, [(t, 1) for t in z2t], TM)); q1.add(stat(1, 1, SQ))
        qadd(q1, zpub(1, SQ, B, 30))
        q2 = Q('epi1')
        q2.at(last[(2, 0)] + 2)
        q2.add(epi(1, [(t, 0) for t in z1t], 192))
        q2.at(last[(2, 1)] + 2)
        q2.add(epi(1, [(t, 1) for t in z1t], 192))
        run(a, mfl, 0, pre, pins, [q0, qf, q1, q2], cap=I('WCAP', 12))
        S(29)
        drain(a, [q0, qf])
        a(f'''
        v_add_u32 v56, s36, v2
        v_add_u32 v59, s64, v56
        v_add_u32 v56, s65, v56
        ''')
        T.wait(v='sd31')
        for i in range(16, 32): a(spr(i, [56, 59]))
        a(f'''
        s_lshl_b32 s34, s{SN8}, 10
        s_lshl_b32 s38, s{SW}, 7
        s_add_u32 s34, s34, s38
        s_add_u32 s{SFP}, s34, {FZ}
        v_lshlrev_b32 v{VFP}, 2, v20
        ''')
        iss, chkZ = poll_items(a, T, tg + 'FZL', VFP, SFP, 1)
        a(iss)
        a(f'''
        s_lshl_b32 s34, s3, 4
        v_xor_b32 v58, s34, v20          ; col'
        v_lshlrev_b32 v{VZL[0]}, 4, v58
        v_lshl_add_u32 v{VZL[0]}, v21, 9, v{VZL[0]}
        s_cmp_eq_u32 s{SN8}, 7
        s_cselect_b32 s34, 8, 24
        v_cmp_gt_u32 vcc, s34, v58
        v_mov_b32 v{VZL[1]}, {OOB}
        v_cndmask_b32 v{VZL[1]}, v{VZL[1]}, v{VZL[0]}, vcc
        s_lshl_b32 s34, s{SN8}, 7
        s_lshl_b32 s38, s{SW}, 4
        s_add_u32 s34, s34, s38
        s_mul_i32 s34, s34, 3072
        s_add_u32 s{SZL}, s34, {WS_Z2F}
        ''')
        drain(a, [q1])
        chkZ()
        S(32)
        NZE = I('NZE', 5)
        for ks in range(NZE):
            for x in zl(ks): a(x)
        drain(a, [q2])
        for ks in range(NZE, NZ):
            for x in zl(ks): a(x)
        T.all_d()
        S(33)
    wphase([2, 2, 1], 'TA')
    sA = T.snap(); seqA = list(a.vm_seq[snap[0]:])
    a('s_branch TL_S')
    a.label('TL_WB')
    wphase([2, 1, 1], 'TB')
    sB = T.snap(); seqB = list(a.vm_seq[snap[0]:])
    ta = [x for x in seqA[sA[1] - snap[0]:]]; tb = [x for x in seqB[sB[1] - snap[0]:]]
    assert ta == tb, (ta, tb)
    a.label('TL_S')
    if STK == 'TL':
        a(f'v_mov_b32 v12, v{K.VST}')
        K.VST = 12
    GB = 212; X2R = 228; BS = 252
    SWO = [60, 61]
    def wol(i):
        r = (192 + 4*i) % 256
        x = f'buffer_load_dwordx4 a[{r}:{r+3}], v2, s[12:15], s{SWO[i & 1]} offen offset:{((i >> 1) & 1)*2048} ; T:wo{i}'
        if i % 4 == 3: x += f'\ns_add_u32 s{SWO[0]}, s{SWO[0]}, 4096\ns_add_u32 s{SWO[1]}, s{SWO[1]}, 4096'
        return x
    mfl = []; pre = {}; pins = {}
    for ks in range(32):
        for blk in range(3):
            for sl in range(2):
                c = SA + (sl*3 + blk)*16
                zb = ZB + (ks % NZ)*12 + 4*blk
                w = spreg(2*ks + sl)
                cc = '0' if ks == 0 else f'v[{c}:{c+15}]'
                mfl.append(f'v_mfma_f32_32x32x16_bf16 v[{c}:{c+15}], v[{zb}:{zb+3}], a[{w}:{w+3}], {cc}')
        pw = [W(v=f'z{ks}')]
        if ks < 8 or ks >= 16: pw.append(W(v=f'sp{2*ks+1}'))
        pre[6*ks] = pw
        k2 = ks - 1 + NZ
        if ks >= 1 and (k2 < 16 or (ks > 16 and k2 < 32)):
            for i, x in enumerate(zl(k2)): pins.setdefault(6*ks + i, []).append(x)
    qz = Q('z')
    zi, zc = zpoll('TZH', 11, 15)
    qz.at(I('S1', 4)); qz.atom(zi); qz.at(I('S2', 20)); qz.add(zc); qz.add(lambda: S(34))
    qz.add(znorm(1, 'H')); qz.add(lambda: S(35))
    qz.at(I('S3', 70)); qz.add(W(v='z2s1')); qz.atom(flag(SFZ, 1, SG, vd=14)); qz.add(lambda: S(36))
    qb = Q('bg')
    qb.at(I('S4', 40))
    for i in range(32, 64): qb.atom(spl(i))
    qb.add(f'''
    s_lshl_b32 s34, s{SN8}, 2
    s_add_u32 s34, s34, s{SW}
    s_mul_i32 s34, s34, {24*1024}
    s_add_u32 s34, s34, {WS_WOUTF}
    s_lshl_b32 s38, s3, 10
    s_add_u32 s{SWO[0]}, s34, s38
    s_xor_b32 s38, s38, 1024
    s_add_u32 s{SWO[1]}, s34, s38
    s_add_u32 s{SFP}, s{SFP}, 512
    ''')
    qb.at(6*12 + 2)
    for i in range(24): qb.atom(wol(i))
    qb.add(f'''
    s_cmp_lt_u32 s{SW}, 2
    s_cselect_b32 s52, s{SRB[0]}, s{SRB[1]}
    s_lshr_b32 s53, s{SW}, 1
    s_lshl_b32 s53, s53, 24
    s_xor_b32 s81, s53, {HP}
    s_add_u32 s53, s53, s{SHA}
    s_add_u32 s81, s81, s{SHA}
    s_lshl_b32 s34, s{SN8}, 1
    s_add_u32 s34, s34, s3           ; c32 (U)
    s_lshl_b32 s35, s34, 7
    s_add_u32 s35, s35, {WS_MOD + 2560*4}
    s_lshl_b32 s37, s34, 11
    s_add_u32 s37, s37, s53
    s_add_u32 s37, s37, {H_X2}
    v_lshlrev_b32 v4, 4, v21
    v_lshlrev_b32 v5, 1, v20
    s_lshl_b32 s38, s52, 6
    buffer_load_ushort v{BS}, v5, s[24:27], s38 offen ; T:mi
    ''')
    run(a, mfl[:96], 0, pre, pins, [qz, qb], cap=I('SCAP', 20))
    S(37)
    drain(a, [qz, qb])
    for q in range(4):
        a(f'buffer_load_dwordx4 v[{GB+4*q}:{GB+4*q+3}], v4, s[12:15], s35 offen offset:{q*32} ; T:mi')
    S(38)
    a('s_mov_b32 s39, 0')
    a.label('TL_FZH')
    a(f'''
    buffer_load_dword v15, v{VFP}, s[12:15], s{SFP} offen sc1
    s_add_u32 s39, s39, 1
    s_waitcnt vmcnt(0)
    v_cmp_ne_u32 vcc, 0, v15
    s_cmp_eq_u64 vcc, -1
    s_cbranch_scc1 TL_FZHD
    s_cmp_lt_u32 s39, {SPIN}
    s_cbranch_scc1 TL_FZH
    ''')
    a.label('TL_FZHD')
    T.vdone = len(a.vm_seq)
    S(39)
    for ks in range(16, 16 + NZ):
        for x in zl(ks): a(x)
    qc = Q('c')
    qc.at(6*27)
    for qp in range(2):
        qc.add(f'buffer_load_dwordx4 v[{X2R+4*qp}:{X2R+4*qp+3}], v2, s[12:15], s37 offen offset:{qp*1024} {SL} ; T:mi')
    for d in range(1, 4):
        qc.add(f'''
        s_xor_b32 s34, s{SW}, {d}
        s_mul_i32 s34, s34, 18432
        v_add_u32 v{5+d}, s34, v2
        ''')
    qc.add(f'''
    s_mul_i32 s34, s{SW}, 18432
    v_add_u32 v9, s34, v2
    s_lshr_b32 s34, s{SW}, 1
    s_lshl_b32 s34, s34, 5
    v_add_u32 v10, s34, v20
    v_mul_u32_u24 v10, {Z1S}, v10
    v_lshl_add_u32 v10, v21, 3, v10
    s_lshl_b32 s34, s3, 5
    s_add_u32 s34, s34, {LB}
    v_add_u32 v10, s34, v10
    s_mul_i32 s34, s{SN8}, 6144
    s_lshl_b32 s38, s3, 10
    s_add_u32 s34, s34, s38
    s_add_u32 s34, s34, s53
    s_add_u32 s28, s34, {H_YF}       ; y store
    s_add_u32 s29, s28, 4096
    s_lshl_b32 s34, s{SRBI}, 7
    s_add_u32 s34, s34, s{SLOC}
    s_add_u32 s34, s34, {FY}
    s_lshl_b32 s30, s{SN8}, 4
    s_lshl_b32 s38, s{SW}, 2
    s_add_u32 s30, s30, s38
    s_add_u32 s30, s30, s34
    s_lshl_b32 s38, s{SW}, 5
    s_add_u32 s31, s34, s38
    s_mul_i32 s34, s{SW}, 12288
    s_add_u32 s34, s34, {H_YF}
    s_add_u32 s32, s34, s53
    s_add_u32 s33, s34, s81          ; y slot 1
    v_lshlrev_b32 v{BS}, 16, v{BS}
    ''')
    pre[96].append(lambda: S(40))
    run(a, mfl[96:], 96, pre, pins, [qc], cap=I('SCAP', 20))
    S(41)
    drain(a, [qc])
    a('s_barrier')
    for d, (sl, ro) in enumerate([(0, 8), (1, 0), (1, 8)]):
        for blk in range(3):
            for i in range(2):
                r = SA + (sl*3 + blk)*16 + ro + 4*i
                a(f'ds_write_b128 v{6+d}, v[{r}:{r+3}] offset:{L_RX + d*6144 + blk*2048 + i*1024} ; T:rxw')
    Z1R = 200
    for blk in range(3):
        for q in range(2):
            a(f'ds_read_b64 v[{Z1R+4*blk+2*q}:{Z1R+4*blk+2*q+1}], v10 offset:{blk*64 + q*16} ; T:z1r')
    for blk in range(3):
        for i in range(8):
            a(f'v_add_f32 v{SA+blk*16+i}, v{SA+blk*16+i}, v{BS}')
    T.wait(d='z1r')
    a('s_barrier')
    S(42)
    RR = 128
    for blk in range(3):
        for d in range(3):
            for i in range(2):
                r = RR + (blk*3 + d)*8 + 4*i
                a(f'ds_read_b128 v[{r}:{r+3}], v9 offset:{L_RX + d*6144 + blk*2048 + i*1024} ; T:rr{blk}')
    for blk in range(3):
        c = SA + blk*16
        for i in range(4):
            z = Z1R + 4*blk + i
            a(f'''
            v_lshlrev_b32 v{c+8+2*i}, 16, v{z}
            v_and_b32 v{c+9+2*i}, 0xffff0000, v{z}
            ''')
    for blk in range(3):
        T.wait(d=f'rr{blk}')
        c = SA + blk*16
        R0 = RR + blk*24
        for i in range(0, 8, 2):
            a(f'''
            v_pk_add_f32 v[{c+i}:{c+i+1}], v[{c+i}:{c+i+1}], v[{R0+i}:{R0+i+1}]
            v_pk_add_f32 v[{R0+8+i}:{R0+9+i}], v[{R0+8+i}:{R0+9+i}], v[{R0+16+i}:{R0+17+i}]
            ''')
        for i in range(0, 8, 2):
            a(f'v_pk_add_f32 v[{c+i}:{c+i+1}], v[{c+i}:{c+i+1}], v[{R0+8+i}:{R0+9+i}]')
        for i in range(0, 8, 2):
            a(f'v_pk_mul_f32 v[{c+i}:{c+i+1}], v[{c+i}:{c+i+1}], v[{c+8+i}:{c+9+i}]')
        for i in range(0, 8, 2):
            a(f'v_cvt_pk_bf16_f32 v{R0+i//2}, v{c+i}, v{c+i+1}')
        if blk < 2:
            a(f'buffer_store_dwordx4 v[{R0}:{R0+3}], v2, s[12:15], s28 offen offset:{blk*2048} {SC} ; T:ys')
        else:
            a(f'buffer_store_dwordx4 v[{R0}:{R0+3}], v2, s[12:15], s29 offen {SC} ; T:ys')
    S(43)
    XV = 236
    T.wait(v='mi')
    for i in range(8):
        a(f'''
        v_lshlrev_b32 v{XV+2*i}, 16, v{X2R+i}
        v_and_b32 v{XV+2*i+1}, 0xffff0000, v{X2R+i}
        ''')
    for d in range(1, 4):
        a(f'''
        s_xor_b32 s39, s{SW}, {d}
        s_mul_i32 s39, s39, 12288
        s_add_u32 s39, s39, {L_RX2}
        v_add_u32 v{5+d}, s39, v2
        ''')
    a(f'''
    s_mul_i32 s39, s{SW}, 12288
    s_add_u32 s39, s39, {L_RX2}
    v_add_u32 v9, s39, v2
    v_lshlrev_b32 v13, 10, v20
    v_lshl_add_u32 v13, v21, 4, v13  ; row*1024 + h*16
    s_lshl_b32 s34, s52, 15
    s_lshl_b32 s35, s{SN8}, 7
    s_add_u32 s34, s34, s35
    s_lshl_b32 s35, s3, 6
    s_add_u32 s34, s34, s35
    ''')
    T.wait(v='ys')
    S(44)
    lflag(a, 30, 1, vd=14)()
    a('s_mov_b32 s39, 0')
    a.label('TL_FY')
    a(f'''
    buffer_load_dword v15, v24, s[12:15], s31 offen sc1
    s_add_u32 s39, s39, 1
    s_waitcnt vmcnt(0)
    v_cmp_ne_u32 vcc, 0, v15
    s_cmp_eq_u64 vcc, -1
    s_cbranch_scc1 TL_FYD
    s_cmp_lt_u32 s39, {SPIN}
    s_cbranch_scc1 TL_FY
    ''')
    a.label('TL_FYD')
    T.vdone = len(a.vm_seq)
    S(45)
    UA = 64; YR = [128, 32]
    def yreg(ks, sl):
        n = 2*ks + sl
        return 128 + 4*n if n < 18 else 32 + 4*(n - 18)
    for ks in range(12):
        for sl in range(2):
            r = yreg(ks, sl)
            a(f'buffer_load_dwordx4 v[{r}:{r+3}], v2, s[12:15], s{32+sl} offen offset:{(ks % 4)*1024} {SL} ; T:yl{ks}')
        if ks % 4 == 3 and ks < 11:
            a('s_add_u32 s32, s32, 4096\ns_add_u32 s33, s33, 4096')
    for ks in range(12):
        T.wait(v=f'yl{ks}')
        if ks == 0: S(46)
        for sl in (1, 0):
            for c_ in (1, 0):
                c = UA + (sl*2 + c_)*16
                y = yreg(ks, sl)
                w = (192 + 4*(2*ks + c_)) % 256
                cc = '0' if ks == 0 else f'v[{c}:{c+15}]'
                a(f'v_mfma_f32_32x32x16_bf16 v[{c}:{c+15}], a[{w}:{w+3}], v[{y}:{y+3}], {cc}')
    S(47)
    for d in (3, 2, 1):
        for q in range(4):
            r = UA + d*16 + 4*q
            a(f'ds_write_b128 v{5+d}, v[{r}:{r+3}] offset:{(d-1)*4096 + q*1024} ; T:r2w')
    T.wait(d='r2w')
    a('s_barrier')
    S(48)
    for q in range(4):
        for d in range(3):
            r = RR + d*16 + 4*q
            a(f'ds_read_b128 v[{r}:{r+3}], v9 offset:{d*4096 + q*1024} ; T:r2r{q}')
    OP_ = 176
    for q in range(4):
        T.wait(d=f'r2r{q}')
        for i in (0, 2):
            o = UA + 4*q + i; p = RR + 4*q + i
            a(f'''
            v_pk_add_f32 v[{o}:{o+1}], v[{o}:{o+1}], v[{p}:{p+1}]
            v_pk_add_f32 v[{p+16}:{p+17}], v[{p+16}:{p+17}], v[{p+32}:{p+33}]
            ''')
        for i in (0, 2):
            o = UA + 4*q + i; p = RR + 4*q + i
            a(f'v_pk_add_f32 v[{o}:{o+1}], v[{o}:{o+1}], v[{p+16}:{p+17}]')
        for i in (0, 2):
            o = UA + 4*q + i
            a(f'v_pk_fma_f32 v[{o}:{o+1}], v[{o}:{o+1}], v[{GB+4*q+i}:{GB+4*q+i+1}], v[{XV+4*q+i}:{XV+4*q+i+1}]')
        for i in (0, 2):
            o = UA + 4*q + i
            a(f'v_cvt_pk_bf16_f32 v{OP_+2*q+i//2}, v{o}, v{o+1}')
        if q % 2 == 1:
            p = OP_ + 2*(q - 1)
            a(f'''
            v_permlane32_swap_b32 v{p}, v{p+2}
            v_permlane32_swap_b32 v{p+1}, v{p+3}
            buffer_store_dwordx4 v[{p}:{p+3}], v13, s[20:23], s34 offen offset:{(q//2)*32}
            ''')
    if STK == 'TL':
        S(49)
        a('s_waitcnt vmcnt(0)')
        S(50)
        a(f'''
        s_lshl_b32 s34, s2, 10
        s_lshl_b32 s35, s{SW}, 8
        s_add_u32 s34, s34, s35
        s_add_u32 s34, s34, 0x7000000
        v_lshlrev_b32 v3, 2, v1
        buffer_store_dword v{K.VST}, v3, s[12:15], s34 offen
        ''')
```

```python
import re
TRANS = ('v_exp_f32', 'v_log_f32', 'v_rcp_f32', 'v_rsq_f32', 'v_sqrt_f32')

class Trk:
    def __init__(self, a):
        self.a = a
        self.vbase = len(a.vm_seq); self.vdone = self.vbase
        self.dbase = len(a.ds_seq); self.ddone = self.dbase
    def snap(self):
        return (len(self.a.vm_seq), self.vdone, len(self.a.ds_seq), self.ddone)
    def restore(self, s):
        del self.a.vm_seq[s[0]:]; self.vdone = s[1]
        del self.a.ds_seq[s[2]:]; self.ddone = s[3]
    def _n(self, seq, base, done, tag):
        idx = [i for i in range(base, len(seq)) if seq[i] == tag]
        assert idx, tag
        last = idx[-1]
        if last < done: return None, done
        return len(seq) - 1 - last, last + 1
    def wait(self, v=None, d=None):
        parts = []
        if v is not None:
            n, self.vdone = self._n(self.a.vm_seq, self.vbase, self.vdone, v)
            if n is not None: parts.append(f'vmcnt({min(n, 63)})')
        if d is not None:
            n, self.ddone = self._n(self.a.ds_seq, self.dbase, self.ddone, d)
            if n is not None: parts.append(f'lgkmcnt({min(n, 15)})')
        if parts:
            self.a('s_waitcnt ' + ' '.join(parts))
            return 4
        return 0
    def all_v(self):
        self.a('s_waitcnt vmcnt(0)'); self.vdone = len(self.a.vm_seq)
    def all_d(self):
        self.a('s_waitcnt lgkmcnt(0)'); self.ddone = len(self.a.ds_seq)

def icost(x):
    if callable(x): return getattr(x, 'cost', 4)
    c = 0
    for l in x.strip().split('\n'):
        l = l.split(';')[0].strip()
        if not l: continue
        mn = l.split()[0]
        if mn in TRANS: c += 8
        elif mn.startswith('buffer_') or mn.startswith('global_'): c += 8
        elif mn.startswith('s_'): c += 2
        else: c += 4
    return c

def lines(txt):
    return [l.strip() for l in txt.strip().split('\n') if l.strip()]

def group(ls):
    out = []
    ps = pv = None
    for l in ls:
        c = l.split(';')[0].strip(); mn = c.split()[0]
        src = None
        if mn.startswith(('s_cselect', 's_addc', 's_subb', 's_cbranch_scc')): src = ps
        if mn.startswith('v_cndmask') and c.endswith('vcc'): src = pv
        if src is not None:
            m = [y for x in out[src:] for y in x]
            del out[src:]
            out.append(m + [l])
            if ps is not None and ps > src: ps = src
            if pv is not None and pv > src: pv = src
        else:
            out.append([l])
        if mn.startswith(('s_cmp', 's_bitcmp', 's_add', 's_sub')): ps = len(out) - 1
        if mn.startswith('v_cmp') or ' vcc,' in c.split(',')[0] + ',': pv = len(out) - 1
    return ['\n'.join(x) for x in out]

class Q:
    def __init__(self, name=''):
        self.items = []; self.k = 0; self.name = name; self.log = []
    def at(self, slot):
        self.items.append(('at', slot)); return self
    def add(self, x):
        if isinstance(x, str): self.items += group(lines(x))
        elif callable(x): self.items.append(x)
        else:
            for y in x: self.add(y)
        return self
    def atom(self, x):
        self.items.append(x); return self
    def head(self, slot):
        while self.k < len(self.items) and isinstance(self.items[self.k], tuple):
            if slot < self.items[self.k][1]: return None
            self.k += 1
        return self.items[self.k] if self.k < len(self.items) else None
    def pop(self):
        x = self.items[self.k]; self.k += 1; return x
    def left(self):
        return sum(1 for x in self.items[self.k:] if not isinstance(x, tuple))

def emit(a, x):
    if callable(x):
        x()
    else:
        a(x)

def run(a, mf, base, pre, pins, queues, cap=24, caps=None, marks=None):
    caps = caps or {}
    for k, m in enumerate(mf):
        slot = base + k
        for x in pre.get(slot, []): emit(a, x)
        a(m)
        used = 0
        for x in pins.get(slot, []):
            emit(a, x); used += icost(x)
        c = caps.get(slot, cap)
        while True:
            for q in queues:
                x = q.head(slot)
                if x is not None and (used + icost(x) <= c or (used == 0 and c > 0)):
                    emit(a, q.pop()); used += icost(x)
                    if q.left() == 0: q.log.append(slot)
                    break
            else:
                break

def drain(a, queues, slot=10**9):
    n = 0
    for q in queues:
        while True:
            x = q.head(slot)
            if x is None: break
            emit(a, q.pop()); n += icost(x)
    return n
```

```python
from k_common import *
import os
EXP = os.environ.get('ATT_EXP', '')
import k_tail2 as TL
import k_front as FR
from k_prep import WS_WOF

class VMT:
    def __init__(self, a):
        self.a = a; self.base = len(a.vm_seq); self.done = self.base
    def wait(self, tag):
        seq = self.a.vm_seq
        last = max(i for i in range(self.base, len(seq)) if seq[i] == tag)
        if last < self.done:
            return
        assert len(seq) - self.done <= 63, (tag, len(seq) - self.done)
        n = len(seq) - 1 - last
        self.a(f's_waitcnt vmcnt({n})')
        self.done = last + 1

def cost(x):
    c = 0
    for l in x.strip().split('\n'):
        l = l.split(';')[0].strip()
        if not l: continue
        mn = l.split()[0]
        c += 16 if mn in ('v_exp_f32', 'v_rcp_f32') or mn.startswith('buffer_') else 4
    return c

def merge_items(main, extra, start, end):
    out = []; acc = 0; k = 0
    n = len(extra)
    for x in main:
        while k < n and acc >= start + (end - start) * k / n:
            out.append(extra[k]); k += 1
        out.append(x); acc += cost(x)
    out += extra[k:]
    return out

def weave(a, mf, items, lead=0, tail_free=2):
    tot = sum(cost(x) for x in items)
    k = 0; acc = 0
    while k < len(items) and acc < lead:
        a(items[k]); acc += cost(items[k]); k += 1
    n = max(1, len(mf) - tail_free)
    per = max(0, tot - acc) / n
    base = acc
    for i, f in enumerate(mf):
        f()
        while k < len(items) and acc < base + per * (i + 1):
            a(items[k]); acc += cost(items[k]); k += 1
    while k < len(items):
        a(items[k]); k += 1

def check_p(lines):
    import re
    written = set()
    for l in lines:
        m = re.match(r'\s*v_cvt_pk_bf16_f32 v(\d+),', l)
        if m:
            written.add(int(m.group(1)))
        m = re.match(r'\s*v_mfma_f32_32x32x16_bf16 a\[\d+:\d+\], a\[\d+:\d+\], v\[(\d+):(\d+)\]', l)
        if m:
            for r in range(int(m.group(1)), int(m.group(2)) + 1):
                assert r in written, l

def stamp(a, idx):
    if 'ST' not in EXP: return
    a('''
    s_memtime s[82:83]
    s_waitcnt lgkmcnt(0)
    ''')
    if isinstance(idx, int) and idx <= 0:
        a(f's_mov_b32 s{85-idx}, s82')
    elif isinstance(idx, int):
        a(f'v_writelane_b32 v48, s82, {idx}')
    else:
        a(idx)
        a('''
        v_mov_b32 v49, s82
        v_cmp_eq_u32 vcc, s84, v1
        v_cndmask_b32 v48, v48, v49, vcc
        ''')


TRANS = ('v_exp_f32', 'v_log_f32', 'v_rcp_f32', 'v_rsq_f32', 'v_sqrt_f32')
import re as _re
def vcost(x):
    mn = x.split()[0]
    if mn in TRANS: return 8
    if mn.startswith('buffer_') or mn.startswith('ds_'): return 12
    return 4
class VQ:
    def __init__(self, items, earliest=0, marks=None, needs=None):
        self.items = list(items); self.k = 0; self.earliest = earliest; self.marks = marks; self.needs = needs
        self.lag = []
    def head(self, slot):
        if self.k >= len(self.items) or slot < self.earliest: return None
        x = self.items[self.k]
        if self.needs is not None:
            r = int(_re.findall(r'v(\d+)', x)[-1])
            if r not in self.needs: return None
        return x
    def pop(self):
        x = self.items[self.k]; self.k += 1
        if self.marks is not None:
            for r in self.lag: self.marks.add(r)
            self.lag = []
            if x.startswith('v_exp'):
                self.lag = [int(_re.findall(r'v(\d+)', x)[0])]
            if self.k >= len(self.items):
                for r in self.lag: self.marks.add(r)
        return x
    def left(self):
        return len(self.items) - self.k
def slots(a, mf, spec, sq, mem, vqs, cap=24, pre=None, post=None, caps=None):
    pre = pre or {}; post = post or {}; caps = caps or {}
    sq = [[lo, hi, list(it)] for lo, hi, it in sq]
    for k, m in enumerate(mf):
        a(m)
        used = 0
        sp = spec.get(k, [])
        for j, x in enumerate(sp):
            a(x); used += 4 if j else 0
        for q in sq:
            lo, hi, it = q
            if it and lo <= k:
                n = 0 if sp else 1
                free_later = sum(1 for kk in range(k + 1, hi + 1) if not spec.get(kk))
                n = max(n, len(it) - free_later) if k <= hi else len(it)
                for j in range(min(n, len(it))):
                    a(it.pop(0)); used += 4 if (sp or j) else 0
                break
        if k in pre:
            used += pre[k]()
        for x in mem.get(k, []):
            a(x); used += 4
        c = caps.get(k, cap)
        while True:
            for q in vqs:
                x = q.head(k)
                if x is not None and used + vcost(x) <= c:
                    a(q.pop()); used += vcost(x)
                    break
            else:
                break
        if k in post:
            post[k]()
    for q in sq:
        assert not q[2]
    rest = 0
    while any(q.left() for q in vqs):
        for q in vqs:
            x = q.head(1000)
            if x is not None:
                a(q.pop()); rest += vcost(x)
                break
        else:
            assert False
    if os.environ.get('VERB'): print('slots', len(mf), 'leftover', rest)

def gen_attn(a):
    name = 'attn_kernel'
    WQL = 65536
    MODL = 147456
    QST = 131072
    SCRL = 163840 - 64
    kernel_header(a, name)
    if TL.STK == 'TL': a('s_memtime s[100:101]')
    QT = 64
    DKV = 16
    L16 = 17
    def kv_items(t, isv, tag):
        base = (16384 if isv else 0) + (t % 4)*32768
        sr = 24 if isv else 20
        out = []
        for h in range(2):
            out.append(f"""
            s_add_u32 m0, s36, {base}
            s_mov_b32 s50, {t*16384}
            buffer_load_dwordx4 v{DKV}, s[{sr}:{sr+3}], s50 offen offset:{h*2048} lds  ; T:{tag}
            buffer_load_dwordx4 v{DKV}, s[{sr}:{sr+3}], s50 offen offset:{h*2048+1024} lds  ; T:{tag}
            """)
        return out
    FT = FR.front(a, kv_items)
    C2L = f'buffer_load_dword v59, off, s[{FR.DBG}:{FR.DBG+3}], 0 offset:{FR.D_C2} sc0 sc1'
    a(C2L)
    a('s_mov_b64 s[4:5], s[92:93]\ns_mov_b64 s[6:7], s[94:95]')
    C2L = C2L.replace('s[92:95]', 's[4:7]')
    QF = 128
    SB = [[64, 96], [128, 160]]
    PF = [192, 208]
    RING = 192
    RA = [4, 5]
    DKV2 = 33
    DV = [50, 51]; WV = TL.WV
    PFA = [7, 34]
    PFV = 35
    PFR = 40
    VM = [18, 20]; VL = [19, 21]; VMC = [22, 23]; VT0 = [24, 25]; VT1 = [26, 27]; VDF = [28, 29]; VAL = 30; VLS = [31, 32]
    RS = [76, 78]
    CA = 44
    TQ = 224
    NM = [224, 240]
    a(f'''
    s_lshl_b32 s45, s3, 14
    s_add_u32 s45, s45, {QST}
    v_add_u32 v6, s45, v{L16}
    ''')
    for qb in range(2):
        for s in range(8):
            blk, hf = s // 2, s % 2
            for j in range(4):
                r = QT + qb*64 + blk*16 + hf*8 + j*2
                a(f'v_cvt_pk_bf16_f32 v{TQ+4*s+j}, v{r}, v{r+1}')
        for i in range(32):
            a(f'v_accvgpr_write_b32 a{QF+qb*32+i}, v{TQ+i}')
    def zero_items():
        return [f'v_accvgpr_write_b32 a{i}, 0' for i in range(128)]
    def set_rows():
        a(f'''
        v_add_u32 v{VDF[0]}, s44, v2        ; q
        v_lshlrev_b32 v{VT0[0]}, 2, v3
        v_sub_u32 v{VDF[0]}, v{VDF[0]}, v{VT0[0]}    ; q - 4*half
        v_add_u32 v{VDF[1]}, 32, v{VDF[0]}
        s_lshr_b32 s53, s44, 6
        v_mov_b32 v{VL[0]}, 0
        v_mov_b32 v{VL[1]}, 0
        v_mov_b32 v{VM[0]}, 0xf149f2ca
        v_mov_b32 v{VM[1]}, 0xf149f2ca
        ''')
    set_rows()
    a(f"""
    s_lshl_b32 s59, s56, 1           ; 2p
    s_mov_b32 s47, 0
    s_mov_b32 s80, 0                 ; next
    s_mov_b32 s54, 0x41000000
    s_add_u32 s45, s59, 1
    s_bfm_b32 s45, s45, 0
    s_and_b32 s60, s45, 0x5555
    s_andn2_b32 s45, 0x7fff, s45
    s_or_b32 s60, s60, s45           ; KE
    s_add_u32 s45, s59, 2
    s_bfm_b32 s45, s45, 0
    s_and_b32 s61, s45, 0xaaaa
    s_andn2_b32 s45, 0xffff, s45
    s_or_b32 s61, s61, s45           ; VE
    s_add_u32 s62, s36, 65536
    s_mov_b32 s63, 32768
    s_add_u32 s64, s36, {65536 + 16384}
    s_mov_b32 s65, 32768
    s_or_b32 s60, s60, 0x18000
    s_or_b32 s61, s61, 0x10000
    v_add_u32 v{DKV2}, 16384, v{DKV}
    v_mov_b32 v{RA[1]}, v{L16}
    v_mov_b32 v{DV[0]}, v{DKV}
    v_add_u32 v{DV[1]}, 16384, v{DKV}
    v_lshrrev_b32 v{WV[1]}, 4, v1            ; rg
    v_lshlrev_b32 v{WV[0]}, 2, v{WV[1]}
    v_xor_b32 v{WV[0]}, v{WV[0]}, v1
    v_and_b32 v{WV[0]}, 15, v{WV[0]}
    v_lshlrev_b32 v{WV[0]}, 4, v{WV[0]}
    v_lshl_add_u32 v{WV[0]}, v{WV[1]}, 12, v{WV[0]}
    s_lshl_b32 s45, s3, 14
    s_lshr_b32 s50, s55, 1
    s_lshl_b32 s50, s50, 16
    s_add_u32 s45, s45, s50
    v_add_u32 v{WV[0]}, s45, v{WV[0]}
    v_add_u32 v{WV[1]}, 0x20000, v{WV[0]}
    """)
    TL.touch_setup(a, PFA, PFV)
    def rd(j, base):
        out = []
        for h in range(2):
            r = RING + (j % 8)*8 + h*4
            if j < 8:
                off = h*8192 + j*1024
            else:
                n = j - 8; u, dbp = n // 2, n % 2
                off = 16384 + (dbp*2 + h)*4096 + u*1024
            out.append(f'ds_read_b128 a[{r}:{r+3}], v{base} offset:{off}')
        return out
    def grp(g, base):
        return rd(2*g, base) + rd(2*g + 1, base)
    def s_mf(S, first):
        mf = []
        for s in range(8):
            for kvb in range(2):
                for qb in range(2):
                    r = RING + s*8 + kvb*4
                    c = S[qb] + kvb*16
                    cc = ('0' if first else f'v[{NM[qb]}:{NM[qb]+15}]') if s == 0 else f'v[{c}:{c+15}]'
                    q = QF + qb*32 + 4*s
                    mf.append(f'v_mfma_f32_32x32x16_bf16 v[{c}:{c+15}], a[{r}:{r+3}], a[{q}:{q+3}], {cc}')
        return mf
    def pv_mf():
        mf = []
        for n in range(8):
            u, dbp = n // 2, n % 2
            for i in range(2):
                for qb in range(2):
                    db = dbp*2 + i
                    r = RING + n*8 + i*4
                    c = qb*64 + db*16
                    mf.append(f'v_mfma_f32_32x32x16_bf16 a[{c}:{c+15}], a[{r}:{r+3}], v[{PF[qb]+4*u}:{PF[qb]+4*u+3}], a[{c}:{c+15}]')
        return mf
    def mask_body(S):
        a(f"""
        s_lshl_b32 s51, s53, 6
        v_subrev_u32 v{VT0[0]}, s51, v{VDF[0]}
        v_subrev_u32 v{VT0[1]}, s51, v{VDF[1]}
        v_mov_b32 v{VT1[0]}, 0xf149f2ca
        """)
        for qb, kvb in ((0, 0), (1, 1)):
            for r in range(16):
                off = 32*kvb + 8*(r//4) + r % 4
                a(f"""
                v_cmp_gt_i32 vcc, {off}, v{VT0[qb]}
                v_cndmask_b32 v{S[qb]+kvb*16+r}, v{S[qb]+kvb*16+r}, v{VT1[0]}, vcc
                """)
        for r in range(16):
            a(f'v_mov_b32 v{S[0]+16+r}, v{VT1[0]}')
    def max_valu(S):
        v = []
        for qb in range(2):
            s = S[qb]; t0 = VT0[qb]
            v.append(f'v_max3_f32 v{t0}, v{s}, v{s+1}, v{s+2}')
            for i in range(3, 31, 2):
                v.append(f'v_max3_f32 v{t0}, v{t0}, v{s+i}, v{s+i+1}')
            v += [f'v_max_f32 v{t0}, v{t0}, v{s+31}',
                  f'v_cmp_lt_f32 s[{RS[qb]}:{RS[qb]+1}], s54, v{t0}']
        return v
    def adopt(S, qb, first):
        t0, t1 = VT0[qb], VT1[qb]
        a(f'''
        v_mov_b32 v{t1}, v{t0}
        v_permlane32_swap_b32 v{t0}, v{t1}
        ''')
        if first:
            a(f'''
            v_max_f32 v{t0}, v{t0}, v{t1}
            v_mov_b32 v{VM[qb]}, v{t0}
            ''')
        else:
            a(f'''
            v_max3_f32 v{t0}, v{t0}, v{t1}, 0
            v_add_f32 v{VM[qb]}, v{VM[qb]}, v{t0}
            ''')
        a(f'v_sub_f32 v{t1}, 0, v{VM[qb]}')
        for i in range(16):
            a(f'v_mov_b32 v{NM[qb]+i}, v{t1}')
        for i in range(32):
            a(f'v_sub_f32 v{S[qb]+i}, v{S[qb]+i}, v{t0}')
        a(f's_mov_b64 s[{RS[qb]}:{RS[qb]+1}], 0')
    def first_tile(S, items, base):
        for x in grp(0, base) + grp(1, base):
            a(x)
        mf = s_mf(S, True)
        spec = {}; mem = {}
        for g in range(2):
            for k, x in enumerate(grp(g + 2, base)):
                mem[8*g + k] = [x]
        spec[7] = ['s_waitcnt lgkmcnt(4)']; spec[15] = ['s_waitcnt lgkmcnt(4)']; spec[23] = ['s_waitcnt lgkmcnt(0)']
        nlead = min(len(items), 24)
        for x in items[:nlead]:
            a(x)
        a('s_waitcnt lgkmcnt(4)')
        slots(a, mf, spec, [], mem, [VQ(items[nlead:])])
        lnm = a.newlabel('AT_NOMASK')
        a(f"""
        s_cmp_lg_u32 s80, s53
        s_cbranch_scc1 {lnm}
        """)
        mask_body(S)
        a.label(lnm)
        for x in max_valu(S):
            if not x.startswith('v_cmp'):
                a(x)
        for qb in range(2):
            adopt(S, qb, True)
    def rescale_code(Sc, Sn):
        for qb in range(2):
            lnr = a.newlabel('AT_NORS')
            a(f"""
            s_cmp_eq_u64 s[{RS[qb]}:{RS[qb]+1}], 0
            s_cbranch_scc1 {lnr}
            """)
            adopt(Sc, qb, False)
            a(f"""
            v_sub_f32 v{VAL}, 0, v{VT0[qb]}
            v_exp_f32 v{VAL}, v{VAL}
            v_mul_f32 v{VL[qb]}, v{VL[qb]}, v{VAL}
            """)
            T = Sn[0]
            for i0 in range(0, 64, 16):
                for i in range(16):
                    a(f'v_accvgpr_read_b32 v{T+i}, a{qb*64+i0+i}')
                for i in range(16):
                    a(f'v_mul_f32 v{T+i}, v{T+i}, v{VAL}')
                for i in range(16):
                    a(f'v_accvgpr_write_b32 a{qb*64+i0+i}, v{T+i}')
            a.label(lnr)
    def exp_valu(S):
        out = []
        for u in range(4):
            for qb in range(2):
                s = S[qb] + u*8
                for j in range(8):
                    out.append(f'v_exp_f32 v{s+j}, v{s+j}')
                for j in range(4):
                    out.append(f'v_cvt_pk_bf16_f32 v{PF[qb]+4*u+j}, v{s+2*j}, v{s+2*j+1}')
        return out
    def sum_valu(S):
        out = []
        for u in range(4):
            for qb in range(2):
                for j in range(8):
                    out.append(f'v_add_f32 v{VL[qb]}, v{VL[qb]}, v{S[qb]+u*8+j}')
        return out
    def ctx_addr():
        a(f'''
        s_lshr_b32 s45, s44, 7
        s_lshl_b32 s45, s45, 20
        s_lshl_b32 s50, s40, 15
        s_add_u32 s45, s45, s50
        s_lshl_b32 s50, s3, 14
        s_add_u32 s45, s45, s50
        v_add_u32 v{CA}, s45, v{L16}
        v_add_u32 v{CA+1}, 4096, v{CA}
        v_add_u32 v{CA+2}, 8192, v{CA}
        v_add_u32 v{CA+3}, 8192, v{CA+1}
        ''')
    def store_items(qb, db, R, T):
        out = []
        for gp in range(2):
            c = R + gp*8
            t = T + gp*4
            for j in range(4):
                out.append(f'v_cvt_pk_bf16_f32 v{t+j}, v{c+2*j}, v{c+2*j+1}')
            va = CA + qb*2 + (0 if db < 2 else 1)
            out.append(f'buffer_store_dwordx4 v[{t}:{t+3}], v{va}, s[28:31], 0 offen offset:{(db%2)*2048 + gp*1024} {TL.SC} ; T:ctx')
        return out
    def store_regs(qb, db, R, T):
        for x in store_items(qb, db, R, T):
            a(x)
    def dctl():
        out = []
        for (E, m, o, d) in ((60, 62, 63, 90), (61, 64, 65, 93)):
            sr = 20 if E == 60 else 24
            vo = [DKV, DKV2] if E == 60 else DV
            out += [f's_cmp_eq_u32 s47, {15 if E == 60 else 16}',
                    f's_cselect_b64 s[{sr}:{sr+1}], s[68:69], s[{sr}:{sr+1}]',
                    f's_cselect_b32 s{o}, {0 if E == 60 else 262144}, s{o}',
                    's_cselect_b64 vcc, -1, 0',
                    f'v_cndmask_b32 v{vo[0]}, v{vo[0]}, v{WV[0]}, vcc',
                    f'v_cndmask_b32 v{vo[1]}, v{vo[1]}, v{WV[1]}, vcc',
                    f's_bitcmp1_b32 s{E}, s47',
                    f's_cselect_b32 s{d}, s{m}, 0x28000',
                    f's_cselect_b32 s{d+2}, s{o}, 0x80000',
                    f's_cselect_b32 s96, 0x8000, 0',
                    f's_add_u32 s{o}, s{o}, s96',
                    f's_lshl_b32 s96, s96, 1',
                    f's_xor_b32 s{m}, s{m}, s96',
                    f's_add_u32 s{d+1}, s{d}, 32768']
        return out
    def nctl():
        return ['s_mov_b32 s57, s80',
                's_add_u32 s52, s59, 2',
                's_cmp_ge_u32 s47, s52',
                's_addc_u32 s80, s57, 1',
                's_and_b32 s50, s80, 3',
                's_cmp_gt_u32 s80, s53',
                's_cselect_b64 s[98:99], -1, 0',
                's_cmp_eq_u32 s47, s66',
                f's_cselect_b32 s81, s67, {TL.OOB}']
    def dma(k):
        t, i = k // 4, k % 4
        sr = 20 if t < 2 else 24
        d = 90 + 3*(t // 2)
        m = f's_mov_b32 m0, s{d + t % 2}' if i == 0 else None
        return m, f'buffer_load_dwordx4 v{[DKV, DKV2, DV[0], DV[1]][t]}, s[{sr}:{sr+3}], s{d+2} offen offset:{i*1024} lds'
    FLST = f'buffer_store_dword v{DKV2}, off, s[72:75], s81 sc1'
    def pf_loads():
        return [f'buffer_load_dword v{PFR}, v{PFV}, s[72:75], s70 offen',
                f'buffer_load_dword v{PFR-4}, v{PFV}, s[72:75], s71 offen']
    def pf_adv():
        return [f'v_readlane_b32 s70, v{PFA[0]}, s47', f'v_readlane_b32 s71, v{PFA[1]}, s47']
    NB0 = int(os.environ.get('NB0', '6'))
    BST = int(os.environ.get('BST', '2'))
    def place_dma(spec, mem, ks, slot_list):
        for k, sl in zip(ks, slot_list):
            m, ld = dma(k)
            if m:
                if any(x.startswith('buffer_') for x in mem.get(sl - 1, [])):
                    spec.setdefault(sl, []).append(m)
                else:
                    spec.setdefault(sl - 1, []).append(m)
            mem.setdefault(sl, []).append(ld)
    FT.wait(v='k0')
    a('''
    s_waitcnt lgkmcnt(0)
    s_barrier
    ''')
    a('''
    s_cmp_ge_u32 s55, 2
    s_cbranch_scc1 AT_NOSTASH
    ''')
    for i in range(16):
        a(f'ds_write_b128 v6, a[{QF+4*i}:{QF+4*i+3}] offset:{i*1024}')
    a('s_waitcnt lgkmcnt(0)')
    a.label('AT_NOSTASH')
    first_tile(SB[0], zero_items(), RA[1])
    for x in dctl():
        a(x)
    a('s_waitcnt vmcnt(0)')
    TL.home3(a, PFA, C2L)
    FR.front_out(a)
    if 'ST' in EXP:
        a('v_mov_b32 v48, 0')
        a('v_writelane_b32 v48, s100, 0')
    stamp(a, 5)
    a('s_branch AT_BAR1')
    def full(p):
        Sc, Sn = SB[p], SB[p ^ 1]
        a.raw(f'AT_FULL{p}:')
        mark0 = len(a.lines)
        mf = s_mf(Sn, False) + pv_mf()
        spec = {}; mem = {}; post = {}; pre = {}
        for g in range(6):
            for k, x in enumerate(grp(g + 2, RA[p] if g + 2 < 4 else RA[p ^ 1])):
                mem.setdefault(8*g + k, []).append(x)
        for g in range(1, 7):
            spec[8*g - 1] = ['s_waitcnt lgkmcnt(4)']
        sl = [1 + BST*j for j in range(16 - NB0)]
        sl = [s + 1 if (s % 8) == 0 else s for s in sl]
        place_dma(spec, mem, range(NB0, 16), sl)
        lastb = sl[-1]
        pfs = max(lastb + 2, 44)
        mem.setdefault(pfs, []).append(pf_loads()[0]); mem.setdefault(pfs + 1, []).append(pf_loads()[1])
        spec[32] = ['s_cmp_eq_u32 s80, s53']
        def mk():
            a(f's_cbranch_scc1 AT_MASK{p}')
            a.raw(f'AT_MRET{p}:')
            return 10
        pre[32] = mk
        g0, g1 = grp(0, RA[p ^ 1]), grp(1, RA[p ^ 1])
        def bar():
            a(f'v_lshl_add_u32 v{RA[p^1]}, s50, 15, v{L16}')
            stamp(a, 's_lshl_b32 s84, s47, 1\ns_add_u32 s84, s84, 8')
            a(f'''
            s_waitcnt vmcnt(2) lgkmcnt(0)
            s_barrier
            ''')
            stamp(a, 's_add_u32 s84, s84, 1')
            a(g0[0]); a(g0[1])
            a(FLST)
        post[55] = bar
        for k, x in enumerate(g0[2:] + g1):
            mem.setdefault(56 + k, []).append(x)
        bsl = [57 + j for j in range(NB0)]
        place_dma(spec, mem, range(NB0), bsl)
        spec.setdefault(63, []).append('s_waitcnt lgkmcnt(4)')
        sq = [(lastb + 1, 31, ['s_add_u32 s47, s47, 1'] + dctl()[:14]), (33, 54, dctl()[14:] + nctl())]
        caps = {55: 8, 62: 16, 63: 0}
        done = set()
        q1 = VQ(exp_valu(Sc), marks=done)
        q2 = VQ(max_valu(Sn), earliest=34)
        q3 = VQ(sum_valu(Sc), needs=done)
        q4 = VQ(pf_adv(), earliest=pfs + 2)
        slots(a, mf, spec, sq, mem, [q1, q2, q4, q3], pre=pre, post=post, caps=caps, cap=int(os.environ.get('CAP', '20')))
        check_p(a.lines[mark0:])
        a(f'''
        s_or_b64 s[98:99], s[98:99], s[{RS[0]}:{RS[0]+1}]
        s_or_b64 s[98:99], s[98:99], s[{RS[1]}:{RS[1]+1}]
        s_cbranch_scc1 AT_EXC{p^1}
        ''')
    full(0)
    full(1)
    a('s_branch AT_FULL0')
    def other(p):
        Sc, Sn = SB[p], SB[p ^ 1]
        a.label(f'AT_MASK{p}')
        a.nop(16)
        mask_body(Sn)
        a.nop(4)
        a(f's_branch AT_MRET{p}')
        a.label(f'AT_EXC{p}')
        if p == 0: a(TL.PL)
        a.nop(16)
        a(f"""
        s_cmp_gt_u32 s57, s53
        s_cbranch_scc1 AT_IDLE{p}
        """)
        rescale_code(Sc, Sn)
        a.nop(8)
        a(f"""
        s_cmp_le_u32 s80, s53
        s_cbranch_scc1 AT_FULL{p}
        """)
        mark0 = len(a.lines)
        a('s_waitcnt lgkmcnt(0)')
        for x in grp(4, RA[p ^ 1]) + grp(5, RA[p ^ 1]):
            a(x)
        ex = exp_valu(Sc)
        done = set()
        q1 = VQ(ex, marks=done)
        k = NB0
        for j in range(24):
            a(q1.pop())
            if j % 6 == 5 and k < 16:
                m, ld = dma(k); k += 1
                if m: a(m)
                a('s_nop 0')
                a(ld)
        a('s_waitcnt lgkmcnt(4)')
        mf = pv_mf()
        spec = {}; mem = {}
        for g in range(2):
            for kk, x in enumerate(grp(g + 6, RA[p ^ 1])):
                mem.setdefault(8*g + kk, []).append(x)
        spec[7] = ['s_waitcnt lgkmcnt(4)']; spec[15] = ['s_waitcnt lgkmcnt(4)']; spec[23] = ['s_waitcnt lgkmcnt(0)']
        sl = [1 + 2*j for j in range(16 - k)]
        place_dma(spec, mem, range(k, 16), sl)
        lastb = sl[-1] if sl else 0
        q3 = VQ(sum_valu(Sc), needs=done)
        slots(a, mf, spec, [], mem, [q1, q3], cap=32)
        check_p(a.lines[mark0:])
        a(f's_branch AT_POST{p}')
        a.label(f'AT_IDLE{p}')
        for k in range(NB0, 16):
            m, ld = dma(k)
            if m: a(m)
            a(ld)
        a.label(f'AT_POST{p}')
        for x in pf_loads() + ['s_add_u32 s47, s47, 1'] + pf_adv() + dctl():
            a(x)
        if p == 0:
            a(f"""
            s_cmp_eq_u32 s47, 17
            s_cbranch_scc1 AT_MERGE
            """)
        else:
            a(f"""
            s_add_u32 s52, s59, 2
            s_cmp_lg_u32 s47, s52
            s_cbranch_scc1 AT_BAR1
            s_cmp_lt_u32 s55, 2
            s_cbranch_scc1 AT_BAR1
            s_waitcnt lgkmcnt(0)
            """)
            for i in range(16):
                a(f'ds_read_b128 a[{QF+4*i}:{QF+4*i+3}], v6 offset:{i*1024}')
            for qb in range(2):
                a(f'''
                v_mov_b32 v{VT0[qb]}, v{VL[qb]}
                v_permlane32_swap_b32 v{VL[qb]}, v{VT0[qb]}
                v_add_f32 v{VL[qb]}, v{VL[qb]}, v{VT0[qb]}
                v_rcp_f32 v{VLS[qb]}, v{VL[qb]}
                ''')
            ctx_addr()
            st = []
            for qb in range(2):
                for db in range(4):
                    R = Sc[0] + (db % 2) * 16
                    T = Sc[1] + ((qb*4 + db) % 4) * 8
                    for i in range(16):
                        st.append(f'v_accvgpr_read_b32 v{R+i}, a{qb*64+db*16+i}')
                    for i in range(16):
                        st.append(f'v_mul_f32 v{R+i}, v{R+i}, v{VLS[qb]}')
                    st += store_items(qb, db, R, T)
                    for i in range(16):
                        st.append(f'v_accvgpr_write_b32 a{qb*64+db*16+i}, 0')
            lsw2 = a.newlabel('AT_SW2')
            a(f"""
            s_sub_u32 s44, 15, s56
            s_lshl_b32 s44, s44, 7
            s_lshl_b32 s45, s3, 6
            s_add_u32 s44, s44, s45
            """)
            set_rows()
            a(f"""
            s_add_u32 s80, s59, 3
            s_and_b32 s50, s80, 3
            v_lshl_add_u32 v{RA[p]}, s50, 15, v{L16}
            s_waitcnt vmcnt(2) lgkmcnt(0)
            s_cmp_gt_u32 s80, s53
            s_cbranch_scc1 {lsw2}
            """)
            first_tile(Sn, st, RA[p])
            a(f's_branch AT_SW3')
            a.label(lsw2)
            for x in st:
                a(x)
            a.label('AT_SW3')
            a(f'''
            s_cmp_lg_u32 s{TL.SAH}, 0
            s_cbranch_scc1 AT_BARW
            s_waitcnt vmcnt(0)
            buffer_wbl2 sc1
            s_branch AT_BARW
            ''')
        a.label(f'AT_BAR{p}')
        a('s_waitcnt vmcnt(2)')
        if p == 1:
            a.label('AT_BARW')
        for x in nctl():
            a(x)
        a(f'v_lshl_add_u32 v{RA[p^1]}, s50, 15, v{L16}')
        stamp(a, 's_lshl_b32 s84, s47, 1\ns_add_u32 s84, s84, 8')
        a(f'''
        s_waitcnt lgkmcnt(0)
        s_barrier
        ''')
        stamp(a, 's_add_u32 s84, s84, 1')
        for x in grp(0, RA[p ^ 1]) + grp(1, RA[p ^ 1]):
            a(x)
        a(FLST)
        for k in range(NB0):
            m, ld = dma(k)
            if m: a(m)
            a(ld)
        a(f'''
        s_waitcnt lgkmcnt(4)
        s_branch AT_EXC{p^1}
        ''')
    other(0)
    other(1)
    a.label('AT_MERGE')
    stamp(a, 6)
    if 'ST' in EXP:
        a('''
        s_lshl_b32 s45, s2, 10
        s_lshl_b32 s50, s55, 8
        s_add_u32 s45, s45, s50
        s_add_u32 s45, s45, 0x7100000
        v_lshlrev_b32 v49, 2, v1
        buffer_store_dword v48, v49, s[72:75], s45 offen
        ''')
    TL.st(a, 0)
    for qb in range(2):
        a(f'''
        v_mov_b32 v{VT0[qb]}, v{VL[qb]}
        v_permlane32_swap_b32 v{VL[qb]}, v{VT0[qb]}
        v_add_f32 v{VL[qb]}, v{VL[qb]}, v{VT0[qb]}
        ''')
    a(f'''
    s_sub_u32 s64, s64, s36          ; q3 base
    s_sub_u32 s62, s62, s36          ; q0 base
    s_lshl_b32 s45, s3, 15
    s_add_u32 s45, s45, s64
    s_lshl_b32 s50, s3, 14
    s_add_u32 s50, s50, 0x20000
    s_cmp_lt_u32 s55, 2
    s_cselect_b32 s52, s45, s50
    s_cselect_b32 s53, s50, s45
    v_add_u32 v8, s52, v{L16}
    v_add_u32 v10, s53, v{L16}
    s_add_u32 s45, s62, s36
    v_add_u32 v9, s45, v{L16}        ; own m/l (+3072)
    v_xor_b32 v11, 8192, v9          ; partner m/l
    ''')
    T = TL.pre(a, DKV2)
    TL.st(a, 52)
    a('''
    s_barrier
    s_cmp_ge_u32 s55, 2
    s_cbranch_scc1 AT_MG1
    ''')
    MO = 64
    OW = 128
    snap = T.snap()
    NA0 = TL.NA0; NA1 = int(os.environ.get('NA1', '16'))
    def merge(keep, send, tag):
        T.restore(snap)
        TL.poll_l(a, T, DKV2)
        it = []
        rd_ = [f'v_accvgpr_read_b32 v{OW+qb*32+i}, a{qb*64+keep*16+i}' for qb in range(2) for i in range(32)]
        for n in range(16):
            qb, k = n // 8, n % 8
            r = qb*64 + send*16 + k*4
            it.append(f'ds_write_b128 v8, a[{r}:{r+3}] offset:{(qb*8+k)*1024}')
            if n == 3: it.append('ds_write_b128 v9, v[18:21] offset:3072')
            it += rd_[4*n:4*n+4]
        for x in merge_items(it, [TL.aload(g, 17) for g in range(NA0, NA0 + NA1)], 0, 320):
            a(x)
        a('s_waitcnt lgkmcnt(0)')
        TL.st(a, 53)
        a('''
        s_barrier
        ds_read_b128 v[24:27], v11 offset:3072
        ''')
        for k in range(8):
            a(f'ds_read_b128 v[{MO+k*4}:{MO+k*4+3}], v10 offset:{k*1024}')
        TL.st(a, 54)
        TL.poll2(a)
        ctx_addr()
        rest = [TL.aload(g, 17) for g in range(NA0 + NA1, 32)]
        for x in rest[:2]: a(x)
        rest = rest[2:]
        a('s_waitcnt lgkmcnt(8)')
        for k in range(8, 16):
            a(f'ds_read_b128 v[{MO+k*4}:{MO+k*4+3}], v10 offset:{k*1024}')
        it = []
        for qb in range(2):
            pm, pl = 24 + 2*qb, 25 + 2*qb
            it += TL.lines(f'''
            v_max_f32 v{VMC[qb]}, v{VM[qb]}, v{pm}
            v_sub_f32 v{VM[qb]}, v{VM[qb]}, v{VMC[qb]}
            v_sub_f32 v{pm}, v{pm}, v{VMC[qb]}
            v_exp_f32 v{VM[qb]}, v{VM[qb]}
            v_exp_f32 v{pm}, v{pm}
            v_mul_f32 v{VL[qb]}, v{VL[qb]}, v{VM[qb]}
            v_fma_f32 v{VL[qb]}, v{pl}, v{pm}, v{VL[qb]}
            v_rcp_f32 v{VL[qb]}, v{VL[qb]}
            v_mul_f32 v{VM[qb]}, v{VM[qb]}, v{VL[qb]}
            v_mul_f32 v{pm}, v{pm}, v{VL[qb]}
            ''')
        for qb in range(2):
            for i in range(32):
                r = OW + qb*32 + i
                it.append(f'v_mul_f32 v{r}, v{r}, v{VM[qb]}')
        for x in merge_items(it, rest, 0, 380):
            a(x)
        TL.st(a, 55)
        for qb in range(2):
            pm = 24 + 2*qb
            a(f's_waitcnt lgkmcnt({8 if qb == 0 else 0})')
            for d in range(2):
                for i in range(16*d, 16*d + 16):
                    r = OW + qb*32 + i
                    a(f'v_fma_f32 v{r}, v{MO+qb*32+i}, v{pm}, v{r}')
                store_regs(qb, keep + d, OW + qb*32 + d*16, 192 + (qb*2 + d) * 8)
        T.ddone = len(a.ds_seq)
    merge(0, 2, 'a')
    a('s_branch AT_END2')
    a.label('AT_MG1')
    merge(2, 0, 'b')
    a.label('AT_END2')
    TL.main(a, T)
    a.label('AT_END')
    a('s_endpgm')
    TL.ool(a)
    return dict(name=name, grid=256, block=256, lds=163840, vgpr=512, accum=256)
```

```python
from k_common import *
from k_prep import WS_WINF, WS_WOUTF, WS_MODF, WS_WSPF, WTC
from sched import *
import k_tail2 as TL
import os
E = os.environ.get
I = lambda k, d: int(E(k, str(d)), 0)
FSTK = 'ST' in E('ATT_EXP', '')
OOB = 0x40000000
WS_H = WS_N1
WS_MODQ = 0x4000
FH, FKV = 0x4200, 0x4400
D_C1, D_C0, D_C2 = 128, 160, 192
MT = 131072; MP = MT + 4096; SCRL = 163840 - 64
CKV, WUK, WUV, SX, SC_, WMOD, DBG, WIN, WOUT, WSP = 60, 64, 76, 80, 84, 88, 92, 20, 24, 28
RAW = 4
QT = 64; FW = 28; FA = 64; FB = 80
DKV = 16; L16 = 17
VST = 62
CSC = 0x3e0293ee

def fs(a, idx, T=None):
    if not FSTK: return
    a(f'''
    s_memtime s[98:99]
    s_waitcnt lgkmcnt(0)
    v_writelane_b32 v{VST}, s98, {idx}
    ''')
    if T is not None: T.ddone = len(a.ds_seq)

def fmt(a, q, n):
    a(f's_mov_b32 s{q+2}, {n}\ns_mov_b32 s{q+3}, 0x00020000')

class MQ(Q):
    def __init__(self, name=''):
        super().__init__(name); self.passed = set()
    def mark(self, nm):
        def f(): self.passed.add(nm)
        f.cost = 0
        self.items.append(f); return self

def front(a, kv_items):
    if FSTK: a(f'v_mov_b32 v{VST}, 0')
    fs(a, 0)
    for q, nm in ((DBG, 'dbg'), (WMOD, 'w_mod'), (SC_, 'c'), (CKV, 'A_c_kv'), (WUK, 'A_w_uk'), (WUV, 'A_w_uv'), (8, 'ws'),
                  (SX, 'A_x'), (16, 'A_w_q'), (68, 'A_w_o'), (WIN, 'B_w_in'), (WOUT, 'B_w_out'), (WSP, 'B_w_sp')):
        a(f's_load_dwordx2 s[{q}:{q+1}], s[0:1], {ARG[nm]}')
    a(f'''
    s_getreg_b32 s5, hwreg(HW_REG_XCC_ID, 0, 4)
    v_lshrrev_b32 v1, 6, v0
    s_cmp_ge_u32 s2, 256
    s_cbranch_scc1 AT_END
    v_readfirstlane_b32 s55, v1      ; wave 0..3
    s_and_b32 s5, s5, 7
    s_mov_b32 s{RAW}, s2
    v_and_b32 v1, 63, v0             ; lane
    ''')
    fmt(a, DBG, 256); fmt(a, WMOD, 512*3072*2); fmt(a, SC_, 1024)
    fmt(a, CKV, 2048*512*2); fmt(a, WUK, 4194304); fmt(a, WUV, 4194304)
    NC = I('NCNT', 32)
    a(f'''
    s_cmp_lg_u32 s55, 0
    s_cbranch_scc1 FR_PF
    ''')
    if NC == 32:
        a(f'''
        s_lshl_b32 s96, s5, 2
        s_lshr_b32 s97, s2, 6
        s_add_u32 s96, s96, s97
        s_lshl_b32 s97, s96, 2
        ''')
    else:
        a(f'''
        s_mov_b32 s96, s5
        s_lshl_b32 s97, s96, 4
        ''')
    a(f'''
    v_mov_b32 v3, 1
    s_mov_b64 exec, 1
    s_waitcnt lgkmcnt(0)
    buffer_atomic_add v3, off, s[{DBG}:{DBG+3}], s97 sc0 sc1
    s_mov_b64 exec, -1
    s_branch FR_CM
    ''')
    a.label('FR_PF')
    code_pf(a, None, 'CODE_END', 55, 3, I('PF0', 24000), sb=32, vt=250, woff=1)
    if I('PFK', 1):
        a(f'''
        s_getreg_b32 s6, hwreg(HW_REG_HW_ID, 13, 2)
        s_lshr_b32 s7, s2, 6
        s_lshl_b32 s7, s7, 2
        s_add_u32 s7, s7, s6             ; portion 0..15
        s_mul_i32 s7, s7, 3
        s_add_u32 s7, s7, s55
        s_sub_u32 s7, s7, 1              ; g 0..47
        v_lshlrev_b32 v2, 10, v1         ; A: lane*1024
        v_lshrrev_b32 v3, 3, v1
        v_lshlrev_b32 v3, 13, v3
        v_and_b32 v4, 7, v1
        v_lshl_add_u32 v3, v4, 7, v3     ; B: (lane/8)*8192 + (lane%8)*128
        s_lshl_b32 s6, s5, 10
        v_add_u32 v3, s6, v3
        s_lshl_b32 s6, s7, 16
        s_waitcnt lgkmcnt(0)
        s_cmp_ge_u32 s7, 32
        s_cbranch_scc1 FR_PB
        buffer_load_dword v248, v2, s[{CKV}:{CKV+3}], s6 offen
        buffer_load_dword v249, v2, s[{CKV}:{CKV+3}], s6 offen offset:128
        s_branch FR_CM
        ''')
        a.label('FR_PB')
        a(f'''
        s_and_b32 s6, s6, 0x70000        ; 8 rows * 8192
        s_add_u32 s10, s6, {64*8192}
        s_cmp_ge_u32 s7, 40
        s_cbranch_scc1 FR_PV
        buffer_load_dword v248, v3, s[{WUK}:{WUK+3}], s6 offen
        buffer_load_dword v249, v3, s[{WUK}:{WUK+3}], s10 offen
        s_branch FR_CM
        ''')
        a.label('FR_PV')
        a(f'''
        buffer_load_dword v248, v3, s[{WUV}:{WUV+3}], s6 offen
        buffer_load_dword v249, v3, s[{WUV}:{WUV+3}], s10 offen
        ''')
    a.label('FR_CM')
    T = Trk(a)
    W = lambda **k: (lambda: T.wait(**k))
    MODW, SCV = 144, 176
    a(f'''
    s_waitcnt lgkmcnt(0)
    v_lshrrev_b32 v4, 2, v0          ; rg
    v_lshlrev_b32 v5, 4, v4
    buffer_load_dwordx4 v[{SCV}:{SCV+3}], v5, s[{SC_}:{SC_+3}], 0 offen ; T:mc
    v_mul_u32_u24 v4, {8*6144}, v4
    v_and_b32 v5, 3, v0
    v_lshl_add_u32 v4, v5, 4, v4
    s_lshl_b32 s6, s{RAW}, 6
    s_cmp_lt_u32 s{RAW}, 96
    s_cselect_b32 s6, s6, {OOB}
    ''')
    for i in range(8):
        a(f'buffer_load_dwordx4 v[{MODW+4*i}:{MODW+4*i+3}], v4, s[{WMOD}:{WMOD+3}], s6 offen ; T:mw{i}')
        if i < 7: a('s_add_u32 s6, s6, 6144')
    srd(a, 72, 8, 9, 0x10000000)
    a(f'''
    v_lshlrev_b32 v{L16}, 4, v1
    v_mov_b32 v8, 0
    v_mov_b32 v9, 0
    v_mov_b32 v10, 0
    v_mov_b32 v11, 0
    s_lshl_b32 s6, s{RAW}, 10
    s_add_u32 s6, s6, {TL.LOC}
    s_cmp_eq_u32 s55, 1
    s_cselect_b32 s6, s6, {OOB}
    buffer_store_dwordx4 v[8:11], v{L16}, s[72:75], s6 offen sc0 sc1 ; T:zero
    v_mov_b32 v2, {SCRL}
    s_cmp_lg_u32 s55, 0
    s_cbranch_scc1 FR_DW
    s_mov_b32 s10, 0
    s_waitcnt vmcnt(10)
    ''')
    a.label('FR_DL')
    lim = 8 if NC == 32 else 32
    a(f'''
    v_readfirstlane_b32 s98, v3
    s_cmp_lt_u32 s98, {lim}
    s_cbranch_scc1 FR_DF
    s_add_u32 s10, s10, 1
    s_cmp_ge_u32 s10, {NC}
    s_cbranch_scc1 FR_DN
    s_add_u32 s96, s96, 1
    s_and_b32 s96, s96, {NC - 1}
    s_lshl_b32 s97, s96, {2 if NC == 32 else 4}
    v_mov_b32 v3, 1
    s_mov_b64 exec, 1
    ''')
    n0 = len(a.vm_seq)
    a(f'''
    buffer_atomic_add v3, off, s[{DBG}:{DBG+3}], s97 sc0 sc1
    s_mov_b64 exec, -1
    s_waitcnt vmcnt(0)
    s_branch FR_DL
    ''')
    del a.vm_seq[n0:]
    a.label('FR_DN')
    a('s_mov_b32 s98, 0x00ffffff')
    a.label('FR_DF')
    if NC == 32:
        a(f'''
        s_and_b32 s99, s96, 3
        s_lshl_b32 s99, s99, 3
        s_add_u32 s98, s98, s99
        s_lshr_b32 s96, s96, 2
        ''')
    a(f'''
    s_lshl_b32 s98, s98, 3
    s_add_u32 s98, s98, s96
    v_mov_b32 v3, s98
    ds_write_b32 v2, v3
    s_waitcnt lgkmcnt(0)
    ''')
    a.label('FR_DW')
    a(f'''
    v_lshrrev_b32 v4, 2, v1          ; l/4
    v_bfe_u32 v5, v1, 4, 2           ; (row>>2)&3
    v_and_b32 v6, 3, v1
    v_xor_b32 v5, v5, v6             ; chunk
    s_lshl_b32 s6, s55, 4
    v_add_u32 v4, s6, v4
    v_lshlrev_b32 v4, 10, v4
    v_lshl_add_u32 v10, v5, 4, v4
    v_lshrrev_b32 v12, 4, v1         ; lane/16
    v_and_b32 v13, 15, v1
    v_lshlrev_b32 v14, 2, v12
    v_xor_b32 v14, v14, v13
    s_lshl_b32 s6, s55, 2
    v_add_u32 v15, s6, v12           ; row 0..15
    v_lshlrev_b32 v18, 13, v15
    v_lshl_add_u32 v19, v14, 4, v18
    s_lshl_b32 s36, s55, 12          ; wave*4096
    s_lshl_b32 s37, s55, 10          ; wave*1024
    s_barrier
    ds_read_b32 v3, v2
    s_waitcnt lgkmcnt(0)
    v_readfirstlane_b32 s2, v3
    ''')
    fs(a, 1)
    a(f'''
    s_cmp_ge_u32 s2, 256
    s_cbranch_scc1 AT_END
    s_and_b32 s40, s2, 7
    s_lshr_b32 s41, s2, 3
    s_and_b32 s42, s41, 3
    s_lshl_b32 s40, s40, 2
    s_add_u32 s40, s40, s42          ; head
    s_lshr_b32 s56, s41, 2           ; pair p 0..7 (= m)
    s_lshl_b32 s45, s56, 18
    v_add_u32 v10, s45, v10
    s_lshl_b32 s45, s40, 8
    v_add_u32 v19, s45, v19
    ''')
    def dma(Tn):
        sl = (Tn % 4) * 32768
        out = []
        if Tn < 16:
            for i in range(4):
                out.append(f'''
                s_add_u32 m0, s37, {sl + i*4096}
                s_mov_b32 s39, {Tn*64 + i*65536}
                buffer_load_dwordx4 v10, s[{CKV}:{CKV+3}], s39 offen lds ; T:d{Tn}
                ''')
            for i in range(2):
                out.append(f'''
                s_add_u32 m0, s37, {sl + 16384 + i*4096}
                s_mov_b32 s39, {(Tn*32 + i*16)*8192}
                buffer_load_dwordx4 v19, s[{WUK}:{WUK+3}], s39 offen lds ; T:d{Tn}
                ''')
                out.append(f'''
                s_add_u32 m0, s37, {sl + 24576 + i*4096}
                s_nop 0
                buffer_load_dwordx4 v19, s[{WUV}:{WUV+3}], s39 offen lds ; T:d{Tn}
                ''')
            out = out[:4] + [out[4] + out[5], out[6] + out[7]]
        else:
            j = Tn - 16
            for i in range(8):
                out.append(f'''
                s_add_u32 m0, s37, {sl + i*4096}
                s_mov_b32 s39, {(j*128 + i*16)*8192}
                buffer_load_dwordx4 v19, s[16:19], s39 offen lds ; T:d{Tn}
                ''')
        return out
    for t in range(4):
        for x in dma(t): a(x)
        if t == 0: fs(a, 2)
    fs(a, 3)
    XR = 192
    a(f'''
    s_and_b32 s3, s55, 1
    s_sub_u32 s43, 15, s56
    s_cmp_lt_u32 s55, 2
    s_cselect_b32 s41, s43, s56
    s_cmp_lt_u32 s42, 2
    s_cselect_b32 s43, s43, s56
    s_lshl_b32 s43, s43, 7
    s_and_b32 s45, s42, 1
    s_lshl_b32 s45, s45, 6
    s_add_u32 s43, s43, s45
    s_lshl_b32 s45, s55, 4
    s_add_u32 s43, s43, s45
    v_and_b32 v4, 7, v1
    v_lshrrev_b32 v5, 3, v1
    v_lshlrev_b32 v6, 4, v5
    v_lshl_add_u32 v6, v4, 10, v6    ; x voffset
    s_lshl_b32 s45, s43, 10
    s_add_u32 s46, s45, 8192
    ''')
    fmt(a, SX, 2048*512*2); fmt(a, 16, 4194304)
    for G in range(2):
        for i in range(8):
            r = XR + G*32 + 4*i
            a(f'buffer_load_dwordx4 v[{r}:{r+3}], v6, s[{SX}:{SX+3}], s{45+G} offen offset:{i*128} ; T:x{G}_{i}')
    a(f'''
    v_lshlrev_b32 v6, 9, v5
    v_lshl_add_u32 v6, v4, 4, v6
    v_lshlrev_b32 v18, 5, v5
    v_add_u32 v18, {MT}, v18
    v_and_b32 v2, 31, v1             ; l%32
    v_lshrrev_b32 v3, 5, v1          ; half
    v_bfe_u32 v5, v1, 2, 2           ; (row>>2)&3 = r
    s_lshl_b32 s45, s55, 6
    v_add_u32 v4, s45, v2
    v_lshlrev_b32 v4, 6, v4          ; row*64
    ''')
    for s in range(2):
        a(f'''
        v_or_b32 v7, {2*s}, v3
        v_xor_b32 v7, v7, v5
        v_lshl_add_u32 v{12+s}, v7, 4, v4
        v_add_u32 v{14+s}, 0x10000, v{12+s}
        ''')
    a(f'''
    v_and_b32 v4, 3, v1              ; c4
    v_bfe_u32 v7, v1, 4, 1           ; nsub
    v_lshlrev_b32 v8, 3, v3
    v_add_u32 v8, v8, v5
    v_lshlrev_b32 v8, 8, v8
    v_lshl_add_u32 v8, v7, 5, v8
    v_lshl_add_u32 v8, v4, 3, v8
    ''')
    for blk in range(4):
        a(f'''
        v_xor_b32 v7, {blk}, v5
        v_lshl_add_u32 v{20+blk}, v7, 6, v8
        v_add_u32 v{24+blk}, 0x10000, v{20+blk}
        ''')
    SL, AC, U = 28, 44, 52
    T.wait(v='mc')
    for j in range(4):
        a(f'v_lshlrev_b32 v{SL+2*j}, 16, v{SCV+j}\nv_and_b32 v{SL+2*j+1}, 0xffff0000, v{SCV+j}')
    for f in ('v_mul_f32 v{t}, 0xbfb8aa3b, v{c}', 'v_exp_f32 v{t}, v{t}', 'v_add_f32 v{t}, 1.0, v{t}', 'v_rcp_f32 v{t}, v{t}',
              'v_mul_f32 v{c}, v{c}, v{t}', 'v_cvt_pk_bf16_f32 v{c}, v{c}, v{c}', 'v_lshlrev_b32 v{c}, 16, v{c}'):
        for j in range(8): a(f.format(t=SL+8+j, c=SL+j))
    for i in range(8):
        T.wait(v=f'mw{i}')
        for j in range(4):
            a(f'v_lshlrev_b32 v{U+2*j}, 16, v{MODW+4*i+j}\nv_and_b32 v{U+2*j+1}, 0xffff0000, v{MODW+4*i+j}')
        for j in range(8):
            a(f'v_mul_f32 v{AC+j}, v{U+j}, v{SL}' if i == 0 else f'v_fmac_f32 v{AC+j}, v{U+j}, v{SL+i}')
    for j in range(8):
        a(f'v_add_f32_dpp v{U+j}, v{AC+j}, v{AC+j} row_ror:4 row_mask:0xf bank_mask:0xf')
    for j in range(8):
        a(f'v_add_f32_dpp v{AC+j}, v{U+j}, v{U+j} row_ror:8 row_mask:0xf bank_mask:0xf')
    for j in range(4): a(f'v_permlane16_swap_b32 v{AC+j}, v{AC+4+j}')
    for j in range(4): a(f'v_add_f32 v{AC+j}, v{AC+j}, v{AC+4+j}')
    for j in range(2): a(f'v_permlane32_swap_b32 v{AC+j}, v{AC+2+j}')
    for j in range(2): a(f'v_add_f32 v{AC+j}, v{AC+j}, v{AC+2+j}')
    a(f'''
    v_bfe_u32 v7, v1, 4, 1           ; e
    v_lshlrev_b32 v7, 4, v7
    v_lshl_add_u32 v7, v3, 3, v7     ; + f*8
    v_lshl_add_u32 v7, v4, 5, v7     ; + cq*32
    s_lshl_b32 s45, s55, 7
    s_add_u32 s45, s45, {MP}
    v_add_u32 v7, s45, v7
    ds_write_b64 v7, v[{AC}:{AC+1}] ; T:mp
    s_xor_b32 s45, s5, s2
    s_and_b32 s45, s45, 7
    s_cmp_eq_u32 s45, 0
    s_cselect_b32 s45, {0x10001 if TL.FORCE else 1}, 0x10001
    v_mov_b32 v9, s45
    s_cmp_eq_u32 s55, 1
    s_cselect_b32 s45, {D_C1}, {OOB}
    ''')
    T.wait(v='zero')
    a(f'''
    s_mov_b64 exec, 1
    buffer_atomic_add v9, off, s[{DBG}:{DBG+3}], s45 sc1
    s_mov_b64 exec, -1
    ''')
    fs(a, 4, T)
    def reads(t, s):
        buf = s; sl = t % 4; sb = (sl % 2)*32768
        va, vb = (12, 20) if sl < 2 else (14, 24)
        out = []
        for mb in range(2):
            r = FA + buf*8 + mb*4
            out.append(f'ds_read_b128 v[{r}:{r+3}], v{va+s} offset:{sb + mb*2048} ; T:f{2*t+s}')
        for v in range(2):
            for nb in range(4):
                for j in range(2):
                    r = FB + buf*32 + (v*4 + nb)*4 + j*2
                    out.append(f'ds_read_b64_tr_b16 v[{r}:{r+1}], v{vb+nb} offset:{sb + 16384 + v*8192 + s*4096 + j*1024} ; T:f{2*t+s}')
        return out
    def wreads(g):
        vb = 20 if g < 16 else 24
        out = []
        for blk in range(4):
            for j in range(2):
                r = FW + (g & 1)*16 + blk*4 + j*2
                out.append(f'ds_read_b64_tr_b16 v[{r}:{r+1}], v{vb+blk} offset:{(g % 16)*4096 + j*1024} ; T:f{32+g}')
        return out
    T.wait(v='d0', d='mp')
    a('s_barrier')
    fs(a, 5, T)
    for x in reads(0, 0): a(x)
    def tile_reg(n):
        return 16*n
    mfl = []; pre = {}; pins = {}
    NH0 = 4
    def hreg(g, qb):
        if g < NH0: return f'v[{224 + g*8 + qb*4}:{224 + g*8 + qb*4 + 3}]'
        r = (g - NH0)*8 + qb*4
        return f'a[{r}:{r+3}]'
    for ks in range(32):
        t, s = ks // 2, ks % 2
        b = len(mfl)
        for n in range(16):
            c = tile_reg(n)
            cc = '0' if ks == 0 else f'a[{c}:{c+15}]'
            if n < 8:
                mb, nb = n // 4, n % 4
                fa = FA + s*8 + mb*4; fb = FB + s*32 + nb*4
                mfl.append(f'v_mfma_f32_32x32x16_bf16 a[{c}:{c+15}], v[{fb}:{fb+3}], v[{fa}:{fa+3}], {cc}')
            else:
                nb, mb = (n - 8) // 2, (n - 8) % 2
                fa = FA + s*8 + mb*4; fb = FB + s*32 + (4 + nb)*4
                mfl.append(f'v_mfma_f32_32x32x16_bf16 a[{c}:{c+15}], v[{fa}:{fa+3}], v[{fb}:{fb+3}], {cc}')
        pre[b] = [W(d=f'f{ks}')]
        if FSTK and s == 0: pre[b].append(lambda t=t: fs(a, 8 + t, T))
        rd = reads(t, 1) if s == 0 else (reads(t + 1, 0) if t < 15 else wreads(0))
        o = 0
        if s == 1:
            pins[b] = [W(v=f'd{t+1}'), 's_barrier']
            o = 1
        RP = I('RP', 3)
        for i, x in enumerate(rd): pins.setdefault(b + o + i // RP, []).append(x)
        if s == 1:
            for i, x in enumerate(dma(t + 4)): pins.setdefault(b + 8 + i, []).append(x)
    QB = len(mfl)
    for g in range(32):
        b = len(mfl)
        for blk in range(4):
            for qb in range(2):
                fr = FW + (g & 1)*16 + blk*4
                q = QT + qb*64 + blk*16
                cc = '0' if g == 0 else f'v[{q}:{q+15}]'
                mfl.append(f'v_mfma_f32_32x32x16_bf16 v[{q}:{q+15}], v[{fr}:{fr+3}], {hreg(g, qb)}, {cc}')
        pre[b] = [W(d=f'f{32+g}', v=f'h{g}')]
        if FSTK and g % 4 == 0: pre[b].append(lambda g=g: fs(a, 24 + g // 4, T))
        o = 0
        if g % 8 == 7 and g < 31:
            pins[b] = [W(v=f'd{17 + g // 8}'), 's_barrier']
            o = 1
        if g < 31:
            for i, x in enumerate(wreads(g + 1)): pins.setdefault(b + o + i // 3, []).append(x)
    def SL_(t, s=0, i=0): return t*32 + s*16 + i
    def need(q, nm, slot):
        def f():
            n = 0
            while nm not in q.passed:
                while isinstance(q.items[q.k], tuple): q.k += 1
                x = q.pop(); emit(a, x); n += icost(x)
            if n and E('VERB'): print('forced', nm, n)
        f.cost = 0
        pins.setdefault(slot, []).insert(0, f)
    qm = MQ('mod')
    qm.add(f'''
    v_lshlrev_b32 v7, 2, v2
    v_add_u32 v8, {MP}, v7
    ds_read_b32 v{U}, v8 ; T:mq
    ds_read_b32 v{U+1}, v8 offset:128 ; T:mq
    ds_read_b32 v{U+2}, v8 offset:256 ; T:mq
    ds_read_b32 v{U+3}, v8 offset:384 ; T:mq
    s_lshl_b32 s6, s{RAW}, 7
    s_cmp_lt_u32 s{RAW}, 96
    s_cselect_b32 s7, s6, {OOB}
    s_cmp_eq_u32 s55, 0
    s_cselect_b32 s7, s7, {OOB}
    s_add_u32 s6, s6, {WS_MODQ}
    s_cmp_lt_u32 s{RAW}, 32
    s_cselect_b32 s6, s6, {OOB}
    s_cselect_b32 s10, {D_C0}, {OOB}
    s_cmp_eq_u32 s55, 1
    s_cselect_b32 s6, s6, {OOB}
    s_cselect_b32 s10, s10, {OOB}
    s_cmp_ge_u32 s{RAW}, 16
    s_cselect_b32 s11, 1.0, 0
    s_mov_b32 s48, {CSC}
    ''')
    qm.at(3)
    qm.add(W(d='mq'))
    qm.add(f'''
    v_add_f32 v{U}, v{U}, v{U+1}
    v_add_f32 v{U+2}, v{U+2}, v{U+3}
    v_add_f32 v{U}, v{U}, v{U+2}
    v_cvt_pk_bf16_f32 v{U}, v{U}, v{U}
    v_lshlrev_b32 v{U}, 16, v{U}
    v_add_f32 v{U+1}, s11, v{U}
    v_mul_f32 v{U+1}, s48, v{U+1}
    buffer_store_dword v{U+1}, v7, s[72:75], s6 offen sc1 ; T:mods
    buffer_store_dword v{U}, v7, s[72:75], s7 offen sc1 ; T:side
    s_cmp_ge_u32 s{RAW}, 64
    s_cselect_b32 s11, 1.0, 0
    s_cselect_b32 s7, 0, 16
    v_add_f32 v{U+2}, s11, v{U}
    v_cvt_pk_bf16_f32 v{U+2}, v{U+2}, v{U+2}
    s_and_b32 s6, s{RAW}, 15
    s_lshl_b32 s6, s6, 10
    s_add_u32 s6, s6, s7
    s_lshl_b32 s7, s55, 6
    s_add_u32 s6, s6, s7
    s_add_u32 s6, s6, {WS_MODF}
    s_sub_u32 s7, s{RAW}, 48
    s_cmp_lt_u32 s7, 32
    s_cselect_b32 s6, s6, {OOB}
    v_bfe_u32 v8, v1, 4, 1               ; gq
    v_lshlrev_b32 v8, 9, v8
    v_bfe_u32 v9, v1, 2, 1               ; h
    v_lshl_add_u32 v8, v9, 8, v8
    v_and_b32 v9, 3, v1
    v_lshl_add_u32 v8, v9, 1, v8
    v_bfe_u32 v9, v1, 3, 1
    v_lshl_add_u32 v8, v9, 3, v8
    buffer_store_short v{U+2}, v8, s[72:75], s6 offen sc1 ; T:side
    v_mov_b32 v9, 1
    ''')
    qm.mark('mu')
    qm.at(I('M1', SL_(1, 0, 8)))
    qm.add(W(v='mods'))
    qm.atom(f'''
    s_mov_b64 exec, 1
    buffer_atomic_add v9, off, s[{DBG}:{DBG+3}], s10 sc1
    s_mov_b64 exec, -1
    ''')
    qj = MQ('job')
    qj.at(I('J0', SL_(1)))
    WU = 176; WP = 28
    qj.add(f'''
    s_mov_b32 s{WIN+2}, {512*1376*2}
    s_mov_b32 s{WIN+3}, 0x00020000
    s_mov_b32 s{WOUT+2}, {688*512*2}
    s_mov_b32 s{WOUT+3}, 0x00020000
    s_mov_b32 s{WSP+2}, {2048*2048*2}
    s_mov_b32 s{WSP+3}, 0x00020000
    v_lshlrev_b32 v60, 12, v2
    v_lshl_add_u32 v60, v3, 5, v60       ; t*4096 + h*32
    s_lshr_b32 s32, s2, 6                ; rbi
    s_and_b32 s33, s2, 7
    s_lshl_b32 s33, s33, 2               ; 4y
    s_add_u32 s34, s33, s32
    s_sub_u32 s35, 60, s33
    s_add_u32 s35, s35, s32
    s_lshl_b32 s49, s34, 18
    s_lshl_b32 s34, s34, 17
    s_lshl_b32 s35, s35, 17
    s_bfe_u32 s32, s2, 0x20004           ; w'
    s_lshl_b32 s32, s32, 3
    s_lshl_b32 s33, s55, 1
    s_add_u32 s32, s32, s33
    s_bfe_u32 s33, s2, 0x10003
    s_lshl_b32 s33, s33, 5
    s_add_u32 s32, s32, s33              ; Pg (u = 0)
    s_lshl_b32 s32, s32, 6
    s_add_u32 s34, s34, s32
    s_add_u32 s35, s35, s32
    s_bfe_u32 s32, s2, 0x30003
    s_lshl_b32 s32, s32, 15
    s_add_u32 s49, s49, s32
    s_lshl_b32 s32, s55, 13
    s_add_u32 s49, s49, s32
    s_add_u32 s49, s49, {WS_WSPF}
    ''')
    for u in range(2):
        for ksl in range(2):
            for rbk in range(2):
                r = MODW + u*16 + (ksl*2 + rbk)*4
                qj.add(f'buffer_load_dwordx4 v[{r}:{r+3}], v60, s[{WSP}:{WSP+3}], s{34+rbk} offen offset:{u*64 + ksl*16} ; T:sp{u}')
    def win_addr(su, so):
        return f'''
        s_lshr_b32 s32, s{su}, 3             ; x = n8*12 + wt
        s_mul_i32 s33, s32, 43691
        s_lshr_b32 s33, s33, 19              ; n8
        s_mul_i32 s50, s33, 12
        s_sub_u32 s50, s32, s50              ; wt
        s_lshl_b32 s50, s50, 2
        s_mov_b32 s96, {WTC & 0xffffffff}
        s_mov_b32 s97, {WTC >> 32}
        s_lshr_b64 s[96:97], s[96:97], s50
        s_and_b32 s50, s96, 7                ; c
        s_lshl_b32 s50, s50, 4
        s_mul_i32 s33, s33, 88
        s_add_u32 s33, s33, s50
        s_bitcmp1_b32 s96, 3
        s_cselect_b32 s50, 688, 0
        s_add_u32 s33, s33, s50              ; colbase
        s_lshl_b32 s33, s33, 1
        s_and_b32 s50, s{su}, 7
        s_mul_i32 s50, s50, {64*2752}
        s_add_u32 s{so}, s33, s50
        '''
    qj.add(f'''
    s_sub_u32 s52, s{RAW}, 96
    s_lshl_b32 s52, s52, 2
    s_add_u32 s52, s52, s55              ; unit 0
    s_add_u32 s53, s52, 640              ; unit 1
    v_and_b32 v61, 7, v1                 ; cp
    v_bfe_u32 v11, v1, 3, 1
    v_lshlrev_b32 v11, 2, v11
    v_lshrrev_b32 v63, 4, v1
    v_lshl_add_u32 v11, v63, 4, v11      ; row
    v_mul_u32_u24 v11, 2752, v11
    v_lshl_add_u32 v11, v61, 2, v11      ; w_in voffset
    ''' + win_addr(52, 54) + f'''
    s_cmp_lt_u32 s{RAW}, 96
    s_cselect_b32 s54, {OOB}, s54
    s_lshl_b32 s52, s52, 11
    s_add_u32 s52, s52, {WS_WINF}
    s_cmp_lt_u32 s{RAW}, 96
    s_cselect_b32 s52, {OOB}, s52
    ''')
    for j in range(8):
        x = f'buffer_load_dword v{WU+j}, v11, s[{WIN}:{WIN+3}], s54 offen ; T:u0'
        if j < 7: x += f'\ns_add_u32 s54, s54, {2752 if j != 3 else 5*2752}'
        qj.atom(x)
    qj.add(win_addr(53, 54) + f'''
    s_sub_u32 s57, s53, 768              ; u = n8*48 + p*6 + kf
    s_mul_i32 s33, s57, 43691
    s_lshr_b32 s33, s33, 21              ; n8
    s_mul_i32 s50, s33, 48
    s_sub_u32 s50, s57, s50
    s_mul_i32 s32, s50, 43691
    s_lshr_b32 s32, s32, 18              ; p
    s_mul_i32 s96, s32, 6
    s_sub_u32 s96, s50, s96              ; kf
    s_lshl_b32 s96, s96, 4
    s_cmp_eq_u32 s32, 7
    s_cselect_b32 s97, 9, 11
    s_lshl_b32 s97, s97, 3               ; lim
    s_mul_i32 s32, s32, 88
    s_add_u32 s32, s32, s96              ; f0
    s_lshl_b32 s32, s32, 10
    s_lshl_b32 s33, s33, 7
    s_add_u32 s33, s33, s32              ; soffset
    s_cmp_lt_u32 s96, s97
    s_cselect_b32 s33, s33, {OOB}
    s_add_u32 s96, s96, 8
    s_cmp_lt_u32 s96, s97
    s_cselect_b32 s58, {5*1024}, {OOB}   ; step to the second row group
    s_lshl_b32 s57, s57, 11
    s_add_u32 s57, s57, {WS_WOUTF}
    s_lshl_b32 s32, s53, 11
    s_add_u32 s32, s32, {WS_WINF}
    v_and_b32 v61, 15, v1
    v_bfe_u32 v63, v1, 4, 1
    v_lshlrev_b32 v63, 12, v63
    v_lshl_add_u32 v63, v3, 6, v63
    v_lshl_add_u32 v63, v61, 2, v63      ; w_out voffset
    s_cmp_lt_u32 s53, 768
    s_cselect_b32 s54, s54, s33
    s_cselect_b32 s57, s32, s57
    s_cselect_b32 s58, {5*2752}, s58
    s_cselect_b32 s59, 43, 16
    s_cselect_b32 s{WOUT}, s{WIN}, s{WOUT}
    s_cselect_b32 s{WOUT+1}, s{WIN+1}, s{WOUT+1}
    s_cselect_b32 s{WOUT+2}, s{WIN+2}, s{WOUT+2}
    s_cselect_b64 vcc, -1, 0
    v_cndmask_b32 v63, v63, v11, vcc
    s_lshl_b32 s59, s59, 6
    s_sub_u32 s32, s53, 640
    s_cmp_lt_u32 s32, 512
    s_cselect_b32 s54, s54, {OOB}
    s_cselect_b32 s57, s57, {OOB}
    ''')
    for j in range(8):
        x = f'buffer_load_dword v{WU+8+j}, v63, s[{WOUT}:{WOUT+3}], s54 offen ; T:u1'
        if j < 7: x += f'\ns_add_u32 s54, s54, s{59 if j != 3 else 58}'
        qj.atom(x)
    qj.add(f'''
    v_lshlrev_b32 v11, 5, v1             ; lane*32
    s_mov_b32 s32, 0x05040100
    s_mov_b32 s33, 0x07060302
    ''')
    def cpf():
        a('s_getpc_b64 s[34:35]')
        a.raw('FR_CPF:')
        a(f'''
        s_lshl_b32 s50, s42, 2
        s_add_u32 s50, s50, s55
        s_lshl_b32 s50, s50, 13
        v_lshl_add_u32 v61, v1, 7, s50
        ''')
        a.raw('    v_min_u32 v61, CODE_END-FR_CPF-4, v61')
        a('s_nop 0\nglobal_load_dword v61, v61, s[34:35]')
    cpf.cost = 30
    if I('CPF', 1): qj.add(cpf)
    qj.at(I('J1', SL_(4)))
    for u in range(2):
        qj.add(W(v=f'sp{u}'))
        for i in range(4):
            r = MODW + u*16 + i*4
            qj.add(f'''
            v_permlane32_swap_b32 v{r}, v{r+2}
            v_permlane32_swap_b32 v{r+1}, v{r+3}
            ''')
        for i in range(4):
            r = MODW + u*16 + i*4
            qj.add(f'buffer_store_dwordx4 v[{r}:{r+3}], v{L16}, s[72:75], s49 offen offset:{i*1024} sc1 ; T:side')
        if u == 0: qj.add('s_add_u32 s49, s49, 4096')
    for u in range(2):
        qj.add(W(v=f'u{u}'))
        R, D = WU + 8*u, WP + 8*u
        for j in range(4):
            qj.add(f'v_perm_b32 v{D+j}, v{R+2*j+1}, v{R+2*j}, s32\nv_perm_b32 v{D+4+j}, v{R+2*j+1}, v{R+2*j}, s33')
        qj.add(f'''
        buffer_store_dwordx4 v[{D}:{D+3}], v11, s[72:75], s{[52, 57][u]} offen sc1 ; T:side
        buffer_store_dwordx4 v[{D+4}:{D+7}], v11, s[72:75], s{[52, 57][u]} offen offset:16 sc1 ; T:side
        ''')
    qj.mark('jobs')
    qh = MQ('h')
    qh.at(I('H0', SL_(1)))
    SS = 44
    def hstart():
        assert 'mu' in qm.passed
    hstart.cost = 0
    qh.add(hstart)
    for G in range(2):
        for i in range(8):
            qh.add(W(v=f'x{G}_{i}'))
            for j in range(4):
                x = XR + G*32 + 4*i + j; t = U + 2*j
                qh.add(f'v_lshlrev_b32 v{t}, 16, v{x}\nv_and_b32 v{t+1}, 0xffff0000, v{x}')
            for j in range(8):
                s = SS + 2*G + 4*(j & 1)
                if i == 0 and j < 2:
                    qh.add(f'v_mov_b32 v{s}, v{U+j}\nv_mul_f32 v{s+1}, v{U+j}, v{U+j}')
                else:
                    qh.add(f'v_add_f32 v{s}, v{s}, v{U+j}\nv_fmac_f32 v{s+1}, v{U+j}, v{U+j}')
    for j in range(4): qh.add(f'v_add_f32 v{SS+j}, v{SS+j}, v{SS+4+j}')
    for j in range(4): qh.add(f'v_add_f32_dpp v{SS+4+j}, v{SS+j}, v{SS+j} row_ror:8 row_mask:0xf bank_mask:0xf')
    for j in range(4): qh.add(f'v_mov_b32 v{SS+j}, v{SS+4+j}')
    for j in range(4): qh.add(f'v_permlane16_swap_b32 v{SS+j}, v{SS+4+j}')
    for j in range(4): qh.add(f'v_add_f32 v{SS+j}, v{SS+j}, v{SS+4+j}')
    for j in range(4): qh.add(f'v_mov_b32 v{SS+4+j}, v{SS+j}')
    for j in range(4): qh.add(f'v_permlane32_swap_b32 v{SS+j}, v{SS+4+j}')
    for j in range(4): qh.add(f'v_add_f32 v{SS+j}, v{SS+j}, v{SS+4+j}')
    for G in range(2):
        s = SS + 2*G
        qh.add(f'''
        v_mul_f32 v{s}, 0xbb000000, v{s}
        v_mul_f32 v{s+1}, 0x3b000000, v{s+1}
        v_fma_f32 v{s+1}, -v{s}, v{s}, v{s+1}
        v_max_f32 v{s+1}, 0, v{s+1}
        v_add_f32 v{s+1}, 0x3727c5ac, v{s+1}
        v_rsq_f32 v{s+1}, v{s+1}
        v_mul_f32 v{s}, v{s}, v{s+1}
        ''')
    CL = f'buffer_load_dword v63, v61, s[{DBG}:{DBG+3}], 0 offen offset:{D_C1} sc0 sc1'
    CK = f'''
    v_and_b32 v{U}, 0xffff, v63
    v_cmp_eq_u32 vcc, v{U}, v60
    s_cmp_eq_u64 vcc, -1
    '''
    def jdone():
        assert 'jobs' in qj.passed, 'jobs not done'
    jdone.cost = 0
    qh.at(I('C0', SL_(5)))
    qh.add(jdone)
    qh.add(f'''
    v_and_b32 v60, 1, v1
    v_lshlrev_b32 v61, 5, v60
    v_mul_u32_u24 v60, {256 - 32}, v60
    v_sub_u32 v60, 256, v60
    ''')
    qh.add(CL + ' ; T:cl')
    qh.at(I('C1', SL_(6)))
    def cchk():
        T.wait(v='cl')
        a(CK + 's_cbranch_scc0 FR_CS')
        a.raw('FR_CR:')
        a(f'''
        v_cmp_gt_u32 vcc, 0x10000, v63
        s_cmp_eq_u64 vcc, -1
        s_cselect_b32 s10, 1, 0
        s_add_u32 m0, s37, {MT}
        s_add_u32 s39, s37, {WS_MODQ}
        buffer_load_dwordx4 v{L16}, s[72:75], s39 offen lds ; T:mt
        ''')
    cchk.cost = 24
    def cspin():
        a.label('FR_CS')
        a('s_mov_b32 s39, 0')
        a.label('FR_CL')
        a(CL + '\ns_add_u32 s39, s39, 1\ns_waitcnt vmcnt(0)' + CK + f'''
        s_cbranch_scc1 FR_CR
        s_cmp_lt_u32 s39, {TL.SPIN}
        s_cbranch_scc1 FR_CL
        s_branch FR_CR
        ''')
    TL._ool.append(cspin)
    qh.add(cchk)
    qh.mark('mt')
    TB = I('TB', 7)
    need(qh, 'mt', SL_(TB - 1, 1) + 1)
    pins[SL_(TB, 1)].insert(0, W(v='mt'))
    qh.add(f'''
    s_lshr_b32 s45, s43, 5
    s_lshl_b32 s45, s45, 15
    s_and_b32 s46, s43, 31
    s_lshl_b32 s46, s46, 4
    s_add_u32 s45, s45, s46
    s_and_b32 s46, s2, 7
    s_lshl_b32 s47, s46, 21
    s_add_u32 s45, s45, s47
    s_add_u32 s45, s45, {WS_H}
    s_add_u32 s47, s47, {WS_H}
    s_add_u32 s12, s8, s47
    s_addc_u32 s13, s9, 0
    s_mov_b32 s14, {2048*512*2}
    s_mov_b32 s15, 0x00020000
    s_mul_i32 s46, s46, {TL.LOCS}
    s_add_u32 s46, s46, {TL.LOC}
    s_lshl_b32 s47, s56, 6
    s_add_u32 s47, s47, s46
    s_add_u32 s47, s47, {FH}
    s_lshl_b32 s50, s42, 4
    s_lshl_b32 s51, s55, 2
    s_add_u32 s50, s50, s51
    s_add_u32 s50, s50, s47
    s_lshl_b32 s51, s55, 4
    s_add_u32 s47, s47, s51
    s_lshl_b32 s51, s42, 7
    s_add_u32 s46, s46, s51
    s_add_u32 s46, s46, {FKV}
    s_lshl_b32 s51, s56, 4
    s_add_u32 s51, s51, s46
    s_lshl_b32 s52, s55, 2
    s_add_u32 s51, s51, s52
    s_lshl_b32 s44, s41, 7
    s_lshl_b32 s52, s3, 6
    s_add_u32 s44, s44, s52              ; q0 = qblock*128 + w*64
    s_lshl_b32 s52, s44, 10
    v_add_u32 v5, s52, v{L16}
    v_add_u32 v{DKV}, s36, v{L16}
    ''')
    qh.at(SL_(TB, 1) + 1)
    def mread(i):
        b = MODW + (i % 2)*16
        return [f'ds_read_b128 v[{b+4*k}:{b+4*k+3}], v18 offset:{i*256 + (k & 1)*16 + (k >> 1)*2048} ; T:mr{i}' for k in range(4)]
    qh.add(mread(0)); qh.add(mread(1))
    for i in range(8):
        b = MODW + (i % 2)*16
        for G in range(2):
            s = SS + 2*G
            for j in range(4):
                x = XR + G*32 + 4*i + j; t = U + 2*j
                qh.add(f'v_lshlrev_b32 v{t}, 16, v{x}\nv_and_b32 v{t+1}, 0xffff0000, v{x}')
            for j in range(8): qh.add(f'v_fma_f32 v{U+j}, v{U+j}, v{s+1}, v{s}')
            if G == 0: qh.add(W(d=f'mr{i}'))
            for j in range(8): qh.add(f'v_fma_f32 v{U+j}, v{U+j}, v{b+8+j}, v{b+j}')
            for j in range(4):
                x = XR + G*32 + 4*i + j
                qh.add(f'v_cvt_pk_bf16_f32 v{x}, v{U+2*j}, v{U+2*j+1}')
            x = XR + G*32 + 4*i
            qh.add(f'buffer_store_dwordx4 v[{x}:{x+3}], v6, s[72:75], s45 offen offset:{G*128} ; T:hs')
        qh.add('s_add_u32 s45, s45, 4096')
        if i + 2 < 8: qh.add(mread(i + 2))
    def lflag(so):
        def f():
            lb = a.newlabel('FR_LF')
            txt = f'''
            v_mov_b32 v60, 1
            s_mov_b64 exec, 1
            buffer_store_dword v60, off, s[72:75], s{so} @
            s_mov_b64 exec, -1
            '''
            a(f's_cmp_eq_u32 s10, 0\ns_cbranch_scc1 {lb}' + txt.replace('@', ''))
            a.raw(f'{lb}_R:')
            def o():
                a.label(lb)
                a('s_waitcnt vmcnt(0)\nbuffer_wbl2 sc1\ns_waitcnt vmcnt(0)' + txt.replace('@', 'sc0 sc1') + f's_branch {lb}_R')
            TL._ool.append(o)
        f.cost = 20
        return f
    def poll(tag, va, so, vd):
        ld = f'buffer_load_dword v{vd}, v{va}, s[72:75], s{so} offen sc1'
        ck = f'\nv_cmp_ne_u32 vcc, 0, v{vd}\ns_cmp_eq_u64 vcc, -1\n'
        def chk():
            T.wait(v=tag)
            a(ck + f's_cbranch_scc0 {tag}_S')
            a.raw(f'{tag}_R:')
        chk.cost = 12
        def o():
            a.label(f'{tag}_S')
            a('s_mov_b32 s39, 0')
            a.label(f'{tag}_L')
            a(ld + '\ns_add_u32 s39, s39, 1\ns_waitcnt vmcnt(0)' + ck + f'''
            s_cbranch_scc1 {tag}_R
            s_cmp_lt_u32 s39, {TL.SPIN}
            s_cbranch_scc1 {tag}_L
            s_branch {tag}_R
            ''')
        TL._ool.append(o)
        return ld + f' ; T:{tag}', chk
    qh.add(lambda: fs(a, 40))
    qh.mark('hs')
    qh.at(I('H1', SL_(11, 1)))
    qh.add(W(v='hs')); qh.add(lflag(50))
    qh.add(lambda: fs(a, 41))
    qh.mark('sidew')
    CB = I('CB', 12)
    need(qh, 'sidew', SL_(CB, 1))
    qh.at(SL_(CB, 1) + 1)
    qh.add(f'''
    v_mov_b32 v9, 1
    s_cmp_eq_u32 s55, 0
    s_cselect_b32 s52, {D_C2}, {OOB}
    ''')
    qh.atom(f'''
    s_mov_b64 exec, 1
    buffer_atomic_add v9, off, s[{DBG}:{DBG+3}], s52 sc1
    s_mov_b64 exec, -1
    ''')
    qh.add(f'''
    v_and_b32 v61, 3, v1
    v_lshlrev_b32 v61, 2, v61
    s_lshl_b32 s42, s40, 19
    s_add_u32 s43, s42, {WS_K}
    s_add_u32 s20, s8, s43
    s_addc_u32 s21, s9, 0
    s_mov_b32 s22, 524288
    s_mov_b32 s23, 0x00020000
    s_add_u32 s43, s42, {WS_VT}
    s_add_u32 s24, s8, s43
    s_addc_u32 s25, s9, 0
    s_mov_b32 s26, 524288
    s_mov_b32 s27, 0x00020000
    s_add_u32 s28, s8, {WS_CTX}
    s_addc_u32 s29, s9, 0
    s_mov_b32 s30, {2048*4096*2}
    s_mov_b32 s31, 0x00020000
    s_lshl_b32 s52, s56, 2
    s_add_u32 s52, s52, s55
    s_lshl_b32 s52, s52, 14
    s_mov_b32 s53, s52
    v_and_b32 v7, 3, v1
    v_lshlrev_b32 v7, 2, v7
    v_bfe_u32 v8, v1, 2, 2
    v_or_b32 v7, v7, v8
    v_and_b32 v8, 0x30, v1
    v_or_b32 v7, v7, v8
    v_lshlrev_b32 v7, 4, v7
    s_mov_b32 s38, 0
    s_mov_b32 s54, 32768
    ''')
    iss, chk = poll('FR_H', 61, 47, 63)
    qh.at(I('H2', SL_(13))); qh.add(iss)
    qh.at(I('H3', SL_(14))); qh.add(chk)
    qh.add(lambda: fs(a, 42))
    def hload(g):
        x = ''
        for qb in range(2):
            x += f'buffer_load_dwordx4 {hreg(g, qb)}, v5, s[12:15], s{[38, 54][qb]} offen offset:{(g % 4)*1024} ; T:h{g}\n'
        if g % 4 == 3: x += 's_add_u32 s38, s38, 4096\ns_add_u32 s54, s54, 4096'
        return x
    for g in range(NH0): qh.atom(hload(g))
    qh.add('v_lshlrev_b32 v61, 2, v2')
    qh.mark('h0')
    need(qh, 'h0', SL_(15, 1))
    qe = MQ('epi')
    for n in range(16):
        c = tile_reg(n); t = 192 + (n % 2)*16
        qe.at(SL_(15, 1) + n + 2)
        for i in range(16): qe.add(f'v_accvgpr_read_b32 v{t+i}, a{c+i}')
        for g in (NH0 + 2*n, NH0 + 2*n + 1):
            if g < 32: qe.atom(hload(g))
        for gp in range(2):
            for j in range(4):
                qe.add(f'v_cvt_pk_bf16_f32 v{t+gp*8+j}, v{t+gp*8+2*j}, v{t+gp*8+2*j+1}')
            if n < 8:
                x = f'buffer_store_dwordx4 v[{t+gp*8}:{t+gp*8+3}], v{L16}, s[20:23], s52 offen offset:{(n % 2)*2048 + gp*1024} ; T:kvs'
                if n % 2 == 1 and gp == 1: x += '\ns_add_u32 s52, s52, 4096'
            else:
                x = f'buffer_store_dwordx4 v[{t+gp*8}:{t+gp*8+3}], v7, s[24:27], s53 offen offset:{(n % 2)*2048 + gp*1024} ; T:kvs'
                if n % 2 == 1 and gp == 1: x += '\ns_add_u32 s53, s53, 4096'
            qe.atom(x)
    qe.add(lambda: fs(a, 43))
    qe.at(QB + 8*I('E1', 14))
    qe.add(W(v='kvs')); qe.add(lflag(51))
    qe.add(lambda: fs(a, 44))
    iss, chk = poll('FR_K', 61, 46, 63)
    qe.at(QB + 8*I('E2', 17)); qe.add(iss)
    qe.at(QB + 8*I('E3', 20)); qe.add(chk)
    qe.add(lambda: fs(a, 45))
    for i, x in enumerate(kv_items(0, False, 'k0') + kv_items(1, False, 'k1') + kv_items(0, True, 'v0') + kv_items(1, True, 'v1')):
        qe.atom(x)
    run(a, mfl, 0, pre, pins, [qm, qe, qj, qh], cap=I("FCAP", 24))
    n = drain(a, [qm, qe, qj, qh])
    if E('VERB'): print('front leftover', n, [(q.name, q.log) for q in (qm, qe, qh, qj)])
    fs(a, 46, T)
    return T

def front_out(a):
    if not FSTK: return
    a(f'''
    s_lshl_b32 s45, s2, 10
    s_lshl_b32 s50, s55, 8
    s_add_u32 s45, s45, s50
    s_add_u32 s45, s45, 0x7200000
    v_lshlrev_b32 v63, 2, v1
    buffer_store_dword v{VST}, v63, s[72:75], s45 offen
    ''')
```

```python
from k_common import *
from k_prep import WS_WOF, WS_WINF, WS_WOUTF, WS_MODF, WS_WSPF
from sched import *
import os
E = os.environ.get
STK = E('STK', '')
HA = int(E('HAB', str(WS_K)), 0)
HP = WS_VT - WS_K
H_XS, H_X2, H_YF, H_ST, H_PX = 0x38000, 0x30000, 0x40000, 0x2C000, 0x40000
WS_Z2F = 0x4800000
LOC = 0x40000; LOCS = 0x5000
L_ZST, FAH, FX2, FY, FD, HM = 0, 0x4000, 0x4800, 0x4C00, 0x4E00, 0x4F00
FAL, FZ, FXG = 0x68000, 0x6A000, 0x6C000
WS_PX = 0x8000000
SAH = 8
OOB = 0x40000000
LB = 131072; Z1S = 200
def L_QS(P): return 16384 + P*2048
def L_FS(P): return 20480 + P*2048
def L_PS(P): return 24576 + P*2048
def L_FS2(P): return 28672 + P*2048
L_RX = 0; L_RX2 = 73728
SC = ''; SG = 'sc1'; SL = 'sc1'
FORCE = int(E('FORCE', '0'))
SPIN = 0x8000
CKH = int(E('CKH', '24'))
TCH = E('TCH', '0:11:wi0,0:12:wi1,1:13:cx,1:14:ha,1:15:lf')
VST = 63
SW = 55; SY = 42; SIDX = 41; SN8 = 43; SRBI = 46; SNT = 47; SKS = 48; SHA = 49; SAO = 51; SC16 = 57; SGF = 58; SOK = 79
SPX = 84
SLOC = 80
WV = [52, 53]
PL = 'buffer_load_dword v57, v56, s[72:75], s35 offen sc1'
def kap(g):
    g %= 32
    c, sl = g // 8, g % 8
    return [2, 16, 0, 18][c] + (sl & 1) + ((sl >> 1) & 1)*4 + (sl >> 2)*8
_ool = []

def st(a, idx, T=None):
    if STK != 'TL': return
    if idx == 0:
        a(f'v_mov_b32 v{VST}, 0\nv_writelane_b32 v{VST}, s100, 0')
        idx = 1
    a(f"""
    s_memtime s[82:83]
    s_waitcnt lgkmcnt(0)
    v_writelane_b32 v{VST}, s82, {idx}
    """)
    if T is not None: T.ddone = len(a.ds_seq)

def home(a):
    srd(a, 72, 8, 9, 0x10000000)
    a(f'''
    s_getreg_b32 s45, hwreg(HW_REG_XCC_ID, 0, 4)
    s_xor_b32 s45, s45, s2
    s_and_b32 s45, s45, 7
    s_cmp_eq_u32 s45, 0
    s_cselect_b32 s45, {2 if FORCE else 1}, 2
    v_mov_b32 v2, s45
    s_and_b32 s45, s2, 7
    s_mul_i32 s45, s45, {LOCS}
    s_lshr_b32 s50, s2, 3
    s_lshl_b32 s50, s50, 2
    s_add_u32 s45, s45, s50
    s_add_u32 s45, s45, {LOC + HM}
    s_cmp_eq_u32 s55, 0
    s_cselect_b32 s45, s45, {OOB}
    buffer_store_dword v2, off, s[72:75], s45 sc1
    ''')

def home2(a, PFA):
    a(f'''
    v_cmp_eq_u32 vcc, 1, v59
    s_cmp_eq_u64 vcc, -1
    s_cselect_b32 s{SAH}, 1, 0
    s_cbranch_scc1 TL_HOME
    v_mov_b32 v{PFA[0]}, {OOB}
    v_mov_b32 v{PFA[1]}, {OOB}
    ''')
    a.label('TL_HOME')

def home3(a, PFA, C2L):
    a(f'''
    v_readfirstlane_b32 s45, v59
    s_cmp_eq_u32 s45, 256
    s_cbranch_scc0 TL_C2S
    ''')
    a.raw('TL_C2R:')
    def o():
        a.label('TL_C2S')
        a('s_mov_b32 s39, 0')
        a.label('TL_C2L')
        a(C2L + f'''
        s_add_u32 s39, s39, 1
        s_waitcnt vmcnt(0)
        v_readfirstlane_b32 s45, v59
        s_cmp_eq_u32 s45, 256
        s_cbranch_scc1 TL_C2R
        s_cmp_lt_u32 s39, {SPIN}
        s_cbranch_scc1 TL_C2L
        s_branch TL_C2R
        ''')
    _ool.append(o)
    a(f'''
    s_mov_b32 s{SAH}, s10
    s_cmp_lg_u32 s10, 0
    s_cbranch_scc1 TL_HOME
    v_mov_b32 v{PFA[0]}, {OOB}
    v_mov_b32 v{PFA[1]}, {OOB}
    ''')
    a.label('TL_HOME')

def touch_setup(a, PFA, PFV):
    a(f'''
    s_and_b32 s90, s2, 7             ; y
    s_mul_i32 s94, s90, {LOCS}
    s_add_u32 s94, s94, {LOC + HM}
    s_lshl_b32 s45, s90, 19
    s_and_b32 s50, s40, 3
    s_lshl_b32 s50, s50, 8
    s_add_u32 s45, s45, s50          ; w_o slice
    s_add_u32 s68, s68, s45
    s_addc_u32 s69, s69, 0
    s_lshl_b32 s35, s56, 1
    s_lshr_b32 s34, s55, 1
    s_add_u32 s35, s35, s34
    s_lshl_b32 s37, s35, 5           ; (p*2+w2)*32
    s_lshl_b32 s35, s35, 7
    s_lshl_b32 s34, s90, 4
    s_add_u32 s35, s35, s34
    s_add_u32 s35, s35, {FAL}
    s_add_u32 s37, s37, s94
    s_sub_u32 s37, s37, {HM - FAH}
    v_and_b32 v56, 3, v1
    v_lshlrev_b32 v56, 2, v56
    s_add_u32 s66, s59, 3
    s_cmp_lt_u32 s55, 2
    s_cselect_b32 s66, 99, s66
    s_lshl_b32 s67, s56, 1
    s_add_u32 s67, s67, s3
    s_lshl_b32 s67, s67, 5
    s_add_u32 s67, s67, s40
    s_lshl_b32 s67, s67, 2
    s_add_u32 s67, s67, {FAL}
    s_mov_b32 s70, {OOB}
    s_mov_b32 s71, {OOB}
    s_mov_b32 s81, {OOB}
    v_mov_b32 v{PFA[0]}, {OOB}
    v_mov_b32 v{PFA[1]}, {OOB}
    s_lshl_b32 s50, s55, 13
    v_lshlrev_b32 v{PFV}, 7, v1
    v_add_u32 v{PFV}, s50, v{PFV}
    s_lshr_b32 s91, s2, 3            ; idx
    s_and_b32 s92, s91, 7            ; n8
    s_lshr_b32 s93, s91, 3           ; rbi
    ''')
    for ent in [x for x in TCH.split(',') if x]:
        sm, it, kind = ent.split(':')
        k2, c = kind[:2], int(kind[2:] or 0)
        if k2 == 'cx' or k2 == 'cl':
            a(f'''
            s_sub_u32 s94, 15, s56
            s_lshl_b32 s94, {'s94' if k2 == 'cx' else 's56'}, 20
            s_lshl_b32 s50, s40, 15
            s_add_u32 s50, s50, s94
            s_add_u32 s50, s50, {WS_CTX}
            ''')
            if k2 == 'cl':
                a(f'''
                s_add_u32 s94, s59, {int(it) & 0xffffffff}
                s_max_i32 s94, s94, 0
                ''')
                it = 's94'
        elif k2 == 'ha':
            a(f'''
            s_lshl_b32 s50, s40, 19
            s_and_b32 s94, s56, 3
            s_lshl_b32 s94, s94, 15
            s_add_u32 s50, s50, s94
            s_lshr_b32 s94, s56, 2
            s_lshl_b32 s94, s94, 24
            s_add_u32 s50, s50, s94
            s_add_u32 s50, s50, {HA + 0x20000}
            ''')
        elif k2 == 'lf':
            a(f'''
            s_mul_i32 s50, s90, {LOCS}
            s_add_u32 s50, s50, {LOC}
            ''')
        elif k2 == 'wi':
            a(f'''
            s_lshl_b32 s50, s92, 2
            s_add_u32 s50, s50, s93
            s_mul_i32 s50, s50, {48*1024}
            s_add_u32 s50, s50, {WS_WINF + c*16384}
            ''')
        elif k2 == 'sp':
            a(f'''
            s_lshl_b32 s50, s90, 5
            s_add_u32 s50, s50, s91
            s_lshl_b32 s50, s50, 15
            s_add_u32 s50, s50, {WS_WSPF}
            ''')
        elif k2 == 'wu':
            a(f'''
            s_lshl_b32 s50, s92, 2
            s_add_u32 s50, s50, s93
            s_mul_i32 s50, s50, {24*1024}
            s_add_u32 s50, s50, {WS_WOUTF}
            ''')
        else:
            assert False, ent
        a(f'v_writelane_b32 v{PFA[int(sm)]}, s50, {it}')

NA0 = int(E('NA0', '4'))
def pre(a, VNZ):
    T = Trk(a)
    a.vm_seq += ['pl0'] + ['dma16']*10 + [None]*2
    a(f'''
    s_load_dwordx2 s[4:5], s[0:1], {ARG['A_x']}
    s_load_dwordx2 s[10:11], s[0:1], {ARG['out']}
    s_load_dwordx2 s[6:7], s[0:1], {ARG['B_b_sp']}
    s_mov_b64 s[12:13], s[72:73]
    s_mov_b64 s[14:15], s[74:75]
    s_and_b32 s{SY}, s2, 7
    s_lshr_b32 s{SIDX}, s2, 3
    s_and_b32 s{SN8}, s{SIDX}, 7
    s_lshr_b32 s{SRBI}, s{SIDX}, 3
    s_and_b32 s{SNT}, s{SIDX}, 3
    s_lshr_b32 s{SKS}, s{SIDX}, 2
    s_lshl_b32 s{SHA}, s{SY}, 21
    s_add_u32 s{SHA}, s{SHA}, {HA}
    s_mul_i32 s{SLOC}, s{SY}, {LOCS}
    s_add_u32 s{SLOC}, s{SLOC}, {LOC}
    s_lshl_b32 s78, s{SIDX}, 2
    s_add_u32 s78, s78, s{SLOC}
    s_add_u32 s78, s78, {FD}
    s_cmp_eq_u32 s{SW}, 0
    s_cselect_b32 s78, s78, {OOB}
    s_lshl_b32 s{SC16}, s{SNT}, 3
    s_add_u32 s{SC16}, s{SC16}, s{SKS}
    s_lshl_b32 s34, s{SY}, 17
    s_lshl_b32 s{SAO}, s{SW}, 13
    s_add_u32 s34, s34, s{SAO}
    s_add_u32 s34, s34, {WS_CTX}
    s_lshl_b32 s60, s56, 20
    s_add_u32 s{SAO}, s34, s60       ; A soffset (L)
    s_sub_u32 s60, s34, s60
    s_add_u32 s60, s60, {15 << 20}   ; A soffset (H)
    s_cmp_lt_u32 s{SW}, 2
    s_cselect_b32 s81, {OOB}, s67
    s_mov_b32 s59, s{SAO}
    ''')
    T.wait(v='pl0')
    a(f'''
    buffer_store_dword v{VNZ}, off, s[72:75], s81 sc1
    v_cmp_ne_u32 vcc, 0, v57
    s_cmp_eq_u64 vcc, -1
    s_cselect_b32 s{SOK}, 1, 0
    s_cselect_b32 s{SAO}, s{SAO}, {OOB}
    ''')
    for g in range(NA0): a(aload(g, 17))
    return T

def poll_l(a, T, VNZ):
    lflag(a, 78, 1)()
def poll2(a):
    a('buffer_load_dword v57, v56, s[12:15], s35 offen sc1 ; T:pl')

def aload(g, va=2):
    r = 128 + (g % 32)*4
    x = f'buffer_load_dwordx4 a[{r}:{r+3}], v{va}, s[12:15], s{SAO} offen offset:{(kap(g) % 4)*1024} ; T:a{g}'
    fo = lambda k: (k // 8)*32768 + ((k % 8)//4)*4096
    d = fo(kap(g + 1)) - fo(kap(g))
    if g % 32 != 31 and d > 0: x += f'\ns_add_u32 s{SAO}, s{SAO}, {d}'
    if g % 32 != 31 and d < 0: x += f'\ns_sub_u32 s{SAO}, s{SAO}, {-d}'
    return x

def ool(a):
    for f in _ool: f()

def spin(a, tag, va, so, need, T, vd=57):
    def f():
        a.label(f'{tag}_S')
        a('s_mov_b32 s39, 0')
        a.label(f'{tag}_L')
        n0 = len(a.vm_seq)
        a(f'''
        buffer_load_dword v{vd}, v{va}, s[12:15], s{so} offen sc1
        s_add_u32 s39, s39, 1
        s_waitcnt vmcnt(0)
        v_cmp_le_u32 vcc, {need}, v{vd}
        s_cmp_eq_u64 vcc, -1
        s_cbranch_scc1 {tag}_R
        s_cmp_lt_u32 s39, {SPIN}
        s_cbranch_scc1 {tag}_L
        s_branch {tag}_R
        ''')
    _ool.append(f)

def poll_items(a, T, tag, va, so, need=1, vd=57):
    iss = f'buffer_load_dword v{vd}, v{va}, s[12:15], s{so} offen sc1 ; T:{tag}'
    def chk():
        T.wait(v=tag)
        a(f'''
        v_cmp_le_u32 vcc, {need}, v{vd}
        s_cmp_eq_u64 vcc, -1
        s_cbranch_scc0 {tag}_S
        ''')
        a.raw(f'{tag}_R:')
    chk.cost = 12
    spin(a, tag, va, so, need, T, vd)
    return iss, chk

def flag(so, val, fl, vd=58):
    return f'''
    v_mov_b32 v{vd}, {val}
    s_mov_b64 exec, 1
    buffer_store_dword v{vd}, off, s[12:15], s{so} {fl}
    s_mov_b64 exec, -1
    '''

def lstore(a, txt):
    def f():
        lb = a.newlabel('TL_LF')
        a(f'''
        s_cmp_eq_u32 s{SAH}, 0
        s_cbranch_scc1 {lb}
        ''' + txt.replace('@', ''))
        a.raw(f'{lb}_R:')
        def o():
            a.label(lb)
            a('''
            s_waitcnt vmcnt(0)
            buffer_wbl2 sc1
            s_waitcnt vmcnt(0)
            ''' + txt.replace('@', 'sc0 sc1') + f'\ns_branch {lb}_R')
        _ool.append(o)
    f.cost = 20
    return f

def lflag(a, so, val, vd=58):
    return lstore(a, flag(so, val, '@', vd))

def main(a, T):
    S = lambda i: st(a, i, T)
    S(2)
    ACC = [64, 128]; FB = 192; BA = 4
    XT = 32; GA = 40; CB = 48
    a(f'''
    v_mov_b32 v2, v17
    ''')
    T.wait(v='dma16')
    a(f'''
    s_barrier
    s_add_u32 m0, s64, s36
    s_mov_b32 s34, {262144 + 32768}
    s_mov_b64 s[24:25], s[68:69]
    ''')
    for i in range(4):
        a(f'buffer_load_dwordx4 v{WV[0]}, s[24:27], s34 offen offset:{i*1024} lds ; T:b3')
    a('s_add_u32 m0, m0, 32768')
    for i in range(4):
        a(f'buffer_load_dwordx4 v{WV[1]}, s[24:27], s34 offen offset:{i*1024} lds ; T:b3')
    a(f'''
    s_mov_b32 s65, s62
    s_xor_b32 s62, s62, 0x10000
    s_xor_b32 s63, s64, 0x10000
    s_add_u32 m0, s65, s36
    s_add_u32 s34, s36, {WS_MODF}
    buffer_load_dwordx4 v{WV[0]}, s[24:27], 0 offen offset:3072 lds ; T:b3
    s_add_u32 m0, s36, {LB}
    ''')
    for i in range(4):
        a(f'buffer_load_dwordx4 v2, s[12:15], s34 offen offset:{i*1024} lds ; T:b3')
    a(f'''
    v_bfe_u32 v58, v1, 2, 2          ; r
    v_lshrrev_b32 v3, 5, v1
    v_lshlrev_b32 v3, 10, v3
    v_lshl_add_u32 v3, v58, 8, v3
    v_and_b32 v56, 3, v1
    v_lshl_add_u32 v3, v56, 3, v3
    v_bfe_u32 v56, v1, 4, 1
    v_lshl_add_u32 v3, v56, 5, v3
    ''')
    for j in range(4):
        a(f'''
        v_xor_b32 v56, {j}, v58
        v_lshl_add_u32 v56, v56, 6, v3
        ''')
        for q in range(4):
            a(f'v_add_u32 v{BA+4*q+j}, s{[62,63,65,64][q]}, v56')
    def breads(g):
        k = g % 32
        out = []
        for j in range(4):
            for jj in range(2):
                r = FB + (g & 1)*16 + j*4 + jj*2
                out.append(f'ds_read_b64_tr_b16 v[{r}:{r+1}], v{BA + 4*(k//8) + j} offset:{((k % 8)//4)*32768 + (k % 4)*4096 + jj*2048} ; T:f{g}')
        return out
    for x in breads(0): a(x)
    a(f'''
    s_lshl_b32 s34, s56, 1
    s_add_u32 s34, s34, s3
    s_lshl_b32 s34, s34, 1
    s_lshr_b32 s38, s{SW}, 1
    s_add_u32 s34, s34, s38
    s_lshl_b32 s34, s34, 2
    s_add_u32 s34, s34, s{SNT}
    s_lshl_b32 s34, s34, 2
    s_add_u32 s34, s34, s{SLOC}
    s_add_u32 s99, s34, {FAH}
    s_waitcnt lgkmcnt(0)
    ''')
    T.ddone = len(a.ds_seq)
    srd(a, 16, 4, 5, 2048*512*2)
    srd(a, 20, 10, 11, 2048*512*2)
    srd(a, 24, 6, 7, 4096)
    FH0 = int(E('FH0', '8'))
    if FH0 < 0:
        T.wait(v='ctx')
        lflag(a, 99, 1)()
    S(3)
    a(f'''
    s_cmp_eq_u32 s{SOK}, 0
    s_cbranch_scc1 TL_LATE
    ''')
    a.raw('TL_LATER:')
    def late():
        a.label('TL_LATE')
        a('s_mov_b32 s39, 0\nv_and_b32 v56, 3, v1\nv_lshlrev_b32 v56, 2, v56')
        a('s_waitcnt vmcnt(0)')
        lflag(a, 99, 1)()
        a.label('TL_LATEL')
        a(f'''
        v_cmp_ne_u32 vcc, 0, v57
        s_cmp_eq_u64 vcc, -1
        s_cbranch_scc1 TL_LATED
        buffer_load_dword v57, v56, s[12:15], s35 offen sc1
        s_add_u32 s39, s39, 1
        s_waitcnt vmcnt(0)
        s_cmp_lt_u32 s39, {SPIN}
        s_cbranch_scc1 TL_LATEL
        ''')
        a.label('TL_LATED')
        a(f's_mov_b32 s{SAO}, s59')
        for g in range(32): a(aload(g))
        a('s_waitcnt vmcnt(0)\ns_branch TL_LATER')
    _ool.append(late)
    qs = Q('setup')
    qs.add(f'''
    v_and_b32 v20, 31, v1            ; row
    v_lshrrev_b32 v21, 5, v1         ; h
    v_lshlrev_b32 v22, 10, v20
    v_lshl_add_u32 v22, v21, 3, v22  ; row*1024 + h*8
    v_lshlrev_b32 v23, 4, v21        ; h*16
    s_lshl_b32 s34, s{SY}, 2
    s_add_u32 s34, s34, s{SW}        ; rb32 L
    s_sub_u32 s38, 60, s34
    s_add_u32 s38, s38, s{SW}
    s_add_u32 s38, s38, s{SW}        ; rb32 H = 60 - 4y + w
    s_lshl_b32 s61, s{SC16}, 5
    s_lshl_b32 s34, s34, 15
    s_add_u32 s34, s34, s61
    s_lshl_b32 s38, s38, 15
    s_add_u32 s38, s38, s61
    s_lshl_b32 s61, s{SC16}, 6
    s_add_u32 s59, s61, {WS_MOD + 1024*4}
    s_add_u32 s61, s61, {WS_MOD + 2048*4}
    ''')
    for P in range(2):
        for q in range(2):
            qs.add(f'buffer_load_dwordx2 v[{XT+4*P+2*q}:{XT+4*P+2*q+1}], v22, s[16:19], s{[34,38][P]} offen offset:{q*16} ; T:cst')
    for q in range(2):
        qs.add(f'buffer_load_dwordx4 v[{GA+4*q}:{GA+4*q+3}], v23, s[12:15], s59 offen offset:{q*32} ; T:cst')
        qs.add(f'buffer_load_dwordx4 v[{CB+4*q}:{CB+4*q+3}], v23, s[12:15], s61 offen offset:{q*32} ; T:cst')
    qs.add(f'''
    s_lshl_b32 s34, s{SNT}, 2
    s_add_u32 s34, s34, s{SW}
    s_lshl_b32 s34, s34, 7
    s_add_u32 s34, s34, {FXG}
    s_lshl_b32 s{SGF}, s{SY}, 11
    s_add_u32 s{SGF}, s{SGF}, s34
    s_lshl_b32 s92, s56, 11
    s_add_u32 s92, s92, s34
    s_lshl_b32 s34, s{SY}, 2
    s_add_u32 s92, s92, s34
    s_lshl_b32 s34, s{SW}, 13
    s_add_u32 s34, s34, {WS_PX}
    s_lshl_b32 s84, s56, 20
    s_add_u32 s84, s84, s34
    s_lshl_b32 s38, s{SNT}, 18
    s_add_u32 s84, s84, s38
    s_lshl_b32 s38, s{SY}, 10
    s_add_u32 s84, s84, s38
    s_lshl_b32 s91, s{SY}, 20
    s_add_u32 s91, s91, s34
    s_lshl_b32 s38, s{SC16}, 15
    s_add_u32 s91, s91, s38
    s_add_u32 s78, s{SLOC}, {FD}
    v_and_b32 v24, 7, v1
    v_lshlrev_b32 v24, 2, v24        ; (lane&7)*4
    v_bfe_u32 v26, v1, 4, 1
    v_lshlrev_b32 v26, 14, v26
    v_lshl_add_u32 v26, v21, 8, v26
    v_and_b32 v27, 15, v1
    v_lshl_add_u32 v26, v27, 4, v26
    v_lshlrev_b32 v27, 6, v20
    s_lshl_b32 s30, s{SN8}, 2
    s_add_u32 s30, s30, s{SW}
    s_mul_i32 s30, s30, {48*1024}
    s_add_u32 s30, s30, {WS_WINF}
    s_lshl_b32 s34, s{SW}, 19
    s_add_u32 s34, s34, s{SHA}
    s_lshl_b32 s38, s{SC16}, 9
    s_add_u32 s95, s34, s38
    s_add_u32 s96, s95, s38
    s_add_u32 s95, s95, {H_XS}
    s_add_u32 s96, s96, {H_X2}       ; x2 soffset (L)
    s_lshl_b32 s97, s{SNT}, 11
    s_lshl_b32 s38, s{SKS}, 3
    s_add_u32 s97, s97, s38
    s_add_u32 s97, s97, s34
    s_add_u32 s97, s97, {H_ST}
    s_lshl_b32 s98, s{SW}, 7
    s_lshl_b32 s38, s{SC16}, 2
    s_add_u32 s98, s98, s38
    s_add_u32 s98, s98, s{SLOC}
    s_add_u32 s98, s98, {FX2}
    v_lshlrev_b32 v28, 2, v20
    ''')
    def wil(i):
        r = 4*i
        x = f'buffer_load_dwordx4 a[{r}:{r+3}], v2, s[12:15], s30 offen offset:{(i % 4)*1024} ; T:wi{i}'
        if i % 4 == 3: x += '\ns_add_u32 s30, s30, 4096'
        return x
    def px_stores(P):
        out = []
        for i in range(8):
            r = ACC[P] + 8*i
            for j in range(4):
                out.append(f'v_cvt_pk_bf16_f32 v{r+j}, v{r+2*j}, v{r+2*j+1}')
            out.append([f'buffer_store_dwordx4 v[{r}:{r+3}], v2, s[12:15], s84 offen {SG} ; T:px{P}\n'
                        f's_add_u32 s84, s84, {32768 if i < 7 else 0x800000 - 7*32768}'])
        return out
    def px_loads(P):
        out = []
        for i in range(8):
            r = ACC[P] + 32 + 4*i
            x = f'buffer_load_dwordx4 v[{r}:{r+3}], v2, s[12:15], s91 offen offset:{(i % 4)*1024} ; T:pr{P}_{i}\n'
            if i % 4 == 3: x += f's_add_u32 s91, s91, {4096 if i < 7 else 0x800000 - 4096}'
            out.append(x)
        return out
    def qadd(q, items):
        for x in items:
            if isinstance(x, list): q.atom(x[0])
            else: q.add(x)
    def W(**k):
        f = lambda: T.wait(**k)
        return f
    def fin(P, first):
        O = ACC[P]
        out = []
        if first:
            out.append(W(v='cst'))
            for i in range(8): out.append(f'v_add_f32 v{CB+i}, 1.0, v{CB+i}')
            for i in range(0, 8, 2):
                out += [f'v_cvt_pk_bf16_f32 v59, v{CB+i}, v{CB+i+1}', f'v_lshlrev_b32 v{CB+i}, 16, v59', f'v_and_b32 v{CB+i+1}, 0xffff0000, v59']
        for r in range(4):
            out += [f'v_lshlrev_b32 v{O+8+2*r}, 16, v{XT+4*P+r}', f'v_and_b32 v{O+9+2*r}, 0xffff0000, v{XT+4*P+r}']
        for i in range(8):
            out.append(W(v=f'pr{P}_{i}'))
            D = O if i == 0 else O + 16
            for r in range(4):
                out += [f'v_lshlrev_b32 v{D+2*r}, 16, v{O+32+4*i+r}', f'v_and_b32 v{D+2*r+1}, 0xffff0000, v{O+32+4*i+r}']
            if i:
                for r in range(8):
                    out.append(f'v_add_f32 v{O+r}, v{O+r}, v{D+r}')
        marker = len(out)
        XU = O + 8; X2P = O + 16; XSP = O + 20; SS = O + 24
        for r in range(8): out.append(f'v_fma_f32 v{O+r}, v{O+r}, v{GA+r}, v{XU+r}')
        for r in range(4): out.append(f'v_cvt_pk_bf16_f32 v{X2P+r}, v{O+2*r}, v{O+2*r+1}')
        for r in range(4):
            out += [f'v_lshlrev_b32 v{O+2*r}, 16, v{X2P+r}', f'v_and_b32 v{O+2*r+1}, 0xffff0000, v{X2P+r}']
        for r in range(8): out.append(f'v_mul_f32 v{XU+r}, v{O+r}, v{CB+r}')
        for r in range(4): out.append(f'v_cvt_pk_bf16_f32 v{XSP+r}, v{XU+2*r}, v{XU+2*r+1}')
        out.append(f'buffer_store_dwordx4 v[{XSP}:{XSP+3}], v26, s[12:15], s95 offen {SC} ; T:xs{P}')
        out += [f'v_add_f32 v{SS}, v{O}, v{O+1}', f'v_mul_f32 v{SS+1}, v{O}, v{O}', f'v_add_f32 v{SS+2}, v{O+2}, v{O+3}', f'v_mul_f32 v{SS+3}, v{O+1}, v{O+1}']
        for r in range(2, 8): out.append(f'v_fmac_f32 v{SS+1+2*(r&1)}, v{O+r}, v{O+r}')
        for r in range(4, 8): out.append(f'v_add_f32 v{SS+2*(r&1)}, v{SS+2*(r&1)}, v{O+r}')
        out += [f'v_add_f32 v{SS}, v{SS}, v{SS+2}', f'v_add_f32 v{SS+1}, v{SS+1}, v{SS+3}',
                f'v_mov_b32 v{SS+2}, v{SS}', f'v_mov_b32 v{SS+3}, v{SS+1}',
                f'v_permlane32_swap_b32 v{SS}, v{SS+2}', f'v_permlane32_swap_b32 v{SS+1}, v{SS+3}',
                f'v_add_f32 v{SS}, v{SS}, v{SS+2}', f'v_add_f32 v{SS+1}, v{SS+1}, v{SS+3}',
                f'buffer_store_dwordx2 v[{SS}:{SS+1}], v27, s[12:15], s97 offen {SC} ; T:xs{P}',
                f'buffer_store_dwordx4 v[{X2P}:{X2P+3}], v2, s[12:15], s96 offen {SC} ; T:x2{P}']
        return out, marker
    adv = f'''
    s_add_u32 s95, s95, {HP}
    s_add_u32 s96, s96, {HP}
    s_add_u32 s97, s97, {HP}
    '''
    mfl = []; pre_ = {}; pins = {}
    for g in range(64):
        P = g // 32
        for j in range(4):
            c = ACC[P] + 16*j
            fb = FB + (g & 1)*16 + j*4
            ar = 128 + (g % 32)*4
            cc = '0' if g % 32 == 0 else f'v[{c}:{c+15}]'
            mfl.append(f'v_mfma_f32_32x32x16_bf16 v[{c}:{c+15}], v[{fb}:{fb+3}], a[{ar}:{ar+3}], {cc}')
        pre_[4*g] = [lambda g=g: T.wait(v=f'a{g}', d=f'f{g}')]
        if g + 1 < 64:
            br = breads(g + 1)
            if g == 15:
                pins[4*g] = [W(v='b3'), 's_barrier'] + br[:2]
                pins[4*g+1] = br[2:5]; pins[4*g+2] = br[5:]
            elif g == 50:
                pins[4*g] = ['s_barrier'] + br[:2]
                pins[4*g+1] = br[2:5]; pins[4*g+2] = br[5:]
            else:
                pins[4*g] = br[:3]; pins[4*g+1] = br[3:6]; pins[4*g+2] = br[6:]
        if STK == 'TL' and g % 8 == 0 and g:
            pre_[4*g].insert(0, lambda g=g: S(3 + g // 8))
    qa = Q('A')
    if FH0 >= 0:
        qa.at(4*FH0); qa.add(W(v='ctx')); qa.add(lflag(a, 99, 1))
    iss, chk = poll_items(a, T, 'TPH', 24, 37)
    qa.at(4*(CKH - 6)); qa.add(iss); qa.at(4*CKH); qa.add(chk)
    qa.add(f's_mov_b32 s{SAO}, s60')
    for g in range(32, 64):
        qa.at(4*(g - 32) + 4); qa.atom(aload(g))
    qw = Q('wi')
    WI0 = int(E('WI0', '6')); WIS = int(E('WIS', '2')); WI2 = int(E('WI2', '50'))
    for i in range(32):
        qw.at(4*WI0 + WIS*i); qw.atom(wil(i))
    for i in range(32, 48):
        qw.at(max(4*WI2 + 2*(i - 32), 4*(32 + i - 32) + 4)); qw.atom(wil(i))
    qf = Q('fin')
    F1 = int(E('F1', '44')); F2 = int(E('F2', '50')); F3 = int(E('F3', '56')); F4 = int(E('F4', '62'))
    iss, chkD = poll_items(a, T, 'TPD', 28, 78, 1, vd=29)
    qf.at(4*int(E('F0', '27'))); qf.add(iss)
    qf.at(128 + 3)
    qadd(qf, px_stores(0))
    qf.add(chkD)
    qf.at(4*F1); qf.add(W(v='px0')); qf.atom(flag(92, 1, SG))
    iss, chk = poll_items(a, T, 'TPX0', 24, SGF, 1)
    qf.at(4*F2); qf.add(iss); qf.at(4*F3); qf.add(chk)
    for x in px_loads(0): qf.atom(x)
    qf.at(4*F4)
    fl, mk = fin(0, True)
    qf.add(fl)
    run(a, mfl, 0, pre_, pins, [qa, qf, qs, qw], cap=int(E('OCAP', '20')))
    S(11)
    drain(a, [qa, qs])
    a.flush()
    for x in px_stores(1): a(x[0] if isinstance(x, list) else x)
    S(12)
    drain(a, [qf])
    S(51)
    drain(a, [qw])
    import k_tail2b
    k_tail2b.rest(a, T, S, locals())
```

```python
import sys, os, importlib
from k_common import *
mods = [importlib.import_module(os.environ.get('ATT', 'k_at3')).gen_attn]
HEAD = open('adaLN_cond__compressed_kv_cla__mixer_gmlp__prompt.s.ref').read().split('\n')
hdr = [l for l in HEAD if l.startswith(';') and '@launch' not in l and 'Override launch' not in l and 'grid=ceil' not in l]
a = Asm()
infos = []
for g in mods:
    infos.append(g(a))
out = '\n'.join(hdr) + '\n'
for k in infos:
    out += f"; @launch kernel={k['name']} grid=({k['grid']},1,1) block=({k['block']},1,1) lds={k['lds']}\n"
out += '.amdgcn_target "amdgcn-amd-amdhsa--gfx950"\n.text\n'
out += a.text()
for nm in ['oproj_kernel', 'win_kernel', 'sp_kernel', 'wout_kernel']:
    out += nm + ':\n'
out += 'CODE_END:\n    s_endpgm\n'
out += '.section .rodata,"a"\n'
for k in infos:
    out += '.p2align 6\n' + kernel_desc(k['name'], k['vgpr'], accum=k.get('accum'))
dst = sys.argv[1]
open(dst, 'w').write(out)
print('wrote', dst, len(out))
```

```python
from k_common import *
import os
EXP = os.environ.get('ATT_EXP', '')
import k_tail2 as TL
import importlib; FR = importlib.import_module(os.environ.get("FRONT", "k_front3"))
from k_prep import WS_WOF

class VMT:
    def __init__(self, a):
        self.a = a; self.base = len(a.vm_seq); self.done = self.base
    def wait(self, tag):
        seq = self.a.vm_seq
        last = max(i for i in range(self.base, len(seq)) if seq[i] == tag)
        if last < self.done:
            return
        assert len(seq) - self.done <= 63, (tag, len(seq) - self.done)
        n = len(seq) - 1 - last
        self.a(f's_waitcnt vmcnt({n})')
        self.done = last + 1

def cost(x):
    c = 0
    for l in x.strip().split('\n'):
        l = l.split(';')[0].strip()
        if not l: continue
        mn = l.split()[0]
        c += 16 if mn in ('v_exp_f32', 'v_rcp_f32') or mn.startswith('buffer_') else 4
    return c

def merge_items(main, extra, start, end):
    out = []; acc = 0; k = 0
    n = len(extra)
    for x in main:
        while k < n and acc >= start + (end - start) * k / n:
            out.append(extra[k]); k += 1
        out.append(x); acc += cost(x)
    out += extra[k:]
    return out

def weave(a, mf, items, lead=0, tail_free=2):
    tot = sum(cost(x) for x in items)
    k = 0; acc = 0
    while k < len(items) and acc < lead:
        a(items[k]); acc += cost(items[k]); k += 1
    n = max(1, len(mf) - tail_free)
    per = max(0, tot - acc) / n
    base = acc
    for i, f in enumerate(mf):
        f()
        while k < len(items) and acc < base + per * (i + 1):
            a(items[k]); acc += cost(items[k]); k += 1
    while k < len(items):
        a(items[k]); k += 1

def check_p(lines):
    import re
    written = set()
    for l in lines:
        m = re.match(r'\s*v_cvt_pk_bf16_f32 v(\d+),', l)
        if m:
            written.add(int(m.group(1)))
        m = re.match(r'\s*v_mfma_f32_32x32x16_bf16 a\[\d+:\d+\], a\[\d+:\d+\], v\[(\d+):(\d+)\]', l)
        if m:
            for r in range(int(m.group(1)), int(m.group(2)) + 1):
                assert r in written, l

def stamp(a, idx):
    if 'ST' not in EXP: return
    a('''
    s_memtime s[82:83]
    s_waitcnt lgkmcnt(0)
    ''')
    if isinstance(idx, int) and idx <= 0:
        a(f's_mov_b32 s{85-idx}, s82')
    elif isinstance(idx, int):
        a(f'v_writelane_b32 v48, s82, {idx}')
    else:
        a(idx)
        a('''
        v_mov_b32 v49, s82
        v_cmp_eq_u32 vcc, s84, v1
        v_cndmask_b32 v48, v48, v49, vcc
        ''')


TRANS = ('v_exp_f32', 'v_log_f32', 'v_rcp_f32', 'v_rsq_f32', 'v_sqrt_f32')
import re as _re
def vcost(x):
    mn = x.split()[0]
    if mn in TRANS: return 8
    if mn.startswith('buffer_') or mn.startswith('ds_'): return 12
    return 4
class VQ:
    def __init__(self, items, earliest=0, marks=None, needs=None):
        self.items = list(items); self.k = 0; self.earliest = earliest; self.marks = marks; self.needs = needs
        self.lag = []
    def head(self, slot):
        if self.k >= len(self.items) or slot < self.earliest: return None
        x = self.items[self.k]
        if self.needs is not None:
            r = int(_re.findall(r'v(\d+)', x)[-1])
            if r not in self.needs: return None
        return x
    def pop(self):
        x = self.items[self.k]; self.k += 1
        if self.marks is not None:
            for r in self.lag: self.marks.add(r)
            self.lag = []
            if x.startswith('v_exp'):
                self.lag = [int(_re.findall(r'v(\d+)', x)[0])]
            if self.k >= len(self.items):
                for r in self.lag: self.marks.add(r)
        return x
    def left(self):
        return len(self.items) - self.k
def slots(a, mf, spec, sq, mem, vqs, cap=24, pre=None, post=None, caps=None):
    pre = pre or {}; post = post or {}; caps = caps or {}
    sq = [[lo, hi, list(it)] for lo, hi, it in sq]
    for k, m in enumerate(mf):
        a(m)
        used = 0
        sp = spec.get(k, [])
        for j, x in enumerate(sp):
            a(x); used += 4 if j else 0
        for q in sq:
            lo, hi, it = q
            if it and lo <= k:
                n = 0 if sp else 1
                free_later = sum(1 for kk in range(k + 1, hi + 1) if not spec.get(kk))
                n = max(n, len(it) - free_later) if k <= hi else len(it)
                for j in range(min(n, len(it))):
                    a(it.pop(0)); used += 4 if (sp or j) else 0
                break
        if k in pre:
            used += pre[k]()
        for x in mem.get(k, []):
            a(x); used += 4
        c = caps.get(k, cap)
        while True:
            for q in vqs:
                x = q.head(k)
                if x is not None and used + vcost(x) <= c:
                    a(q.pop()); used += vcost(x)
                    break
            else:
                break
        if k in post:
            post[k]()
    for q in sq:
        assert not q[2]
    rest = 0
    while any(q.left() for q in vqs):
        for q in vqs:
            x = q.head(1000)
            if x is not None:
                a(q.pop()); rest += vcost(x)
                break
        else:
            assert False
    if os.environ.get('VERB'): print('slots', len(mf), 'leftover', rest)

def gen_attn(a):
    name = 'attn_kernel'
    WQL = 65536
    MODL = 147456
    QST = 131072
    SCRL = 163840 - 64
    kernel_header(a, name)
    if TL.STK == 'TL': a('s_memtime s[100:101]')
    QT = 64
    DKV = 16
    L16 = 17
    def kv_items(t, isv, tag):
        base = (16384 if isv else 0) + (t % 4)*32768
        sr = 24 if isv else 20
        out = []
        for h in range(2):
            out.append(f"""
            s_add_u32 m0, s36, {base}
            s_mov_b32 s50, {t*16384}
            buffer_load_dwordx4 v{DKV}, s[{sr}:{sr+3}], s50 offen offset:{h*2048} lds  ; T:{tag}
            buffer_load_dwordx4 v{DKV}, s[{sr}:{sr+3}], s50 offen offset:{h*2048+1024} lds  ; T:{tag}
            """)
        return out
    FT = FR.front(a, kv_items)
    C2L = f'buffer_load_dword v59, off, s[{FR.DBG}:{FR.DBG+3}], 0 offset:{FR.D_C2} sc0 sc1'
    a(C2L)
    a('s_mov_b64 s[4:5], s[92:93]\ns_mov_b64 s[6:7], s[94:95]')
    C2L = C2L.replace('s[92:95]', 's[4:7]')
    QF = 128
    SB = [[64, 96], [128, 160]]
    PF = [192, 208]
    RING = 192
    RA = [4, 5]
    DKV2 = 33
    DV = [50, 51]; WV = TL.WV
    PFA = [7, 34]
    PFV = 35
    PFR = 40
    VM = [18, 20]; VL = [19, 21]; VMC = [22, 23]; VT0 = [24, 25]; VT1 = [26, 27]; VDF = [28, 29]; VAL = 30; VLS = [31, 32]
    RS = [76, 78]
    CA = 44
    TQ = 224
    NM = [224, 240]
    a(f'''
    s_lshl_b32 s45, s3, 14
    s_add_u32 s45, s45, {QST}
    v_add_u32 v6, s45, v{L16}
    ''')
    for qb in range(2):
        for s in range(8):
            blk, hf = s // 2, s % 2
            for j in range(4):
                r = QT + qb*64 + blk*16 + hf*8 + j*2
                a(f'v_cvt_pk_bf16_f32 v{TQ+4*s+j}, v{r}, v{r+1}')
        for i in range(32):
            a(f'v_accvgpr_write_b32 a{QF+qb*32+i}, v{TQ+i}')
    def zero_items():
        return [f'v_accvgpr_write_b32 a{i}, 0' for i in range(128)]
    def set_rows():
        a(f'''
        v_add_u32 v{VDF[0]}, s44, v2        ; q
        v_lshlrev_b32 v{VT0[0]}, 2, v3
        v_sub_u32 v{VDF[0]}, v{VDF[0]}, v{VT0[0]}    ; q - 4*half
        v_add_u32 v{VDF[1]}, 32, v{VDF[0]}
        s_lshr_b32 s53, s44, 6
        v_mov_b32 v{VL[0]}, 0
        v_mov_b32 v{VL[1]}, 0
        v_mov_b32 v{VM[0]}, 0xf149f2ca
        v_mov_b32 v{VM[1]}, 0xf149f2ca
        ''')
    set_rows()
    a(f"""
    s_lshl_b32 s59, s56, 1           ; 2p
    s_mov_b32 s47, 0
    s_mov_b32 s80, 0                 ; next
    s_mov_b32 s54, 0x41000000
    s_add_u32 s45, s59, 1
    s_bfm_b32 s45, s45, 0
    s_and_b32 s60, s45, 0x5555
    s_andn2_b32 s45, 0x7fff, s45
    s_or_b32 s60, s60, s45           ; KE
    s_add_u32 s45, s59, 2
    s_bfm_b32 s45, s45, 0
    s_and_b32 s61, s45, 0xaaaa
    s_andn2_b32 s45, 0xffff, s45
    s_or_b32 s61, s61, s45           ; VE
    s_add_u32 s62, s36, 65536
    s_mov_b32 s63, 32768
    s_add_u32 s64, s36, {65536 + 16384}
    s_mov_b32 s65, 32768
    s_or_b32 s60, s60, 0x18000
    s_or_b32 s61, s61, 0x10000
    v_add_u32 v{DKV2}, 16384, v{DKV}
    v_mov_b32 v{RA[1]}, v{L16}
    v_mov_b32 v{DV[0]}, v{DKV}
    v_add_u32 v{DV[1]}, 16384, v{DKV}
    v_lshrrev_b32 v{WV[1]}, 4, v1            ; rg
    v_lshlrev_b32 v{WV[0]}, 2, v{WV[1]}
    v_xor_b32 v{WV[0]}, v{WV[0]}, v1
    v_and_b32 v{WV[0]}, 15, v{WV[0]}
    v_lshlrev_b32 v{WV[0]}, 4, v{WV[0]}
    v_lshl_add_u32 v{WV[0]}, v{WV[1]}, 12, v{WV[0]}
    s_lshl_b32 s45, s3, 14
    s_lshr_b32 s50, s55, 1
    s_lshl_b32 s50, s50, 16
    s_add_u32 s45, s45, s50
    v_add_u32 v{WV[0]}, s45, v{WV[0]}
    v_add_u32 v{WV[1]}, 0x20000, v{WV[0]}
    """)
    TL.touch_setup(a, PFA, PFV)
    def rd(j, base):
        out = []
        for h in range(2):
            r = RING + (j % 8)*8 + h*4
            if j < 8:
                off = h*8192 + j*1024
            else:
                n = j - 8; u, dbp = n // 2, n % 2
                off = 16384 + (dbp*2 + h)*4096 + u*1024
            out.append(f'ds_read_b128 a[{r}:{r+3}], v{base} offset:{off}')
        return out
    def grp(g, base):
        return rd(2*g, base) + rd(2*g + 1, base)
    def s_mf(S, first):
        mf = []
        for s in range(8):
            for kvb in range(2):
                for qb in range(2):
                    r = RING + s*8 + kvb*4
                    c = S[qb] + kvb*16
                    cc = ('0' if first else f'v[{NM[qb]}:{NM[qb]+15}]') if s == 0 else f'v[{c}:{c+15}]'
                    q = QF + qb*32 + 4*s
                    mf.append(f'v_mfma_f32_32x32x16_bf16 v[{c}:{c+15}], a[{r}:{r+3}], a[{q}:{q+3}], {cc}')
        return mf
    def pv_mf():
        mf = []
        for n in range(8):
            u, dbp = n // 2, n % 2
            for i in range(2):
                for qb in range(2):
                    db = dbp*2 + i
                    r = RING + n*8 + i*4
                    c = qb*64 + db*16
                    mf.append(f'v_mfma_f32_32x32x16_bf16 a[{c}:{c+15}], a[{r}:{r+3}], v[{PF[qb]+4*u}:{PF[qb]+4*u+3}], a[{c}:{c+15}]')
        return mf
    def mask_body(S):
        a(f"""
        s_lshl_b32 s51, s53, 6
        v_subrev_u32 v{VT0[0]}, s51, v{VDF[0]}
        v_subrev_u32 v{VT0[1]}, s51, v{VDF[1]}
        v_mov_b32 v{VT1[0]}, 0xf149f2ca
        """)
        for qb, kvb in ((0, 0), (1, 1)):
            for r in range(16):
                off = 32*kvb + 8*(r//4) + r % 4
                a(f"""
                v_cmp_gt_i32 vcc, {off}, v{VT0[qb]}
                v_cndmask_b32 v{S[qb]+kvb*16+r}, v{S[qb]+kvb*16+r}, v{VT1[0]}, vcc
                """)
        for r in range(16):
            a(f'v_mov_b32 v{S[0]+16+r}, v{VT1[0]}')
    def max_valu(S):
        v = []
        for qb in range(2):
            s = S[qb]; t0 = VT0[qb]
            v.append(f'v_max3_f32 v{t0}, v{s}, v{s+1}, v{s+2}')
            for i in range(3, 31, 2):
                v.append(f'v_max3_f32 v{t0}, v{t0}, v{s+i}, v{s+i+1}')
            v += [f'v_max_f32 v{t0}, v{t0}, v{s+31}',
                  f'v_cmp_lt_f32 s[{RS[qb]}:{RS[qb]+1}], s54, v{t0}']
        return v
    def adopt(S, qb, first):
        t0, t1 = VT0[qb], VT1[qb]
        a(f'''
        v_mov_b32 v{t1}, v{t0}
        v_permlane32_swap_b32 v{t0}, v{t1}
        ''')
        if first:
            a(f'''
            v_max_f32 v{t0}, v{t0}, v{t1}
            v_mov_b32 v{VM[qb]}, v{t0}
            ''')
        else:
            a(f'''
            v_max3_f32 v{t0}, v{t0}, v{t1}, 0
            v_add_f32 v{VM[qb]}, v{VM[qb]}, v{t0}
            ''')
        a(f'v_sub_f32 v{t1}, 0, v{VM[qb]}')
        for i in range(16):
            a(f'v_mov_b32 v{NM[qb]+i}, v{t1}')
        for i in range(32):
            a(f'v_sub_f32 v{S[qb]+i}, v{S[qb]+i}, v{t0}')
        a(f's_mov_b64 s[{RS[qb]}:{RS[qb]+1}], 0')
    def first_tile(S, items, base):
        for x in grp(0, base) + grp(1, base):
            a(x)
        mf = s_mf(S, True)
        spec = {}; mem = {}
        for g in range(2):
            for k, x in enumerate(grp(g + 2, base)):
                mem[8*g + k] = [x]
        spec[7] = ['s_waitcnt lgkmcnt(4)']; spec[15] = ['s_waitcnt lgkmcnt(4)']; spec[23] = ['s_waitcnt lgkmcnt(0)']
        nlead = min(len(items), 24)
        for x in items[:nlead]:
            a(x)
        a('s_waitcnt lgkmcnt(4)')
        slots(a, mf, spec, [], mem, [VQ(items[nlead:])])
        lnm = a.newlabel('AT_NOMASK')
        a(f"""
        s_cmp_lg_u32 s80, s53
        s_cbranch_scc1 {lnm}
        """)
        mask_body(S)
        a.label(lnm)
        for x in max_valu(S):
            if not x.startswith('v_cmp'):
                a(x)
        for qb in range(2):
            adopt(S, qb, True)
    def rescale_code(Sc, Sn):
        for qb in range(2):
            lnr = a.newlabel('AT_NORS')
            a(f"""
            s_cmp_eq_u64 s[{RS[qb]}:{RS[qb]+1}], 0
            s_cbranch_scc1 {lnr}
            """)
            adopt(Sc, qb, False)
            a(f"""
            v_sub_f32 v{VAL}, 0, v{VT0[qb]}
            v_exp_f32 v{VAL}, v{VAL}
            v_mul_f32 v{VL[qb]}, v{VL[qb]}, v{VAL}
            """)
            T = Sn[0]
            for i0 in range(0, 64, 16):
                for i in range(16):
                    a(f'v_accvgpr_read_b32 v{T+i}, a{qb*64+i0+i}')
                for i in range(16):
                    a(f'v_mul_f32 v{T+i}, v{T+i}, v{VAL}')
                for i in range(16):
                    a(f'v_accvgpr_write_b32 a{qb*64+i0+i}, v{T+i}')
            a.label(lnr)
    def exp_valu(S):
        out = []
        for u in range(4):
            for qb in range(2):
                s = S[qb] + u*8
                for j in range(8):
                    out.append(f'v_exp_f32 v{s+j}, v{s+j}')
                for j in range(4):
                    out.append(f'v_cvt_pk_bf16_f32 v{PF[qb]+4*u+j}, v{s+2*j}, v{s+2*j+1}')
        return out
    def sum_valu(S):
        out = []
        for u in range(4):
            for qb in range(2):
                for j in range(8):
                    out.append(f'v_add_f32 v{VL[qb]}, v{VL[qb]}, v{S[qb]+u*8+j}')
        return out
    def ctx_addr():
        a(f'''
        s_lshr_b32 s45, s44, 7
        s_lshl_b32 s45, s45, 20
        s_lshl_b32 s50, s40, 15
        s_add_u32 s45, s45, s50
        s_lshl_b32 s50, s3, 14
        s_add_u32 s45, s45, s50
        v_add_u32 v{CA}, s45, v{L16}
        v_add_u32 v{CA+1}, 4096, v{CA}
        v_add_u32 v{CA+2}, 8192, v{CA}
        v_add_u32 v{CA+3}, 8192, v{CA+1}
        ''')
    def store_items(qb, db, R, T):
        out = []
        for gp in range(2):
            c = R + gp*8
            t = T + gp*4
            for j in range(4):
                out.append(f'v_cvt_pk_bf16_f32 v{t+j}, v{c+2*j}, v{c+2*j+1}')
            va = CA + qb*2 + (0 if db < 2 else 1)
            out.append(f'buffer_store_dwordx4 v[{t}:{t+3}], v{va}, s[28:31], 0 offen offset:{(db%2)*2048 + gp*1024} {TL.SC} ; T:ctx')
        return out
    def store_regs(qb, db, R, T):
        for x in store_items(qb, db, R, T):
            a(x)
    def dctl():
        out = []
        for (E, m, o, d) in ((60, 62, 63, 90), (61, 64, 65, 93)):
            sr = 20 if E == 60 else 24
            vo = [DKV, DKV2] if E == 60 else DV
            out += [f's_cmp_eq_u32 s47, {15 if E == 60 else 16}',
                    f's_cselect_b64 s[{sr}:{sr+1}], s[68:69], s[{sr}:{sr+1}]',
                    f's_cselect_b32 s{o}, {0 if E == 60 else 262144}, s{o}',
                    's_cselect_b64 vcc, -1, 0',
                    f'v_cndmask_b32 v{vo[0]}, v{vo[0]}, v{WV[0]}, vcc',
                    f'v_cndmask_b32 v{vo[1]}, v{vo[1]}, v{WV[1]}, vcc',
                    f's_bitcmp1_b32 s{E}, s47',
                    f's_cselect_b32 s{d}, s{m}, 0x28000',
                    f's_cselect_b32 s{d+2}, s{o}, 0x80000',
                    f's_cselect_b32 s96, 0x8000, 0',
                    f's_add_u32 s{o}, s{o}, s96',
                    f's_lshl_b32 s96, s96, 1',
                    f's_xor_b32 s{m}, s{m}, s96',
                    f's_add_u32 s{d+1}, s{d}, 32768']
        return out
    def nctl():
        return ['s_mov_b32 s57, s80',
                's_add_u32 s52, s59, 2',
                's_cmp_ge_u32 s47, s52',
                's_addc_u32 s80, s57, 1',
                's_and_b32 s50, s80, 3',
                's_cmp_gt_u32 s80, s53',
                's_cselect_b64 s[98:99], -1, 0',
                's_cmp_eq_u32 s47, s66',
                f's_cselect_b32 s81, s67, {TL.OOB}']
    def dma(k):
        t, i = k // 4, k % 4
        sr = 20 if t < 2 else 24
        d = 90 + 3*(t // 2)
        m = f's_mov_b32 m0, s{d + t % 2}' if i == 0 else None
        return m, f'buffer_load_dwordx4 v{[DKV, DKV2, DV[0], DV[1]][t]}, s[{sr}:{sr+3}], s{d+2} offen offset:{i*1024} lds'
    FLST = f'buffer_store_dword v{DKV2}, off, s[72:75], s81 sc1'
    def pf_pre(p):
        r = TL.JR[p]
        return [f'v_permlane32_swap_b32 v{r}, v{r+2}', f'v_permlane32_swap_b32 v{r+1}, v{r+3}']
    def pf_loads(p):
        r = TL.JR[p]
        return [f'buffer_store_dwordx4 v[{r}:{r+3}], v{L16}, s[72:75], s11 offen',
                f'buffer_load_dwordx4 v[{r}:{r+3}], v{TL.JA}, s[16:19], s70 offen {FR.NT}',
                f'buffer_load_dword v{PFR-4}, v{PFV}, s[72:75], s71 offen']
    def pf_adv():
        return [f'v_readlane_b32 s70, v{PFA[0]}, s47', f'v_readlane_b32 s71, v{PFA[1]}, s47', f'v_readlane_b32 s11, v{TL.JT}, s47']
    NB0 = int(os.environ.get('NB0', '6'))
    BST = int(os.environ.get('BST', '2'))
    def place_dma(spec, mem, ks, slot_list):
        for k, sl in zip(ks, slot_list):
            m, ld = dma(k)
            if m:
                if any(x.startswith('buffer_') for x in mem.get(sl - 1, [])):
                    spec.setdefault(sl, []).append(m)
                else:
                    spec.setdefault(sl - 1, []).append(m)
            mem.setdefault(sl, []).append(ld)
    FT.wait(v='k0')
    a('''
    s_waitcnt lgkmcnt(0)
    s_barrier
    ''')
    a('''
    s_cmp_ge_u32 s55, 2
    s_cbranch_scc1 AT_NOSTASH
    ''')
    for i in range(16):
        a(f'ds_write_b128 v6, a[{QF+4*i}:{QF+4*i+3}] offset:{i*1024}')
    a('s_waitcnt lgkmcnt(0)')
    a.label('AT_NOSTASH')
    first_tile(SB[0], zero_items(), RA[1])
    for x in dctl():
        a(x)
    a('s_waitcnt vmcnt(0)')
    TL.home3(a, PFA, C2L)
    FR.front_out(a)
    if 'ST' in EXP:
        a('v_mov_b32 v48, 0')
        a('v_writelane_b32 v48, s100, 0')
    stamp(a, 5)
    a('s_branch AT_BAR1')
    def full(p):
        Sc, Sn = SB[p], SB[p ^ 1]
        a.raw(f'AT_FULL{p}:')
        mark0 = len(a.lines)
        mf = s_mf(Sn, False) + pv_mf()
        spec = {}; mem = {}; post = {}; pre = {}
        for g in range(6):
            for k, x in enumerate(grp(g + 2, RA[p] if g + 2 < 4 else RA[p ^ 1])):
                mem.setdefault(8*g + k, []).append(x)
        for g in range(1, 7):
            spec[8*g - 1] = ['s_waitcnt lgkmcnt(4)']
        sl = [1 + BST*j for j in range(16 - NB0)]
        sl = [s + 1 if (s % 8) == 0 else s for s in sl]
        place_dma(spec, mem, range(NB0, 16), sl)
        lastb = sl[-1]
        pfs = max(lastb + 2, 44)
        for k, x in enumerate(pf_pre(p) + pf_loads(p)): mem.setdefault(pfs - 2 + k, []).append(x)
        spec[32] = ['s_cmp_eq_u32 s80, s53']
        def mk():
            a(f's_cbranch_scc1 AT_MASK{p}')
            a.raw(f'AT_MRET{p}:')
            return 10
        pre[32] = mk
        g0, g1 = grp(0, RA[p ^ 1]), grp(1, RA[p ^ 1])
        def bar():
            a(f'v_lshl_add_u32 v{RA[p^1]}, s50, 15, v{L16}')
            stamp(a, 's_lshl_b32 s84, s47, 1\ns_add_u32 s84, s84, 8')
            a(f'''
            s_waitcnt vmcnt(3) lgkmcnt(0)
            s_barrier
            ''')
            stamp(a, 's_add_u32 s84, s84, 1')
            a(g0[0]); a(g0[1])
            a(FLST)
        post[55] = bar
        for k, x in enumerate(g0[2:] + g1):
            mem.setdefault(56 + k, []).append(x)
        bsl = [57 + j for j in range(NB0)]
        place_dma(spec, mem, range(NB0), bsl)
        spec.setdefault(63, []).append('s_waitcnt lgkmcnt(4)')
        sq = [(lastb + 1, 31, ['s_add_u32 s47, s47, 1'] + dctl()[:14]), (33, 54, dctl()[14:] + nctl())]
        caps = {55: 8, 62: 16, 63: 0}
        done = set()
        q1 = VQ(exp_valu(Sc), marks=done)
        q2 = VQ(max_valu(Sn), earliest=34)
        q3 = VQ(sum_valu(Sc), needs=done)
        q4 = VQ(pf_adv(), earliest=pfs + 3)
        slots(a, mf, spec, sq, mem, [q1, q2, q4, q3], pre=pre, post=post, caps=caps, cap=int(os.environ.get('CAP', '20')))
        check_p(a.lines[mark0:])
        a(f'''
        s_or_b64 s[98:99], s[98:99], s[{RS[0]}:{RS[0]+1}]
        s_or_b64 s[98:99], s[98:99], s[{RS[1]}:{RS[1]+1}]
        s_cbranch_scc1 AT_EXC{p^1}
        ''')
    full(0)
    full(1)
    a('s_branch AT_FULL0')
    def other(p):
        Sc, Sn = SB[p], SB[p ^ 1]
        a.label(f'AT_MASK{p}')
        a.nop(16)
        mask_body(Sn)
        a.nop(4)
        a(f's_branch AT_MRET{p}')
        a.label(f'AT_EXC{p}')
        if p == 0: a(TL.PL)
        a.nop(16)
        a(f"""
        s_cmp_gt_u32 s57, s53
        s_cbranch_scc1 AT_IDLE{p}
        """)
        rescale_code(Sc, Sn)
        a.nop(8)
        a(f"""
        s_cmp_le_u32 s80, s53
        s_cbranch_scc1 AT_FULL{p}
        """)
        mark0 = len(a.lines)
        a('s_waitcnt lgkmcnt(0)')
        for x in grp(4, RA[p ^ 1]) + grp(5, RA[p ^ 1]):
            a(x)
        ex = exp_valu(Sc)
        done = set()
        q1 = VQ(ex, marks=done)
        k = NB0
        for j in range(24):
            a(q1.pop())
            if j % 6 == 5 and k < 16:
                m, ld = dma(k); k += 1
                if m: a(m)
                a('s_nop 0')
                a(ld)
        a('s_waitcnt lgkmcnt(4)')
        mf = pv_mf()
        spec = {}; mem = {}
        for g in range(2):
            for kk, x in enumerate(grp(g + 6, RA[p ^ 1])):
                mem.setdefault(8*g + kk, []).append(x)
        spec[7] = ['s_waitcnt lgkmcnt(4)']; spec[15] = ['s_waitcnt lgkmcnt(4)']; spec[23] = ['s_waitcnt lgkmcnt(0)']
        sl = [1 + 2*j for j in range(16 - k)]
        place_dma(spec, mem, range(k, 16), sl)
        lastb = sl[-1] if sl else 0
        q3 = VQ(sum_valu(Sc), needs=done)
        slots(a, mf, spec, [], mem, [q1, q3], cap=32)
        check_p(a.lines[mark0:])
        a(f's_branch AT_POST{p}')
        a.label(f'AT_IDLE{p}')
        for k in range(NB0, 16):
            m, ld = dma(k)
            if m: a(m)
            a(ld)
        a.label(f'AT_POST{p}')
        for x in pf_pre(p) + pf_loads(p) + ['s_add_u32 s47, s47, 1'] + pf_adv() + dctl():
            a(x)
        if p == 0:
            a(f"""
            s_cmp_eq_u32 s47, 17
            s_cbranch_scc1 AT_MERGE
            """)
        else:
            a(f"""
            s_add_u32 s52, s59, 2
            s_cmp_lg_u32 s47, s52
            s_cbranch_scc1 AT_BAR1
            s_cmp_lt_u32 s55, 2
            s_cbranch_scc1 AT_BAR1
            s_waitcnt lgkmcnt(0)
            """)
            for i in range(16):
                a(f'ds_read_b128 a[{QF+4*i}:{QF+4*i+3}], v6 offset:{i*1024}')
            for qb in range(2):
                a(f'''
                v_mov_b32 v{VT0[qb]}, v{VL[qb]}
                v_permlane32_swap_b32 v{VL[qb]}, v{VT0[qb]}
                v_add_f32 v{VL[qb]}, v{VL[qb]}, v{VT0[qb]}
                v_rcp_f32 v{VLS[qb]}, v{VL[qb]}
                ''')
            ctx_addr()
            st = []
            for qb in range(2):
                for db in range(4):
                    R = Sc[0] + (db % 2) * 16
                    T = Sc[1] + ((qb*4 + db) % 4) * 8
                    for i in range(16):
                        st.append(f'v_accvgpr_read_b32 v{R+i}, a{qb*64+db*16+i}')
                    for i in range(16):
                        st.append(f'v_mul_f32 v{R+i}, v{R+i}, v{VLS[qb]}')
                    st += store_items(qb, db, R, T)
                    for i in range(16):
                        st.append(f'v_accvgpr_write_b32 a{qb*64+db*16+i}, 0')
            lsw2 = a.newlabel('AT_SW2')
            a(f"""
            s_sub_u32 s44, 15, s56
            s_lshl_b32 s44, s44, 7
            s_lshl_b32 s45, s3, 6
            s_add_u32 s44, s44, s45
            """)
            set_rows()
            a(f"""
            s_add_u32 s80, s59, 3
            s_and_b32 s50, s80, 3
            v_lshl_add_u32 v{RA[p]}, s50, 15, v{L16}
            s_waitcnt vmcnt(3) lgkmcnt(0)
            s_cmp_gt_u32 s80, s53
            s_cbranch_scc1 {lsw2}
            """)
            first_tile(Sn, st, RA[p])
            a(f's_branch AT_SW3')
            a.label(lsw2)
            for x in st:
                a(x)
            a.label('AT_SW3')
            a(f'''
            s_cmp_lg_u32 s{TL.SAH}, 0
            s_cbranch_scc1 AT_BARW
            s_waitcnt vmcnt(0)
            buffer_wbl2 sc1
            s_branch AT_BARW
            ''')
        a.label(f'AT_BAR{p}')
        a('s_waitcnt vmcnt(3)')
        if p == 1:
            a.label('AT_BARW')
        for x in nctl():
            a(x)
        a(f'v_lshl_add_u32 v{RA[p^1]}, s50, 15, v{L16}')
        stamp(a, 's_lshl_b32 s84, s47, 1\ns_add_u32 s84, s84, 8')
        a(f'''
        s_waitcnt lgkmcnt(0)
        s_barrier
        ''')
        stamp(a, 's_add_u32 s84, s84, 1')
        for x in grp(0, RA[p ^ 1]) + grp(1, RA[p ^ 1]):
            a(x)
        a(FLST)
        for k in range(NB0):
            m, ld = dma(k)
            if m: a(m)
            a(ld)
        a(f'''
        s_waitcnt lgkmcnt(4)
        s_branch AT_EXC{p^1}
        ''')
    other(0)
    other(1)
    a.label('AT_MERGE')
    stamp(a, 6)
    if 'ST' in EXP:
        a('''
        s_lshl_b32 s45, s2, 10
        s_lshl_b32 s50, s55, 8
        s_add_u32 s45, s45, s50
        s_add_u32 s45, s45, 0x7100000
        v_lshlrev_b32 v49, 2, v1
        buffer_store_dword v48, v49, s[72:75], s45 offen
        ''')
    TL.st(a, 0)
    for qb in range(2):
        a(f'''
        v_mov_b32 v{VT0[qb]}, v{VL[qb]}
        v_permlane32_swap_b32 v{VL[qb]}, v{VT0[qb]}
        v_add_f32 v{VL[qb]}, v{VL[qb]}, v{VT0[qb]}
        ''')
    a(f'''
    s_sub_u32 s64, s64, s36          ; q3 base
    s_sub_u32 s62, s62, s36          ; q0 base
    s_lshl_b32 s45, s3, 15
    s_add_u32 s45, s45, s64
    s_lshl_b32 s50, s3, 14
    s_add_u32 s50, s50, 0x20000
    s_cmp_lt_u32 s55, 2
    s_cselect_b32 s52, s45, s50
    s_cselect_b32 s53, s50, s45
    v_add_u32 v8, s52, v{L16}
    v_add_u32 v10, s53, v{L16}
    s_add_u32 s45, s62, s36
    v_add_u32 v9, s45, v{L16}        ; own m/l (+3072)
    v_xor_b32 v11, 8192, v9          ; partner m/l
    ''')
    T = TL.pre(a, DKV2)
    TL.st(a, 52)
    a('''
    s_barrier
    s_cmp_ge_u32 s55, 2
    s_cbranch_scc1 AT_MG1
    ''')
    MO = 64
    OW = 128
    snap = T.snap()
    NA0 = TL.NA0; NA1 = int(os.environ.get('NA1', '16'))
    def merge(keep, send, tag):
        T.restore(snap)
        TL.poll_l(a, T, DKV2)
        it = []
        rd_ = [f'v_accvgpr_read_b32 v{OW+qb*32+i}, a{qb*64+keep*16+i}' for qb in range(2) for i in range(32)]
        for n in range(16):
            qb, k = n // 8, n % 8
            r = qb*64 + send*16 + k*4
            it.append(f'ds_write_b128 v8, a[{r}:{r+3}] offset:{(qb*8+k)*1024}')
            if n == 3: it.append('ds_write_b128 v9, v[18:21] offset:3072')
            it += rd_[4*n:4*n+4]
        for x in merge_items(it, [TL.aload(g, 17) for g in range(NA0, NA0 + NA1)], 0, 320):
            a(x)
        a('s_waitcnt lgkmcnt(0)')
        TL.st(a, 53)
        a('''
        s_barrier
        ds_read_b128 v[24:27], v11 offset:3072
        ''')
        for k in range(8):
            a(f'ds_read_b128 v[{MO+k*4}:{MO+k*4+3}], v10 offset:{k*1024}')
        TL.st(a, 54)
        TL.poll2(a)
        ctx_addr()
        rest = [TL.aload(g, 17) for g in range(NA0 + NA1, 32)]
        for x in rest[:2]: a(x)
        rest = rest[2:]
        a('s_waitcnt lgkmcnt(8)')
        for k in range(8, 16):
            a(f'ds_read_b128 v[{MO+k*4}:{MO+k*4+3}], v10 offset:{k*1024}')
        it = []
        for qb in range(2):
            pm, pl = 24 + 2*qb, 25 + 2*qb
            it += TL.lines(f'''
            v_max_f32 v{VMC[qb]}, v{VM[qb]}, v{pm}
            v_sub_f32 v{VM[qb]}, v{VM[qb]}, v{VMC[qb]}
            v_sub_f32 v{pm}, v{pm}, v{VMC[qb]}
            v_exp_f32 v{VM[qb]}, v{VM[qb]}
            v_exp_f32 v{pm}, v{pm}
            v_mul_f32 v{VL[qb]}, v{VL[qb]}, v{VM[qb]}
            v_fma_f32 v{VL[qb]}, v{pl}, v{pm}, v{VL[qb]}
            v_rcp_f32 v{VL[qb]}, v{VL[qb]}
            v_mul_f32 v{VM[qb]}, v{VM[qb]}, v{VL[qb]}
            v_mul_f32 v{pm}, v{pm}, v{VL[qb]}
            ''')
        for qb in range(2):
            for i in range(32):
                r = OW + qb*32 + i
                it.append(f'v_mul_f32 v{r}, v{r}, v{VM[qb]}')
        for x in merge_items(it, rest, 0, 380):
            a(x)
        TL.st(a, 55)
        for qb in range(2):
            pm = 24 + 2*qb
            a(f's_waitcnt lgkmcnt({8 if qb == 0 else 0})')
            for d in range(2):
                for i in range(16*d, 16*d + 16):
                    r = OW + qb*32 + i
                    a(f'v_fma_f32 v{r}, v{MO+qb*32+i}, v{pm}, v{r}')
                store_regs(qb, keep + d, OW + qb*32 + d*16, 192 + (qb*2 + d) * 8)
        T.ddone = len(a.ds_seq)
    merge(0, 2, 'a')
    a('s_branch AT_END2')
    a.label('AT_MG1')
    merge(2, 0, 'b')
    a.label('AT_END2')
    TL.main(a, T)
    a.label('AT_END')
    a('s_endpgm')
    TL.ool(a)
    return dict(name=name, grid=256, block=256, lds=163840, vgpr=512, accum=256)
```

```python
from k_common import *
from k_prep import WS_WINF, WS_WOUTF, WS_MODF, WS_WSPF, WTC
from sched import *
import k_tail2 as TL
import os
E = os.environ.get
I = lambda k, d: int(E(k, str(d)), 0)
FSTK = 'ST' in E('ATT_EXP', '')
OOB = 0x40000000
WS_H = WS_N1
WS_MODQ = 0x4000
FH, FKV = 0x4200, 0x4400
D_R, D_C0, D_OV, D_C2 = 128, 136, 140, 192
NT = 'nt' if I('NT', 1) else ''
MT = 131072; MP = MT + 4096; SCRL = 163840 - 64
CKV, WUK, WUV, SX, SC_, WMOD, DBG, WIN, WOUT, WSP = 60, 64, 76, 80, 84, 88, 92, 20, 24, 28
RAW = 4
QT = 64; FW = 28; FA = 64; FB = 80
DKV = 16; L16 = 17
VST = 62
CSC = 0x3e0293ee

def fs(a, idx, T=None):
    if not FSTK: return
    a(f'''
    s_memtime s[98:99]
    s_waitcnt lgkmcnt(0)
    v_writelane_b32 v{VST}, s98, {idx}
    ''')
    if T is not None: T.ddone = len(a.ds_seq)

def fmt(a, q, n):
    a(f's_mov_b32 s{q+2}, {n}\ns_mov_b32 s{q+3}, 0x00020000')

class MQ(Q):
    def __init__(self, name=''):
        super().__init__(name); self.passed = set()
    def mark(self, nm):
        def f(): self.passed.add(nm)
        f.cost = 0
        self.items.append(f); return self

def front(a, kv_items):
    if FSTK: a(f'v_mov_b32 v{VST}, 0')
    fs(a, 0)
    for q, nm in ((DBG, 'dbg'), (WMOD, 'w_mod'), (SC_, 'c'), (CKV, 'A_c_kv'), (WUK, 'A_w_uk'), (WUV, 'A_w_uv'), (8, 'ws'),
                  (SX, 'A_x'), (16, 'A_w_q'), (68, 'A_w_o'), (WIN, 'B_w_in'), (WOUT, 'B_w_out')):
        a(f's_load_dwordx2 s[{q}:{q+1}], s[0:1], {ARG[nm]}')
    a(f'''
    s_getreg_b32 s5, hwreg(HW_REG_XCC_ID, 0, 4)
    v_lshrrev_b32 v1, 6, v0
    s_cmp_ge_u32 s2, 256
    s_cbranch_scc1 AT_END
    v_readfirstlane_b32 s55, v1      ; wave 0..3
    s_and_b32 s5, s5, 7
    s_mov_b32 s{RAW}, s2
    v_and_b32 v1, 63, v0             ; lane
    ''')
    fmt(a, DBG, 256); fmt(a, WMOD, 512*3072*2); fmt(a, SC_, 1024)
    fmt(a, CKV, 2048*512*2); fmt(a, WUK, 4194304); fmt(a, WUV, 4194304)
    FAKE = TL.FORCE == 2
    if FAKE: a('s_lshr_b32 s5, s5, 1')
    a(f'''
    s_cmp_lg_u32 s55, 0
    s_cbranch_scc1 FR_PF
    s_lshl_b32 s97, s5, 4
    s_lshl_b32 s96, s5, 3
    s_lshl_b64 s[98:99], 1, s96
    v_mov_b32 v3, 1
    v_mov_b32 v4, s98
    v_mov_b32 v5, s99
    s_mov_b64 exec, 1
    s_waitcnt lgkmcnt(0)
    buffer_atomic_add v3, off, s[{DBG}:{DBG+3}], s97 sc0 {'sc1' if FAKE else ''}
    buffer_atomic_add_x2 v[4:5], off, s[{DBG}:{DBG+3}], 0 offset:{D_R} sc1
    s_mov_b64 exec, -1
    s_branch FR_CM
    ''')
    a.label('FR_PF')
    code_pf(a, None, 'CODE_END', 55, 3, I('PF0', 24000), sb=32, vt=250, woff=1)
    if I('PFK', 1):
        a(f'''
        s_getreg_b32 s6, hwreg(HW_REG_HW_ID, 13, 2)
        s_lshr_b32 s7, s2, 6
        s_lshl_b32 s7, s7, 2
        s_add_u32 s7, s7, s6             ; portion 0..15
        s_mul_i32 s7, s7, 3
        s_add_u32 s7, s7, s55
        s_sub_u32 s7, s7, 1              ; g 0..47
        v_lshlrev_b32 v2, 10, v1         ; A: lane*1024
        v_lshrrev_b32 v3, 3, v1
        v_lshlrev_b32 v3, 13, v3
        v_and_b32 v4, 7, v1
        v_lshl_add_u32 v3, v4, 7, v3     ; B: (lane/8)*8192 + (lane%8)*128
        s_lshl_b32 s6, s5, 10
        v_add_u32 v3, s6, v3
        s_lshl_b32 s6, s7, 16
        s_waitcnt lgkmcnt(0)
        s_cmp_ge_u32 s7, 32
        s_cbranch_scc1 FR_PB
        buffer_load_dword v248, v2, s[{CKV}:{CKV+3}], s6 offen
        buffer_load_dword v249, v2, s[{CKV}:{CKV+3}], s6 offen offset:128
        s_branch FR_CM
        ''')
        a.label('FR_PB')
        a(f'''
        s_and_b32 s6, s6, 0x70000        ; 8 rows * 8192
        s_add_u32 s10, s6, {64*8192}
        s_cmp_ge_u32 s7, 40
        s_cbranch_scc1 FR_PV
        buffer_load_dword v248, v3, s[{WUK}:{WUK+3}], s6 offen {NT}
        buffer_load_dword v249, v3, s[{WUK}:{WUK+3}], s10 offen {NT}
        s_branch FR_CM
        ''')
        a.label('FR_PV')
        a(f'''
        buffer_load_dword v248, v3, s[{WUV}:{WUV+3}], s6 offen {NT}
        buffer_load_dword v249, v3, s[{WUV}:{WUV+3}], s10 offen {NT}
        ''')
    a.label('FR_CM')
    fs(a, 50)
    T = Trk(a)
    W = lambda **k: (lambda: T.wait(**k))
    MODW, SCV = 144, 176
    a(f'''
    s_waitcnt lgkmcnt(0)
    v_lshrrev_b32 v4, 2, v0          ; rg
    v_lshlrev_b32 v5, 4, v4
    buffer_load_dwordx4 v[{SCV}:{SCV+3}], v5, s[{SC_}:{SC_+3}], 0 offen ; T:mc
    v_mul_u32_u24 v4, {8*6144}, v4
    v_and_b32 v5, 3, v0
    v_lshl_add_u32 v4, v5, 4, v4
    s_lshl_b32 s6, s{RAW}, 6
    s_cmp_lt_u32 s{RAW}, 96
    s_cselect_b32 s6, s6, {OOB}
    ''')
    for i in range(8):
        a(f'buffer_load_dwordx4 v[{MODW+4*i}:{MODW+4*i+3}], v4, s[{WMOD}:{WMOD+3}], s6 offen {NT} ; T:mw{i}')
        if i < 7: a('s_add_u32 s6, s6, 6144')
    fs(a, 51)
    srd(a, 72, 8, 9, 0x10000000)
    a(f'''
    v_lshlrev_b32 v{L16}, 4, v1
    v_mov_b32 v8, 0
    v_mov_b32 v9, 0
    v_mov_b32 v10, 0
    v_mov_b32 v11, 0
    s_lshl_b32 s6, s{RAW}, 13
    s_lshl_b32 s7, s55, 11
    s_add_u32 s6, s6, s7
    s_add_u32 s6, s6, {TL.LOC}
    s_cmp_lt_u32 s{RAW}, 32
    s_cselect_b32 s6, s6, {OOB}
    buffer_store_dwordx4 v[8:11], v{L16}, s[72:75], s6 offen sc0 sc1
    buffer_store_dwordx4 v[8:11], v{L16}, s[72:75], s6 offen offset:1024 sc0 sc1
    v_mov_b32 v2, {SCRL}
    ''')
    fs(a, 52)
    a(f'''
    s_cmp_lg_u32 s55, 0
    s_cbranch_scc1 FR_DW
    s_waitcnt vmcnt(12)
    v_readfirstlane_b32 s98, v3
    s_mov_b32 s96, s5
    s_cmp_lt_u32 s98, 32
    s_cbranch_scc0 FR_OV
    ''')
    a.raw('FR_DF:')
    def ovf():
        a.label('FR_OV')
        a(f'''
        v_mov_b32 v3, 1
        s_mov_b64 exec, 1
        buffer_atomic_add v3, off, s[{DBG}:{DBG+3}], 0 offset:{D_OV} sc0 sc1
        s_mov_b64 exec, -1
        s_mov_b32 s39, 0
        ''')
        a.label('FR_OL')
        a(f'''
        buffer_load_dwordx2 v[4:5], off, s[{DBG}:{DBG+3}], 0 offset:{D_R} sc0 sc1
        s_add_u32 s39, s39, 1
        s_waitcnt vmcnt(0)
        v_sad_u8 v6, v4, 0, 0
        v_sad_u8 v6, v5, 0, v6
        s_nop 1
        v_readfirstlane_b32 s96, v6
        s_cmp_eq_u32 s96, 256
        s_cbranch_scc1 FR_OK
        s_cmp_lt_u32 s39, {TL.SPIN}
        s_cbranch_scc1 FR_OL
        ''')
        a.label('FR_ON')
        a('''
        s_mov_b32 s98, 0x00ffffff
        s_mov_b32 s96, 0
        s_branch FR_DF
        ''')
        a.label('FR_OK')
        a('''
        v_readfirstlane_b32 s10, v4
        v_readfirstlane_b32 s11, v5
        v_readfirstlane_b32 s97, v3          ; ticket
        s_mov_b32 s96, 0
        ''')
        a.label('FR_OY')
        a('''
        s_and_b32 s98, s10, 0xff             ; n_y
        s_min_u32 s98, s98, 32
        s_add_u32 s98, s98, s97
        s_cmp_lt_u32 s98, 32
        s_cbranch_scc1 FR_DF
        s_sub_u32 s97, s98, 32
        s_lshr_b64 s[10:11], s[10:11], 8
        s_add_u32 s96, s96, 1
        s_cmp_lt_u32 s96, 8
        s_cbranch_scc1 FR_OY
        s_branch FR_ON
        ''')
    TL._ool.append(ovf)
    a(f'''
    s_lshl_b32 s98, s98, 3
    s_add_u32 s98, s98, s96
    v_mov_b32 v3, s98
    ds_write_b32 v2, v3
    s_waitcnt lgkmcnt(0)
    ''')
    a.label('FR_DW')
    a(f'''
    v_lshrrev_b32 v4, 2, v1          ; l/4
    v_bfe_u32 v5, v1, 4, 2           ; (row>>2)&3
    v_and_b32 v6, 3, v1
    v_xor_b32 v5, v5, v6             ; chunk
    s_lshl_b32 s6, s55, 4
    v_add_u32 v4, s6, v4
    v_lshlrev_b32 v4, 10, v4
    v_lshl_add_u32 v10, v5, 4, v4
    v_lshrrev_b32 v12, 4, v1         ; lane/16
    v_and_b32 v13, 15, v1
    v_lshlrev_b32 v14, 2, v12
    v_xor_b32 v14, v14, v13
    s_lshl_b32 s6, s55, 2
    v_add_u32 v15, s6, v12           ; row 0..15
    v_lshlrev_b32 v18, 13, v15
    v_lshl_add_u32 v19, v14, 4, v18
    s_lshl_b32 s36, s55, 12          ; wave*4096
    s_lshl_b32 s37, s55, 10          ; wave*1024
    ''')
    fs(a, 53)
    a(f'''
    s_barrier
    ds_read_b32 v3, v2
    s_waitcnt lgkmcnt(0)
    v_readfirstlane_b32 s2, v3
    ''')
    fs(a, 1)
    a(f'''
    s_cmp_ge_u32 s2, 256
    s_cbranch_scc1 AT_END
    s_and_b32 s40, s2, 7
    s_lshr_b32 s41, s2, 3
    s_and_b32 s42, s41, 3
    s_lshl_b32 s40, s40, 2
    s_add_u32 s40, s40, s42          ; head
    s_lshr_b32 s56, s41, 2           ; pair p 0..7 (= m)
    s_lshl_b32 s45, s56, 18
    v_add_u32 v10, s45, v10
    s_lshl_b32 s45, s40, 8
    v_add_u32 v19, s45, v19
    ''')
    def dma(Tn):
        sl = (Tn % 4) * 32768
        out = []
        if Tn < 16:
            for i in range(4):
                out.append(f'''
                s_add_u32 m0, s37, {sl + i*4096}
                s_mov_b32 s39, {Tn*64 + i*65536}
                buffer_load_dwordx4 v10, s[{CKV}:{CKV+3}], s39 offen lds ; T:d{Tn}
                ''')
            for i in range(2):
                out.append(f'''
                s_add_u32 m0, s37, {sl + 16384 + i*4096}
                s_mov_b32 s39, {(Tn*32 + i*16)*8192}
                buffer_load_dwordx4 v19, s[{WUK}:{WUK+3}], s39 offen {NT} lds ; T:d{Tn}
                ''')
                out.append(f'''
                s_add_u32 m0, s37, {sl + 24576 + i*4096}
                s_nop 0
                buffer_load_dwordx4 v19, s[{WUV}:{WUV+3}], s39 offen {NT} lds ; T:d{Tn}
                ''')
            out = out[:4] + [out[4] + out[5], out[6] + out[7]]
        else:
            j = Tn - 16
            for i in range(8):
                out.append(f'''
                s_add_u32 m0, s37, {sl + i*4096}
                s_mov_b32 s39, {(j*128 + i*16)*8192}
                buffer_load_dwordx4 v19, s[16:19], s39 offen {NT} lds ; T:d{Tn}
                ''')
        return out
    for t in range(4):
        for x in dma(t): a(x)
        if t == 0: fs(a, 2)
    fs(a, 3)
    XR = 192
    a(f'''
    s_and_b32 s3, s55, 1
    s_sub_u32 s43, 15, s56
    s_cmp_lt_u32 s55, 2
    s_cselect_b32 s41, s43, s56
    s_cmp_lt_u32 s42, 2
    s_cselect_b32 s43, s43, s56
    s_lshl_b32 s43, s43, 7
    s_and_b32 s45, s42, 1
    s_lshl_b32 s45, s45, 6
    s_add_u32 s43, s43, s45
    s_lshl_b32 s45, s55, 4
    s_add_u32 s43, s43, s45
    v_and_b32 v4, 7, v1
    v_lshrrev_b32 v5, 3, v1
    v_lshlrev_b32 v63, 4, v5
    v_lshl_add_u32 v63, v4, 10, v63  ; x voffset
    s_lshl_b32 s70, s43, 10
    s_add_u32 s71, s70, 8192
    ''')
    fmt(a, SX, 2048*512*2); fmt(a, 16, 4194304)
    xl = []
    for G in range(2):
        for i in range(8):
            r = XR + G*32 + 4*i
            xl.append(f'buffer_load_dwordx4 v[{r}:{r+3}], v63, s[{SX}:{SX+3}], s{70+G} offen offset:{i*128} ; T:x{G}_{i}')
    NX0 = I('NX0', 4); XS = I('XS', 10); XD = I('XD', 80)
    for x in xl[:NX0]: a(x)
    qx = MQ('x')
    for i, x in enumerate(xl[NX0:]):
        qx.at(4 + XS*i); qx.add(x)
    a(f'''
    v_lshlrev_b32 v6, 9, v5
    v_lshl_add_u32 v6, v4, 4, v6
    v_lshlrev_b32 v18, 5, v5
    v_add_u32 v18, {MT}, v18
    v_and_b32 v2, 31, v1             ; l%32
    v_lshrrev_b32 v3, 5, v1          ; half
    v_bfe_u32 v5, v1, 2, 2           ; (row>>2)&3 = r
    s_lshl_b32 s45, s55, 6
    v_add_u32 v4, s45, v2
    v_lshlrev_b32 v4, 6, v4          ; row*64
    ''')
    for s in range(2):
        a(f'''
        v_or_b32 v7, {2*s}, v3
        v_xor_b32 v7, v7, v5
        v_lshl_add_u32 v{12+s}, v7, 4, v4
        v_add_u32 v{14+s}, 0x10000, v{12+s}
        ''')
    a(f'''
    v_and_b32 v4, 3, v1              ; c4
    v_bfe_u32 v7, v1, 4, 1           ; nsub
    v_lshlrev_b32 v8, 3, v3
    v_add_u32 v8, v8, v5
    v_lshlrev_b32 v8, 8, v8
    v_lshl_add_u32 v8, v7, 5, v8
    v_lshl_add_u32 v8, v4, 3, v8
    ''')
    for blk in range(4):
        a(f'''
        v_xor_b32 v7, {blk}, v5
        v_lshl_add_u32 v{20+blk}, v7, 6, v8
        v_add_u32 v{24+blk}, 0x10000, v{20+blk}
        ''')
    SL, AC, U = 28, 44, 52
    T.wait(v='mc')
    for j in range(4):
        a(f'v_lshlrev_b32 v{SL+2*j}, 16, v{SCV+j}\nv_and_b32 v{SL+2*j+1}, 0xffff0000, v{SCV+j}')
    for f in ('v_mul_f32 v{t}, 0xbfb8aa3b, v{c}', 'v_exp_f32 v{t}, v{t}', 'v_add_f32 v{t}, 1.0, v{t}', 'v_rcp_f32 v{t}, v{t}',
              'v_mul_f32 v{c}, v{c}, v{t}', 'v_cvt_pk_bf16_f32 v{c}, v{c}, v{c}', 'v_lshlrev_b32 v{c}, 16, v{c}'):
        for j in range(8): a(f.format(t=SL+8+j, c=SL+j))
    for i in range(8):
        T.wait(v=f'mw{i}')
        for j in range(4):
            a(f'v_lshlrev_b32 v{U+2*j}, 16, v{MODW+4*i+j}\nv_and_b32 v{U+2*j+1}, 0xffff0000, v{MODW+4*i+j}')
        for j in range(8):
            a(f'v_mul_f32 v{AC+j}, v{U+j}, v{SL}' if i == 0 else f'v_fmac_f32 v{AC+j}, v{U+j}, v{SL+i}')
    for j in range(8):
        a(f'v_add_f32_dpp v{U+j}, v{AC+j}, v{AC+j} row_ror:4 row_mask:0xf bank_mask:0xf')
    for j in range(8):
        a(f'v_add_f32_dpp v{AC+j}, v{U+j}, v{U+j} row_ror:8 row_mask:0xf bank_mask:0xf')
    for j in range(4): a(f'v_permlane16_swap_b32 v{AC+j}, v{AC+4+j}')
    for j in range(4): a(f'v_add_f32 v{AC+j}, v{AC+j}, v{AC+4+j}')
    for j in range(2): a(f'v_permlane32_swap_b32 v{AC+j}, v{AC+2+j}')
    for j in range(2): a(f'v_add_f32 v{AC+j}, v{AC+j}, v{AC+2+j}')
    a(f'''
    v_bfe_u32 v7, v1, 4, 1           ; e
    v_lshlrev_b32 v7, 4, v7
    v_lshl_add_u32 v7, v3, 3, v7     ; + f*8
    v_lshl_add_u32 v7, v4, 5, v7     ; + cq*32
    s_lshl_b32 s45, s55, 7
    s_add_u32 s45, s45, {MP}
    v_add_u32 v7, s45, v7
    ds_write_b64 v7, v[{AC}:{AC+1}] ; T:mp
    ''')
    fs(a, 4, T)
    def reads(t, s):
        buf = s; sl = t % 4; sb = (sl % 2)*32768
        va, vb = (12, 20) if sl < 2 else (14, 24)
        out = []
        for mb in range(2):
            r = FA + buf*8 + mb*4
            out.append(f'ds_read_b128 v[{r}:{r+3}], v{va+s} offset:{sb + mb*2048} ; T:f{2*t+s}')
        for v in range(2):
            for nb in range(4):
                for j in range(2):
                    r = FB + buf*32 + (v*4 + nb)*4 + j*2
                    out.append(f'ds_read_b64_tr_b16 v[{r}:{r+1}], v{vb+nb} offset:{sb + 16384 + v*8192 + s*4096 + j*1024} ; T:f{2*t+s}')
        return out
    def wreads(g):
        vb = 20 if g < 16 else 24
        out = []
        for blk in range(4):
            for j in range(2):
                r = FW + (g & 1)*16 + blk*4 + j*2
                out.append(f'ds_read_b64_tr_b16 v[{r}:{r+1}], v{vb+blk} offset:{(g % 16)*4096 + j*1024} ; T:f{32+g}')
        return out
    T.wait(v='d0', d='mp')
    a('s_barrier')
    fs(a, 5, T)
    for x in reads(0, 0): a(x)
    def tile_reg(n):
        return 16*n
    mfl = []; pre = {}; pins = {}
    NH0 = 4
    def hreg(g, qb):
        if g < NH0: return f'v[{224 + g*8 + qb*4}:{224 + g*8 + qb*4 + 3}]'
        r = (g - NH0)*8 + qb*4
        return f'a[{r}:{r+3}]'
    for ks in range(32):
        t, s = ks // 2, ks % 2
        b = len(mfl)
        for n in range(16):
            c = tile_reg(n)
            cc = '0' if ks == 0 else f'a[{c}:{c+15}]'
            if n < 8:
                mb, nb = n // 4, n % 4
                fa = FA + s*8 + mb*4; fb = FB + s*32 + nb*4
                mfl.append(f'v_mfma_f32_32x32x16_bf16 a[{c}:{c+15}], v[{fb}:{fb+3}], v[{fa}:{fa+3}], {cc}')
            else:
                nb, mb = (n - 8) // 2, (n - 8) % 2
                fa = FA + s*8 + mb*4; fb = FB + s*32 + (4 + nb)*4
                mfl.append(f'v_mfma_f32_32x32x16_bf16 a[{c}:{c+15}], v[{fa}:{fa+3}], v[{fb}:{fb+3}], {cc}')
        pre[b] = [W(d=f'f{ks}')]
        if FSTK and s == 0: pre[b].append(lambda t=t: fs(a, 8 + t, T))
        rd = reads(t, 1) if s == 0 else (reads(t + 1, 0) if t < 15 else wreads(0))
        o = 0
        if s == 1:
            pins[b] = [W(v=f'd{t+1}'), 's_barrier']
            o = 1
        RP = I('RP', 3)
        for i, x in enumerate(rd): pins.setdefault(b + o + i // RP, []).append(x)
        if s == 1:
            for i, x in enumerate(dma(t + 4)): pins.setdefault(b + 8 + i, []).append(x)
    QB = len(mfl)
    for g in range(32):
        b = len(mfl)
        for blk in range(4):
            for qb in range(2):
                fr = FW + (g & 1)*16 + blk*4
                q = QT + qb*64 + blk*16
                cc = '0' if g == 0 else f'v[{q}:{q+15}]'
                mfl.append(f'v_mfma_f32_32x32x16_bf16 v[{q}:{q+15}], v[{fr}:{fr+3}], {hreg(g, qb)}, {cc}')
        pre[b] = [W(d=f'f{32+g}', v=f'h{g}')]
        if FSTK and g % 4 == 0: pre[b].append(lambda g=g: fs(a, 24 + g // 4, T))
        o = 0
        if g % 8 == 7 and g < 31:
            pins[b] = [W(v=f'd{17 + g // 8}'), 's_barrier']
            o = 1
        if g < 31:
            for i, x in enumerate(wreads(g + 1)): pins.setdefault(b + o + i // 3, []).append(x)
    def SL_(t, s=0, i=0): return t*32 + s*16 + i
    def need(q, nm, slot):
        def f():
            n = 0
            while nm not in q.passed:
                while isinstance(q.items[q.k], tuple): q.k += 1
                x = q.pop(); emit(a, x); n += icost(x)
            if n and E('VERB'): print('forced', nm, n)
        f.cost = 0
        pins.setdefault(slot, []).insert(0, f)
    qm = MQ('mod')
    qm.add(f'''
    v_lshlrev_b32 v7, 2, v2
    v_add_u32 v8, {MP}, v7
    ds_read_b32 v{U}, v8 ; T:mq
    ds_read_b32 v{U+1}, v8 offset:128 ; T:mq
    ds_read_b32 v{U+2}, v8 offset:256 ; T:mq
    ds_read_b32 v{U+3}, v8 offset:384 ; T:mq
    s_lshl_b32 s6, s{RAW}, 7
    s_cmp_lt_u32 s{RAW}, 96
    s_cselect_b32 s7, s6, {OOB}
    s_cmp_eq_u32 s55, 0
    s_cselect_b32 s7, s7, {OOB}
    s_add_u32 s6, s6, {WS_MODQ}
    s_cmp_lt_u32 s{RAW}, 32
    s_cselect_b32 s6, s6, {OOB}
    s_cselect_b32 s10, {D_C0}, {OOB}
    s_cmp_eq_u32 s55, 1
    s_cselect_b32 s6, s6, {OOB}
    s_cselect_b32 s10, s10, {OOB}
    s_cmp_ge_u32 s{RAW}, 16
    s_cselect_b32 s11, 1.0, 0
    s_mov_b32 s48, {CSC}
    ''')
    qm.at(3)
    qm.add(W(d='mq'))
    qm.add(f'''
    v_add_f32 v{U}, v{U}, v{U+1}
    v_add_f32 v{U+2}, v{U+2}, v{U+3}
    v_add_f32 v{U}, v{U}, v{U+2}
    v_cvt_pk_bf16_f32 v{U}, v{U}, v{U}
    v_lshlrev_b32 v{U}, 16, v{U}
    v_add_f32 v{U+1}, s11, v{U}
    v_mul_f32 v{U+1}, s48, v{U+1}
    buffer_store_dword v{U+1}, v7, s[72:75], s6 offen sc1 ; T:mods
    buffer_store_dword v{U}, v7, s[72:75], s7 offen sc1 ; T:side
    s_cmp_ge_u32 s{RAW}, 64
    s_cselect_b32 s11, 1.0, 0
    s_cselect_b32 s7, 0, 16
    v_add_f32 v{U+2}, s11, v{U}
    v_cvt_pk_bf16_f32 v{U+2}, v{U+2}, v{U+2}
    s_and_b32 s6, s{RAW}, 15
    s_lshl_b32 s6, s6, 10
    s_add_u32 s6, s6, s7
    s_lshl_b32 s7, s55, 6
    s_add_u32 s6, s6, s7
    s_add_u32 s6, s6, {WS_MODF}
    s_sub_u32 s7, s{RAW}, 48
    s_cmp_lt_u32 s7, 32
    s_cselect_b32 s6, s6, {OOB}
    v_bfe_u32 v8, v1, 4, 1               ; gq
    v_lshlrev_b32 v8, 9, v8
    v_bfe_u32 v9, v1, 2, 1               ; h
    v_lshl_add_u32 v8, v9, 8, v8
    v_and_b32 v9, 3, v1
    v_lshl_add_u32 v8, v9, 1, v8
    v_bfe_u32 v9, v1, 3, 1
    v_lshl_add_u32 v8, v9, 3, v8
    buffer_store_short v{U+2}, v8, s[72:75], s6 offen sc1 ; T:side
    v_mov_b32 v9, 1
    ''')
    qm.mark('mu')
    qm.at(I('M1', SL_(1, 0, 8)))
    qm.add(W(v='mods'))
    qm.atom(f'''
    s_mov_b64 exec, 1
    buffer_atomic_add v9, off, s[{DBG}:{DBG+3}], s10 sc1
    s_mov_b64 exec, -1
    ''')
    qj = MQ('job')
    qj.at(I('J0', SL_(6)))
    WU = 176; WP = 28
    qj.add(f'''
    s_mov_b32 s{WIN+2}, {512*1376*2}
    s_mov_b32 s{WIN+3}, 0x00020000
    s_mov_b32 s{WOUT+2}, {688*512*2}
    s_mov_b32 s{WOUT+3}, 0x00020000
    ''')
    def win_addr(su, so):
        return f'''
        s_lshr_b32 s32, s{su}, 3             ; x = n8*12 + wt
        s_mul_i32 s33, s32, 43691
        s_lshr_b32 s33, s33, 19              ; n8
        s_mul_i32 s84, s33, 12
        s_sub_u32 s84, s32, s84              ; wt
        s_lshl_b32 s84, s84, 2
        s_mov_b32 s96, {WTC & 0xffffffff}
        s_mov_b32 s97, {WTC >> 32}
        s_lshr_b64 s[96:97], s[96:97], s84
        s_and_b32 s84, s96, 7                ; c
        s_lshl_b32 s84, s84, 4
        s_mul_i32 s33, s33, 88
        s_add_u32 s33, s33, s84
        s_bitcmp1_b32 s96, 3
        s_cselect_b32 s84, 688, 0
        s_add_u32 s33, s33, s84              ; colbase
        s_lshl_b32 s33, s33, 1
        s_and_b32 s84, s{su}, 7
        s_mul_i32 s84, s84, {64*2752}
        s_add_u32 s{so}, s33, s84
        '''
    qj.add(f'''
    s_sub_u32 s85, s{RAW}, 96
    s_lshl_b32 s85, s85, 2
    s_add_u32 s85, s85, s55              ; unit 0
    s_add_u32 s86, s85, 640              ; unit 1
    v_and_b32 v0, 7, v1                 ; cp
    v_bfe_u32 v11, v1, 3, 1
    v_lshlrev_b32 v11, 2, v11
    v_lshrrev_b32 v4, 4, v1
    v_lshl_add_u32 v11, v4, 4, v11      ; row
    v_mul_u32_u24 v11, 2752, v11
    v_lshl_add_u32 v11, v0, 2, v11      ; w_in voffset
    ''' + win_addr(85, 87) + f'''
    s_cmp_lt_u32 s{RAW}, 96
    s_cselect_b32 s87, {OOB}, s87
    s_lshl_b32 s85, s85, 11
    s_add_u32 s85, s85, {WS_WINF}
    s_cmp_lt_u32 s{RAW}, 96
    s_cselect_b32 s85, {OOB}, s85
    ''')
    for j in range(8):
        x = f'buffer_load_dword v{WU+j}, v11, s[{WIN}:{WIN+3}], s87 offen {NT} ; T:u0'
        if j < 7: x += f'\ns_add_u32 s87, s87, {2752 if j != 3 else 5*2752}'
        qj.atom(x)
    qj.add(win_addr(86, 87) + f'''
    s_sub_u32 s57, s86, 768              ; u = n8*48 + p*6 + kf
    s_mul_i32 s33, s57, 43691
    s_lshr_b32 s33, s33, 21              ; n8
    s_mul_i32 s84, s33, 48
    s_sub_u32 s84, s57, s84
    s_mul_i32 s32, s84, 43691
    s_lshr_b32 s32, s32, 18              ; p
    s_mul_i32 s96, s32, 6
    s_sub_u32 s96, s84, s96              ; kf
    s_lshl_b32 s96, s96, 4
    s_cmp_eq_u32 s32, 7
    s_cselect_b32 s97, 9, 11
    s_lshl_b32 s97, s97, 3               ; lim
    s_mul_i32 s32, s32, 88
    s_add_u32 s32, s32, s96              ; f0
    s_lshl_b32 s32, s32, 10
    s_lshl_b32 s33, s33, 7
    s_add_u32 s33, s33, s32              ; soffset
    s_cmp_lt_u32 s96, s97
    s_cselect_b32 s33, s33, {OOB}
    s_add_u32 s96, s96, 8
    s_cmp_lt_u32 s96, s97
    s_cselect_b32 s58, {5*1024}, {OOB}   ; step to the second row group
    s_lshl_b32 s57, s57, 11
    s_add_u32 s57, s57, {WS_WOUTF}
    s_lshl_b32 s32, s86, 11
    s_add_u32 s32, s32, {WS_WINF}
    v_and_b32 v0, 15, v1
    v_bfe_u32 v4, v1, 4, 1
    v_lshlrev_b32 v4, 12, v4
    v_lshl_add_u32 v4, v3, 6, v4
    v_lshl_add_u32 v4, v0, 2, v4      ; w_out voffset
    s_cmp_lt_u32 s86, 768
    s_cselect_b32 s87, s87, s33
    s_cselect_b32 s57, s32, s57
    s_cselect_b32 s58, {5*2752}, s58
    s_cselect_b32 s59, 43, 16
    s_cselect_b32 s{WOUT}, s{WIN}, s{WOUT}
    s_cselect_b32 s{WOUT+1}, s{WIN+1}, s{WOUT+1}
    s_cselect_b32 s{WOUT+2}, s{WIN+2}, s{WOUT+2}
    s_cselect_b64 vcc, -1, 0
    v_cndmask_b32 v4, v4, v11, vcc
    s_lshl_b32 s59, s59, 6
    s_sub_u32 s32, s86, 640
    s_cmp_lt_u32 s32, 512
    s_cselect_b32 s87, s87, {OOB}
    s_cselect_b32 s57, s57, {OOB}
    ''')
    for j in range(8):
        x = f'buffer_load_dword v{WU+8+j}, v4, s[{WOUT}:{WOUT+3}], s87 offen {NT} ; T:u1'
        if j < 7: x += f'\ns_add_u32 s87, s87, s{59 if j != 3 else 58}'
        qj.atom(x)
    qj.mark('jld')
    qj.add(f'''
    v_lshlrev_b32 v11, 5, v1             ; lane*32
    s_mov_b32 s32, 0x05040100
    s_mov_b32 s33, 0x07060302
    ''')
    def cpf():
        a('s_getpc_b64 s[34:35]')
        a.raw('FR_CPF:')
        a(f'''
        s_lshl_b32 s84, s42, 2
        s_add_u32 s84, s84, s55
        s_lshl_b32 s84, s84, 13
        v_lshl_add_u32 v0, v1, 7, s84
        ''')
        a.raw('    v_min_u32 v0, CODE_END-FR_CPF-4, v0')
        a('s_nop 0\nglobal_load_dword v0, v0, s[34:35]')
    cpf.cost = 30
    if I('CPF', 1): qj.add(cpf)
    qj.at(I('J1', SL_(10)))
    def jchk():
        assert 'mt' in qc.passed
    jchk.cost = 0
    qj.add(jchk)
    for u in range(2):
        qj.add(W(v=f'u{u}'))
        R, D = WU + 8*u, WP + 8*u
        for j in range(4):
            qj.add(f'v_perm_b32 v{D+j}, v{R+2*j+1}, v{R+2*j}, s32\nv_perm_b32 v{D+4+j}, v{R+2*j+1}, v{R+2*j}, s33')
        qj.add(f'''
        buffer_store_dwordx4 v[{D}:{D+3}], v11, s[72:75], s{[85, 57][u]} offen sc1 ; T:side
        buffer_store_dwordx4 v[{D+4}:{D+7}], v11, s[72:75], s{[85, 57][u]} offen offset:16 sc1 ; T:side
        ''')
    CB = I('CB', 13)
    qj.at(SL_(CB, 1) - 2)
    qj.add(W(v='side'))
    qj.mark('sidew')
    need(qj, 'sidew', SL_(CB, 1))
    qj.at(SL_(CB, 1) + 1)
    qj.add(f'''
    v_mov_b32 v0, 1
    s_cmp_eq_u32 s55, 0
    s_cselect_b32 s84, {D_C2}, {OOB}
    ''')
    qj.atom(f'''
    s_mov_b64 exec, 1
    buffer_atomic_add v0, off, s[{DBG}:{DBG+3}], s84 sc1
    s_mov_b64 exec, -1
    ''')
    qh = MQ('h')
    qh.at(I('H0', SL_(1)))
    SS = 44
    def hstart():
        assert 'mu' in qm.passed
    hstart.cost = 0
    qh.add(hstart)
    for G in range(2):
        for i in range(8):
            qh.at(4 + XS*(G*8 + i - NX0) + XD)
            qh.add(W(v=f'x{G}_{i}'))
            for j in range(4):
                x = XR + G*32 + 4*i + j; t = U + 2*j
                qh.add(f'v_lshlrev_b32 v{t}, 16, v{x}\nv_and_b32 v{t+1}, 0xffff0000, v{x}')
            for j in range(8):
                s = SS + 2*G + 4*(j & 1)
                if i == 0 and j < 2:
                    qh.add(f'v_mov_b32 v{s}, v{U+j}\nv_mul_f32 v{s+1}, v{U+j}, v{U+j}')
                else:
                    qh.add(f'v_add_f32 v{s}, v{s}, v{U+j}\nv_fmac_f32 v{s+1}, v{U+j}, v{U+j}')
    for j in range(4): qh.add(f'v_add_f32 v{SS+j}, v{SS+j}, v{SS+4+j}')
    for j in range(4): qh.add(f'v_add_f32_dpp v{SS+4+j}, v{SS+j}, v{SS+j} row_ror:8 row_mask:0xf bank_mask:0xf')
    for j in range(4): qh.add(f'v_mov_b32 v{SS+j}, v{SS+4+j}')
    for j in range(4): qh.add(f'v_permlane16_swap_b32 v{SS+j}, v{SS+4+j}')
    for j in range(4): qh.add(f'v_add_f32 v{SS+j}, v{SS+j}, v{SS+4+j}')
    for j in range(4): qh.add(f'v_mov_b32 v{SS+4+j}, v{SS+j}')
    for j in range(4): qh.add(f'v_permlane32_swap_b32 v{SS+j}, v{SS+4+j}')
    for j in range(4): qh.add(f'v_add_f32 v{SS+j}, v{SS+j}, v{SS+4+j}')
    for G in range(2):
        s = SS + 2*G
        qh.add(f'''
        v_mul_f32 v{s}, 0xbb000000, v{s}
        v_mul_f32 v{s+1}, 0x3b000000, v{s+1}
        v_fma_f32 v{s+1}, -v{s}, v{s}, v{s+1}
        v_max_f32 v{s+1}, 0, v{s+1}
        v_add_f32 v{s+1}, 0x3727c5ac, v{s+1}
        v_rsq_f32 v{s+1}, v{s+1}
        v_mul_f32 v{s}, v{s}, v{s+1}
        ''')
    CR = 40
    CL = f'buffer_load_dwordx4 v[{CR}:{CR+3}], off, s[{DBG}:{DBG+3}], 0 offset:{D_R} sc0 sc1'
    CK = f'''
    v_sad_u8 v{CR+3}, v{CR}, 0, 0
    v_sad_u8 v{CR+3}, v{CR+1}, 0, v{CR+3}
    v_lshl_add_u32 v{CR+3}, v{CR+2}, 16, v{CR+3}
    v_cmp_eq_u32 vcc, {256 + (32 << 16)}, v{CR+3}
    s_cmp_eq_u64 vcc, -1
    '''
    qc = MQ('cnt')
    qc.at(I('C0', SL_(4)))
    qc.add(CL + ' ; T:cl')
    qc.at(I('C1', SL_(5)))
    def cchk():
        T.wait(v='cl')
        a(CK + 's_cbranch_scc0 FR_CS')
        a.raw('FR_CR:')
        a(f'''
        v_and_b32 v{CR}, v{CR}, v{CR+1}
        v_cmp_eq_u32 vcc, {0x20202020 if not TL.FORCE else 0x7f7f7f7f}, v{CR}
        s_cmp_eq_u64 vcc, -1
        s_cselect_b32 s10, 1, 0
        s_add_u32 m0, s37, {MT}
        s_add_u32 s39, s37, {WS_MODQ}
        buffer_load_dwordx4 v{L16}, s[72:75], s39 offen lds ; T:mt
        ''')
    cchk.cost = 24
    def cspin():
        a.label('FR_CS')
        a('s_mov_b32 s39, 0')
        a.label('FR_CL')
        a(CL + '\ns_add_u32 s39, s39, 1\ns_waitcnt vmcnt(0)' + CK + f'''
        s_cbranch_scc1 FR_CR
        s_cmp_lt_u32 s39, {TL.SPIN}
        s_cbranch_scc1 FR_CL
        s_branch FR_CR
        ''')
    TL._ool.append(cspin)
    qc.add(cchk)
    qc.mark('mt')
    TB = I('TB', 6)
    need(qc, 'mt', SL_(TB - 1, 1) + 1)
    pins[SL_(TB, 1)].insert(0, W(v='mt'))
    qh.add(f'''
    s_lshr_b32 s45, s43, 5
    s_lshl_b32 s45, s45, 15
    s_and_b32 s46, s43, 31
    s_lshl_b32 s46, s46, 4
    s_add_u32 s45, s45, s46
    s_and_b32 s46, s2, 7
    s_lshl_b32 s47, s46, 21
    s_add_u32 s45, s45, s47
    s_add_u32 s45, s45, {WS_H}
    s_add_u32 s47, s47, {WS_H}
    s_add_u32 s12, s8, s47
    s_addc_u32 s13, s9, 0
    s_mov_b32 s14, {2048*512*2}
    s_mov_b32 s15, 0x00020000
    s_mul_i32 s46, s46, {TL.LOCS}
    s_add_u32 s46, s46, {TL.LOC}
    s_lshl_b32 s47, s56, 6
    s_add_u32 s47, s47, s46
    s_add_u32 s47, s47, {FH}
    s_lshl_b32 s50, s42, 4
    s_lshl_b32 s51, s55, 2
    s_add_u32 s50, s50, s51
    s_add_u32 s50, s50, s47
    s_lshl_b32 s51, s55, 4
    s_add_u32 s47, s47, s51
    s_lshl_b32 s51, s42, 7
    s_add_u32 s46, s46, s51
    s_add_u32 s46, s46, {FKV}
    s_lshl_b32 s51, s56, 4
    s_add_u32 s51, s51, s46
    s_lshl_b32 s52, s55, 2
    s_add_u32 s51, s51, s52
    s_lshl_b32 s44, s41, 7
    s_lshl_b32 s52, s3, 6
    s_add_u32 s44, s44, s52              ; q0 = qblock*128 + w*64
    s_lshl_b32 s52, s44, 10
    v_add_u32 v5, s52, v{L16}
    v_add_u32 v{DKV}, s36, v{L16}
    ''')
    qh.at(SL_(TB, 1) + 1)
    def mread(i):
        b = MODW + (i % 2)*16
        return [f'ds_read_b128 v[{b+4*k}:{b+4*k+3}], v18 offset:{i*256 + (k & 1)*16 + (k >> 1)*2048} ; T:mr{i}' for k in range(4)]
    qh.add(mread(0)); qh.add(mread(1))
    for i in range(8):
        b = MODW + (i % 2)*16
        for G in range(2):
            s = SS + 2*G
            for j in range(4):
                x = XR + G*32 + 4*i + j; t = U + 2*j
                qh.add(f'v_lshlrev_b32 v{t}, 16, v{x}\nv_and_b32 v{t+1}, 0xffff0000, v{x}')
            for j in range(8): qh.add(f'v_fma_f32 v{U+j}, v{U+j}, v{s+1}, v{s}')
            if G == 0: qh.add(W(d=f'mr{i}'))
            for j in range(8): qh.add(f'v_fma_f32 v{U+j}, v{U+j}, v{b+8+j}, v{b+j}')
            for j in range(4):
                x = XR + G*32 + 4*i + j
                qh.add(f'v_cvt_pk_bf16_f32 v{x}, v{U+2*j}, v{U+2*j+1}')
            x = XR + G*32 + 4*i
            qh.add(f'buffer_store_dwordx4 v[{x}:{x+3}], v6, s[72:75], s45 offen offset:{G*128} ; T:hs')
        qh.add('s_add_u32 s45, s45, 4096')
        if i + 2 < 8: qh.add(mread(i + 2))
    def lflag(so):
        def f():
            lb = a.newlabel('FR_LF')
            txt = f'''
            v_mov_b32 v60, 1
            s_mov_b64 exec, 1
            buffer_store_dword v60, off, s[72:75], s{so} @
            s_mov_b64 exec, -1
            '''
            a(f's_cmp_eq_u32 s10, 0\ns_cbranch_scc1 {lb}' + txt.replace('@', ''))
            a.raw(f'{lb}_R:')
            def o():
                a.label(lb)
                a('s_waitcnt vmcnt(0)\nbuffer_wbl2 sc1\ns_waitcnt vmcnt(0)' + txt.replace('@', 'sc0 sc1') + f's_branch {lb}_R')
            TL._ool.append(o)
        f.cost = 20
        return f
    def poll(tag, va, so, vd):
        ld = f'buffer_load_dword v{vd}, v{va}, s[72:75], s{so} offen sc1'
        ck = f'\nv_cmp_ne_u32 vcc, 0, v{vd}\ns_cmp_eq_u64 vcc, -1\n'
        def chk():
            T.wait(v=tag)
            a(ck + f's_cbranch_scc0 {tag}_S')
            a.raw(f'{tag}_R:')
        chk.cost = 12
        def o():
            a.label(f'{tag}_S')
            a('s_mov_b32 s39, 0')
            a.label(f'{tag}_L')
            a(ld + '\ns_add_u32 s39, s39, 1\ns_waitcnt vmcnt(0)' + ck + f'''
            s_cbranch_scc1 {tag}_R
            s_cmp_lt_u32 s39, {TL.SPIN}
            s_cbranch_scc1 {tag}_L
            s_branch {tag}_R
            ''')
        TL._ool.append(o)
        return ld + f' ; T:{tag}', chk
    qh.add(lambda: fs(a, 40))
    qh.mark('hs')
    qh.at(I('H1', SL_(11, 1)))
    qh.add(W(v='hs')); qh.add(lflag(50))
    qh.add(lambda: fs(a, 41))
    def jld():
        assert 'jld' in qj.passed, 'job loads not issued'
    jld.cost = 0
    qh.add(jld)
    qh.add(f'''
    v_and_b32 v61, 3, v1
    v_lshlrev_b32 v61, 2, v61
    s_lshl_b32 s42, s40, 19
    s_add_u32 s43, s42, {WS_K}
    s_add_u32 s20, s8, s43
    s_addc_u32 s21, s9, 0
    s_mov_b32 s22, 524288
    s_mov_b32 s23, 0x00020000
    s_add_u32 s43, s42, {WS_VT}
    s_add_u32 s24, s8, s43
    s_addc_u32 s25, s9, 0
    s_mov_b32 s26, 524288
    s_mov_b32 s27, 0x00020000
    s_add_u32 s28, s8, {WS_CTX}
    s_addc_u32 s29, s9, 0
    s_mov_b32 s30, {2048*4096*2}
    s_mov_b32 s31, 0x00020000
    s_lshl_b32 s52, s56, 2
    s_add_u32 s52, s52, s55
    s_lshl_b32 s52, s52, 14
    s_mov_b32 s53, s52
    v_and_b32 v7, 3, v1
    v_lshlrev_b32 v7, 2, v7
    v_bfe_u32 v8, v1, 2, 2
    v_or_b32 v7, v7, v8
    v_and_b32 v8, 0x30, v1
    v_or_b32 v7, v7, v8
    v_lshlrev_b32 v7, 4, v7
    s_mov_b32 s38, 0
    s_mov_b32 s54, 32768
    ''')
    iss, chk = poll('FR_H', 61, 47, 63)
    qh.at(I('H2', SL_(13))); qh.add(iss)
    qh.at(I('H3', SL_(14))); qh.add(chk)
    qh.add(lambda: fs(a, 42))
    def hload(g):
        x = ''
        for qb in range(2):
            x += f'buffer_load_dwordx4 {hreg(g, qb)}, v5, s[12:15], s{[38, 54][qb]} offen offset:{(g % 4)*1024} ; T:h{g}\n'
        if g % 4 == 3: x += 's_add_u32 s38, s38, 4096\ns_add_u32 s54, s54, 4096'
        return x
    for g in range(NH0): qh.atom(hload(g))
    qh.add('v_lshlrev_b32 v61, 2, v2')
    qh.mark('h0')
    need(qh, 'h0', SL_(15, 1))
    qe = MQ('epi')
    for n in range(16):
        c = tile_reg(n); t = 192 + (n % 2)*16
        qe.at(SL_(15, 1) + max(n + 2, I('EP', 0)*n))
        for i in range(16): qe.add(f'v_accvgpr_read_b32 v{t+i}, a{c+i}')
        for g in (NH0 + 2*n, NH0 + 2*n + 1):
            if g < 32: qe.atom(hload(g))
        for gp in range(2):
            for j in range(4):
                qe.add(f'v_cvt_pk_bf16_f32 v{t+gp*8+j}, v{t+gp*8+2*j}, v{t+gp*8+2*j+1}')
            if n < 8:
                x = f'buffer_store_dwordx4 v[{t+gp*8}:{t+gp*8+3}], v{L16}, s[20:23], s52 offen offset:{(n % 2)*2048 + gp*1024} ; T:kvs'
                if n % 2 == 1 and gp == 1: x += '\ns_add_u32 s52, s52, 4096'
            else:
                x = f'buffer_store_dwordx4 v[{t+gp*8}:{t+gp*8+3}], v7, s[24:27], s53 offen offset:{(n % 2)*2048 + gp*1024} ; T:kvs'
                if n % 2 == 1 and gp == 1: x += '\ns_add_u32 s53, s53, 4096'
            qe.atom(x)
    qe.add(lambda: fs(a, 43))
    qe.at(QB + 8*I('E1', 14))
    qe.add(W(v='kvs')); qe.add(lflag(51))
    qe.add(lambda: fs(a, 44))
    iss, chk = poll('FR_K', 61, 46, 63)
    qe.at(QB + 8*I('E2', 17)); qe.add(iss)
    qe.at(QB + 8*I('E3', 20)); qe.add(chk)
    qe.add(lambda: fs(a, 45))
    for i, x in enumerate(kv_items(0, False, 'k0') + kv_items(1, False, 'k1') + kv_items(0, True, 'v0') + kv_items(1, True, 'v1')):
        qe.atom(x)
    run(a, mfl, 0, pre, pins, [qm, qc, qx, qe, qh, qj], cap=I("FCAP", 24))
    n = drain(a, [qm, qc, qx, qe, qh, qj])
    if E('VERB'): print('front leftover', n, [(q.name, q.log) for q in (qm, qc, qx, qe, qh, qj)])
    fs(a, 46, T)
    a(f's_load_dwordx2 s[16:17], s[0:1], {ARG["B_w_sp"]}')
    fmt(a, 16, 2048*2048*2)
    return T

def front_out(a):
    if not FSTK: return
    a(f'''
    s_lshl_b32 s45, s2, 10
    s_lshl_b32 s50, s55, 8
    s_add_u32 s45, s45, s50
    s_add_u32 s45, s45, 0x7200000
    v_lshlrev_b32 v63, 2, v1
    buffer_store_dword v{VST}, v63, s[72:75], s45 offen
    ''')
```

```python
from k_common import *
from k_prep import WS_WOF, WS_WINF, WS_WOUTF, WS_MODF, WS_WSPF
from sched import *
import os
E = os.environ.get
STK = E('STK', '')
HA = int(E('HAB', str(WS_K)), 0)
HP = WS_VT - WS_K
H_XS, H_X2, H_YF, H_ST, H_PX = 0x38000, 0x30000, 0x40000, 0x2C000, 0x40000
WS_Z2F = 0x4800000
LOC = 0x40000; LOCS = 0x5000
L_ZST, FAH, FX2, FY, FD, HM = 0, 0x4000, 0x4800, 0x4C00, 0x4E00, 0x4F00
FAL, FZ, FXG = 0x68000, 0x6A000, 0x6C000
WS_PX = 0x8000000
SAH = 8
OOB = 0x40000000
LB = 131072; Z1S = 200
def L_QS(P): return 16384 + P*2048
def L_FS(P): return 20480 + P*2048
def L_PS(P): return 24576 + P*2048
def L_FS2(P): return 28672 + P*2048
L_RX = 0; L_RX2 = 73728
SC = ''; SG = 'sc1'; SL = 'sc1'
FORCE = int(E('FORCE', '0'))
SPIN = 0x8000
CKH = int(E('CKH', '24'))
TCH = E('TCH', '0:11:wi0,0:12:wi1,1:13:cx,1:14:ha,1:15:lf')
VST = 63
SW = 55; SY = 42; SIDX = 41; SN8 = 43; SRBI = 46; SNT = 47; SKS = 48; SHA = 49; SAO = 51; SC16 = 57; SGF = 58; SOK = 79
SPX = 84
SLOC = 80
WV = [52, 53]
PL = 'buffer_load_dword v57, v56, s[72:75], s35 offen sc1'
def kap(g):
    g %= 32
    c, sl = g // 8, g % 8
    return [2, 16, 0, 18][c] + (sl & 1) + ((sl >> 1) & 1)*4 + (sl >> 2)*8
_ool = []

def st(a, idx, T=None):
    if STK != 'TL': return
    if idx == 0:
        a(f'v_mov_b32 v{VST}, 0\nv_writelane_b32 v{VST}, s100, 0')
        idx = 1
    a(f"""
    s_memtime s[82:83]
    s_waitcnt lgkmcnt(0)
    v_writelane_b32 v{VST}, s82, {idx}
    """)
    if T is not None: T.ddone = len(a.ds_seq)

def home(a):
    srd(a, 72, 8, 9, 0x10000000)
    a(f'''
    s_getreg_b32 s45, hwreg(HW_REG_XCC_ID, 0, 4)
    s_xor_b32 s45, s45, s2
    s_and_b32 s45, s45, 7
    s_cmp_eq_u32 s45, 0
    s_cselect_b32 s45, {2 if FORCE else 1}, 2
    v_mov_b32 v2, s45
    s_and_b32 s45, s2, 7
    s_mul_i32 s45, s45, {LOCS}
    s_lshr_b32 s50, s2, 3
    s_lshl_b32 s50, s50, 2
    s_add_u32 s45, s45, s50
    s_add_u32 s45, s45, {LOC + HM}
    s_cmp_eq_u32 s55, 0
    s_cselect_b32 s45, s45, {OOB}
    buffer_store_dword v2, off, s[72:75], s45 sc1
    ''')

def home2(a, PFA):
    a(f'''
    v_cmp_eq_u32 vcc, 1, v59
    s_cmp_eq_u64 vcc, -1
    s_cselect_b32 s{SAH}, 1, 0
    s_cbranch_scc1 TL_HOME
    v_mov_b32 v{PFA[0]}, {OOB}
    v_mov_b32 v{PFA[1]}, {OOB}
    ''')
    a.label('TL_HOME')

def home3(a, PFA, C2L):
    a(f'''
    v_readfirstlane_b32 s45, v59
    s_cmp_eq_u32 s45, 256
    s_cbranch_scc0 TL_C2S
    ''')
    a.raw('TL_C2R:')
    def o():
        a.label('TL_C2S')
        a('s_mov_b32 s39, 0')
        a.label('TL_C2L')
        a(C2L + f'''
        s_add_u32 s39, s39, 1
        s_waitcnt vmcnt(0)
        v_readfirstlane_b32 s45, v59
        s_cmp_eq_u32 s45, 256
        s_cbranch_scc1 TL_C2R
        s_cmp_lt_u32 s39, {SPIN}
        s_cbranch_scc1 TL_C2L
        s_branch TL_C2R
        ''')
    _ool.append(o)
    a(f'''
    s_mov_b32 s{SAH}, s10
    s_cmp_lg_u32 s10, 0
    s_cbranch_scc1 TL_HOME
    v_mov_b32 v{PFA[1]}, {OOB}
    ''')
    a.label('TL_HOME')

JA, JT = 8, 9
JR = [12, 60]
JI = int(E('JI', '2'))
def touch_setup(a, PFA, PFV):
    a(f'''
    s_and_b32 s90, s2, 7             ; y
    s_mul_i32 s94, s90, {LOCS}
    s_add_u32 s94, s94, {LOC + HM}
    s_lshl_b32 s45, s90, 19
    s_and_b32 s50, s40, 3
    s_lshl_b32 s50, s50, 8
    s_add_u32 s45, s45, s50          ; w_o slice
    s_add_u32 s68, s68, s45
    s_addc_u32 s69, s69, 0
    s_lshl_b32 s35, s56, 1
    s_lshr_b32 s34, s55, 1
    s_add_u32 s35, s35, s34
    s_lshl_b32 s37, s35, 5           ; (p*2+w2)*32
    s_lshl_b32 s35, s35, 7
    s_lshl_b32 s34, s90, 4
    s_add_u32 s35, s35, s34
    s_add_u32 s35, s35, {FAL}
    s_add_u32 s37, s37, s94
    s_sub_u32 s37, s37, {HM - FAH}
    v_and_b32 v56, 3, v1
    v_lshlrev_b32 v56, 2, v56
    s_add_u32 s66, s59, 3
    s_cmp_lt_u32 s55, 2
    s_cselect_b32 s66, 99, s66
    s_lshl_b32 s67, s56, 1
    s_add_u32 s67, s67, s3
    s_lshl_b32 s67, s67, 5
    s_add_u32 s67, s67, s40
    s_lshl_b32 s67, s67, 2
    s_add_u32 s67, s67, {FAL}
    s_mov_b32 s70, {OOB}
    s_mov_b32 s71, {OOB}
    s_mov_b32 s81, {OOB}
    v_mov_b32 v{PFA[0]}, {OOB}
    v_mov_b32 v{PFA[1]}, {OOB}
    s_lshl_b32 s50, s55, 13
    v_lshlrev_b32 v{PFV}, 7, v1
    v_add_u32 v{PFV}, s50, v{PFV}
    s_lshr_b32 s91, s2, 3            ; idx
    s_and_b32 s92, s91, 7            ; n8
    s_lshr_b32 s93, s91, 3           ; rbi
    v_lshlrev_b32 v{JA}, 12, v2
    v_lshl_add_u32 v{JA}, v3, 5, v{JA}   ; t*4096 + h*32
    s_lshl_b32 s33, s90, 2               ; 4y
    s_add_u32 s34, s33, s93
    s_sub_u32 s45, 60, s33
    s_add_u32 s45, s45, s93
    s_lshl_b32 s49, s34, 18
    s_lshl_b32 s34, s34, 17
    s_lshl_b32 s45, s45, 17
    s_bfe_u32 s32, s2, 0x20004           ; w'
    s_lshl_b32 s32, s32, 3
    s_lshl_b32 s33, s55, 1
    s_add_u32 s32, s32, s33
    s_bfe_u32 s33, s2, 0x10003
    s_lshl_b32 s33, s33, 5
    s_add_u32 s32, s32, s33              ; Pg (u = 0)
    s_lshl_b32 s32, s32, 6
    s_add_u32 s34, s34, s32
    s_add_u32 s45, s45, s32
    s_lshl_b32 s32, s92, 15
    s_add_u32 s49, s49, s32
    s_lshl_b32 s32, s55, 13
    s_add_u32 s49, s49, s32
    s_add_u32 s49, s49, {WS_WSPF}
    v_subrev_u32 v58, {JI}, v1           ; n
    v_and_b32 v57, 1, v58
    v_cmp_eq_u32 vcc, 0, v57
    v_mov_b32 v57, s45
    v_mov_b32 v{JT}, s34
    v_cndmask_b32 v57, v57, v{JT}, vcc
    v_bfe_u32 v{JT}, v58, 1, 1
    v_lshl_add_u32 v57, v{JT}, 4, v57
    v_bfe_u32 v{JT}, v58, 2, 1
    v_lshl_add_u32 v57, v{JT}, 6, v57
    v_cmp_gt_u32 vcc, 8, v58
    v_cndmask_b32 v{PFA[0]}, v{PFA[0]}, v57, vcc
    v_subrev_u32 v58, {JI + 2}, v1
    v_lshlrev_b32 v57, 10, v58
    v_add_u32 v57, s49, v57
    v_mov_b32 v{JT}, {OOB}
    v_cmp_gt_u32 vcc, 8, v58
    v_cndmask_b32 v{JT}, v{JT}, v57, vcc
    s_mov_b32 s11, {OOB}
    ''')
    for ent in [x for x in TCH.split(',') if x]:
        sm, it, kind = ent.split(':')
        k2, c = kind[:2], int(kind[2:] or 0)
        if k2 == 'cx' or k2 == 'cl':
            a(f'''
            s_sub_u32 s94, 15, s56
            s_lshl_b32 s94, {'s94' if k2 == 'cx' else 's56'}, 20
            s_lshl_b32 s50, s40, 15
            s_add_u32 s50, s50, s94
            s_add_u32 s50, s50, {WS_CTX}
            ''')
            if k2 == 'cl':
                a(f'''
                s_add_u32 s94, s59, {int(it) & 0xffffffff}
                s_max_i32 s94, s94, 0
                ''')
                it = 's94'
        elif k2 == 'ha':
            a(f'''
            s_lshl_b32 s50, s40, 19
            s_and_b32 s94, s56, 3
            s_lshl_b32 s94, s94, 15
            s_add_u32 s50, s50, s94
            s_lshr_b32 s94, s56, 2
            s_lshl_b32 s94, s94, 24
            s_add_u32 s50, s50, s94
            s_add_u32 s50, s50, {HA + 0x20000}
            ''')
        elif k2 == 'lf':
            a(f'''
            s_mul_i32 s50, s90, {LOCS}
            s_add_u32 s50, s50, {LOC}
            ''')
        elif k2 == 'wi':
            a(f'''
            s_lshl_b32 s50, s92, 2
            s_add_u32 s50, s50, s93
            s_mul_i32 s50, s50, {48*1024}
            s_add_u32 s50, s50, {WS_WINF + c*16384}
            ''')
        elif k2 == 'sp':
            a(f'''
            s_lshl_b32 s50, s90, 5
            s_add_u32 s50, s50, s91
            s_lshl_b32 s50, s50, 15
            s_add_u32 s50, s50, {WS_WSPF}
            ''')
        elif k2 == 'wu':
            a(f'''
            s_lshl_b32 s50, s92, 2
            s_add_u32 s50, s50, s93
            s_mul_i32 s50, s50, {24*1024}
            s_add_u32 s50, s50, {WS_WOUTF}
            ''')
        else:
            assert False, ent
        a(f'v_writelane_b32 v{PFA[int(sm)]}, s50, {it}')

NA0 = int(E('NA0', '4'))
def pre(a, VNZ):
    T = Trk(a)
    a.vm_seq += ['pl0'] + ['dma16']*10 + [None]*3
    a(f'''
    s_load_dwordx2 s[4:5], s[0:1], {ARG['A_x']}
    s_load_dwordx2 s[10:11], s[0:1], {ARG['out']}
    s_load_dwordx2 s[6:7], s[0:1], {ARG['B_b_sp']}
    s_mov_b64 s[12:13], s[72:73]
    s_mov_b64 s[14:15], s[74:75]
    s_and_b32 s{SY}, s2, 7
    s_lshr_b32 s{SIDX}, s2, 3
    s_and_b32 s{SN8}, s{SIDX}, 7
    s_lshr_b32 s{SRBI}, s{SIDX}, 3
    s_and_b32 s{SNT}, s{SIDX}, 3
    s_lshr_b32 s{SKS}, s{SIDX}, 2
    s_lshl_b32 s{SHA}, s{SY}, 21
    s_add_u32 s{SHA}, s{SHA}, {HA}
    s_mul_i32 s{SLOC}, s{SY}, {LOCS}
    s_add_u32 s{SLOC}, s{SLOC}, {LOC}
    s_lshl_b32 s78, s{SIDX}, 2
    s_add_u32 s78, s78, s{SLOC}
    s_add_u32 s78, s78, {FD}
    s_cmp_eq_u32 s{SW}, 0
    s_cselect_b32 s78, s78, {OOB}
    s_lshl_b32 s{SC16}, s{SNT}, 3
    s_add_u32 s{SC16}, s{SC16}, s{SKS}
    s_lshl_b32 s34, s{SY}, 17
    s_lshl_b32 s{SAO}, s{SW}, 13
    s_add_u32 s34, s34, s{SAO}
    s_add_u32 s34, s34, {WS_CTX}
    s_lshl_b32 s60, s56, 20
    s_add_u32 s{SAO}, s34, s60       ; A soffset (L)
    s_sub_u32 s60, s34, s60
    s_add_u32 s60, s60, {15 << 20}   ; A soffset (H)
    s_cmp_lt_u32 s{SW}, 2
    s_cselect_b32 s81, {OOB}, s67
    s_mov_b32 s59, s{SAO}
    ''')
    T.wait(v='pl0')
    a(f'''
    buffer_store_dword v{VNZ}, off, s[72:75], s81 sc1
    v_cmp_ne_u32 vcc, 0, v57
    s_cmp_eq_u64 vcc, -1
    s_cselect_b32 s{SOK}, 1, 0
    s_cselect_b32 s{SAO}, s{SAO}, {OOB}
    ''')
    for g in range(NA0): a(aload(g, 17))
    return T

def poll_l(a, T, VNZ):
    lflag(a, 78, 1)()
def poll2(a):
    a('buffer_load_dword v57, v56, s[12:15], s35 offen sc1 ; T:pl')

def aload(g, va=2):
    r = 128 + (g % 32)*4
    x = f'buffer_load_dwordx4 a[{r}:{r+3}], v{va}, s[12:15], s{SAO} offen offset:{(kap(g) % 4)*1024} ; T:a{g}'
    fo = lambda k: (k // 8)*32768 + ((k % 8)//4)*4096
    d = fo(kap(g + 1)) - fo(kap(g))
    if g % 32 != 31 and d > 0: x += f'\ns_add_u32 s{SAO}, s{SAO}, {d}'
    if g % 32 != 31 and d < 0: x += f'\ns_sub_u32 s{SAO}, s{SAO}, {-d}'
    return x

def ool(a):
    for f in _ool: f()

def spin(a, tag, va, so, need, T, vd=57):
    def f():
        a.label(f'{tag}_S')
        a('s_mov_b32 s39, 0')
        a.label(f'{tag}_L')
        n0 = len(a.vm_seq)
        a(f'''
        buffer_load_dword v{vd}, v{va}, s[12:15], s{so} offen sc1
        s_add_u32 s39, s39, 1
        s_waitcnt vmcnt(0)
        v_cmp_le_u32 vcc, {need}, v{vd}
        s_cmp_eq_u64 vcc, -1
        s_cbranch_scc1 {tag}_R
        s_cmp_lt_u32 s39, {SPIN}
        s_cbranch_scc1 {tag}_L
        s_branch {tag}_R
        ''')
    _ool.append(f)

def poll_items(a, T, tag, va, so, need=1, vd=57):
    iss = f'buffer_load_dword v{vd}, v{va}, s[12:15], s{so} offen sc1 ; T:{tag}'
    def chk():
        T.wait(v=tag)
        a(f'''
        v_cmp_le_u32 vcc, {need}, v{vd}
        s_cmp_eq_u64 vcc, -1
        s_cbranch_scc0 {tag}_S
        ''')
        a.raw(f'{tag}_R:')
    chk.cost = 12
    spin(a, tag, va, so, need, T, vd)
    return iss, chk

def flag(so, val, fl, vd=58):
    return f'''
    v_mov_b32 v{vd}, {val}
    s_mov_b64 exec, 1
    buffer_store_dword v{vd}, off, s[12:15], s{so} {fl}
    s_mov_b64 exec, -1
    '''

def lstore(a, txt):
    def f():
        lb = a.newlabel('TL_LF')
        a(f'''
        s_cmp_eq_u32 s{SAH}, 0
        s_cbranch_scc1 {lb}
        ''' + txt.replace('@', ''))
        a.raw(f'{lb}_R:')
        def o():
            a.label(lb)
            a('''
            s_waitcnt vmcnt(0)
            buffer_wbl2 sc1
            s_waitcnt vmcnt(0)
            ''' + txt.replace('@', 'sc0 sc1') + f'\ns_branch {lb}_R')
        _ool.append(o)
    f.cost = 20
    return f

def lflag(a, so, val, vd=58):
    return lstore(a, flag(so, val, '@', vd))

def main(a, T):
    S = lambda i: st(a, i, T)
    S(2)
    ACC = [64, 128]; FB = 192; BA = 4
    XT = 32; GA = 40; CB = 48
    a(f'''
    v_mov_b32 v2, v17
    ''')
    T.wait(v='dma16')
    a(f'''
    s_barrier
    s_add_u32 m0, s64, s36
    s_mov_b32 s34, {262144 + 32768}
    s_mov_b64 s[24:25], s[68:69]
    ''')
    for i in range(4):
        a(f'buffer_load_dwordx4 v{WV[0]}, s[24:27], s34 offen offset:{i*1024} lds ; T:b3')
    a('s_add_u32 m0, m0, 32768')
    for i in range(4):
        a(f'buffer_load_dwordx4 v{WV[1]}, s[24:27], s34 offen offset:{i*1024} lds ; T:b3')
    a(f'''
    s_mov_b32 s65, s62
    s_xor_b32 s62, s62, 0x10000
    s_xor_b32 s63, s64, 0x10000
    s_add_u32 m0, s65, s36
    s_add_u32 s34, s36, {WS_MODF}
    buffer_load_dwordx4 v{WV[0]}, s[24:27], 0 offen offset:3072 lds ; T:b3
    s_add_u32 m0, s36, {LB}
    ''')
    for i in range(4):
        a(f'buffer_load_dwordx4 v2, s[12:15], s34 offen offset:{i*1024} lds ; T:b3')
    a(f'''
    v_bfe_u32 v58, v1, 2, 2          ; r
    v_lshrrev_b32 v3, 5, v1
    v_lshlrev_b32 v3, 10, v3
    v_lshl_add_u32 v3, v58, 8, v3
    v_and_b32 v56, 3, v1
    v_lshl_add_u32 v3, v56, 3, v3
    v_bfe_u32 v56, v1, 4, 1
    v_lshl_add_u32 v3, v56, 5, v3
    ''')
    for j in range(4):
        a(f'''
        v_xor_b32 v56, {j}, v58
        v_lshl_add_u32 v56, v56, 6, v3
        ''')
        for q in range(4):
            a(f'v_add_u32 v{BA+4*q+j}, s{[62,63,65,64][q]}, v56')
    def breads(g):
        k = g % 32
        out = []
        for j in range(4):
            for jj in range(2):
                r = FB + (g & 1)*16 + j*4 + jj*2
                out.append(f'ds_read_b64_tr_b16 v[{r}:{r+1}], v{BA + 4*(k//8) + j} offset:{((k % 8)//4)*32768 + (k % 4)*4096 + jj*2048} ; T:f{g}')
        return out
    for x in breads(0): a(x)
    a(f'''
    s_lshl_b32 s34, s56, 1
    s_add_u32 s34, s34, s3
    s_lshl_b32 s34, s34, 1
    s_lshr_b32 s38, s{SW}, 1
    s_add_u32 s34, s34, s38
    s_lshl_b32 s34, s34, 2
    s_add_u32 s34, s34, s{SNT}
    s_lshl_b32 s34, s34, 2
    s_add_u32 s34, s34, s{SLOC}
    s_add_u32 s99, s34, {FAH}
    s_waitcnt lgkmcnt(0)
    ''')
    T.ddone = len(a.ds_seq)
    srd(a, 16, 4, 5, 2048*512*2)
    srd(a, 20, 10, 11, 2048*512*2)
    srd(a, 24, 6, 7, 4096)
    FH0 = int(E('FH0', '8'))
    if FH0 < 0:
        T.wait(v='ctx')
        lflag(a, 99, 1)()
    S(3)
    a(f'''
    s_cmp_eq_u32 s{SOK}, 0
    s_cbranch_scc1 TL_LATE
    ''')
    a.raw('TL_LATER:')
    def late():
        a.label('TL_LATE')
        a('s_mov_b32 s39, 0\nv_and_b32 v56, 3, v1\nv_lshlrev_b32 v56, 2, v56')
        a('s_waitcnt vmcnt(0)')
        lflag(a, 99, 1)()
        a.label('TL_LATEL')
        a(f'''
        v_cmp_ne_u32 vcc, 0, v57
        s_cmp_eq_u64 vcc, -1
        s_cbranch_scc1 TL_LATED
        buffer_load_dword v57, v56, s[12:15], s35 offen sc1
        s_add_u32 s39, s39, 1
        s_waitcnt vmcnt(0)
        s_cmp_lt_u32 s39, {SPIN}
        s_cbranch_scc1 TL_LATEL
        ''')
        a.label('TL_LATED')
        a(f's_mov_b32 s{SAO}, s59')
        for g in range(32): a(aload(g))
        a('s_waitcnt vmcnt(0)\ns_branch TL_LATER')
    _ool.append(late)
    qs = Q('setup')
    qs.add(f'''
    v_and_b32 v20, 31, v1            ; row
    v_lshrrev_b32 v21, 5, v1         ; h
    v_lshlrev_b32 v22, 10, v20
    v_lshl_add_u32 v22, v21, 3, v22  ; row*1024 + h*8
    v_lshlrev_b32 v23, 4, v21        ; h*16
    s_lshl_b32 s34, s{SY}, 2
    s_add_u32 s34, s34, s{SW}        ; rb32 L
    s_sub_u32 s38, 60, s34
    s_add_u32 s38, s38, s{SW}
    s_add_u32 s38, s38, s{SW}        ; rb32 H = 60 - 4y + w
    s_lshl_b32 s61, s{SC16}, 5
    s_lshl_b32 s34, s34, 15
    s_add_u32 s34, s34, s61
    s_lshl_b32 s38, s38, 15
    s_add_u32 s38, s38, s61
    s_lshl_b32 s61, s{SC16}, 6
    s_add_u32 s59, s61, {WS_MOD + 1024*4}
    s_add_u32 s61, s61, {WS_MOD + 2048*4}
    ''')
    for P in range(2):
        for q in range(2):
            qs.add(f'buffer_load_dwordx2 v[{XT+4*P+2*q}:{XT+4*P+2*q+1}], v22, s[16:19], s{[34,38][P]} offen offset:{q*16} ; T:cst')
    for q in range(2):
        qs.add(f'buffer_load_dwordx4 v[{GA+4*q}:{GA+4*q+3}], v23, s[12:15], s59 offen offset:{q*32} ; T:cst')
        qs.add(f'buffer_load_dwordx4 v[{CB+4*q}:{CB+4*q+3}], v23, s[12:15], s61 offen offset:{q*32} ; T:cst')
    qs.add(f'''
    s_lshl_b32 s34, s{SNT}, 2
    s_add_u32 s34, s34, s{SW}
    s_lshl_b32 s34, s34, 7
    s_add_u32 s34, s34, {FXG}
    s_lshl_b32 s{SGF}, s{SY}, 11
    s_add_u32 s{SGF}, s{SGF}, s34
    s_lshl_b32 s92, s56, 11
    s_add_u32 s92, s92, s34
    s_lshl_b32 s34, s{SY}, 2
    s_add_u32 s92, s92, s34
    s_lshl_b32 s34, s{SW}, 13
    s_add_u32 s34, s34, {WS_PX}
    s_lshl_b32 s84, s56, 20
    s_add_u32 s84, s84, s34
    s_lshl_b32 s38, s{SNT}, 18
    s_add_u32 s84, s84, s38
    s_lshl_b32 s38, s{SY}, 10
    s_add_u32 s84, s84, s38
    s_lshl_b32 s91, s{SY}, 20
    s_add_u32 s91, s91, s34
    s_lshl_b32 s38, s{SC16}, 15
    s_add_u32 s91, s91, s38
    s_add_u32 s78, s{SLOC}, {FD}
    v_and_b32 v24, 7, v1
    v_lshlrev_b32 v24, 2, v24        ; (lane&7)*4
    v_bfe_u32 v26, v1, 4, 1
    v_lshlrev_b32 v26, 14, v26
    v_lshl_add_u32 v26, v21, 8, v26
    v_and_b32 v27, 15, v1
    v_lshl_add_u32 v26, v27, 4, v26
    v_lshlrev_b32 v27, 6, v20
    s_lshl_b32 s30, s{SN8}, 2
    s_add_u32 s30, s30, s{SW}
    s_mul_i32 s30, s30, {48*1024}
    s_add_u32 s30, s30, {WS_WINF}
    s_lshl_b32 s34, s{SW}, 19
    s_add_u32 s34, s34, s{SHA}
    s_lshl_b32 s38, s{SC16}, 9
    s_add_u32 s95, s34, s38
    s_add_u32 s96, s95, s38
    s_add_u32 s95, s95, {H_XS}
    s_add_u32 s96, s96, {H_X2}       ; x2 soffset (L)
    s_lshl_b32 s97, s{SNT}, 11
    s_lshl_b32 s38, s{SKS}, 3
    s_add_u32 s97, s97, s38
    s_add_u32 s97, s97, s34
    s_add_u32 s97, s97, {H_ST}
    s_lshl_b32 s98, s{SW}, 7
    s_lshl_b32 s38, s{SC16}, 2
    s_add_u32 s98, s98, s38
    s_add_u32 s98, s98, s{SLOC}
    s_add_u32 s98, s98, {FX2}
    v_lshlrev_b32 v28, 2, v20
    ''')
    def wil(i):
        r = 4*i
        x = f'buffer_load_dwordx4 a[{r}:{r+3}], v2, s[12:15], s30 offen offset:{(i % 4)*1024} ; T:wi{i}'
        if i % 4 == 3: x += '\ns_add_u32 s30, s30, 4096'
        return x
    def px_stores(P):
        out = []
        for i in range(8):
            r = ACC[P] + 8*i
            for j in range(4):
                out.append(f'v_cvt_pk_bf16_f32 v{r+j}, v{r+2*j}, v{r+2*j+1}')
            out.append([f'buffer_store_dwordx4 v[{r}:{r+3}], v2, s[12:15], s84 offen {SG} ; T:px{P}\n'
                        f's_add_u32 s84, s84, {32768 if i < 7 else 0x800000 - 7*32768}'])
        return out
    def px_loads(P):
        out = []
        for i in range(8):
            r = ACC[P] + 32 + 4*i
            x = f'buffer_load_dwordx4 v[{r}:{r+3}], v2, s[12:15], s91 offen offset:{(i % 4)*1024} ; T:pr{P}_{i}\n'
            if i % 4 == 3: x += f's_add_u32 s91, s91, {4096 if i < 7 else 0x800000 - 4096}'
            out.append(x)
        return out
    def qadd(q, items):
        for x in items:
            if isinstance(x, list): q.atom(x[0])
            else: q.add(x)
    def W(**k):
        f = lambda: T.wait(**k)
        return f
    def fin(P, first):
        O = ACC[P]
        out = []
        if first:
            out.append(W(v='cst'))
            for i in range(8): out.append(f'v_add_f32 v{CB+i}, 1.0, v{CB+i}')
            for i in range(0, 8, 2):
                out += [f'v_cvt_pk_bf16_f32 v59, v{CB+i}, v{CB+i+1}', f'v_lshlrev_b32 v{CB+i}, 16, v59', f'v_and_b32 v{CB+i+1}, 0xffff0000, v59']
        for r in range(4):
            out += [f'v_lshlrev_b32 v{O+8+2*r}, 16, v{XT+4*P+r}', f'v_and_b32 v{O+9+2*r}, 0xffff0000, v{XT+4*P+r}']
        for i in range(8):
            out.append(W(v=f'pr{P}_{i}'))
            D = O if i == 0 else O + 16
            for r in range(4):
                out += [f'v_lshlrev_b32 v{D+2*r}, 16, v{O+32+4*i+r}', f'v_and_b32 v{D+2*r+1}, 0xffff0000, v{O+32+4*i+r}']
            if i:
                for r in range(8):
                    out.append(f'v_add_f32 v{O+r}, v{O+r}, v{D+r}')
        marker = len(out)
        XU = O + 8; X2P = O + 16; XSP = O + 20; SS = O + 24
        for r in range(8): out.append(f'v_fma_f32 v{O+r}, v{O+r}, v{GA+r}, v{XU+r}')
        for r in range(4): out.append(f'v_cvt_pk_bf16_f32 v{X2P+r}, v{O+2*r}, v{O+2*r+1}')
        for r in range(4):
            out += [f'v_lshlrev_b32 v{O+2*r}, 16, v{X2P+r}', f'v_and_b32 v{O+2*r+1}, 0xffff0000, v{X2P+r}']
        for r in range(8): out.append(f'v_mul_f32 v{XU+r}, v{O+r}, v{CB+r}')
        for r in range(4): out.append(f'v_cvt_pk_bf16_f32 v{XSP+r}, v{XU+2*r}, v{XU+2*r+1}')
        out.append(f'buffer_store_dwordx4 v[{XSP}:{XSP+3}], v26, s[12:15], s95 offen {SC} ; T:xs{P}')
        out += [f'v_add_f32 v{SS}, v{O}, v{O+1}', f'v_mul_f32 v{SS+1}, v{O}, v{O}', f'v_add_f32 v{SS+2}, v{O+2}, v{O+3}', f'v_mul_f32 v{SS+3}, v{O+1}, v{O+1}']
        for r in range(2, 8): out.append(f'v_fmac_f32 v{SS+1+2*(r&1)}, v{O+r}, v{O+r}')
        for r in range(4, 8): out.append(f'v_add_f32 v{SS+2*(r&1)}, v{SS+2*(r&1)}, v{O+r}')
        out += [f'v_add_f32 v{SS}, v{SS}, v{SS+2}', f'v_add_f32 v{SS+1}, v{SS+1}, v{SS+3}',
                f'v_mov_b32 v{SS+2}, v{SS}', f'v_mov_b32 v{SS+3}, v{SS+1}',
                f'v_permlane32_swap_b32 v{SS}, v{SS+2}', f'v_permlane32_swap_b32 v{SS+1}, v{SS+3}',
                f'v_add_f32 v{SS}, v{SS}, v{SS+2}', f'v_add_f32 v{SS+1}, v{SS+1}, v{SS+3}',
                f'buffer_store_dwordx2 v[{SS}:{SS+1}], v27, s[12:15], s97 offen {SC} ; T:xs{P}',
                f'buffer_store_dwordx4 v[{X2P}:{X2P+3}], v2, s[12:15], s96 offen {SC} ; T:x2{P}']
        return out, marker
    adv = f'''
    s_add_u32 s95, s95, {HP}
    s_add_u32 s96, s96, {HP}
    s_add_u32 s97, s97, {HP}
    '''
    mfl = []; pre_ = {}; pins = {}
    for g in range(64):
        P = g // 32
        for j in range(4):
            c = ACC[P] + 16*j
            fb = FB + (g & 1)*16 + j*4
            ar = 128 + (g % 32)*4
            cc = '0' if g % 32 == 0 else f'v[{c}:{c+15}]'
            mfl.append(f'v_mfma_f32_32x32x16_bf16 v[{c}:{c+15}], v[{fb}:{fb+3}], a[{ar}:{ar+3}], {cc}')
        pre_[4*g] = [lambda g=g: T.wait(v=f'a{g}', d=f'f{g}')]
        if g + 1 < 64:
            br = breads(g + 1)
            if g == 15:
                pins[4*g] = [W(v='b3'), 's_barrier'] + br[:2]
                pins[4*g+1] = br[2:5]; pins[4*g+2] = br[5:]
            elif g == 50:
                pins[4*g] = ['s_barrier'] + br[:2]
                pins[4*g+1] = br[2:5]; pins[4*g+2] = br[5:]
            else:
                pins[4*g] = br[:3]; pins[4*g+1] = br[3:6]; pins[4*g+2] = br[6:]
        if STK == 'TL' and g % 8 == 0 and g:
            pre_[4*g].insert(0, lambda g=g: S(3 + g // 8))
    qa = Q('A')
    if FH0 >= 0:
        qa.at(4*FH0); qa.add(W(v='ctx')); qa.add(lflag(a, 99, 1))
    iss, chk = poll_items(a, T, 'TPH', 24, 37)
    qa.at(4*(CKH - 6)); qa.add(iss); qa.at(4*CKH); qa.add(chk)
    qa.add(f's_mov_b32 s{SAO}, s60')
    for g in range(32, 64):
        qa.at(4*(g - 32) + 4); qa.atom(aload(g))
    qw = Q('wi')
    WI0 = int(E('WI0', '6')); WIS = int(E('WIS', '2')); WI2 = int(E('WI2', '50'))
    for i in range(32):
        qw.at(4*WI0 + WIS*i); qw.atom(wil(i))
    for i in range(32, 48):
        qw.at(max(4*WI2 + 2*(i - 32), 4*(32 + i - 32) + 4)); qw.atom(wil(i))
    qf = Q('fin')
    F1 = int(E('F1', '44')); F2 = int(E('F2', '50')); F3 = int(E('F3', '56')); F4 = int(E('F4', '62'))
    iss, chkD = poll_items(a, T, 'TPD', 28, 78, 1, vd=29)
    qf.at(4*int(E('F0', '27'))); qf.add(iss)
    qf.at(128 + 3)
    qadd(qf, px_stores(0))
    qf.add(chkD)
    qf.at(4*F1); qf.add(W(v='px0')); qf.atom(flag(92, 1, SG))
    iss, chk = poll_items(a, T, 'TPX0', 24, SGF, 1)
    qf.at(4*F2); qf.add(iss); qf.at(4*F3); qf.add(chk)
    for x in px_loads(0): qf.atom(x)
    qf.at(4*F4)
    fl, mk = fin(0, True)
    qf.add(fl)
    run(a, mfl, 0, pre_, pins, [qa, qf, qs, qw], cap=int(E('OCAP', '20')))
    S(11)
    drain(a, [qa, qs])
    a.flush()
    for x in px_stores(1): a(x[0] if isinstance(x, list) else x)
    S(12)
    drain(a, [qf])
    S(51)
    drain(a, [qw])
    import k_tail2b
    k_tail2b.rest(a, T, S, locals())
```

```python
from k_common import *
from k_prep import WS_WINF, WS_WOUTF, WS_MODF, WS_WSPF, WTC
from sched import *
import k_tail2 as TL
import os
E = os.environ.get
I = lambda k, d: int(E(k, str(d)), 0)
FSTK = 'ST' in E('ATT_EXP', '')
OOB = 0x40000000
WS_H = WS_N1
FHG = 0x70000
WS_MODQ = 0x4000
FH, FKV = 0x4200, 0x4400
D_R, D_C0, D_OV, D_C2 = 128, 136, 140, 192
NT = 'nt' if I('NT', 1) else ''
AS = [32768, 65536, 0]
BS = [98304, 114688, 131072]
WQ = [0, 32768, 114688, 65536]
MT = 147456; MP = MT + 4096; MP2 = MP + 1024; STX = MP2 + 512; SCRL = 163840 - 64
NC0 = 96
CKV, WUK, WUV, SX, SC_, WMOD, DBG, WIN, WOUT, WSP = 60, 64, 76, 80, 84, 88, 92, 20, 24, 28
RAW = 4
QT = 64; FW = 28; FA = 64; FB = 80
DKV = 16; L16 = 17
VST = 62
CSC = 0x3e0293ee

def fs(a, idx, T=None):
    if not FSTK: return
    a(f'''
    s_memtime s[98:99]
    s_waitcnt lgkmcnt(0)
    v_writelane_b32 v{VST}, s98, {idx}
    ''')
    if T is not None: T.ddone = len(a.ds_seq)

def fmt(a, q, n):
    a(f's_mov_b32 s{q+2}, {n}\ns_mov_b32 s{q+3}, 0x00020000')

CUR = [0]
class MQ(Q):
    def __init__(self, name=''):
        super().__init__(name); self.passed = set()
    def mark(self, nm):
        def f():
            self.passed.add(nm)
            if E('VERB'): print('  mark', nm, CUR[0] // 32, CUR[0] % 32)
        f.cost = 0
        self.items.append(f); return self
    def after(self, getq, nm):
        self.items.append(('after', getq, nm)); return self
    def head(self, slot):
        if slot < 10**6: CUR[0] = slot
        while self.k < len(self.items) and isinstance(self.items[self.k], tuple):
            it = self.items[self.k]
            if it[0] == 'at':
                if slot < it[1]: return None
            elif it[2] not in it[1]().passed: return None
            self.k += 1
        return self.items[self.k] if self.k < len(self.items) else None

def front(a, kv_items):
    if FSTK: a(f'v_mov_b32 v{VST}, 0')
    fs(a, 0)
    for q, nm in ((DBG, 'dbg'), (WMOD, 'w_mod'), (SC_, 'c'), (CKV, 'A_c_kv'), (WUK, 'A_w_uk'), (WUV, 'A_w_uv'), (8, 'ws'),
                  (SX, 'A_x'), (16, 'A_w_q'), (68, 'A_w_o'), (WIN, 'B_w_in'), (WOUT, 'B_w_out')):
        a(f's_load_dwordx2 s[{q}:{q+1}], s[0:1], {ARG[nm]}')
    a(f'''
    s_getreg_b32 s5, hwreg(HW_REG_XCC_ID, 0, 4)
    v_lshrrev_b32 v1, 6, v0
    s_cmp_ge_u32 s2, 256
    s_cbranch_scc1 AT_END
    v_readfirstlane_b32 s55, v1      ; wave 0..3
    s_and_b32 s5, s5, 7
    s_mov_b32 s{RAW}, s2
    v_and_b32 v1, 63, v0             ; lane
    ''')
    fmt(a, DBG, 256); fmt(a, WMOD, 512*3072*2); fmt(a, SC_, 1024)
    fmt(a, CKV, 2048*512*2); fmt(a, WUK, 4194304); fmt(a, WUV, 4194304)
    FAKE = TL.FORCE == 2
    if FAKE: a('s_lshr_b32 s5, s5, 1')
    a(f'''
    s_cmp_lg_u32 s55, 0
    s_cbranch_scc1 FR_PF
    s_lshl_b32 s97, s5, 4
    s_lshl_b32 s96, s5, 3
    s_lshl_b64 s[98:99], 1, s96
    v_mov_b32 v3, 1
    v_mov_b32 v4, s98
    v_mov_b32 v5, s99
    s_mov_b64 exec, 1
    s_waitcnt lgkmcnt(0)
    buffer_atomic_add v3, off, s[{DBG}:{DBG+3}], s97 sc0 {'sc1' if FAKE else ''}
    buffer_atomic_add_x2 v[4:5], off, s[{DBG}:{DBG+3}], 0 offset:{D_R} sc1
    s_mov_b64 exec, -1
    s_branch FR_CM
    ''')
    a.label('FR_PF')
    a.label('FR_CM')
    fs(a, 50)
    T = Trk(a)
    W = lambda **k: (lambda: T.wait(**k))
    MODW = 144
    XR = 192
    UW = XR + 48; UC = 58
    a(f'''
    v_lshrrev_b32 v4, 3, v1
    v_lshlrev_b32 v5, 3, v4
    v_mul_u32_u24 v4, {4*6144}, v4
    v_and_b32 v6, 7, v1
    v_lshl_add_u32 v4, v6, 4, v4
    s_bfe_u32 s7, s{RAW}, 0x20004    ; kq
    s_lshl_b32 s7, s7, 2
    s_add_u32 s7, s7, s55
    s_lshl_b32 s7, s7, 6             ; row0*2
    s_mul_i32 s6, s7, 3072
    s_and_b32 s10, s{RAW}, 15
    s_lshl_b32 s10, s10, 7
    s_add_u32 s6, s6, s10
    s_cmp_ge_u32 s{RAW}, 192
    s_cselect_b32 s6, s6, {OOB}
    s_cselect_b32 s7, s7, {OOB}
    s_waitcnt lgkmcnt(0)
    buffer_load_dwordx2 v[{UC}:{UC+1}], v5, s[{SC_}:{SC_+3}], s7 offen ; T:mc
    ''')
    for i in range(4):
        a(f'buffer_load_dwordx4 v[{UW+4*i}:{UW+4*i+3}], v4, s[{WMOD}:{WMOD+3}], s6 offen {NT} ; T:mw{i}')
        if i < 3: a('s_add_u32 s6, s6, 6144')
    fs(a, 51)
    srd(a, 72, 8, 9, 0x10000000)
    a(f'''
    v_lshlrev_b32 v{L16}, 4, v1
    v_mov_b32 v8, 0
    v_mov_b32 v9, 0
    v_mov_b32 v10, 0
    v_mov_b32 v11, 0
    s_sub_u32 s10, s{RAW}, 64
    s_lshl_b32 s6, s10, 13
    s_lshl_b32 s7, s55, 11
    s_add_u32 s6, s6, s7
    s_add_u32 s6, s6, {TL.LOC}
    s_cmp_lt_u32 s10, 32
    s_cselect_b32 s6, s6, {OOB}
    buffer_store_dwordx4 v[8:11], v{L16}, s[72:75], s6 offen sc0 sc1
    buffer_store_dwordx4 v[8:11], v{L16}, s[72:75], s6 offen offset:1024 sc0 sc1
    ''')
    PFK = I('PFK', 1)
    if PFK:
        a(f'''
        s_getreg_b32 s6, hwreg(HW_REG_HW_ID, 13, 2)
        s_lshr_b32 s7, s2, 6
        s_lshl_b32 s7, s7, 2
        s_add_u32 s7, s7, s6             ; portion 0..15
        s_mul_i32 s7, s7, 3
        s_add_u32 s7, s7, s55
        s_sub_u32 s7, s7, 1              ; g 0..47
        v_lshlrev_b32 v12, 10, v1        ; A: lane*1024
        v_lshrrev_b32 v13, 3, v1
        v_lshlrev_b32 v13, 13, v13
        v_lshl_add_u32 v13, v6, 7, v13   ; B: (lane/8)*8192 + (lane%8)*128
        s_lshl_b32 s6, s5, 10
        v_add_u32 v13, s6, v13
        s_lshl_b32 s6, s7, 16
        s_and_b32 s10, s6, 0x70000       ; 8 rows * 8192
        s_cmp_eq_u32 s55, 0
        s_cselect_b32 s7, 99, s7
        s_cmp_lt_u32 s7, 32
        s_cselect_b32 s6, s6, {OOB}
        s_sub_u32 s7, s7, 32
        s_cmp_lt_u32 s7, 8
        s_cselect_b32 s11, s10, {OOB}
        s_sub_u32 s7, s7, 8
        s_cmp_lt_u32 s7, 8
        s_cselect_b32 s10, s10, {OOB}
        buffer_load_dword v191, v12, s[{CKV}:{CKV+3}], s6 offen
        buffer_load_dword v191, v13, s[{WUK}:{WUK+3}], s11 offen {NT}
        buffer_load_dword v191, v13, s[{WUV}:{WUV+3}], s10 offen {NT}
        ''')
    a(f'v_mov_b32 v2, {SCRL}')
    fs(a, 52)
    a(f'''
    s_cmp_lg_u32 s55, 0
    s_cbranch_scc1 FR_DW
    s_waitcnt vmcnt({8 + (3 if PFK else 0)})
    v_readfirstlane_b32 s98, v3
    s_mov_b32 s96, s5
    s_cmp_lt_u32 s98, 32
    s_cbranch_scc0 FR_OV
    ''')
    a.raw('FR_DF:')
    def ovf():
        a.label('FR_OV')
        a(f'''
        v_mov_b32 v3, 1
        s_mov_b64 exec, 1
        buffer_atomic_add v3, off, s[{DBG}:{DBG+3}], 0 offset:{D_OV} sc0 sc1
        s_mov_b64 exec, -1
        s_mov_b32 s39, 0
        ''')
        a.label('FR_OL')
        a(f'''
        buffer_load_dwordx2 v[4:5], off, s[{DBG}:{DBG+3}], 0 offset:{D_R} sc0 sc1
        s_add_u32 s39, s39, 1
        s_waitcnt vmcnt(0)
        v_sad_u8 v6, v4, 0, 0
        v_sad_u8 v6, v5, 0, v6
        s_nop 1
        v_readfirstlane_b32 s96, v6
        s_cmp_eq_u32 s96, 256
        s_cbranch_scc1 FR_OK
        s_cmp_lt_u32 s39, {TL.SPIN}
        s_cbranch_scc1 FR_OL
        ''')
        a.label('FR_ON')
        a('''
        s_mov_b32 s98, 0x00ffffff
        s_mov_b32 s96, 0
        s_branch FR_DF
        ''')
        a.label('FR_OK')
        a('''
        v_readfirstlane_b32 s10, v4
        v_readfirstlane_b32 s11, v5
        v_readfirstlane_b32 s97, v3          ; ticket
        s_mov_b32 s96, 0
        ''')
        a.label('FR_OY')
        a('''
        s_and_b32 s98, s10, 0xff             ; n_y
        s_min_u32 s98, s98, 32
        s_add_u32 s98, s98, s97              ; candidate index
        s_cmp_lt_u32 s98, 32
        s_cbranch_scc1 FR_DF
        s_sub_u32 s97, s98, 32
        s_lshr_b64 s[10:11], s[10:11], 8
        s_add_u32 s96, s96, 1
        s_cmp_lt_u32 s96, 8
        s_cbranch_scc1 FR_OY
        s_branch FR_ON
        ''')
    TL._ool.append(ovf)
    a(f'''
    s_lshl_b32 s98, s98, 3
    s_add_u32 s98, s98, s96
    v_mov_b32 v3, s98
    ds_write_b32 v2, v3
    s_waitcnt lgkmcnt(0)
    ''')
    a.label('FR_DW')
    a(f'''
    v_lshrrev_b32 v4, 3, v1          ; l/8
    v_and_b32 v6, 7, v1
    v_xor_b32 v5, v4, v6
    s_and_b32 s6, s55, 1
    v_xor_b32 v5, s6, v5             ; chunk
    s_lshl_b32 s6, s55, 3
    v_add_u32 v4, s6, v4
    v_lshlrev_b32 v4, 10, v4
    v_lshl_add_u32 v10, v5, 4, v4
    v_lshrrev_b32 v20, 4, v1         ; lane/16
    v_and_b32 v21, 15, v1
    v_lshlrev_b32 v22, 2, v20
    v_xor_b32 v22, v22, v21
    s_lshl_b32 s6, s55, 2
    v_add_u32 v23, s6, v20           ; row 0..15
    v_lshlrev_b32 v18, 13, v23
    v_lshl_add_u32 v19, v22, 4, v18
    s_lshl_b32 s36, s55, 12          ; wave*4096
    s_lshl_b32 s37, s55, 10          ; wave*1024
    ''')
    fs(a, 53)
    a(f'''
    s_barrier
    ds_read_b32 v3, v2
    s_waitcnt lgkmcnt(0)
    v_readfirstlane_b32 s2, v3
    ''')
    fs(a, 1)
    a(f'''
    s_cmp_ge_u32 s2, 256
    s_cbranch_scc1 AT_END
    s_and_b32 s40, s2, 7
    s_lshr_b32 s41, s2, 3
    s_and_b32 s42, s41, 3
    s_lshl_b32 s40, s40, 2
    s_add_u32 s40, s40, s42          ; head
    s_lshr_b32 s56, s41, 2           ; pair p 0..7 (= m)
    s_lshl_b32 s45, s56, 18
    v_add_u32 v10, s45, v10
    s_lshl_b32 s45, s40, 8
    v_add_u32 v19, s45, v19
    ''')
    def dA(tp, hf):
        return [f'''
                s_add_u32 m0, s37, {AS[tp % 3] + hf*16384 + i*4096}
                s_mov_b32 s39, {tp*128 + (hf*128 + i*32)*1024}
                buffer_load_dwordx4 v10, s[{CKV}:{CKV+3}], s39 offen lds ; T:d{2*tp}
                ''' for i in range(4)]
    def dB(t):
        return [f'''
                s_add_u32 m0, s37, {BS[t % 3] + i*4096}
                s_mov_b32 s39, {(t*32 + i*16)*8192}
                buffer_load_dwordx4 v19, s[{WUK}:{WUK+3}], s39 offen {NT} lds ; T:d{t}
                s_add_u32 m0, s37, {BS[t % 3] + 8192 + i*4096}
                s_nop 0
                buffer_load_dwordx4 v19, s[{WUV}:{WUV+3}], s39 offen {NT} lds ; T:d{t}
                ''' for i in range(2)]
    def dW(j, hf):
        return [f'''
                s_add_u32 m0, s37, {WQ[j] + i*4096}
                s_mov_b32 s39, {(j*128 + i*16)*8192}
                buffer_load_dwordx4 v19, s[16:19], s39 offen {NT} lds ; T:d{16+j}
                ''' for i in range(4*hf, 4*hf + 4)]
    AL = I('AL', 0)
    DS = {t: [] for t in range(16)}
    for t in range(13): DS[t] += dB(t + 3)
    DS[0] += dA(2, 0); DS[AL] += dA(2, 1)
    for tp in range(3, 8):
        DS[2*tp - 5 + AL] += dA(tp, 0); DS[2*tp - 4 + AL] += dA(tp, 1)
    DS[11] += dW(0, 0); DS[12] += dW(0, 1)
    for j in range(1, 4): DS[12 + j] += dW(j, 0) + dW(j, 1)
    for x in dA(0, 0) + dA(0, 1) + dB(0): a(x)
    fs(a, 2)
    D0 = dB(1) + dA(1, 0) + dA(1, 1) + dB(2)
    ND0 = I('ND0', 2)
    for x in D0[:ND0]: a(x)
    fs(a, 3)
    a(f'''
    s_and_b32 s3, s55, 1
    s_sub_u32 s43, 15, s56
    s_cmp_lt_u32 s55, 2
    s_cselect_b32 s41, s43, s56
    s_cmp_lt_u32 s42, 2
    s_cselect_b32 s43, s43, s56
    s_lshl_b32 s43, s43, 7
    s_and_b32 s45, s42, 1
    s_lshl_b32 s45, s45, 6
    s_add_u32 s43, s43, s45
    s_lshl_b32 s45, s55, 4
    s_add_u32 s43, s43, s45
    v_and_b32 v4, 7, v1
    v_lshrrev_b32 v5, 3, v1
    v_lshlrev_b32 v63, 4, v5
    v_lshl_add_u32 v63, v4, 10, v63  ; x voffset
    s_sub_u32 s71, 15, s56
    s_cmp_lt_u32 s40, 16
    s_cselect_b32 s71, s71, s56
    s_lshl_b32 s71, s71, 7
    s_and_b32 s45, s40, 15
    s_lshl_b32 s45, s45, 3
    s_add_u32 s71, s71, s45
    s_lshl_b32 s70, s71, 10
    s_lshl_b32 s45, s55, 8
    s_add_u32 s70, s70, s45
    ''')
    fmt(a, SX, 2048*512*2); fmt(a, 16, 4194304)
    for i in range(2):
        a(f'buffer_load_dwordx4 v[{XR+4*i}:{XR+4*i+3}], v63, s[{SX}:{SX+3}], s70 offen offset:{i*128} ; T:x')
    a(f'''
    s_lshr_b32 s45, s71, 5
    s_lshl_b32 s45, s45, 15
    s_and_b32 s46, s71, 31
    s_lshl_b32 s46, s46, 4
    s_add_u32 s45, s45, s46
    s_lshl_b32 s46, s55, 13
    s_add_u32 s45, s45, s46
    s_add_u32 s54, s45, {WS_H}
    v_lshlrev_b32 v6, 9, v5
    v_lshl_add_u32 v6, v4, 4, v6
    v_lshlrev_b32 v18, 5, v5
    s_lshl_b32 s45, s55, 9
    s_add_u32 s45, s45, {MT}
    v_add_u32 v18, s45, v18
    v_lshlrev_b32 v63, 3, v4
    v_add_u32 v63, {STX}, v63        ; stat address
    v_and_b32 v2, 31, v1             ; l%32
    v_lshrrev_b32 v3, 5, v1          ; half
    v_bfe_u32 v5, v1, 2, 2           ; (row>>2)&3 = r
    s_lshl_b32 s45, s55, 6
    v_add_u32 v4, s45, v2
    v_lshlrev_b32 v4, 7, v4          ; row*128
    v_bfe_u32 v7, v1, 3, 1
    v_xor_b32 v7, v7, v1
    v_and_b32 v7, 7, v7              ; f(row)
    v_xor_b32 v7, v7, v3
    ''')
    for es in range(4):
        a(f'''
        v_xor_b32 v8, {2*es}, v7
        v_lshl_add_u32 v{12+es}, v8, 4, v4
        ''')
    a(f'''
    v_and_b32 v4, 3, v1              ; c4
    v_bfe_u32 v7, v1, 4, 1           ; nsub
    v_lshlrev_b32 v8, 3, v3
    v_add_u32 v8, v8, v5
    v_lshlrev_b32 v8, 8, v8
    v_lshl_add_u32 v8, v7, 5, v8
    v_lshl_add_u32 v8, v4, 3, v8
    ''')
    for blk in range(4):
        a(f'''
        v_xor_b32 v7, {blk}, v5
        v_lshl_add_u32 v{20+blk}, v7, 6, v8
        v_add_u32 v{24+blk}, {BS[0]}, v{20+blk}
        ''')
    SL, AC, U = 28, 44, 52
    SILU = ('v_mul_f32 v{t}, 0xbfb8aa3b, v{c}', 'v_exp_f32 v{t}, v{t}', 'v_add_f32 v{t}, 1.0, v{t}', 'v_rcp_f32 v{t}, v{t}',
            'v_mul_f32 v{c}, v{c}, v{t}', 'v_cvt_pk_bf16_f32 v{c}, v{c}, v{c}', 'v_lshlrev_b32 v{c}, 16, v{c}')
    T.wait(v='mc')
    for j in range(2):
        a(f'v_lshlrev_b32 v{SL+2*j}, 16, v{UC+j}\nv_and_b32 v{SL+2*j+1}, 0xffff0000, v{UC+j}')
    for f in SILU:
        for j in range(4): a(f.format(t=SL+8+j, c=SL+j))
    for i in range(4):
        T.wait(v=f'mw{i}')
        for j in range(4):
            a(f'v_lshlrev_b32 v{U+2*j}, 16, v{UW+4*i+j}\nv_and_b32 v{U+2*j+1}, 0xffff0000, v{UW+4*i+j}')
        for j in range(8):
            a(f'v_mul_f32 v{AC+j}, v{U+j}, v{SL}' if i == 0 else f'v_fmac_f32 v{AC+j}, v{U+j}, v{SL+i}')
    for j in range(8):
        a(f'v_add_f32_dpp v{U+j}, v{AC+j}, v{AC+j} row_ror:8 row_mask:0xf bank_mask:0xf')
    for j in range(4): a(f'v_permlane16_swap_b32 v{U+j}, v{U+4+j}')
    for j in range(4): a(f'v_add_f32 v{U+j}, v{U+j}, v{U+4+j}')
    for j in range(2): a(f'v_permlane32_swap_b32 v{U+j}, v{U+2+j}')
    for j in range(2): a(f'v_add_f32 v{U+j}, v{U+j}, v{U+2+j}')
    a(f'''
    v_bfe_u32 v7, v1, 4, 1           ; e
    v_lshlrev_b32 v7, 4, v7
    v_lshl_add_u32 v7, v3, 3, v7     ; + f*8
    v_and_b32 v8, 7, v1
    v_lshl_add_u32 v7, v8, 5, v7     ; + chunk*32
    s_lshl_b32 s45, s55, 8
    s_add_u32 s45, s45, {MP}
    v_add_u32 v7, s45, v7
    ds_write_b64 v7, v[{U}:{U+1}] ; T:mp
    ''')
    fs(a, 4, T)
    bias = [0]*4
    def reads(t, s):
        buf = s; es = (t % 2)*2 + s; sl = AS[(t // 2) % 3]
        out = []
        nb_ = {0: 0, 32768: bias[es], 65536: 32768}[sl]
        fix = ''
        if nb_ != bias[es]:
            fix = f'v_add_u32 v{12+es}, {(nb_ - bias[es]) & 0xffffffff}, v{12+es}\n'
            bias[es] = nb_
        for mb in range(2):
            r = FA + buf*8 + mb*4
            out.append(fix + f'ds_read_b128 v[{r}:{r+3}], v{12+es} offset:{sl - nb_ + mb*4096} ; T:f{2*t+s}')
            fix = ''
        for v in range(2):
            for nb in range(4):
                for j in range(2):
                    r = FB + buf*32 + (v*4 + nb)*4 + j*2
                    out.append(f'ds_read_b64_tr_b16 v[{r}:{r+1}], v{24+nb} offset:{BS[t % 3] - BS[0] + v*8192 + s*4096 + j*1024} ; T:f{2*t+s}')
        return out
    def wreads(g):
        jt = g // 8
        vb, bs = [(20, 0), (20, 0), (24, BS[0]), (20, 65536)][jt]
        out = []
        for blk in range(4):
            for j in range(2):
                r = FW + (g & 1)*16 + blk*4 + j*2
                fix = f'v_add_u32 v{vb+blk}, 0x10000, v{vb+blk}\n' if g == 24 and j == 0 else ''
                out.append(fix + f'ds_read_b64_tr_b16 v[{r}:{r+1}], v{vb+blk} offset:{WQ[jt] - bs + (g % 8)*4096 + j*1024} ; T:f{32+g}')
        return out
    T.wait(v='d0', d='mp')
    a('s_barrier')
    fs(a, 5, T)
    for x in reads(0, 0): a(x)
    def tile_reg(n):
        return 16*n
    mfl = []; pre = {}; pins = {}
    NH0 = 4
    def hreg(g, qb):
        if g < NH0: return f'v[{224 + g*8 + qb*4}:{224 + g*8 + qb*4 + 3}]'
        r = (g - NH0)*8 + qb*4
        return f'a[{r}:{r+3}]'
    for ks in range(32):
        t, s = ks // 2, ks % 2
        b = len(mfl)
        for n in range(16):
            c = tile_reg(n)
            cc = '0' if ks == 0 else f'a[{c}:{c+15}]'
            if n < 8:
                mb, nb = n // 4, n % 4
                fa = FA + s*8 + mb*4; fb = FB + s*32 + nb*4
                mfl.append(f'v_mfma_f32_32x32x16_bf16 a[{c}:{c+15}], v[{fb}:{fb+3}], v[{fa}:{fa+3}], {cc}')
            else:
                nb, mb = (n - 8) // 2, (n - 8) % 2
                fa = FA + s*8 + mb*4; fb = FB + s*32 + (4 + nb)*4
                mfl.append(f'v_mfma_f32_32x32x16_bf16 a[{c}:{c+15}], v[{fa}:{fa+3}], v[{fb}:{fb+3}], {cc}')
        pre[b] = [W(d=f'f{ks}')]
        if FSTK and s == 0: pre[b].append(lambda t=t: fs(a, 8 + t, T))
        rd = reads(t, 1) if s == 0 else (reads(t + 1, 0) if t < 15 else wreads(0))
        o = 0
        if s == 1:
            pins[b] = [W(v=f'd{t+1}'), 's_barrier']
            o = 1
        RP = I('RP', 3)
        for i, x in enumerate(rd): pins.setdefault(b + o + i // RP, []).append(x)
        if s == 1:
            for i, x in enumerate(DS[t]): pins.setdefault(b + I('DP0', 7) + i*I('DPS', 1), []).append(x)
        if ks == 0:
            for i, x in enumerate(D0[ND0:]): pins.setdefault(I('DQ0', 6) + i, []).append(x)
    QB = len(mfl)
    for g in range(32):
        b = len(mfl)
        for blk in range(4):
            for qb in range(2):
                fr = FW + (g & 1)*16 + blk*4
                q = QT + qb*64 + blk*16
                cc = '0' if g == 0 else f'v[{q}:{q+15}]'
                mfl.append(f'v_mfma_f32_32x32x16_bf16 v[{q}:{q+15}], v[{fr}:{fr+3}], {hreg(g, qb)}, {cc}')
        pre[b] = [W(d=f'f{32+g}', v=f'h{g}')]
        if FSTK and g % 4 == 0: pre[b].append(lambda g=g: fs(a, 24 + g // 4, T))
        o = 0
        if g % 8 == 7 and g < 31:
            pins[b] = [W(v=f'd{17 + g // 8}'), 's_barrier']
            o = 1
        if g < 31:
            for i, x in enumerate(wreads(g + 1)): pins.setdefault(b + o + i // 3, []).append(x)
    def SL_(t, s=0, i=0): return t*32 + s*16 + i
    def need(q, nm, slot):
        def f():
            n = 0
            while nm not in q.passed:
                while isinstance(q.items[q.k], tuple):
                    it = q.items[q.k]
                    assert it[0] == 'at' or it[2] in it[1]().passed, (nm, it[2])
                    q.k += 1
                x = q.pop(); emit(a, x); n += icost(x)
            if n and E('VERB'): print('forced', nm, n)
        f.cost = 0
        pins.setdefault(slot, []).insert(0, f)
    qm = MQ('mod')
    qm.add(f'''
    v_lshlrev_b32 v7, 2, v1
    v_add_u32 v8, {MP}, v7
    ds_read_b32 v{U}, v8 ; T:mq
    ds_read_b32 v{U+1}, v8 offset:256 ; T:mq
    ds_read_b32 v{U+2}, v8 offset:512 ; T:mq
    ds_read_b32 v{U+3}, v8 offset:768 ; T:mq
    s_and_b32 s6, s{RAW}, 63
    s_lshl_b32 s6, s6, 8
    s_add_u32 s6, s6, {WS_MODQ}          ; [kq][cg][64]
    s_sub_u32 s7, s{RAW}, 64
    s_cmp_lt_u32 s7, 32
    s_cselect_b32 s10, {D_C0}, {OOB}
    s_cmp_ge_u32 s{RAW}, 192
    s_cselect_b32 s6, s6, {OOB}
    s_cselect_b32 s10, {D_C0}, s10
    s_cmp_eq_u32 s55, 0
    s_cselect_b32 s6, s6, {OOB}
    s_cselect_b32 s10, s10, {OOB}
    ''')
    qm.at(2)
    qm.add(W(d='mq'))
    qm.add(f'''
    v_add_f32 v{U}, v{U}, v{U+1}
    v_add_f32 v{U+2}, v{U+2}, v{U+3}
    v_add_f32 v{U}, v{U}, v{U+2}
    buffer_store_dword v{U}, v7, s[72:75], s6 offen sc1 ; T:mods
    v_mov_b32 v9, 1
    ''')
    qm.mark('mu')
    qm.at(I('M1', SL_(1, 0, 8)))
    qm.add(W(v='mods'))
    qm.atom(f'''
    s_mov_b64 exec, 1
    buffer_atomic_add v9, off, s[{DBG}:{DBG+3}], s10 sc1
    s_mov_b64 exec, -1
    ''')
    qm.mark('c0')
    qn = MQ('mod2')
    NS, NU, NA, NC_, NW, NP = 28, 36, XR + 48, XR + 40, XR + 8, XR + 56
    N0 = I('N0', SL_(1)); NSP = I('NSP', 8); N1 = I('N1', SL_(5)); NB = I('NB', 7)
    qn.at(N0)
    qn.add(f'''
    s_lshl_b32 s34, s55, 4
    v_lshrrev_b32 v{NP}, 2, v1
    v_add_u32 v{NP}, s34, v{NP}             ; rg
    v_mul_u32_u24 v{NP+2}, {8*6144}, v{NP}
    v_lshlrev_b32 v{NP}, 4, v{NP}
    v_and_b32 v{NP+1}, 3, v1
    v_lshl_add_u32 v{NP+1}, v{NP+1}, 4, v{NP+2}
    s_lshl_b32 s34, s{RAW}, 6
    s_add_u32 s34, s34, 2048
    s_cmp_lt_u32 s{RAW}, 64
    s_cselect_b32 s34, s34, {OOB}
    ''')
    for i in range(8):
        qn.at(N0 + 4 + NSP*i)
        qn.atom(f'buffer_load_dwordx4 v[{NW+4*i}:{NW+4*i+3}], v{NP+1}, s[{WMOD}:{WMOD+3}], s34 offen {NT} ; T:nw{i}' + ('\ns_add_u32 s34, s34, 6144' if i < 7 else ''))
    qn.add(f'buffer_load_dwordx4 v[{NC_}:{NC_+3}], v{NP}, s[{SC_}:{SC_+3}], 0 offen ; T:nc')
    qn.at(N1)
    qn.add(W(v='nc'))
    for j in range(4):
        qn.add(f'v_lshlrev_b32 v{NS+2*j}, 16, v{NC_+j}\nv_and_b32 v{NS+2*j+1}, 0xffff0000, v{NC_+j}')
    for f in SILU:
        for j in range(8): qn.add(f.format(t=NU+j, c=NS+j))
    for i in range(8):
        for j in range(4):
            qn.add(f'v_lshlrev_b32 v{NU+2*j}, 16, v{NW+4*i+j}\nv_and_b32 v{NU+2*j+1}, 0xffff0000, v{NW+4*i+j}')
        for j in range(8):
            qn.add(f'v_mul_f32 v{NA+j}, v{NU+j}, v{NS}' if i == 0 else f'v_fmac_f32 v{NA+j}, v{NU+j}, v{NS+i}')
    for j in range(8):
        qn.add(f'v_add_f32_dpp v{NU+j}, v{NA+j}, v{NA+j} row_ror:4 row_mask:0xf bank_mask:0xf')
    for j in range(8):
        qn.add(f'v_add_f32_dpp v{NA+j}, v{NU+j}, v{NU+j} row_ror:8 row_mask:0xf bank_mask:0xf')
    for j in range(4): qn.add(f'v_permlane16_swap_b32 v{NA+j}, v{NA+4+j}')
    for j in range(4): qn.add(f'v_add_f32 v{NA+j}, v{NA+j}, v{NA+4+j}')
    for j in range(2): qn.add(f'v_permlane32_swap_b32 v{NA+j}, v{NA+2+j}')
    for j in range(2): qn.add(f'v_add_f32 v{NA+j}, v{NA+j}, v{NA+2+j}')
    qn.add(f'''
    v_bfe_u32 v{NP}, v1, 4, 1           ; e
    v_lshlrev_b32 v{NP}, 4, v{NP}
    v_lshl_add_u32 v{NP}, v3, 3, v{NP}     ; + f*8
    v_and_b32 v{NP+1}, 3, v1
    v_lshl_add_u32 v{NP}, v{NP+1}, 5, v{NP}    ; + cq*32
    s_lshl_b32 s34, s55, 7
    s_add_u32 s34, s34, {MP2}
    v_add_u32 v{NP}, s34, v{NP}
    ds_write_b64 v{NP}, v[{NA}:{NA+1}] ; T:np
    ''')
    qn.add(W(d='np'))
    qn.mark('nw')
    need(qn, 'nw', SL_(NB, 1))
    qn.at(SL_(NB, 1) + 1)
    NV = NU
    qn.add(f'''
    v_lshlrev_b32 v{NP+1}, 2, v2
    v_add_u32 v{NP}, {MP2}, v{NP+1}
    ds_read_b32 v{NV}, v{NP} ; T:nq
    ds_read_b32 v{NV+1}, v{NP} offset:128 ; T:nq
    ds_read_b32 v{NV+2}, v{NP} offset:256 ; T:nq
    ds_read_b32 v{NV+3}, v{NP} offset:384 ; T:nq
    s_lshl_b32 s35, s{RAW}, 7
    s_add_u32 s35, s35, 4096
    s_cmp_lt_u32 s{RAW}, 64
    s_cselect_b32 s35, s35, {OOB}
    s_cmp_eq_u32 s55, 0
    s_cselect_b32 s35, s35, {OOB}
    s_cmp_ge_u32 s{RAW}, 32
    s_cselect_b32 s70, 1.0, 0
    s_cselect_b32 s71, 0, 16
    s_and_b32 s34, s{RAW}, 15
    s_lshl_b32 s34, s34, 10
    s_add_u32 s34, s34, s71
    s_lshl_b32 s71, s55, 6
    s_add_u32 s34, s34, s71
    s_add_u32 s34, s34, {WS_MODF}
    s_sub_u32 s71, s{RAW}, 16
    s_cmp_lt_u32 s71, 32
    s_cselect_b32 s34, s34, {OOB}
    v_bfe_u32 v{NV+4}, v1, 4, 1               ; gq
    v_lshlrev_b32 v{NV+4}, 9, v{NV+4}
    v_bfe_u32 v{NP}, v1, 2, 1               ; h
    v_lshl_add_u32 v{NV+4}, v{NP}, 8, v{NV+4}
    v_and_b32 v{NP}, 3, v1
    v_lshl_add_u32 v{NV+4}, v{NP}, 1, v{NV+4}
    v_bfe_u32 v{NP}, v1, 3, 1
    v_lshl_add_u32 v{NV+4}, v{NP}, 3, v{NV+4}
    ''')
    qn.add(W(d='nq'))
    qn.add(f'''
    v_add_f32 v{NV}, v{NV}, v{NV+1}
    v_add_f32 v{NV+2}, v{NV+2}, v{NV+3}
    v_add_f32 v{NV}, v{NV}, v{NV+2}
    v_cvt_pk_bf16_f32 v{NV}, v{NV}, v{NV}
    v_lshlrev_b32 v{NV}, 16, v{NV}
    buffer_store_dword v{NV}, v{NP+1}, s[72:75], s35 offen sc1 ; T:side
    v_add_f32 v{NV+2}, s70, v{NV}
    v_cvt_pk_bf16_f32 v{NV+2}, v{NV+2}, v{NV+2}
    buffer_store_short v{NV+2}, v{NV+4}, s[72:75], s34 offen sc1 ; T:side
    ''')
    qn.mark('nd')
    qj = MQ('job')
    qj.at(I('J0', SL_(3)))
    WU = 176; WP = 28
    qj.add(f'''
    s_mov_b32 s{WIN+2}, {512*1376*2}
    s_mov_b32 s{WIN+3}, 0x00020000
    s_mov_b32 s{WOUT+2}, {688*512*2}
    s_mov_b32 s{WOUT+3}, 0x00020000
    ''')
    def win_addr(su, so):
        return f'''
        s_lshr_b32 s32, s{su}, 3             ; x = n8*12 + wt
        s_mul_i32 s33, s32, 43691
        s_lshr_b32 s33, s33, 19              ; n8
        s_mul_i32 s30, s33, 12
        s_sub_u32 s30, s32, s30              ; wt
        s_lshl_b32 s30, s30, 2
        s_mov_b32 s96, {WTC & 0xffffffff}
        s_mov_b32 s97, {WTC >> 32}
        s_lshr_b64 s[96:97], s[96:97], s30
        s_and_b32 s30, s96, 7                ; c
        s_lshl_b32 s30, s30, 4
        s_mul_i32 s33, s33, 88
        s_add_u32 s33, s33, s30
        s_bitcmp1_b32 s96, 3
        s_cselect_b32 s30, 688, 0
        s_add_u32 s33, s33, s30              ; colbase
        s_lshl_b32 s33, s33, 1
        s_and_b32 s30, s{su}, 7
        s_mul_i32 s30, s30, {64*2752}
        s_add_u32 s{so}, s33, s30
        '''
    qj.add(f'''
    s_sub_u32 s48, s{RAW}, 96
    s_lshl_b32 s48, s48, 2
    s_add_u32 s48, s48, s55              ; unit 0
    s_add_u32 s28, s48, 640              ; unit 1
    v_and_b32 v0, 7, v1                 ; cp
    v_bfe_u32 v11, v1, 3, 1
    v_lshlrev_b32 v11, 2, v11
    v_lshrrev_b32 v4, 4, v1
    v_lshl_add_u32 v11, v4, 4, v11      ; row
    v_mul_u32_u24 v11, 2752, v11
    v_lshl_add_u32 v11, v0, 2, v11      ; w_in voffset
    ''' + win_addr(48, 29) + f'''
    s_cmp_lt_u32 s{RAW}, 96
    s_cselect_b32 s29, {OOB}, s29
    s_lshl_b32 s48, s48, 11
    s_add_u32 s48, s48, {WS_WINF}
    s_cmp_lt_u32 s{RAW}, 96
    s_cselect_b32 s48, {OOB}, s48
    ''')
    for j in range(8):
        x = f'buffer_load_dword v{WU+j}, v11, s[{WIN}:{WIN+3}], s29 offen {NT} ; T:u0'
        if j < 7: x += f'\ns_add_u32 s29, s29, {2752 if j != 3 else 5*2752}'
        qj.atom(x)
    qj.add(win_addr(28, 29) + f'''
    s_sub_u32 s57, s28, 768              ; u = n8*48 + p*6 + kf
    s_mul_i32 s33, s57, 43691
    s_lshr_b32 s33, s33, 21              ; n8
    s_mul_i32 s30, s33, 48
    s_sub_u32 s30, s57, s30
    s_mul_i32 s32, s30, 43691
    s_lshr_b32 s32, s32, 18              ; p
    s_mul_i32 s96, s32, 6
    s_sub_u32 s96, s30, s96              ; kf
    s_lshl_b32 s96, s96, 4
    s_cmp_eq_u32 s32, 7
    s_cselect_b32 s97, 9, 11
    s_lshl_b32 s97, s97, 3               ; lim
    s_mul_i32 s32, s32, 88
    s_add_u32 s32, s32, s96              ; f0
    s_lshl_b32 s32, s32, 10
    s_lshl_b32 s33, s33, 7
    s_add_u32 s33, s33, s32              ; soffset
    s_cmp_lt_u32 s96, s97
    s_cselect_b32 s33, s33, {OOB}
    s_add_u32 s96, s96, 8
    s_cmp_lt_u32 s96, s97
    s_cselect_b32 s58, {5*1024}, {OOB}   ; step to the second row group
    s_lshl_b32 s57, s57, 11
    s_add_u32 s57, s57, {WS_WOUTF}
    s_lshl_b32 s32, s28, 11
    s_add_u32 s32, s32, {WS_WINF}
    v_and_b32 v0, 15, v1
    v_bfe_u32 v4, v1, 4, 1
    v_lshlrev_b32 v4, 12, v4
    v_lshl_add_u32 v4, v3, 6, v4
    v_lshl_add_u32 v4, v0, 2, v4      ; w_out voffset
    s_cmp_lt_u32 s28, 768
    s_cselect_b32 s29, s29, s33
    s_cselect_b32 s57, s32, s57
    s_cselect_b32 s58, {5*2752}, s58
    s_cselect_b32 s59, 43, 16
    s_cselect_b32 s{WOUT}, s{WIN}, s{WOUT}
    s_cselect_b32 s{WOUT+1}, s{WIN+1}, s{WOUT+1}
    s_cselect_b32 s{WOUT+2}, s{WIN+2}, s{WOUT+2}
    s_cselect_b64 vcc, -1, 0
    v_cndmask_b32 v4, v4, v11, vcc
    s_lshl_b32 s59, s59, 6
    s_sub_u32 s32, s28, 640
    s_cmp_lt_u32 s32, 512
    s_cselect_b32 s29, s29, {OOB}
    s_cselect_b32 s57, s57, {OOB}
    ''')
    for j in range(8):
        x = f'buffer_load_dword v{WU+8+j}, v4, s[{WOUT}:{WOUT+3}], s29 offen {NT} ; T:u1'
        if j < 7: x += f'\ns_add_u32 s29, s29, s{59 if j != 3 else 58}'
        qj.atom(x)
    qj.mark('jld')
    qj.add(f'''
    v_lshlrev_b32 v11, 5, v1             ; lane*32
    s_mov_b32 s32, 0x05040100
    s_mov_b32 s33, 0x07060302
    ''')
    qj.at(I('J1', SL_(8)))
    qj.after(lambda: qn, 'nd')
    for u in range(2):
        qj.add(W(v=f'u{u}'))
        R, D = WU + 8*u, WP + 8*u
        for j in range(4):
            qj.add(f'v_perm_b32 v{D+j}, v{R+2*j+1}, v{R+2*j}, s32\nv_perm_b32 v{D+4+j}, v{R+2*j+1}, v{R+2*j}, s33')
    qj.at(I('J2', SL_(8)))
    qj.after(lambda: qh, 'hw')
    for u in range(2):
        R, D = WU + 8*u, WP + 8*u
        qj.add(f'''
        buffer_store_dwordx4 v[{D}:{D+3}], v11, s[72:75], s{[48, 57][u]} offen sc1 ; T:side
        buffer_store_dwordx4 v[{D+4}:{D+7}], v11, s[72:75], s{[48, 57][u]} offen offset:16 sc1 ; T:side
        ''')
    qj.mark('jst')
    CBS = SL_(I('CB', 11), 1)
    qj.at(CBS - 2)
    qj.add(W(v='side'))
    qj.mark('sidew')
    need(qj, 'sidew', CBS)
    qj.at(CBS + 1)
    qj.add(f'''
    v_mov_b32 v0, 1
    s_cmp_eq_u32 s55, 0
    s_cselect_b32 s49, {D_C2}, {OOB}
    ''')
    qj.atom(f'''
    s_mov_b64 exec, 1
    buffer_atomic_add v0, off, s[{DBG}:{DBG+3}], s49 sc1
    s_mov_b64 exec, -1
    ''')
    qh = MQ('h')
    qh.at(I('H0', SL_(1)))
    SS = 44
    qh.after(lambda: qm, 'mu')
    qh.add(W(v='x'))
    for i in range(2):
        for j in range(4):
            x = XR + 4*i + j; t = U + 2*j
            qh.add(f'v_lshlrev_b32 v{t}, 16, v{x}\nv_and_b32 v{t+1}, 0xffff0000, v{x}')
        for j in range(8):
            s = SS + 2*(j & 1)
            if i == 0 and j < 2:
                qh.add(f'v_mov_b32 v{s}, v{U+j}\nv_mul_f32 v{s+1}, v{U+j}, v{U+j}')
            else:
                qh.add(f'v_add_f32 v{s}, v{s}, v{U+j}\nv_fmac_f32 v{s+1}, v{U+j}, v{U+j}')
    for j in range(2): qh.add(f'v_add_f32 v{SS+j}, v{SS+j}, v{SS+2+j}')
    qh.add('s_lshl_b32 s45, s55, 6')
    for j in range(2): qh.add(f'v_add_f32_dpp v{SS+2+j}, v{SS+j}, v{SS+j} row_ror:8 row_mask:0xf bank_mask:0xf')
    for j in range(2): qh.add(f'v_mov_b32 v{SS+j}, v{SS+2+j}')
    qh.add(f'v_add_u32 v{SS+4}, s45, v63')
    for j in range(2): qh.add(f'v_permlane16_swap_b32 v{SS+j}, v{SS+2+j}')
    for j in range(2): qh.add(f'v_add_f32 v{SS+j}, v{SS+j}, v{SS+2+j}')
    for j in range(2): qh.add(f'v_mov_b32 v{SS+2+j}, v{SS+j}')
    for j in range(2): qh.add(f'v_permlane32_swap_b32 v{SS+j}, v{SS+2+j}')
    for j in range(2): qh.add(f'v_add_f32 v{SS+j}, v{SS+j}, v{SS+2+j}')
    qh.add(f'ds_write_b64 v{SS+4}, v[{SS}:{SS+1}] ; T:sw')
    qh.add(W(d='sw'))
    qh.mark('sw')
    SB_ = I('SB', 2)
    need(qh, 'sw', SL_(SB_, 1))
    qh.at(SL_(SB_, 1) + 1)
    for k in range(4): qh.add(f'ds_read_b64 v[{SS+2*k}:{SS+2*k+1}], v63 offset:{64*k} ; T:sr')
    qh.at(SL_(SB_, 1) + 5)
    qh.add(W(d='sr'))
    s = SS
    qh.add(f'''
    v_add_f32 v{s}, v{s}, v{s+2}
    v_add_f32 v{s+1}, v{s+1}, v{s+3}
    v_add_f32 v{s+4}, v{s+4}, v{s+6}
    v_add_f32 v{s+5}, v{s+5}, v{s+7}
    v_add_f32 v{s}, v{s}, v{s+4}
    v_add_f32 v{s+1}, v{s+1}, v{s+5}
    v_mul_f32 v{s}, 0xbb000000, v{s}
    v_mul_f32 v{s+1}, 0x3b000000, v{s+1}
    v_fma_f32 v{s+1}, -v{s}, v{s}, v{s+1}
    v_max_f32 v{s+1}, 0, v{s+1}
    v_add_f32 v{s+1}, 0x3727c5ac, v{s+1}
    v_rsq_f32 v{s+1}, v{s+1}
    v_mul_f32 v{s}, v{s}, v{s+1}
    ''')
    CR = XR + 44
    CL = f'buffer_load_dwordx4 v[{CR}:{CR+3}], off, s[{DBG}:{DBG+3}], 0 offset:{D_R} sc0 sc1'
    CK = f'''
    v_sad_u8 v{CR+3}, v{CR}, 0, 0
    v_sad_u8 v{CR+3}, v{CR+1}, 0, v{CR+3}
    v_lshl_add_u32 v{CR+3}, v{CR+2}, 16, v{CR+3}
    v_cmp_eq_u32 vcc, {256 + (NC0 << 16)}, v{CR+3}
    s_cmp_eq_u64 vcc, -1
    '''
    qc = MQ('cnt')
    qc.at(I('C0', SL_(2, 1)))
    qc.add(CL + ' ; T:cl')
    qc.at(I('C1', SL_(3, 1)))
    def cchk():
        T.wait(v='cl')
        a(CK + 's_cbranch_scc0 FR_CS')
        a.raw('FR_CR:')
        a(f'''
        v_and_b32 v{CR}, v{CR}, v{CR+1}
        v_cmp_eq_u32 vcc, {0x20202020 if not TL.FORCE else 0x7f7f7f7f}, v{CR}
        s_cmp_eq_u64 vcc, -1
        s_cselect_b32 s10, 1, 0              ; all at home
        s_add_u32 s39, s37, {WS_MODQ}
        ''')
        for k in range(4):
            a(f'buffer_load_dwordx4 v[{MODW+4*k}:{MODW+4*k+3}], v{L16}, s[72:75], s39 offen ; T:pt')
            if k < 3: a('s_add_u32 s39, s39, 4096')
    cchk.cost = 48
    def cspin():
        a.label('FR_CS')
        a('s_mov_b32 s39, 0')
        a.label('FR_CL')
        a(CL + '\ns_add_u32 s39, s39, 1\ns_waitcnt vmcnt(0)' + CK + f'''
        s_cbranch_scc1 FR_CR
        s_cmp_lt_u32 s39, {TL.SPIN}
        s_cbranch_scc1 FR_CL
        s_branch FR_CR
        ''')
    TL._ool.append(cspin)
    def c0chk():
        assert 'c0' in qm.passed
    c0chk.cost = 0
    qc.add(c0chk)
    qc.add(cchk)
    qc.add(f'''
    s_cmp_ge_u32 s55, 2
    s_cselect_b32 s11, 1.0, 0
    s_mov_b32 s49, {CSC}
    s_add_u32 s6, s37, {MT}
    v_add_u32 v9, s6, v{L16}
    ''')
    TB = I('TB', 5)
    qc.at(I('C2', SL_(TB, 0, 4)))
    qc.add(W(v='pt'))
    for j in range(4):
        qc.add(f'''
        v_add_f32 v{MODW+j}, v{MODW+j}, v{MODW+4+j}
        v_add_f32 v{MODW+8+j}, v{MODW+8+j}, v{MODW+12+j}
        ''')
    for j in range(4): qc.add(f'v_add_f32 v{MODW+j}, v{MODW+j}, v{MODW+8+j}')
    for j in range(4): qc.add(f'v_cvt_pk_bf16_f32 v{MODW+j}, v{MODW+j}, v{MODW+j}')
    for j in range(4): qc.add(f'v_lshlrev_b32 v{MODW+j}, 16, v{MODW+j}')
    for j in range(4): qc.add(f'v_add_f32 v{MODW+j}, s11, v{MODW+j}')
    for j in range(4): qc.add(f'v_mul_f32 v{MODW+j}, s49, v{MODW+j}')
    qc.add(f'ds_write_b128 v9, v[{MODW}:{MODW+3}] ; T:mt')
    qc.add(W(d='mt'))
    qc.mark('mt')
    need(qc, 'mt', SL_(TB, 1))
    qh.add(f'''
    s_add_u32 s12, s8, {WS_H}
    s_addc_u32 s13, s9, 0
    s_mov_b32 s14, {2048*512*2}
    s_mov_b32 s15, 0x00020000
    s_and_b32 s46, s2, 7
    s_mul_i32 s46, s46, {TL.LOCS}
    s_add_u32 s46, s46, {TL.LOC}
    s_lshl_b32 s47, s56, 9
    s_add_u32 s47, s47, {FHG}
    s_lshl_b32 s50, s40, 4
    s_lshl_b32 s51, s55, 2
    s_add_u32 s50, s50, s51
    s_add_u32 s50, s50, s47
    s_lshl_b32 s51, s42, 7
    s_add_u32 s46, s46, s51
    s_add_u32 s46, s46, {FKV}
    s_lshl_b32 s51, s56, 4
    s_add_u32 s51, s51, s46
    s_lshl_b32 s52, s55, 2
    s_add_u32 s51, s51, s52
    s_lshl_b32 s44, s41, 7
    s_lshl_b32 s52, s3, 6
    s_add_u32 s44, s44, s52              ; q0 = qblock*128 + w*64
    s_lshl_b32 s52, s44, 10
    v_add_u32 v5, s52, v{L16}
    v_add_u32 v{DKV}, s36, v{L16}
    s_lshl_b32 s45, s43, 10
    ''')
    U2 = MODW + 16
    for i in range(2):
        R = [U, U2 + 8][i]
        for j in range(4):
            x = XR + 4*i + j
            qh.add(f'v_lshlrev_b32 v{R+2*j}, 16, v{x}\nv_and_b32 v{R+2*j+1}, 0xffff0000, v{x}')
        for j in range(8): qh.add(f'v_fma_f32 v{R+j}, v{R+j}, v{SS+1}, v{SS}')
    qh.at(SL_(TB, 1) + 1)
    MR = [MODW, SS]
    def mread(i, k, r):
        return f'ds_read_b128 v[{r}:{r+3}], v18 offset:{i*256 + (k & 1)*16 + (k >> 1)*2048} ; T:mr{i}'
    qh.add([mread(0, k, MODW + 4*k) for k in range(4)])
    qh.add([mread(1, 0, SS), mread(1, 1, SS + 4), mread(1, 2, U2), mread(1, 3, U2 + 4)])
    qh.at(SL_(TB, 1) + 5)
    for i in range(2):
        R = [U, U2 + 8][i]; SA = [MODW, SS][i]; GA = [MODW + 8, U2][i]
        qh.add(W(d=f'mr{i}'))
        for j in range(8): qh.add(f'v_fma_f32 v{R+j}, v{R+j}, v{GA+j}, v{SA+j}')
        x = XR + 4*i
        for j in range(4):
            qh.add(f'v_cvt_pk_bf16_f32 v{x+j}, v{R+2*j}, v{R+2*j+1}')
        qh.add(f'buffer_store_dwordx4 v[{x}:{x+3}], v6, s[72:75], s54 offen sc0 sc1 ; T:hs')
        if i == 0: qh.add('s_add_u32 s54, s54, 4096')
    def lflag(so):
        def f():
            lb = a.newlabel('FR_LF')
            txt = f'''
            v_mov_b32 v60, 1
            s_mov_b64 exec, 1
            buffer_store_dword v60, off, s[72:75], s{so} @
            s_mov_b64 exec, -1
            '''
            a(f's_cmp_eq_u32 s10, 0\ns_cbranch_scc1 {lb}' + txt.replace('@', ''))
            a.raw(f'{lb}_R:')
            def o():
                a.label(lb)
                a('s_waitcnt vmcnt(0)\nbuffer_wbl2 sc1\ns_waitcnt vmcnt(0)' + txt.replace('@', 'sc0 sc1') + f's_branch {lb}_R')
            TL._ool.append(o)
        f.cost = 20
        return f
    def poll(tag, va, so, vd, n=1):
        ld = f'buffer_load_dword v{vd}, v{va}, s[72:75], s{so} offen sc1'
        ck = f'\nv_cmp_ne_u32 vcc, 0, v{vd}\ns_cmp_eq_u64 vcc, -1\n'
        if n == 2:
            ld = f'buffer_load_dwordx2 v[{vd}:{vd+1}], v{va}, s[72:75], s{so} offen sc0 sc1'
            ck = f'\nv_min_u32 v{vd}, v{vd}, v{vd+1}' + ck
        def chk():
            T.wait(v=tag)
            a(ck + f's_cbranch_scc0 {tag}_S')
            a.raw(f'{tag}_R:')
        chk.cost = 12
        def o():
            a.label(f'{tag}_S')
            a('s_mov_b32 s39, 0')
            a.label(f'{tag}_L')
            a(ld + '\ns_add_u32 s39, s39, 1\ns_waitcnt vmcnt(0)' + ck + f'''
            s_cbranch_scc1 {tag}_R
            s_cmp_lt_u32 s39, {TL.SPIN}
            s_cbranch_scc1 {tag}_L
            s_branch {tag}_R
            ''')
        TL._ool.append(o)
        return ld + f' ; T:{tag}', chk
    qh.add(lambda: fs(a, 40))
    qh.mark('hs')
    qh.at(I('H1', SL_(TB + 2)))
    qh.add(W(v='hs'))
    qh.atom('''
    v_mov_b32 v60, 1
    s_mov_b64 exec, 1
    buffer_store_dword v60, off, s[72:75], s50 sc0 sc1
    s_mov_b64 exec, -1
    ''')
    qh.mark('hw')
    qh.add(lambda: fs(a, 41))
    qh.add('v_lshlrev_b32 v61, 3, v1\nv_lshlrev_b32 v63, 7, v1')
    iss, chk = poll('FR_H', 61, 47, CR, 2)
    qh.at(I('H2', SL_(TB + 3))); qh.add(iss)
    qh.at(I('H3', SL_(TB + 4))); qh.add(chk)
    qh.atom(f'buffer_load_dword v{CR+2}, v63, s[12:15], s45 offen\ns_add_u32 s45, s45, 8192')
    qh.atom(f'buffer_load_dword v{CR+3}, v63, s[12:15], s45 offen')
    qh.add(lambda: fs(a, 42))
    qh.after(lambda: qj, 'jld')
    qh.add(f'''
    s_lshl_b32 s42, s40, 19
    s_add_u32 s43, s42, {WS_K}
    s_add_u32 s20, s8, s43
    s_addc_u32 s21, s9, 0
    s_mov_b32 s22, 524288
    s_mov_b32 s23, 0x00020000
    s_add_u32 s43, s42, {WS_VT}
    s_add_u32 s24, s8, s43
    s_addc_u32 s25, s9, 0
    s_mov_b32 s26, 524288
    s_mov_b32 s27, 0x00020000
    s_add_u32 s28, s8, {WS_CTX}
    s_addc_u32 s29, s9, 0
    s_mov_b32 s30, {2048*4096*2}
    s_mov_b32 s31, 0x00020000
    s_lshl_b32 s52, s56, 2
    s_add_u32 s52, s52, s55
    s_lshl_b32 s52, s52, 14
    s_mov_b32 s53, s52
    v_and_b32 v7, 3, v1
    v_lshlrev_b32 v7, 2, v7
    v_bfe_u32 v8, v1, 2, 2
    v_or_b32 v7, v7, v8
    v_and_b32 v8, 0x30, v1
    v_or_b32 v7, v7, v8
    v_lshlrev_b32 v7, 4, v7
    s_mov_b32 s38, 0
    s_mov_b32 s54, 32768
    ''')
    qh.at(I('H4', SL_(14)))
    def hload(g):
        x = ''
        for qb in range(2):
            x += f'buffer_load_dwordx4 {hreg(g, qb)}, v5, s[12:15], s{[38, 54][qb]} offen offset:{(g % 4)*1024} ; T:h{g}\n'
        if g % 4 == 3: x += 's_add_u32 s38, s38, 4096\ns_add_u32 s54, s54, 4096'
        return x
    for g in range(NH0): qh.atom(hload(g))
    qh.add('v_lshlrev_b32 v61, 2, v2')
    qh.mark('h0')
    need(qh, 'h0', SL_(15, 1))
    qe = MQ('epi')
    for n in range(16):
        c = tile_reg(n); t = 192 + (n % 2)*16
        qe.at(SL_(15, 1) + max(n + 2, I('EP', 0)*n))
        for i in range(16): qe.add(f'v_accvgpr_read_b32 v{t+i}, a{c+i}')
        for g in (NH0 + 2*n, NH0 + 2*n + 1):
            if g < 32: qe.atom(hload(g))
        for gp in range(2):
            for j in range(4):
                qe.add(f'v_cvt_pk_bf16_f32 v{t+gp*8+j}, v{t+gp*8+2*j}, v{t+gp*8+2*j+1}')
            if n < 8:
                x = f'buffer_store_dwordx4 v[{t+gp*8}:{t+gp*8+3}], v{L16}, s[20:23], s52 offen offset:{(n % 2)*2048 + gp*1024} ; T:kvs'
                if n % 2 == 1 and gp == 1: x += '\ns_add_u32 s52, s52, 4096'
            else:
                x = f'buffer_store_dwordx4 v[{t+gp*8}:{t+gp*8+3}], v7, s[24:27], s53 offen offset:{(n % 2)*2048 + gp*1024} ; T:kvs'
                if n % 2 == 1 and gp == 1: x += '\ns_add_u32 s53, s53, 4096'
            qe.atom(x)
    qe.add(lambda: fs(a, 43))
    qe.at(QB + 8*I('E1', 14))
    qe.add(W(v='kvs')); qe.add(lflag(51))
    qe.add(lambda: fs(a, 44))
    iss, chk = poll('FR_K', 61, 46, 63)
    qe.at(QB + 8*I('E2', 17)); qe.add(iss)
    qe.at(QB + 8*I('E3', 20)); qe.add(chk)
    qe.add(lambda: fs(a, 45))
    for i, x in enumerate(kv_items(0, False, 'k0') + kv_items(1, False, 'k1') + kv_items(0, True, 'v0') + kv_items(1, True, 'v1')):
        qe.atom(x)
    run(a, mfl, 0, pre, pins, [qm, qc, qe, qh, qn, qj], cap=I("FCAP", 24))
    n = drain(a, [qm, qc, qe, qh, qn, qj])
    if E('VERB'): print('front leftover', n, [(q.name, q.log) for q in (qm, qc, qe, qh, qn, qj)])
    fs(a, 46, T)
    a(f's_load_dwordx2 s[16:17], s[0:1], {ARG["B_w_sp"]}')
    fmt(a, 16, 2048*2048*2)
    return T

def front_out(a):
    if not FSTK: return
    a(f'''
    s_lshl_b32 s45, s2, 10
    s_lshl_b32 s50, s55, 8
    s_add_u32 s45, s45, s50
    s_add_u32 s45, s45, 0x7200000
    v_lshlrev_b32 v63, 2, v1
    buffer_store_dword v{VST}, v63, s[72:75], s45 offen
    ''')
```

```python
import sys, re
from k_common import *
base, dst, arg, off, N, stride = sys.argv[1], sys.argv[2], sys.argv[3], int(sys.argv[4], 0), int(sys.argv[5]), int(sys.argv[6])
s = open(base).read()
size = {'ws': 0x10000000, 'A_w_q': 4194304, 'B_x': 2097152, 'A_c_kv': 2097152, 'B_w_sp': 8388608, 'out': 2097152}[arg]
assert off + N*stride <= size
code = f'''.globl pr_kernel
.p2align 8
.type pr_kernel,@function
pr_kernel:
    s_cmp_ge_u32 s2, 1
    s_cbranch_scc1 PR_END
    s_load_dwordx2 s[4:5], s[0:1], {ARG[arg]}
    s_mov_b32 s6, {size}
    s_mov_b32 s7, 0x00020000
    s_mov_b32 s8, {off}
    s_mov_b32 s9, {N}
    v_mov_b32 v1, 0
    s_waitcnt lgkmcnt(0)
PR_L:
    s_cmp_eq_u32 s9, 0
    s_cbranch_scc1 PR_END
    buffer_load_dword v2, v1, s[4:7], s8 offen
    s_add_u32 s8, s8, {stride}
    s_sub_u32 s9, s9, 1
    s_waitcnt vmcnt(0)
    s_branch PR_L
PR_END:
    s_endpgm
'''
s = s.replace('; @launch kernel=attn_kernel', '; @launch kernel=pr_kernel grid=(1,1,1) block=(64,1,1) lds=0\n; @launch kernel=attn_kernel', 1)
s = s.replace('CODE_END:\n    s_endpgm\n', 'CODE_END:\n    s_endpgm\n' + code, 1)
s += '.p2align 6\n' + kernel_desc('pr_kernel', 8)
open(dst, 'w').write(s)
```

```python
from k_common import *
from k_prep import WS_WINF, WS_WOUTF, WS_MODF, WS_WSPF, WTC
from sched import *
import k_tail2 as TL
import os
E = os.environ.get
I = lambda k, d: int(E(k, str(d)), 0)
FSTK = 'ST' in E('ATT_EXP', '')
OOB = 0x40000000
WS_H = WS_N1
FHG = 0x70000
WS_MODQ = 0x4000
FH, FKV = 0x4200, 0x4400
D_R, D_C0, D_OV, D_C2 = 128, 136, 140, 192
NT = 'nt' if I('NT', 1) else ''
AS = [32768, 65536, 0]
BS = [98304, 114688, 131072]
WQ = [0, 32768, 114688, 65536]
MT = 147456; MP = MT + 4096; MP2 = MP + 1024; STX = MP2 + 512; SCRL = 163840 - 64
NC0 = 96
CKV, WUK, WUV, SX, SC_, WMOD, DBG, WIN, WOUT, WSP = 60, 64, 76, 80, 84, 88, 92, 20, 24, 28
RAW = 4
QT = 64; FW = 28; FA = 64; FB = 80
DKV = 16; L16 = 17
VST = 62
CSC = 0x3e0293ee

def fs(a, idx, T=None):
    if not FSTK: return
    a(f'''
    s_memtime s[98:99]
    s_waitcnt lgkmcnt(0)
    v_writelane_b32 v{VST}, s98, {idx}
    ''')
    if T is not None: T.ddone = len(a.ds_seq)

def fmt(a, q, n):
    a(f's_mov_b32 s{q+2}, {n}\ns_mov_b32 s{q+3}, 0x00020000')

CUR = [0]
class MQ(Q):
    def __init__(self, name=''):
        super().__init__(name); self.passed = set()
    def mark(self, nm):
        def f():
            self.passed.add(nm)
            if E('VERB'): print('  mark', nm, CUR[0] // 32, CUR[0] % 32)
        f.cost = 0
        self.items.append(f); return self
    def after(self, getq, nm):
        self.items.append(('after', getq, nm)); return self
    def head(self, slot):
        if slot < 10**6: CUR[0] = slot
        while self.k < len(self.items) and isinstance(self.items[self.k], tuple):
            it = self.items[self.k]
            if it[0] == 'at':
                if slot < it[1]: return None
            elif it[2] not in it[1]().passed: return None
            self.k += 1
        return self.items[self.k] if self.k < len(self.items) else None

def front(a, kv_items):
    if FSTK: a(f'v_mov_b32 v{VST}, 0')
    fs(a, 0)
    for q, nm in ((DBG, 'dbg'), (WMOD, 'w_mod'), (SC_, 'c'), (CKV, 'A_c_kv'), (WUK, 'A_w_uk'), (WUV, 'A_w_uv'), (8, 'ws'),
                  (SX, 'A_x'), (16, 'A_w_q'), (68, 'A_w_o'), (WIN, 'B_w_in'), (WOUT, 'B_w_out')):
        a(f's_load_dwordx2 s[{q}:{q+1}], s[0:1], {ARG[nm]}')
    a(f'''
    s_getreg_b32 s5, hwreg(HW_REG_XCC_ID, 0, 4)
    v_lshrrev_b32 v1, 6, v0
    s_cmp_ge_u32 s2, 256
    s_cbranch_scc1 AT_END
    v_readfirstlane_b32 s55, v1      ; wave 0..3
    s_and_b32 s5, s5, 7
    s_mov_b32 s{RAW}, s2
    v_and_b32 v1, 63, v0             ; lane
    ''')
    fmt(a, DBG, 256); fmt(a, WMOD, 512*3072*2); fmt(a, SC_, 1024)
    fmt(a, CKV, 2048*512*2); fmt(a, WUK, 4194304); fmt(a, WUV, 4194304)
    FAKE = TL.FORCE == 2
    if FAKE: a('s_lshr_b32 s5, s5, 1')
    a(f'''
    s_cmp_lg_u32 s55, 0
    s_cbranch_scc1 FR_PF
    s_lshl_b32 s97, s5, 4
    s_lshl_b32 s96, s5, 3
    s_lshl_b64 s[98:99], 1, s96
    v_mov_b32 v3, 1
    v_mov_b32 v4, s98
    v_mov_b32 v5, s99
    s_mov_b64 exec, 1
    s_waitcnt lgkmcnt(0)
    buffer_atomic_add v3, off, s[{DBG}:{DBG+3}], s97 sc0 {'sc1' if FAKE else ''}
    buffer_atomic_add_x2 v[4:5], off, s[{DBG}:{DBG+3}], 0 offset:{D_R} sc1
    s_mov_b64 exec, -1
    s_branch FR_CM
    ''')
    a.label('FR_PF')
    a.label('FR_CM')
    fs(a, 50)
    T = Trk(a)
    W = lambda **k: (lambda: T.wait(**k))
    MODW = 144
    XR = 192
    UW = XR + 48; UC = 58
    a(f'''
    v_lshrrev_b32 v4, 3, v1
    v_lshlrev_b32 v5, 3, v4
    v_mul_u32_u24 v4, {4*6144}, v4
    v_and_b32 v6, 7, v1
    v_lshl_add_u32 v4, v6, 4, v4
    s_bfe_u32 s7, s{RAW}, 0x20004    ; kq
    s_lshl_b32 s7, s7, 2
    s_add_u32 s7, s7, s55
    s_lshl_b32 s7, s7, 6             ; row0*2
    s_mul_i32 s6, s7, 3072
    s_and_b32 s10, s{RAW}, 15
    s_lshl_b32 s10, s10, 7
    s_add_u32 s6, s6, s10
    s_cmp_ge_u32 s{RAW}, 192
    s_cselect_b32 s6, s6, {OOB}
    s_cselect_b32 s7, s7, {OOB}
    s_waitcnt lgkmcnt(0)
    buffer_load_dwordx2 v[{UC}:{UC+1}], v5, s[{SC_}:{SC_+3}], s7 offen ; T:mc
    ''')
    for i in range(4):
        a(f'buffer_load_dwordx4 v[{UW+4*i}:{UW+4*i+3}], v4, s[{WMOD}:{WMOD+3}], s6 offen {NT} ; T:mw{i}')
        if i < 3: a('s_add_u32 s6, s6, 6144')
    fs(a, 51)
    srd(a, 72, 8, 9, 0x10000000)
    a(f'''
    v_lshlrev_b32 v{L16}, 4, v1
    v_mov_b32 v8, 0
    v_mov_b32 v9, 0
    v_mov_b32 v10, 0
    v_mov_b32 v11, 0
    s_sub_u32 s10, s{RAW}, 64
    s_lshl_b32 s6, s10, 13
    s_lshl_b32 s7, s55, 11
    s_add_u32 s6, s6, s7
    s_add_u32 s6, s6, {TL.LOC}
    s_cmp_lt_u32 s10, 32
    s_cselect_b32 s6, s6, {OOB}
    buffer_store_dwordx4 v[8:11], v{L16}, s[72:75], s6 offen sc0 sc1
    buffer_store_dwordx4 v[8:11], v{L16}, s[72:75], s6 offen offset:1024 sc0 sc1
    ''')
    PFK = I('PFK', 1)
    if PFK:
        a(f'''
        s_getreg_b32 s6, hwreg(HW_REG_HW_ID, 13, 2)
        s_lshr_b32 s7, s2, 6
        s_lshl_b32 s7, s7, 2
        s_add_u32 s7, s7, s6             ; portion 0..15
        s_mul_i32 s7, s7, 3
        s_add_u32 s7, s7, s55
        s_sub_u32 s7, s7, 1              ; g 0..47
        v_lshlrev_b32 v12, 10, v1        ; A: lane*1024
        v_lshrrev_b32 v13, 3, v1
        v_lshlrev_b32 v13, 13, v13
        v_lshl_add_u32 v13, v6, 7, v13   ; B: (lane/8)*8192 + (lane%8)*128
        s_lshl_b32 s6, s5, 10
        v_add_u32 v13, s6, v13
        s_lshl_b32 s6, s7, 16
        s_and_b32 s10, s6, 0x70000       ; 8 rows * 8192
        s_cmp_eq_u32 s55, 0
        s_cselect_b32 s7, 99, s7
        s_cmp_lt_u32 s7, 32
        s_cselect_b32 s6, s6, {OOB}
        s_sub_u32 s7, s7, 32
        s_cmp_lt_u32 s7, 8
        s_cselect_b32 s11, s10, {OOB}
        s_sub_u32 s7, s7, 8
        s_cmp_lt_u32 s7, 8
        s_cselect_b32 s10, s10, {OOB}
        buffer_load_dword v191, v12, s[{CKV}:{CKV+3}], s6 offen
        buffer_load_dword v191, v13, s[{WUK}:{WUK+3}], s11 offen {NT}
        buffer_load_dword v191, v13, s[{WUV}:{WUV+3}], s10 offen {NT}
        ''')
    a(f'v_mov_b32 v2, {SCRL}')
    fs(a, 52)
    a(f'''
    s_cmp_lg_u32 s55, 0
    s_cbranch_scc1 FR_DW
    s_waitcnt vmcnt({8 + (3 if PFK else 0)})
    v_readfirstlane_b32 s98, v3
    s_mov_b32 s96, s5
    s_cmp_lt_u32 s98, 32
    s_cbranch_scc0 FR_OV
    ''')
    a.raw('FR_DF:')
    def ovf():
        a.label('FR_OV')
        a(f'''
        v_mov_b32 v3, 1
        s_mov_b64 exec, 1
        buffer_atomic_add v3, off, s[{DBG}:{DBG+3}], 0 offset:{D_OV} sc0 sc1
        s_mov_b64 exec, -1
        s_mov_b32 s39, 0
        ''')
        a.label('FR_OL')
        a(f'''
        buffer_load_dwordx2 v[4:5], off, s[{DBG}:{DBG+3}], 0 offset:{D_R} sc0 sc1
        s_add_u32 s39, s39, 1
        s_waitcnt vmcnt(0)
        v_sad_u8 v6, v4, 0, 0
        v_sad_u8 v6, v5, 0, v6
        s_nop 1
        v_readfirstlane_b32 s96, v6
        s_cmp_eq_u32 s96, 256
        s_cbranch_scc1 FR_OK
        s_cmp_lt_u32 s39, {TL.SPIN}
        s_cbranch_scc1 FR_OL
        ''')
        a.label('FR_ON')
        a('''
        s_mov_b32 s98, 0x00ffffff
        s_mov_b32 s96, 0
        s_branch FR_DF
        ''')
        a.label('FR_OK')
        a('''
        v_readfirstlane_b32 s10, v4
        v_readfirstlane_b32 s11, v5
        v_readfirstlane_b32 s97, v3          ; ticket
        s_mov_b32 s96, 0
        ''')
        a.label('FR_OY')
        a('''
        s_and_b32 s98, s10, 0xff             ; n_y
        s_min_u32 s98, s98, 32
        s_add_u32 s98, s98, s97              ; candidate index
        s_cmp_lt_u32 s98, 32
        s_cbranch_scc1 FR_DF
        s_sub_u32 s97, s98, 32
        s_lshr_b64 s[10:11], s[10:11], 8
        s_add_u32 s96, s96, 1
        s_cmp_lt_u32 s96, 8
        s_cbranch_scc1 FR_OY
        s_branch FR_ON
        ''')
    TL._ool.append(ovf)
    a(f'''
    s_lshl_b32 s98, s98, 3
    s_add_u32 s98, s98, s96
    v_mov_b32 v3, s98
    ds_write_b32 v2, v3
    s_waitcnt lgkmcnt(0)
    ''')
    a.label('FR_DW')
    a(f'''
    v_lshrrev_b32 v4, 3, v1          ; l/8
    v_and_b32 v6, 7, v1
    v_xor_b32 v5, v4, v6
    s_and_b32 s6, s55, 1
    v_xor_b32 v5, s6, v5             ; chunk
    s_lshl_b32 s6, s55, 3
    v_add_u32 v4, s6, v4
    v_lshlrev_b32 v4, 10, v4
    v_lshl_add_u32 v10, v5, 4, v4
    v_lshrrev_b32 v20, 4, v1         ; lane/16
    v_and_b32 v21, 15, v1
    v_lshlrev_b32 v22, 2, v20
    v_xor_b32 v22, v22, v21
    s_lshl_b32 s6, s55, 2
    v_add_u32 v23, s6, v20           ; row 0..15
    v_lshlrev_b32 v18, 13, v23
    v_lshl_add_u32 v19, v22, 4, v18
    s_lshl_b32 s36, s55, 12          ; wave*4096
    s_lshl_b32 s37, s55, 10          ; wave*1024
    ''')
    fs(a, 53)
    a(f'''
    s_barrier
    ds_read_b32 v3, v2
    s_waitcnt lgkmcnt(0)
    v_readfirstlane_b32 s2, v3
    ''')
    fs(a, 1)
    a(f'''
    s_cmp_ge_u32 s2, 256
    s_cbranch_scc1 AT_END
    s_and_b32 s40, s2, 7
    s_lshr_b32 s41, s2, 3
    s_and_b32 s42, s41, 3
    s_lshl_b32 s40, s40, 2
    s_add_u32 s40, s40, s42          ; head
    s_lshr_b32 s56, s41, 2           ; pair p 0..7 (= m)
    s_lshl_b32 s45, s56, 18
    v_add_u32 v10, s45, v10
    s_lshl_b32 s45, s40, 8
    v_add_u32 v19, s45, v19
    ''')
    def dA(tp, hf):
        return [f'''
                s_add_u32 m0, s37, {AS[tp % 3] + hf*16384 + i*4096}
                s_mov_b32 s39, {tp*128 + (hf*128 + i*32)*1024}
                buffer_load_dwordx4 v10, s[{CKV}:{CKV+3}], s39 offen lds ; T:d{2*tp}
                ''' for i in range(4)]
    def dB(t):
        return [f'''
                s_add_u32 m0, s37, {BS[t % 3] + i*4096}
                s_mov_b32 s39, {(t*32 + i*16)*8192}
                buffer_load_dwordx4 v19, s[{WUK}:{WUK+3}], s39 offen {NT} lds ; T:d{t}
                s_add_u32 m0, s37, {BS[t % 3] + 8192 + i*4096}
                s_nop 0
                buffer_load_dwordx4 v19, s[{WUV}:{WUV+3}], s39 offen {NT} lds ; T:d{t}
                ''' for i in range(2)]
    def dW(j, hf):
        return [f'''
                s_add_u32 m0, s37, {WQ[j] + i*4096}
                s_mov_b32 s39, {(j*128 + i*16)*8192}
                buffer_load_dwordx4 v19, s[16:19], s39 offen {NT} lds ; T:d{16+j}
                ''' for i in range(4*hf, 4*hf + 4)]
    AL = I('AL', 0)
    DS = {t: [] for t in range(16)}
    for t in range(13): DS[t] += dB(t + 3)
    DS[0] += dA(2, 0); DS[AL] += dA(2, 1)
    for tp in range(3, 8):
        DS[2*tp - 5 + AL] += dA(tp, 0); DS[2*tp - 4 + AL] += dA(tp, 1)
    DS[11] += dW(0, 0); DS[12] += dW(0, 1)
    for j in range(1, 4): DS[12 + j] += dW(j, 0) + dW(j, 1)
    for x in dA(0, 0) + dA(0, 1) + dB(0): a(x)
    fs(a, 2)
    D0 = dB(1) + dA(1, 0) + dA(1, 1) + dB(2)
    ND0 = I('ND0', 2)
    for x in D0[:ND0]: a(x)
    def cpf():
        lbl = a.newlabel('PF')
        a('s_getpc_b64 s[32:33]')
        a.raw(f'{lbl}:')
        a.raw(f'    s_sub_u32 s32, s32, {lbl}-attn_kernel')
        a.raw('    s_subb_u32 s33, s33, 0')
        a(f'''
        v_lshrrev_b32 v190, 3, s2
        v_lshl_add_u32 v190, v190, 12, v{L16}
        v_add_u32 v190, s37, v190
        ''')
        a.raw('    v_min_u32 v190, CODE_END-attn_kernel-4, v190')
        a('global_load_dword v190, v190, s[32:33]')
    cpf.cost = 24
    CPF = I('CPF', -1)
    if CPF == 0: cpf()
    fs(a, 3)
    a(f'''
    s_and_b32 s3, s55, 1
    s_sub_u32 s43, 15, s56
    s_cmp_lt_u32 s55, 2
    s_cselect_b32 s41, s43, s56
    s_cmp_lt_u32 s42, 2
    s_cselect_b32 s43, s43, s56
    s_lshl_b32 s43, s43, 7
    s_and_b32 s45, s42, 1
    s_lshl_b32 s45, s45, 6
    s_add_u32 s43, s43, s45
    s_lshl_b32 s45, s55, 4
    s_add_u32 s43, s43, s45
    v_and_b32 v4, 7, v1
    v_lshrrev_b32 v5, 3, v1
    v_lshlrev_b32 v63, 4, v5
    v_lshl_add_u32 v63, v4, 10, v63  ; x voffset
    s_sub_u32 s71, 15, s56
    s_cmp_lt_u32 s40, 16
    s_cselect_b32 s71, s71, s56
    s_lshl_b32 s71, s71, 7
    s_and_b32 s45, s40, 15
    s_lshl_b32 s45, s45, 3
    s_add_u32 s71, s71, s45
    s_lshl_b32 s70, s71, 10
    s_lshl_b32 s45, s55, 8
    s_add_u32 s70, s70, s45
    ''')
    fmt(a, SX, 2048*512*2); fmt(a, 16, 4194304)
    for i in range(2):
        a(f'buffer_load_dwordx4 v[{XR+4*i}:{XR+4*i+3}], v63, s[{SX}:{SX+3}], s70 offen offset:{i*128} ; T:x')
    a(f'''
    s_lshr_b32 s45, s71, 5
    s_lshl_b32 s45, s45, 15
    s_and_b32 s46, s71, 31
    s_lshl_b32 s46, s46, 4
    s_add_u32 s45, s45, s46
    s_lshl_b32 s46, s55, 13
    s_add_u32 s45, s45, s46
    s_add_u32 s54, s45, {WS_H}
    v_lshlrev_b32 v6, 9, v5
    v_lshl_add_u32 v6, v4, 4, v6
    v_lshlrev_b32 v18, 5, v5
    s_lshl_b32 s45, s55, 9
    s_add_u32 s45, s45, {MT}
    v_add_u32 v18, s45, v18
    v_lshlrev_b32 v63, 3, v4
    v_add_u32 v63, {STX}, v63        ; stat address
    v_and_b32 v2, 31, v1             ; l%32
    v_lshrrev_b32 v3, 5, v1          ; half
    v_bfe_u32 v5, v1, 2, 2           ; (row>>2)&3 = r
    s_lshl_b32 s45, s55, 6
    v_add_u32 v4, s45, v2
    v_lshlrev_b32 v4, 7, v4          ; row*128
    v_bfe_u32 v7, v1, 3, 1
    v_xor_b32 v7, v7, v1
    v_and_b32 v7, 7, v7              ; f(row)
    v_xor_b32 v7, v7, v3
    ''')
    for es in range(4):
        a(f'''
        v_xor_b32 v8, {2*es}, v7
        v_lshl_add_u32 v{12+es}, v8, 4, v4
        ''')
    a(f'''
    v_and_b32 v4, 3, v1              ; c4
    v_bfe_u32 v7, v1, 4, 1           ; nsub
    v_lshlrev_b32 v8, 3, v3
    v_add_u32 v8, v8, v5
    v_lshlrev_b32 v8, 8, v8
    v_lshl_add_u32 v8, v7, 5, v8
    v_lshl_add_u32 v8, v4, 3, v8
    ''')
    for blk in range(4):
        a(f'''
        v_xor_b32 v7, {blk}, v5
        v_lshl_add_u32 v{20+blk}, v7, 6, v8
        v_add_u32 v{24+blk}, {BS[0]}, v{20+blk}
        ''')
    SL, AC, U = 28, 44, 52
    SILU = ('v_mul_f32 v{t}, 0xbfb8aa3b, v{c}', 'v_exp_f32 v{t}, v{t}', 'v_add_f32 v{t}, 1.0, v{t}', 'v_rcp_f32 v{t}, v{t}',
            'v_mul_f32 v{c}, v{c}, v{t}', 'v_cvt_pk_bf16_f32 v{c}, v{c}, v{c}', 'v_lshlrev_b32 v{c}, 16, v{c}')
    T.wait(v='mc')
    for j in range(2):
        a(f'v_lshlrev_b32 v{SL+2*j}, 16, v{UC+j}\nv_and_b32 v{SL+2*j+1}, 0xffff0000, v{UC+j}')
    for f in SILU:
        for j in range(4): a(f.format(t=SL+8+j, c=SL+j))
    for i in range(4):
        T.wait(v=f'mw{i}')
        for j in range(4):
            a(f'v_lshlrev_b32 v{U+2*j}, 16, v{UW+4*i+j}\nv_and_b32 v{U+2*j+1}, 0xffff0000, v{UW+4*i+j}')
        for j in range(8):
            a(f'v_mul_f32 v{AC+j}, v{U+j}, v{SL}' if i == 0 else f'v_fmac_f32 v{AC+j}, v{U+j}, v{SL+i}')
    for j in range(8):
        a(f'v_add_f32_dpp v{U+j}, v{AC+j}, v{AC+j} row_ror:8 row_mask:0xf bank_mask:0xf')
    for j in range(4): a(f'v_permlane16_swap_b32 v{U+j}, v{U+4+j}')
    for j in range(4): a(f'v_add_f32 v{U+j}, v{U+j}, v{U+4+j}')
    for j in range(2): a(f'v_permlane32_swap_b32 v{U+j}, v{U+2+j}')
    for j in range(2): a(f'v_add_f32 v{U+j}, v{U+j}, v{U+2+j}')
    a(f'''
    v_bfe_u32 v7, v1, 4, 1           ; e
    v_lshlrev_b32 v7, 4, v7
    v_lshl_add_u32 v7, v3, 3, v7     ; + f*8
    v_and_b32 v8, 7, v1
    v_lshl_add_u32 v7, v8, 5, v7     ; + chunk*32
    s_lshl_b32 s45, s55, 8
    s_add_u32 s45, s45, {MP}
    v_add_u32 v7, s45, v7
    ds_write_b64 v7, v[{U}:{U+1}] ; T:mp
    ''')
    fs(a, 4, T)
    bias = [0]*4
    def reads(t, s):
        buf = s; es = (t % 2)*2 + s; sl = AS[(t // 2) % 3]
        out = []
        nb_ = {0: 0, 32768: bias[es], 65536: 32768}[sl]
        fix = ''
        if nb_ != bias[es]:
            fix = f'v_add_u32 v{12+es}, {(nb_ - bias[es]) & 0xffffffff}, v{12+es}\n'
            bias[es] = nb_
        for mb in range(2):
            r = FA + buf*8 + mb*4
            out.append(fix + f'ds_read_b128 v[{r}:{r+3}], v{12+es} offset:{sl - nb_ + mb*4096} ; T:f{2*t+s}')
            fix = ''
        for v in range(2):
            for nb in range(4):
                for j in range(2):
                    r = FB + buf*32 + (v*4 + nb)*4 + j*2
                    out.append(f'ds_read_b64_tr_b16 v[{r}:{r+1}], v{24+nb} offset:{BS[t % 3] - BS[0] + v*8192 + s*4096 + j*1024} ; T:f{2*t+s}')
        return out
    def wreads(g):
        jt = g // 8
        vb, bs = [(20, 0), (20, 0), (24, BS[0]), (20, 65536)][jt]
        out = []
        for blk in range(4):
            for j in range(2):
                r = FW + (g & 1)*16 + blk*4 + j*2
                fix = f'v_add_u32 v{vb+blk}, 0x10000, v{vb+blk}\n' if g == 24 and j == 0 else ''
                out.append(fix + f'ds_read_b64_tr_b16 v[{r}:{r+1}], v{vb+blk} offset:{WQ[jt] - bs + (g % 8)*4096 + j*1024} ; T:f{32+g}')
        return out
    T.wait(v='d0', d='mp')
    a('s_barrier')
    fs(a, 5, T)
    for x in reads(0, 0): a(x)
    def tile_reg(n):
        return 16*n
    mfl = []; pre = {}; pins = {}
    NH0 = 4
    def hreg(g, qb):
        if g < NH0: return f'v[{224 + g*8 + qb*4}:{224 + g*8 + qb*4 + 3}]'
        r = (g - NH0)*8 + qb*4
        return f'a[{r}:{r+3}]'
    for ks in range(32):
        t, s = ks // 2, ks % 2
        b = len(mfl)
        for n in range(16):
            c = tile_reg(n)
            cc = '0' if ks == 0 else f'a[{c}:{c+15}]'
            if n < 8:
                mb, nb = n // 4, n % 4
                fa = FA + s*8 + mb*4; fb = FB + s*32 + nb*4
                mfl.append(f'v_mfma_f32_32x32x16_bf16 a[{c}:{c+15}], v[{fb}:{fb+3}], v[{fa}:{fa+3}], {cc}')
            else:
                nb, mb = (n - 8) // 2, (n - 8) % 2
                fa = FA + s*8 + mb*4; fb = FB + s*32 + (4 + nb)*4
                mfl.append(f'v_mfma_f32_32x32x16_bf16 a[{c}:{c+15}], v[{fa}:{fa+3}], v[{fb}:{fb+3}], {cc}')
        pre[b] = [W(d=f'f{ks}')]
        if FSTK and s == 0: pre[b].append(lambda t=t: fs(a, 8 + t, T))
        rd = reads(t, 1) if s == 0 else (reads(t + 1, 0) if t < 15 else wreads(0))
        o = 0
        if s == 1:
            pins[b] = [W(v=f'd{t+1}'), 's_barrier']
            o = 1
        RP = I('RP', 3)
        for i, x in enumerate(rd): pins.setdefault(b + o + i // RP, []).append(x)
        if s == 1:
            for i, x in enumerate(DS[t]): pins.setdefault(b + I('DP0', 7) + i*I('DPS', 1), []).append(x)
        if ks == 0:
            for i, x in enumerate(D0[ND0:]): pins.setdefault(I('DQ0', 6) + i, []).append(x)
    QB = len(mfl)
    for g in range(32):
        b = len(mfl)
        for blk in range(4):
            for qb in range(2):
                fr = FW + (g & 1)*16 + blk*4
                q = QT + qb*64 + blk*16
                cc = '0' if g == 0 else f'v[{q}:{q+15}]'
                mfl.append(f'v_mfma_f32_32x32x16_bf16 v[{q}:{q+15}], v[{fr}:{fr+3}], {hreg(g, qb)}, {cc}')
        pre[b] = [W(d=f'f{32+g}', v=f'h{g}')]
        if FSTK and g % 4 == 0: pre[b].append(lambda g=g: fs(a, 24 + g // 4, T))
        o = 0
        if g % 8 == 7 and g < 31:
            pins[b] = [W(v=f'd{17 + g // 8}'), 's_barrier']
            o = 1
        if g < 31:
            for i, x in enumerate(wreads(g + 1)): pins.setdefault(b + o + i // 3, []).append(x)
    def SL_(t, s=0, i=0): return t*32 + s*16 + i
    def need(q, nm, slot):
        def f():
            n = 0
            while nm not in q.passed:
                while isinstance(q.items[q.k], tuple):
                    it = q.items[q.k]
                    assert it[0] == 'at' or it[2] in it[1]().passed, (nm, it[2])
                    q.k += 1
                x = q.pop(); emit(a, x); n += icost(x)
            if n and E('VERB'): print('forced', nm, n)
        f.cost = 0
        pins.setdefault(slot, []).insert(0, f)
    qm = MQ('mod')
    qm.add(f'''
    v_lshlrev_b32 v7, 2, v1
    v_add_u32 v8, {MP}, v7
    ds_read_b32 v{U}, v8 ; T:mq
    ds_read_b32 v{U+1}, v8 offset:256 ; T:mq
    ds_read_b32 v{U+2}, v8 offset:512 ; T:mq
    ds_read_b32 v{U+3}, v8 offset:768 ; T:mq
    s_and_b32 s6, s{RAW}, 63
    s_lshl_b32 s6, s6, 8
    s_add_u32 s6, s6, {WS_MODQ}          ; [kq][cg][64]
    s_sub_u32 s7, s{RAW}, 64
    s_cmp_lt_u32 s7, 32
    s_cselect_b32 s10, {D_C0}, {OOB}
    s_cmp_ge_u32 s{RAW}, 192
    s_cselect_b32 s6, s6, {OOB}
    s_cselect_b32 s10, {D_C0}, s10
    s_cmp_eq_u32 s55, 0
    s_cselect_b32 s6, s6, {OOB}
    s_cselect_b32 s10, s10, {OOB}
    ''')
    qm.at(2)
    qm.add(W(d='mq'))
    qm.add(f'''
    v_add_f32 v{U}, v{U}, v{U+1}
    v_add_f32 v{U+2}, v{U+2}, v{U+3}
    v_add_f32 v{U}, v{U}, v{U+2}
    buffer_store_dword v{U}, v7, s[72:75], s6 offen sc1 ; T:mods
    v_mov_b32 v9, 1
    ''')
    qm.mark('mu')
    qm.at(I('M1', SL_(1, 0, 8)))
    qm.add(W(v='mods'))
    qm.atom(f'''
    s_mov_b64 exec, 1
    buffer_atomic_add v9, off, s[{DBG}:{DBG+3}], s10 sc1
    s_mov_b64 exec, -1
    ''')
    qm.mark('c0')
    qn = MQ('mod2')
    NS, NU, NA, NC_, NW, NP = 28, 36, XR + 48, XR + 40, XR + 8, XR + 56
    N0 = I('N0', SL_(1)); NSP = I('NSP', 8); N1 = I('N1', SL_(5)); NB = I('NB', 7)
    qn.at(N0)
    qn.add(f'''
    s_lshl_b32 s34, s55, 4
    v_lshrrev_b32 v{NP}, 2, v1
    v_add_u32 v{NP}, s34, v{NP}             ; rg
    v_mul_u32_u24 v{NP+2}, {8*6144}, v{NP}
    v_lshlrev_b32 v{NP}, 4, v{NP}
    v_and_b32 v{NP+1}, 3, v1
    v_lshl_add_u32 v{NP+1}, v{NP+1}, 4, v{NP+2}
    s_lshl_b32 s34, s{RAW}, 6
    s_add_u32 s34, s34, 2048
    s_cmp_lt_u32 s{RAW}, 64
    s_cselect_b32 s34, s34, {OOB}
    ''')
    for i in range(8):
        qn.at(N0 + 4 + NSP*i)
        qn.atom(f'buffer_load_dwordx4 v[{NW+4*i}:{NW+4*i+3}], v{NP+1}, s[{WMOD}:{WMOD+3}], s34 offen {NT} ; T:nw{i}' + ('\ns_add_u32 s34, s34, 6144' if i < 7 else ''))
    qn.add(f'buffer_load_dwordx4 v[{NC_}:{NC_+3}], v{NP}, s[{SC_}:{SC_+3}], 0 offen ; T:nc')
    qn.at(N1)
    qn.add(W(v='nc'))
    for j in range(4):
        qn.add(f'v_lshlrev_b32 v{NS+2*j}, 16, v{NC_+j}\nv_and_b32 v{NS+2*j+1}, 0xffff0000, v{NC_+j}')
    for f in SILU:
        for j in range(8): qn.add(f.format(t=NU+j, c=NS+j))
    for i in range(8):
        for j in range(4):
            qn.add(f'v_lshlrev_b32 v{NU+2*j}, 16, v{NW+4*i+j}\nv_and_b32 v{NU+2*j+1}, 0xffff0000, v{NW+4*i+j}')
        for j in range(8):
            qn.add(f'v_mul_f32 v{NA+j}, v{NU+j}, v{NS}' if i == 0 else f'v_fmac_f32 v{NA+j}, v{NU+j}, v{NS+i}')
    for j in range(8):
        qn.add(f'v_add_f32_dpp v{NU+j}, v{NA+j}, v{NA+j} row_ror:4 row_mask:0xf bank_mask:0xf')
    for j in range(8):
        qn.add(f'v_add_f32_dpp v{NA+j}, v{NU+j}, v{NU+j} row_ror:8 row_mask:0xf bank_mask:0xf')
    for j in range(4): qn.add(f'v_permlane16_swap_b32 v{NA+j}, v{NA+4+j}')
    for j in range(4): qn.add(f'v_add_f32 v{NA+j}, v{NA+j}, v{NA+4+j}')
    for j in range(2): qn.add(f'v_permlane32_swap_b32 v{NA+j}, v{NA+2+j}')
    for j in range(2): qn.add(f'v_add_f32 v{NA+j}, v{NA+j}, v{NA+2+j}')
    qn.add(f'''
    v_bfe_u32 v{NP}, v1, 4, 1           ; e
    v_lshlrev_b32 v{NP}, 4, v{NP}
    v_lshl_add_u32 v{NP}, v3, 3, v{NP}     ; + f*8
    v_and_b32 v{NP+1}, 3, v1
    v_lshl_add_u32 v{NP}, v{NP+1}, 5, v{NP}    ; + cq*32
    s_lshl_b32 s34, s55, 7
    s_add_u32 s34, s34, {MP2}
    v_add_u32 v{NP}, s34, v{NP}
    ds_write_b64 v{NP}, v[{NA}:{NA+1}] ; T:np
    ''')
    qn.add(W(d='np'))
    qn.mark('nw')
    need(qn, 'nw', SL_(NB, 1))
    qn.at(SL_(NB, 1) + 1)
    NV = NU
    qn.add(f'''
    v_lshlrev_b32 v{NP+1}, 2, v2
    v_add_u32 v{NP}, {MP2}, v{NP+1}
    ds_read_b32 v{NV}, v{NP} ; T:nq
    ds_read_b32 v{NV+1}, v{NP} offset:128 ; T:nq
    ds_read_b32 v{NV+2}, v{NP} offset:256 ; T:nq
    ds_read_b32 v{NV+3}, v{NP} offset:384 ; T:nq
    s_lshl_b32 s35, s{RAW}, 7
    s_add_u32 s35, s35, 4096
    s_cmp_lt_u32 s{RAW}, 64
    s_cselect_b32 s35, s35, {OOB}
    s_cmp_eq_u32 s55, 0
    s_cselect_b32 s35, s35, {OOB}
    s_cmp_ge_u32 s{RAW}, 32
    s_cselect_b32 s70, 1.0, 0
    s_cselect_b32 s71, 0, 16
    s_and_b32 s34, s{RAW}, 15
    s_lshl_b32 s34, s34, 10
    s_add_u32 s34, s34, s71
    s_lshl_b32 s71, s55, 6
    s_add_u32 s34, s34, s71
    s_add_u32 s34, s34, {WS_MODF}
    s_sub_u32 s71, s{RAW}, 16
    s_cmp_lt_u32 s71, 32
    s_cselect_b32 s34, s34, {OOB}
    v_bfe_u32 v{NV+4}, v1, 4, 1               ; gq
    v_lshlrev_b32 v{NV+4}, 9, v{NV+4}
    v_bfe_u32 v{NP}, v1, 2, 1               ; h
    v_lshl_add_u32 v{NV+4}, v{NP}, 8, v{NV+4}
    v_and_b32 v{NP}, 3, v1
    v_lshl_add_u32 v{NV+4}, v{NP}, 1, v{NV+4}
    v_bfe_u32 v{NP}, v1, 3, 1
    v_lshl_add_u32 v{NV+4}, v{NP}, 3, v{NV+4}
    ''')
    qn.add(W(d='nq'))
    qn.add(f'''
    v_add_f32 v{NV}, v{NV}, v{NV+1}
    v_add_f32 v{NV+2}, v{NV+2}, v{NV+3}
    v_add_f32 v{NV}, v{NV}, v{NV+2}
    v_cvt_pk_bf16_f32 v{NV}, v{NV}, v{NV}
    v_lshlrev_b32 v{NV}, 16, v{NV}
    buffer_store_dword v{NV}, v{NP+1}, s[72:75], s35 offen sc1 ; T:side
    v_add_f32 v{NV+2}, s70, v{NV}
    v_cvt_pk_bf16_f32 v{NV+2}, v{NV+2}, v{NV+2}
    buffer_store_short v{NV+2}, v{NV+4}, s[72:75], s34 offen sc1 ; T:side
    ''')
    qn.mark('nd')
    qj = MQ('job')
    if CPF > 0:
        qj.at(CPF); qj.add(cpf)
    qj.at(I('J0', SL_(3)))
    WU = 176; WP = 28
    qj.add(f'''
    s_mov_b32 s{WIN+2}, {512*1376*2}
    s_mov_b32 s{WIN+3}, 0x00020000
    s_mov_b32 s{WOUT+2}, {688*512*2}
    s_mov_b32 s{WOUT+3}, 0x00020000
    ''')
    def win_addr(su, so):
        return f'''
        s_lshr_b32 s32, s{su}, 3             ; x = n8*12 + wt
        s_mul_i32 s33, s32, 43691
        s_lshr_b32 s33, s33, 19              ; n8
        s_mul_i32 s30, s33, 12
        s_sub_u32 s30, s32, s30              ; wt
        s_lshl_b32 s30, s30, 2
        s_mov_b32 s96, {WTC & 0xffffffff}
        s_mov_b32 s97, {WTC >> 32}
        s_lshr_b64 s[96:97], s[96:97], s30
        s_and_b32 s30, s96, 7                ; c
        s_lshl_b32 s30, s30, 4
        s_mul_i32 s33, s33, 88
        s_add_u32 s33, s33, s30
        s_bitcmp1_b32 s96, 3
        s_cselect_b32 s30, 688, 0
        s_add_u32 s33, s33, s30              ; colbase
        s_lshl_b32 s33, s33, 1
        s_and_b32 s30, s{su}, 7
        s_mul_i32 s30, s30, {64*2752}
        s_add_u32 s{so}, s33, s30
        '''
    qj.add(f'''
    s_sub_u32 s48, s{RAW}, 96
    s_lshl_b32 s48, s48, 2
    s_add_u32 s48, s48, s55              ; unit 0
    s_add_u32 s28, s48, 640              ; unit 1
    v_and_b32 v0, 7, v1                 ; cp
    v_bfe_u32 v11, v1, 3, 1
    v_lshlrev_b32 v11, 2, v11
    v_lshrrev_b32 v4, 4, v1
    v_lshl_add_u32 v11, v4, 4, v11      ; row
    v_mul_u32_u24 v11, 2752, v11
    v_lshl_add_u32 v11, v0, 2, v11      ; w_in voffset
    ''' + win_addr(48, 29) + f'''
    s_cmp_lt_u32 s{RAW}, 96
    s_cselect_b32 s29, {OOB}, s29
    s_lshl_b32 s48, s48, 11
    s_add_u32 s48, s48, {WS_WINF}
    s_cmp_lt_u32 s{RAW}, 96
    s_cselect_b32 s48, {OOB}, s48
    ''')
    for j in range(8):
        x = f'buffer_load_dword v{WU+j}, v11, s[{WIN}:{WIN+3}], s29 offen {NT} ; T:u0'
        if j < 7: x += f'\ns_add_u32 s29, s29, {2752 if j != 3 else 5*2752}'
        qj.atom(x)
    qj.add(win_addr(28, 29) + f'''
    s_sub_u32 s57, s28, 768              ; u = n8*48 + p*6 + kf
    s_mul_i32 s33, s57, 43691
    s_lshr_b32 s33, s33, 21              ; n8
    s_mul_i32 s30, s33, 48
    s_sub_u32 s30, s57, s30
    s_mul_i32 s32, s30, 43691
    s_lshr_b32 s32, s32, 18              ; p
    s_mul_i32 s96, s32, 6
    s_sub_u32 s96, s30, s96              ; kf
    s_lshl_b32 s96, s96, 4
    s_cmp_eq_u32 s32, 7
    s_cselect_b32 s97, 9, 11
    s_lshl_b32 s97, s97, 3               ; lim
    s_mul_i32 s32, s32, 88
    s_add_u32 s32, s32, s96              ; f0
    s_lshl_b32 s32, s32, 10
    s_lshl_b32 s33, s33, 7
    s_add_u32 s33, s33, s32              ; soffset
    s_cmp_lt_u32 s96, s97
    s_cselect_b32 s33, s33, {OOB}
    s_add_u32 s96, s96, 8
    s_cmp_lt_u32 s96, s97
    s_cselect_b32 s58, {5*1024}, {OOB}   ; step to the second row group
    s_lshl_b32 s57, s57, 11
    s_add_u32 s57, s57, {WS_WOUTF}
    s_lshl_b32 s32, s28, 11
    s_add_u32 s32, s32, {WS_WINF}
    v_and_b32 v0, 15, v1
    v_bfe_u32 v4, v1, 4, 1
    v_lshlrev_b32 v4, 12, v4
    v_lshl_add_u32 v4, v3, 6, v4
    v_lshl_add_u32 v4, v0, 2, v4      ; w_out voffset
    s_cmp_lt_u32 s28, 768
    s_cselect_b32 s29, s29, s33
    s_cselect_b32 s57, s32, s57
    s_cselect_b32 s58, {5*2752}, s58
    s_cselect_b32 s59, 43, 16
    s_cselect_b32 s{WOUT}, s{WIN}, s{WOUT}
    s_cselect_b32 s{WOUT+1}, s{WIN+1}, s{WOUT+1}
    s_cselect_b32 s{WOUT+2}, s{WIN+2}, s{WOUT+2}
    s_cselect_b64 vcc, -1, 0
    v_cndmask_b32 v4, v4, v11, vcc
    s_lshl_b32 s59, s59, 6
    s_sub_u32 s32, s28, 640
    s_cmp_lt_u32 s32, 512
    s_cselect_b32 s29, s29, {OOB}
    s_cselect_b32 s57, s57, {OOB}
    ''')
    for j in range(8):
        x = f'buffer_load_dword v{WU+8+j}, v4, s[{WOUT}:{WOUT+3}], s29 offen {NT} ; T:u1'
        if j < 7: x += f'\ns_add_u32 s29, s29, s{59 if j != 3 else 58}'
        qj.atom(x)
    qj.mark('jld')
    qj.add(f'''
    v_lshlrev_b32 v11, 5, v1             ; lane*32
    s_mov_b32 s32, 0x05040100
    s_mov_b32 s33, 0x07060302
    ''')
    qj.at(I('J1', SL_(8)))
    qj.after(lambda: qn, 'nd')
    for u in range(2):
        qj.add(W(v=f'u{u}'))
        R, D = WU + 8*u, WP + 8*u
        for j in range(4):
            qj.add(f'v_perm_b32 v{D+j}, v{R+2*j+1}, v{R+2*j}, s32\nv_perm_b32 v{D+4+j}, v{R+2*j+1}, v{R+2*j}, s33')
    qj.at(I('J2', SL_(8)))
    qj.after(lambda: qh, 'hw')
    for u in range(2):
        R, D = WU + 8*u, WP + 8*u
        qj.add(f'''
        buffer_store_dwordx4 v[{D}:{D+3}], v11, s[72:75], s{[48, 57][u]} offen sc1 ; T:side
        buffer_store_dwordx4 v[{D+4}:{D+7}], v11, s[72:75], s{[48, 57][u]} offen offset:16 sc1 ; T:side
        ''')
    qj.mark('jst')
    CBS = SL_(I('CB', 11), 1)
    qj.at(CBS - 2)
    qj.add(W(v='side'))
    qj.mark('sidew')
    need(qj, 'sidew', CBS)
    qj.at(CBS + 1)
    qj.add(f'''
    v_mov_b32 v0, 1
    s_cmp_eq_u32 s55, 0
    s_cselect_b32 s49, {D_C2}, {OOB}
    ''')
    qj.atom(f'''
    s_mov_b64 exec, 1
    buffer_atomic_add v0, off, s[{DBG}:{DBG+3}], s49 sc1
    s_mov_b64 exec, -1
    ''')
    qh = MQ('h')
    qh.at(I('H0', SL_(1)))
    SS = 44
    qh.after(lambda: qm, 'mu')
    qh.add(W(v='x'))
    for i in range(2):
        for j in range(4):
            x = XR + 4*i + j; t = U + 2*j
            qh.add(f'v_lshlrev_b32 v{t}, 16, v{x}\nv_and_b32 v{t+1}, 0xffff0000, v{x}')
        for j in range(8):
            s = SS + 2*(j & 1)
            if i == 0 and j < 2:
                qh.add(f'v_mov_b32 v{s}, v{U+j}\nv_mul_f32 v{s+1}, v{U+j}, v{U+j}')
            else:
                qh.add(f'v_add_f32 v{s}, v{s}, v{U+j}\nv_fmac_f32 v{s+1}, v{U+j}, v{U+j}')
    for j in range(2): qh.add(f'v_add_f32 v{SS+j}, v{SS+j}, v{SS+2+j}')
    qh.add('s_lshl_b32 s45, s55, 6')
    for j in range(2): qh.add(f'v_add_f32_dpp v{SS+2+j}, v{SS+j}, v{SS+j} row_ror:8 row_mask:0xf bank_mask:0xf')
    for j in range(2): qh.add(f'v_mov_b32 v{SS+j}, v{SS+2+j}')
    qh.add(f'v_add_u32 v{SS+4}, s45, v63')
    for j in range(2): qh.add(f'v_permlane16_swap_b32 v{SS+j}, v{SS+2+j}')
    for j in range(2): qh.add(f'v_add_f32 v{SS+j}, v{SS+j}, v{SS+2+j}')
    for j in range(2): qh.add(f'v_mov_b32 v{SS+2+j}, v{SS+j}')
    for j in range(2): qh.add(f'v_permlane32_swap_b32 v{SS+j}, v{SS+2+j}')
    for j in range(2): qh.add(f'v_add_f32 v{SS+j}, v{SS+j}, v{SS+2+j}')
    qh.add(f'ds_write_b64 v{SS+4}, v[{SS}:{SS+1}] ; T:sw')
    qh.add(W(d='sw'))
    qh.mark('sw')
    SB_ = I('SB', 2)
    need(qh, 'sw', SL_(SB_, 1))
    qh.at(SL_(SB_, 1) + 1)
    for k in range(4): qh.add(f'ds_read_b64 v[{SS+2*k}:{SS+2*k+1}], v63 offset:{64*k} ; T:sr')
    qh.at(SL_(SB_, 1) + 5)
    qh.add(W(d='sr'))
    s = SS
    qh.add(f'''
    v_add_f32 v{s}, v{s}, v{s+2}
    v_add_f32 v{s+1}, v{s+1}, v{s+3}
    v_add_f32 v{s+4}, v{s+4}, v{s+6}
    v_add_f32 v{s+5}, v{s+5}, v{s+7}
    v_add_f32 v{s}, v{s}, v{s+4}
    v_add_f32 v{s+1}, v{s+1}, v{s+5}
    v_mul_f32 v{s}, 0xbb000000, v{s}
    v_mul_f32 v{s+1}, 0x3b000000, v{s+1}
    v_fma_f32 v{s+1}, -v{s}, v{s}, v{s+1}
    v_max_f32 v{s+1}, 0, v{s+1}
    v_add_f32 v{s+1}, 0x3727c5ac, v{s+1}
    v_rsq_f32 v{s+1}, v{s+1}
    v_mul_f32 v{s}, v{s}, v{s+1}
    ''')
    CR = XR + 44
    CL = f'buffer_load_dwordx4 v[{CR}:{CR+3}], off, s[{DBG}:{DBG+3}], 0 offset:{D_R} sc0 sc1'
    CK = f'''
    v_sad_u8 v{CR+3}, v{CR}, 0, 0
    v_sad_u8 v{CR+3}, v{CR+1}, 0, v{CR+3}
    v_lshl_add_u32 v{CR+3}, v{CR+2}, 16, v{CR+3}
    v_cmp_eq_u32 vcc, {256 + (NC0 << 16)}, v{CR+3}
    s_cmp_eq_u64 vcc, -1
    '''
    qc = MQ('cnt')
    qc.at(I('C0', SL_(2, 1)))
    qc.add(CL + ' ; T:cl')
    qc.at(I('C1', SL_(3, 1)))
    def cchk():
        T.wait(v='cl')
        a(CK + 's_cbranch_scc0 FR_CS')
        a.raw('FR_CR:')
        a(f'''
        v_and_b32 v{CR}, v{CR}, v{CR+1}
        v_cmp_eq_u32 vcc, {0x20202020 if not TL.FORCE else 0x7f7f7f7f}, v{CR}
        s_cmp_eq_u64 vcc, -1
        s_cselect_b32 s10, 1, 0              ; all at home
        s_add_u32 s39, s37, {WS_MODQ}
        ''')
        for k in range(4):
            a(f'buffer_load_dwordx4 v[{MODW+4*k}:{MODW+4*k+3}], v{L16}, s[72:75], s39 offen ; T:pt')
            if k < 3: a('s_add_u32 s39, s39, 4096')
    cchk.cost = 48
    def cspin():
        a.label('FR_CS')
        a('s_mov_b32 s39, 0')
        a.label('FR_CL')
        a(CL + '\ns_add_u32 s39, s39, 1\ns_waitcnt vmcnt(0)' + CK + f'''
        s_cbranch_scc1 FR_CR
        s_cmp_lt_u32 s39, {TL.SPIN}
        s_cbranch_scc1 FR_CL
        s_branch FR_CR
        ''')
    TL._ool.append(cspin)
    def c0chk():
        assert 'c0' in qm.passed
    c0chk.cost = 0
    qc.add(c0chk)
    qc.add(cchk)
    qc.add(f'''
    s_cmp_ge_u32 s55, 2
    s_cselect_b32 s11, 1.0, 0
    s_mov_b32 s49, {CSC}
    s_add_u32 s6, s37, {MT}
    v_add_u32 v9, s6, v{L16}
    ''')
    TB = I('TB', 5)
    qc.at(I('C2', SL_(TB, 0, 4)))
    qc.add(W(v='pt'))
    for j in range(4):
        qc.add(f'''
        v_add_f32 v{MODW+j}, v{MODW+j}, v{MODW+4+j}
        v_add_f32 v{MODW+8+j}, v{MODW+8+j}, v{MODW+12+j}
        ''')
    for j in range(4): qc.add(f'v_add_f32 v{MODW+j}, v{MODW+j}, v{MODW+8+j}')
    for j in range(4): qc.add(f'v_cvt_pk_bf16_f32 v{MODW+j}, v{MODW+j}, v{MODW+j}')
    for j in range(4): qc.add(f'v_lshlrev_b32 v{MODW+j}, 16, v{MODW+j}')
    for j in range(4): qc.add(f'v_add_f32 v{MODW+j}, s11, v{MODW+j}')
    for j in range(4): qc.add(f'v_mul_f32 v{MODW+j}, s49, v{MODW+j}')
    qc.add(f'ds_write_b128 v9, v[{MODW}:{MODW+3}] ; T:mt')
    qc.add(W(d='mt'))
    qc.mark('mt')
    need(qc, 'mt', SL_(TB, 1))
    qh.add(f'''
    s_add_u32 s12, s8, {WS_H}
    s_addc_u32 s13, s9, 0
    s_mov_b32 s14, {2048*512*2}
    s_mov_b32 s15, 0x00020000
    s_and_b32 s46, s2, 7
    s_mul_i32 s46, s46, {TL.LOCS}
    s_add_u32 s46, s46, {TL.LOC}
    s_lshl_b32 s47, s56, 9
    s_add_u32 s47, s47, {FHG}
    s_lshl_b32 s50, s40, 4
    s_lshl_b32 s51, s55, 2
    s_add_u32 s50, s50, s51
    s_add_u32 s50, s50, s47
    s_lshl_b32 s51, s42, 7
    s_add_u32 s46, s46, s51
    s_add_u32 s46, s46, {FKV}
    s_lshl_b32 s51, s56, 4
    s_add_u32 s51, s51, s46
    s_lshl_b32 s52, s55, 2
    s_add_u32 s51, s51, s52
    s_lshl_b32 s44, s41, 7
    s_lshl_b32 s52, s3, 6
    s_add_u32 s44, s44, s52              ; q0 = qblock*128 + w*64
    s_lshl_b32 s52, s44, 10
    v_add_u32 v5, s52, v{L16}
    v_add_u32 v{DKV}, s36, v{L16}
    s_lshl_b32 s45, s43, 10
    ''')
    U2 = MODW + 16
    for i in range(2):
        R = [U, U2 + 8][i]
        for j in range(4):
            x = XR + 4*i + j
            qh.add(f'v_lshlrev_b32 v{R+2*j}, 16, v{x}\nv_and_b32 v{R+2*j+1}, 0xffff0000, v{x}')
        for j in range(8): qh.add(f'v_fma_f32 v{R+j}, v{R+j}, v{SS+1}, v{SS}')
    qh.at(SL_(TB, 1) + 1)
    MR = [MODW, SS]
    def mread(i, k, r):
        return f'ds_read_b128 v[{r}:{r+3}], v18 offset:{i*256 + (k & 1)*16 + (k >> 1)*2048} ; T:mr{i}'
    qh.add([mread(0, k, MODW + 4*k) for k in range(4)])
    qh.add([mread(1, 0, SS), mread(1, 1, SS + 4), mread(1, 2, U2), mread(1, 3, U2 + 4)])
    qh.at(SL_(TB, 1) + 5)
    for i in range(2):
        R = [U, U2 + 8][i]; SA = [MODW, SS][i]; GA = [MODW + 8, U2][i]
        qh.add(W(d=f'mr{i}'))
        for j in range(8): qh.add(f'v_fma_f32 v{R+j}, v{R+j}, v{GA+j}, v{SA+j}')
        x = XR + 4*i
        for j in range(4):
            qh.add(f'v_cvt_pk_bf16_f32 v{x+j}, v{R+2*j}, v{R+2*j+1}')
        qh.add(f'buffer_store_dwordx4 v[{x}:{x+3}], v6, s[72:75], s54 offen sc0 sc1 ; T:hs')
        if i == 0: qh.add('s_add_u32 s54, s54, 4096')
    def lflag(so):
        def f():
            lb = a.newlabel('FR_LF')
            txt = f'''
            v_mov_b32 v60, 1
            s_mov_b64 exec, 1
            buffer_store_dword v60, off, s[72:75], s{so} @
            s_mov_b64 exec, -1
            '''
            a(f's_cmp_eq_u32 s10, 0\ns_cbranch_scc1 {lb}' + txt.replace('@', ''))
            a.raw(f'{lb}_R:')
            def o():
                a.label(lb)
                a('s_waitcnt vmcnt(0)\nbuffer_wbl2 sc1\ns_waitcnt vmcnt(0)' + txt.replace('@', 'sc0 sc1') + f's_branch {lb}_R')
            TL._ool.append(o)
        f.cost = 20
        return f
    def poll(tag, va, so, vd, n=1):
        ld = f'buffer_load_dword v{vd}, v{va}, s[72:75], s{so} offen sc1'
        ck = f'\nv_cmp_ne_u32 vcc, 0, v{vd}\ns_cmp_eq_u64 vcc, -1\n'
        if n == 2:
            ld = f'buffer_load_dwordx2 v[{vd}:{vd+1}], v{va}, s[72:75], s{so} offen sc0 sc1'
            ck = f'\nv_min_u32 v{vd}, v{vd}, v{vd+1}' + ck
        def chk():
            T.wait(v=tag)
            a(ck + f's_cbranch_scc0 {tag}_S')
            a.raw(f'{tag}_R:')
        chk.cost = 12
        def o():
            a.label(f'{tag}_S')
            a('s_mov_b32 s39, 0')
            a.label(f'{tag}_L')
            a(ld + '\ns_add_u32 s39, s39, 1\ns_waitcnt vmcnt(0)' + ck + f'''
            s_cbranch_scc1 {tag}_R
            s_cmp_lt_u32 s39, {TL.SPIN}
            s_cbranch_scc1 {tag}_L
            s_branch {tag}_R
            ''')
        TL._ool.append(o)
        return ld + f' ; T:{tag}', chk
    qh.add(lambda: fs(a, 40))
    qh.mark('hs')
    qh.at(I('H1', SL_(TB + 2)))
    qh.add(W(v='hs'))
    qh.atom('''
    v_mov_b32 v60, 1
    s_mov_b64 exec, 1
    buffer_store_dword v60, off, s[72:75], s50 sc0 sc1
    s_mov_b64 exec, -1
    ''')
    qh.mark('hw')
    qh.add(lambda: fs(a, 41))
    qh.add('v_lshlrev_b32 v61, 3, v1\nv_lshlrev_b32 v63, 7, v1')
    iss, chk = poll('FR_H', 61, 47, CR, 2)
    qh.at(I('H2', SL_(TB + 3))); qh.add(iss)
    qh.at(I('H3', SL_(TB + 4))); qh.add(chk)
    qh.atom(f'buffer_load_dword v{CR+2}, v63, s[12:15], s45 offen\ns_add_u32 s45, s45, 8192')
    qh.atom(f'buffer_load_dword v{CR+3}, v63, s[12:15], s45 offen')
    qh.add(lambda: fs(a, 42))
    qh.after(lambda: qj, 'jld')
    qh.add(f'''
    s_lshl_b32 s42, s40, 19
    s_add_u32 s43, s42, {WS_K}
    s_add_u32 s20, s8, s43
    s_addc_u32 s21, s9, 0
    s_mov_b32 s22, 524288
    s_mov_b32 s23, 0x00020000
    s_add_u32 s43, s42, {WS_VT}
    s_add_u32 s24, s8, s43
    s_addc_u32 s25, s9, 0
    s_mov_b32 s26, 524288
    s_mov_b32 s27, 0x00020000
    s_add_u32 s28, s8, {WS_CTX}
    s_addc_u32 s29, s9, 0
    s_mov_b32 s30, {2048*4096*2}
    s_mov_b32 s31, 0x00020000
    s_lshl_b32 s52, s56, 2
    s_add_u32 s52, s52, s55
    s_lshl_b32 s52, s52, 14
    s_mov_b32 s53, s52
    v_and_b32 v7, 3, v1
    v_lshlrev_b32 v7, 2, v7
    v_bfe_u32 v8, v1, 2, 2
    v_or_b32 v7, v7, v8
    v_and_b32 v8, 0x30, v1
    v_or_b32 v7, v7, v8
    v_lshlrev_b32 v7, 4, v7
    s_mov_b32 s38, 0
    s_mov_b32 s54, 32768
    ''')
    qh.at(I('H4', SL_(14)))
    def hload(g):
        x = ''
        for qb in range(2):
            x += f'buffer_load_dwordx4 {hreg(g, qb)}, v5, s[12:15], s{[38, 54][qb]} offen offset:{(g % 4)*1024} ; T:h{g}\n'
        if g % 4 == 3: x += 's_add_u32 s38, s38, 4096\ns_add_u32 s54, s54, 4096'
        return x
    for g in range(NH0): qh.atom(hload(g))
    qh.add('v_lshlrev_b32 v61, 2, v2')
    qh.mark('h0')
    need(qh, 'h0', SL_(15, 1))
    qe = MQ('epi')
    for n in range(16):
        c = tile_reg(n); t = 192 + (n % 2)*16
        qe.at(SL_(15, 1) + max(n + 2, I('EP', 0)*n))
        for i in range(16): qe.add(f'v_accvgpr_read_b32 v{t+i}, a{c+i}')
        for g in (NH0 + 2*n, NH0 + 2*n + 1):
            if g < 32: qe.atom(hload(g))
        for gp in range(2):
            for j in range(4):
                qe.add(f'v_cvt_pk_bf16_f32 v{t+gp*8+j}, v{t+gp*8+2*j}, v{t+gp*8+2*j+1}')
            if n < 8:
                x = f'buffer_store_dwordx4 v[{t+gp*8}:{t+gp*8+3}], v{L16}, s[20:23], s52 offen offset:{(n % 2)*2048 + gp*1024} ; T:kvs'
                if n % 2 == 1 and gp == 1: x += '\ns_add_u32 s52, s52, 4096'
            else:
                x = f'buffer_store_dwordx4 v[{t+gp*8}:{t+gp*8+3}], v7, s[24:27], s53 offen offset:{(n % 2)*2048 + gp*1024} ; T:kvs'
                if n % 2 == 1 and gp == 1: x += '\ns_add_u32 s53, s53, 4096'
            qe.atom(x)
    qe.add(lambda: fs(a, 43))
    qe.at(QB + 8*I('E1', 14))
    qe.add(W(v='kvs')); qe.add(lflag(51))
    qe.add(lambda: fs(a, 44))
    iss, chk = poll('FR_K', 61, 46, 63)
    qe.at(QB + 8*I('E2', 17)); qe.add(iss)
    qe.at(QB + 8*I('E3', 20)); qe.add(chk)
    qe.add(lambda: fs(a, 45))
    for i, x in enumerate(kv_items(0, False, 'k0') + kv_items(1, False, 'k1') + kv_items(0, True, 'v0') + kv_items(1, True, 'v1')):
        qe.atom(x)
    run(a, mfl, 0, pre, pins, [qm, qc, qe, qh, qn, qj], cap=I("FCAP", 24))
    n = drain(a, [qm, qc, qe, qh, qn, qj])
    if E('VERB'): print('front leftover', n, [(q.name, q.log) for q in (qm, qc, qe, qh, qn, qj)])
    fs(a, 46, T)
    a(f's_load_dwordx2 s[16:17], s[0:1], {ARG["B_w_sp"]}')
    fmt(a, 16, 2048*2048*2)
    return T

def front_out(a):
    if not FSTK: return
    a(f'''
    s_lshl_b32 s45, s2, 10
    s_lshl_b32 s50, s55, 8
    s_add_u32 s45, s45, s50
    s_add_u32 s45, s45, 0x7200000
    v_lshlrev_b32 v63, 2, v1
    buffer_store_dword v{VST}, v63, s[72:75], s45 offen
    ''')
```
